```python
import torch

def _softmax(x, axis=-1):
    return torch.softmax(x, dim=axis)
def _gelu(x):
    return torch.nn.functional.gelu(x, approximate="tanh")
def _silu(x):
    return torch.nn.functional.silu(x)
def _sigmoid(x):
    return torch.sigmoid(x)
def _layernorm(x, axis=-1, eps=1e-5):
    m = x.mean(dim=axis, keepdim=True)
    v = x.var(dim=axis, keepdim=True, unbiased=False)
    return (x - m) / torch.sqrt(v + eps)
def _scatter_add(tgt, idx, src, axis=0):
    return tgt.clone().index_add_(axis, idx, src)
def _segment_sum(src, seg, n):
    out = torch.zeros((n,) + src.shape[1:], dtype=src.dtype)
    return out.index_add_(0, seg, src)
def _pad(x, pw):
    flat = tuple(v for pair in reversed(pw) for v in pair)
    return torch.nn.functional.pad(x, flat)

kernel_name = 'recurrent_scan__gqa_block_cached__dense_activation_silu__decode'

def setup_inputs():

    _w = (lambda a: (lambda t: t.to(torch.bfloat16) if t.is_floating_point() else t)(torch.as_tensor(a)))
    def _A_setup():
        B, Sq, D = 2, 1, 512
        Hq, Hkv, Sk, Dh = 32, 8, 32768, 128
        assert Hq % Hkv == 0, (Hq, Hkv)
        return {
            "x": _w((lambda *s: torch.randn(*s, dtype=torch.bfloat16) * 0.4)(B, Sq, D)),
            "k_cache": _w((lambda *s: torch.randn(*s, dtype=torch.bfloat16) * 1.6)(B, Hkv, Sk, Dh)),
            "v_cache": _w((lambda *s: torch.randn(*s, dtype=torch.bfloat16) * 1.6)(B, Hkv, Sk, Dh)),
            "wq": _w((lambda *s: torch.randn(*s, dtype=torch.bfloat16) * 1.6)(D, Hq * Dh) * (D ** -0.5)),
            "wo": _w((lambda *s: torch.randn(*s, dtype=torch.bfloat16) * 1.6)(Hq * Dh, D) * ((Hq * Dh) ** -0.5)),
        }
    _A_in = _A_setup()

    def _B_setup():
        B, S, D, F = 2, 1, 512, 1792
        return {
            "x": _w((lambda *s: torch.randn(*s, dtype=torch.bfloat16) * 0.4)(B, S, D)),
            "w1": _w((lambda *s: torch.randn(*s, dtype=torch.bfloat16) * 1.6)(D, F) * (D ** -0.5)),
            "w2": _w((lambda *s: torch.randn(*s, dtype=torch.bfloat16) * 1.6)(F, D) * (F ** -0.5)),
        }
    _B_in = _B_setup()

    return {
        "A_x": _A_in["x"],
        "A_k_cache": _A_in["k_cache"],
        "A_v_cache": _A_in["v_cache"],
        "A_wq": _A_in["wq"],
        "A_wo": _A_in["wo"],
        "B_x": _B_in["x"],
        "B_w1": _B_in["w1"],
        "B_w2": _B_in["w2"],
    }

def reference(A_x, A_k_cache, A_v_cache, A_wq, A_wo, B_x, B_w1, B_w2):
    def _A_ref(x, k_cache, v_cache, wq, wo):
        B, Sq, D = x.shape
        Hq, Dh = 32, 128
        Hkv = k_cache.shape[1]
        rep = Hq // Hkv
        q = (lambda x, *d: x.permute(*d))((x @ wq).reshape(B, Sq, Hq, Dh), 0, 2, 1, 3)
        k = (lambda x, n, axis: torch.repeat_interleave(x, n, dim=axis))(k_cache, rep, axis=1)
        v = (lambda x, n, axis: torch.repeat_interleave(x, n, dim=axis))(v_cache, rep, axis=1)
        scores = torch.einsum("bhqd,bhkd->bhqk", q, k) * (Dh ** -0.5)
        p = _softmax(scores, axis=-1)
        o = torch.einsum("bhqk,bhkd->bhqd", p, v)
        return (lambda x, *d: x.permute(*d))(o, 0, 2, 1, 3).reshape(B, Sq, Hq * Dh) @ wo

    def _B_ref(x, w1, w2):
        h = torch.einsum("bsd,df->bsf", x, w1)
        h = _silu(h)
        out = torch.einsum("bsf,fd->bsd", h, w2)
        return out

    x = A_x
    xn = _layernorm(x, axis=-1)
    s = _A_ref(xn, A_k_cache, A_v_cache, A_wq, A_wo)
    g = _silu(_B_ref(xn, B_w1, B_w2))
    return x + s * g
```

```python
import sys
KN = "recurrent_scan__gqa_block_cached__dense_activation_silu__decode"

WS_E   = 0x0
WS_Q   = 0x10000
WS_H   = 0x20000
WS_ML  = 0x28000
WS_F   = 0x30000
WS_S   = 0x80000
WS_P   = 0x100000
WS_DBG = 0x200000
WS_SIZE = 0x400000

RING   = 32768
L_STG  = 0x20000
L_XN4  = 0x24000
L_XN5  = 0x24800
L_Q    = 0x25000
L_H    = 0x25400
L_OB   = 0x25600
L_ML   = 0x25800
LDS_BYTES = 0x26000

L2E = 0x3fb8aa3b
SCALE = 0x3db504f3
NEG_INF = 0xff800000

DEBUG_TO = True
class G:
    def __init__(self):
        self.L = []
        self.uid = 0
    def e(self, s):
        self.L.append("  " + s)
    def lab(self, s):
        self.L.append(s + ":")
    def new(self, p):
        self.uid += 1
        return f"L_{p}_{self.uid}"
    def nop(self, n):
        while n > 0:
            k = min(n, 16)
            self.e(f"s_nop {k-1}")
            n -= k

def vr(a, n=None):
    return f"v{a}" if n is None else f"v[{a}:{a+n-1}]"
def sr(a, n=None):
    return f"s{a}" if n is None else f"s[{a}:{a+n-1}]"

S_WAVE = 3
S_X, S_K, S_V, S_WQ, S_WO, S_BX, S_W1, S_W2 = 4, 6, 8, 10, 12, 14, 16, 18
S_OUT, S_DBG, S_WS = 20, 22, 24
S_TAG, S_E = 26, 27
SRD_K, SRD_V, SRD_WS, SRD_W, SRD_X, SRD_OUT, SRD_WO = 28, 32, 36, 40, 44, 48, 52
S_PAIR, S_SPLIT, S_B, S_HKV = 56, 57, 58, 59
S_T0, S_T1, S_T2, S_T3, S_T4, S_T5 = 60, 61, 62, 63, 64, 65
S_RETRY = 66
S_OFF = 67
S_RB = 68
S_PB = 69
S_CNT = 70
S_SOFF = 71
S_RS32 = 72
S_EX = 74
S_ST0 = 76
S_C0 = 96
S_C1 = 97

def build_srd(g, d, ptr, size):
    g.e(f"s_mov_b32 s{d}, s{ptr}")
    g.e(f"s_and_b32 s{d+1}, s{ptr+1}, 0xffff")
    g.e(f"s_mov_b32 s{d+2}, {size:#x}")
    g.e(f"s_mov_b32 s{d+3}, 0x20000")

def rows_reduce(g, v, t, op):
    for sw in ("v_permlane16_swap_b32", "v_permlane32_swap_b32"):
        g.e(f"v_mov_b32 v{t}, v{v}")
        g.nop(2)
        g.e(f"{sw} v{v}, v{t}")
        g.nop(1)
        g.e(f"{op} v{v}, v{v}, v{t}")

def rows_reduce_multi(g, vs, ts, op):
    for sw in ("v_permlane16_swap_b32", "v_permlane32_swap_b32"):
        for v, t in zip(vs, ts):
            g.e(f"v_mov_b32 v{t}, v{v}")
        g.nop(max(0, 3 - len(vs)) if len(vs) < 3 else 0)
        if len(vs) >= 3: pass
        g.nop(1)
        for v, t in zip(vs, ts):
            g.e(f"{sw} v{v}, v{t}")
        g.nop(1)
        for v, t in zip(vs, ts):
            g.e(f"{op} v{v}, v{v}, v{t}")
        g.nop(1)

def row_ror_reduce(g, vs, op, rors):
    for r in rors:
        g.nop(2)
        for v in vs:
            g.e(f"{op}_dpp v{v}, v{v}, v{v} row_ror:{r} row_mask:0xf bank_mask:0xf")
            if len(vs) == 1:
                pass
    g.nop(1)

POLL_IDS = {"q": 0, "h": 1, "f": 2, "p": 3, "s": 4}
def poll(g, name, issue_loads, tag_regs, tmp, dbgword=None):
    L = g.new("poll_" + name); D = g.new("polld_" + name); TO = g.new("pollto_" + name)
    g.e(f"s_mov_b32 s{S_RETRY}, 0x40000")
    g.lab(L)
    issue_loads()
    g.e("s_waitcnt vmcnt(0)")
    g.e(f"v_xor_b32 v{tmp}, s{S_TAG}, v{tag_regs[0]}")
    for t in tag_regs[1:]:
        g.e(f"v_xor_b32 v{tmp+1}, s{S_TAG}, v{t}")
        g.e(f"v_or_b32 v{tmp}, v{tmp}, v{tmp+1}")
    g.e(f"v_cmp_ne_u32 vcc, 0, v{tmp}")
    g.e(f"s_cbranch_vccz {D}")
    g.e(f"s_sub_u32 s{S_RETRY}, s{S_RETRY}, 1")
    g.e(f"s_cbranch_scc1 {TO}")
    g.e("s_sleep 1")
    g.e(f"s_branch {L}")
    g.lab(TO)
    if DEBUG_TO:
        g.e(f"v_mov_b32 v{tmp}, {4*POLL_IDS[name]}")
        g.e(f"v_mov_b32 v{tmp+1}, s2")
        g.e(f"v_add_u32 v{tmp+1}, 0x1000, v{tmp+1}")
        g.e(f"global_store_dword v{tmp}, v{tmp+1}, s[{S_DBG}:{S_DBG+1}]")
    g.lab(D)

def stamp(g, idx, on):
    if on:
        g.e(f"s_memrealtime s[{S_ST0+2*idx}:{S_ST0+2*idx+1}]")

def gen(opt=None):
    o = dict(pattern="grp16", rot=0, xmap=False, stamps=False, ntiles=16, prefetch_code=True, stage=99)
    if opt: o.update(opt)
    ST = o["stamps"]
    g = G(); e = g.e
    g.L.append(f"; @launch grid=(256,1,1) block=(512,1,1) lds={LDS_BYTES}")
    g.L.append('.amdgcn_target "amdgcn-amd-amdhsa--gfx950"')
    g.L.append(".text")
    g.L.append(f".globl {KN}_kernel")
    g.L.append(".p2align 8")
    g.L.append(f".type {KN}_kernel,@function")
    g.lab(f"{KN}_kernel")
    e("s_cmp_ge_u32 s2, 256")
    e("s_cbranch_scc1 L_end")
    stamp(g, 0, ST)
    e(f"s_load_dwordx16 s[4:19], s[0:1], 0")
    e(f"s_load_dwordx4 s[20:23], s[0:1], 64")
    e(f"s_load_dwordx2 s[24:25], s[0:1], 80")
    e("v_lshrrev_b32 v1, 6, v0")
    e("v_and_b32 v0, 63, v0")
    e(f"v_readfirstlane_b32 s{S_WAVE}, v1")
    if o["xmap"]:
        e(f"s_and_b32 s{S_T0}, s2, 7"); e(f"s_lshl_b32 s{S_T0}, s{S_T0}, 5"); e(f"s_lshr_b32 s{S_T1}, s2, 3")
        e(f"s_add_u32 s{S_T0}, s{S_T0}, s{S_T1}")
        e(f"s_lshr_b32 s{S_PAIR}, s{S_T0}, 4"); e(f"s_and_b32 s{S_SPLIT}, s{S_T0}, 15")
    else:
        e(f"s_lshr_b32 s{S_PAIR}, s2, 4"); e(f"s_and_b32 s{S_SPLIT}, s2, 15")
    e(f"s_lshr_b32 s{S_B}, s{S_PAIR}, 3"); e(f"s_and_b32 s{S_HKV}, s{S_PAIR}, 7")
    e(f"s_cmp_ge_u32 s{S_WAVE}, 4")
    e("s_cbranch_scc1 L_helper")

    V_KD, V_VD, V_KR, V_VR = 8, 12, 14, 18
    V_Q, V_O, V_KF, V_VF, V_S, V_A, V_P = 28, 44, 76, 108, 140, 148, 156
    V_M, V_L, V_AL, V_NM, V_MX, V_T = 160, 161, 162, 163, 164, 165
    e("v_lshrrev_b32 v1, 4, v0")
    e("v_and_b32 v2, 15, v0")
    e("v_lshlrev_b32 v3, 8, v1")
    e("v_xor_b32 v4, v2, v1")
    for n in range(4):
        e(f"v_xor_b32 v5, {4*n}, v4")
        e(f"v_lshl_add_u32 v{V_KD+n}, v5, 4, v3")
    e("v_lshlrev_b32 v4, 1, v1")
    e("v_xor_b32 v4, v2, v4")
    for n in range(2):
        e(f"v_xor_b32 v5, {8*n}, v4")
        e(f"v_lshl_add_u32 v{V_VD+n}, v5, 4, v3")
    e(f"s_lshl_b32 s{S_RB}, s{S_WAVE}, 15")
    e(f"s_lshl_b32 s{S_PB}, s{S_PAIR}, 23")
    if o["pattern"] == "grp16":
        e(f"s_lshl_b32 s{S_OFF}, s{S_SPLIT}, 2"); e(f"s_add_u32 s{S_OFF}, s{S_OFF}, s{S_WAVE}")
        e(f"s_lshl_b32 s{S_OFF}, s{S_OFF}, 13")
        STEP = 16 * 4 * 8192
    else:
        e(f"s_lshl_b32 s{S_OFF}, s{S_SPLIT}, 6"); e(f"s_add_u32 s{S_OFF}, s{S_OFF}, s{S_WAVE}")
        e(f"s_lshl_b32 s{S_OFF}, s{S_OFF}, 13")
        STEP = 4 * 8192
    if o["rot"]:
        e(f"s_mul_i32 s{S_T0}, s{S_PAIR}, {o['rot']}")
        e(f"s_add_u32 s{S_OFF}, s{S_OFF}, s{S_T0}")
    e("s_waitcnt lgkmcnt(0)")
    e(f"s_load_dword s{S_E}, s[{S_WS}:{S_WS+1}], {WS_E}")
    build_srd(g, SRD_K, S_K, 0x8000000)
    build_srd(g, SRD_V, S_V, 0x8000000)

    def tile_addr():
        e(f"s_and_b32 s{S_SOFF}, s{S_OFF}, 0x7fffff")
        e(f"s_add_u32 s{S_SOFF}, s{S_SOFF}, s{S_PB}")
    def issue(which, slot):
        srd = SRD_K if which == 0 else SRD_V
        for half in range(2):
            off = slot * 16384 + which * 8192 + half * 4096
            e(f"s_add_u32 m0, s{S_RB}, {off}")
            if half == 0:
                e(f"s_mov_b32 s{S_T0}, s{S_SOFF}")
            else:
                e(f"s_add_u32 s{S_T0}, s{S_SOFF}, 4096")
            for i in range(4):
                n = half * 4 + i
                vo = (V_KD + (n & 3)) if which == 0 else (V_VD + (n & 1))
                e(f"buffer_load_dwordx4 v{vo}, s[{srd}:{srd+3}], s{S_T0} offen offset:{i*1024} nt lds")
    for slot in range(2):
        tile_addr(); issue(0, slot); issue(1, slot)
        e(f"s_add_u32 s{S_OFF}, s{S_OFF}, {STEP}")
    e("v_and_b32 v1, 15, v0")
    e("v_lshrrev_b32 v2, 4, v0")
    e("v_xor_b32 v3, v2, v1")
    e(f"v_lshlrev_b32 v4, 8, v1")
    e(f"v_add_u32 v4, s{S_RB}, v4")
    for kk in range(4):
        e(f"v_xor_b32 v5, {4*kk}, v3")
        e(f"v_lshl_add_u32 v{V_KR+kk}, v5, 4, v4")
    e("v_lshrrev_b32 v1, 2, v0")
    e("v_and_b32 v2, 7, v1")
    e("v_and_b32 v3, 3, v0")
    e("v_lshlrev_b32 v4, 8, v1")
    e("v_lshl_add_u32 v4, v3, 3, v4")
    e(f"v_add_u32 v4, s{S_RB}, v4")
    e("v_add_u32 v4, 8192, v4")
    for dt in range(8):
        e(f"v_xor_b32 v5, {dt}, v2")
        e(f"v_lshl_add_u32 v{V_VR+dt}, v5, 5, v4")
    for i in range(32):
        e(f"v_mov_b32 v{V_O+i}, 0")
    for i in range(16):
        e(f"v_mov_b32 v{V_Q+i}, 0")
    e(f"v_mov_b32 v{V_M}, {NEG_INF:#x}")
    e(f"v_mov_b32 v{V_L}, 0")
    build_srd(g, SRD_WS, S_WS, WS_SIZE)
    build_srd(g, SRD_X, S_X, 2048)
    build_srd(g, SRD_WO, S_WO, 0x400000)
    build_srd(g, SRD_OUT, S_OUT, 2048)
    e("s_waitcnt lgkmcnt(0)")
    e(f"s_mul_i32 s{S_TAG}, s{S_E}, 1664525")
    e(f"s_add_u32 s{S_TAG}, s{S_TAG}, 1013904223")
    stamp(g, 1, ST)
    e("s_barrier")
    stamp(g, 2, ST)
    e("v_and_b32 v1, 15, v0")
    e("v_lshrrev_b32 v2, 4, v0")
    e("v_lshlrev_b32 v1, 8, v1")
    e("v_lshl_add_u32 v1, v2, 4, v1")
    e(f"v_add_u32 v1, {L_Q}, v1")
    e(f"s_mov_b32 s{S_EX}, 0x000f000f"); e(f"s_mov_b32 s{S_EX+1}, 0x000f000f")
    e(f"s_mov_b64 exec, s[{S_EX}:{S_EX+1}]")
    for kk in range(4):
        e(f"ds_read_b128 {vr(V_Q+4*kk,4)}, v1 offset:{kk*64}")
    e("s_mov_b64 exec, -1")
    e(f"s_mov_b32 s{S_C0}, {L2E:#x}")
    e(f"s_mov_b32 s{S_C1}, {SCALE:#x}")
    e("s_waitcnt lgkmcnt(0)")

    def step(slot, do_issue, wK, wV):
        e(f"s_waitcnt vmcnt({wK})")
        for T in range(2):
            for kk in range(4):
                e(f"ds_read_b128 {vr(V_KF+16*T+4*kk,4)}, v{V_KR+kk} offset:{slot*16384+T*4096}")
        e("s_waitcnt lgkmcnt(0)")
        if do_issue:
            tile_addr(); issue(0, slot)
        for kk in range(4):
            for T in range(2):
                c = "0" if kk == 0 else vr(V_S+4*T, 4)
                e(f"v_mfma_f32_16x16x32_bf16 {vr(V_S+4*T,4)}, {vr(V_KF+16*T+4*kk,4)}, {vr(V_Q+4*kk,4)}, {c}")
        e(f"s_waitcnt vmcnt({wV})")
        for dt in range(8):
            for T in range(2):
                e(f"ds_read_b64_tr_b16 {vr(V_VF+4*dt+2*T,2)}, v{V_VR+dt} offset:{slot*16384+T*4096}")
        g.nop(4)
        t = V_T
        for i in range(4):
            e(f"v_cvt_pk_bf16_f32 v{t+i}, v{V_S+2*i}, v{V_S+2*i+1}")
        for i in range(4):
            e(f"v_lshlrev_b32 v{V_A+2*i}, 16, v{t+i}")
            e(f"v_and_b32 v{V_A+2*i+1}, 0xffff0000, v{t+i}")
        for i in range(8):
            e(f"v_mul_f32 v{V_A+i}, s{S_C1}, v{V_A+i}")
        for i in range(4):
            e(f"v_cvt_pk_bf16_f32 v{t+i}, v{V_A+2*i}, v{V_A+2*i+1}")
        for i in range(4):
            e(f"v_lshlrev_b32 v{V_A+2*i}, 16, v{t+i}")
            e(f"v_and_b32 v{V_A+2*i+1}, 0xffff0000, v{t+i}")
        e(f"v_max3_f32 v{V_MX}, v{V_A}, v{V_A+1}, v{V_A+2}")
        e(f"v_max3_f32 v{V_MX}, v{V_MX}, v{V_A+3}, v{V_A+4}")
        e(f"v_max3_f32 v{V_MX}, v{V_MX}, v{V_A+5}, v{V_A+6}")
        e(f"v_max3_f32 v{V_MX}, v{V_MX}, v{V_A+7}, v{V_M}")
        rows_reduce(g, V_MX, t, "v_max_f32")
        e(f"v_sub_f32 v{V_AL}, v{V_M}, v{V_MX}")
        e(f"v_mul_f32 v{V_AL}, s{S_C0}, v{V_AL}")
        e(f"v_exp_f32 v{V_AL}, v{V_AL}")
        e(f"v_mov_b32 v{V_M}, v{V_MX}")
        e(f"v_mul_f32 v{V_NM}, s{S_C0}, v{V_MX}")
        for i in range(8):
            e(f"v_fma_f32 v{V_A+i}, v{V_A+i}, s{S_C0}, -v{V_NM}")
        for i in range(8):
            e(f"v_exp_f32 v{V_A+i}, v{V_A+i}")
        e(f"v_mul_f32 v{V_L}, v{V_L}, v{V_AL}")
        for i in range(32):
            e(f"v_mul_f32 v{V_O+i}, v{V_O+i}, v{V_AL}")
        for i in range(4):
            e(f"v_cvt_pk_bf16_f32 v{V_P+i}, v{V_A+2*i}, v{V_A+2*i+1}")
        e(f"v_add_f32 v{t}, v{V_A}, v{V_A+1}")
        e(f"v_add_f32 v{t+1}, v{V_A+2}, v{V_A+3}")
        e(f"v_add_f32 v{t+2}, v{V_A+4}, v{V_A+5}")
        e(f"v_add_f32 v{t+3}, v{V_A+6}, v{V_A+7}")
        e(f"v_add_f32 v{t}, v{t}, v{t+1}")
        e(f"v_add_f32 v{t+2}, v{t+2}, v{t+3}")
        e(f"v_add_f32 v{t}, v{t}, v{t+2}")
        e(f"v_add_f32 v{V_L}, v{V_L}, v{t}")
        e("s_waitcnt lgkmcnt(0)")
        if do_issue:
            issue(1, slot)
            e(f"s_add_u32 s{S_OFF}, s{S_OFF}, {STEP}")
        else:
            g.nop(2)
        for dt in range(8):
            e(f"v_mfma_f32_16x16x32_bf16 {vr(V_O+4*dt,4)}, {vr(V_VF+4*dt,4)}, {vr(V_P,4)}, {vr(V_O+4*dt,4)}")

    NT = o["ntiles"]
    nloop = (NT - 2) // 2
    e(f"s_mov_b32 s{S_CNT}, {nloop}")
    g.lab("L_loop")
    step(0, True, 24, 24)
    step(1, True, 24, 24)
    e(f"s_sub_u32 s{S_CNT}, s{S_CNT}, 1")
    e(f"s_cmp_lg_u32 s{S_CNT}, 0")
    e("s_cbranch_scc1 L_loop")
    step(0, False, 24, 16)
    step(1, False, 8, 0)
    stamp(g, 3, ST)
    rows_reduce(g, V_L, V_T, "v_add_f32")
    e("v_and_b32 v1, 15, v0")
    e("v_lshrrev_b32 v2, 4, v0")
    e("v_lshlrev_b32 v3, 9, v1")
    e("v_lshl_add_u32 v3, v2, 4, v3")
    e(f"v_add_u32 v3, s{S_RB}, v3")
    e(f"s_lshl_b32 s{S_T0}, s{S_WAVE}, 5")
    e(f"s_add_u32 s{S_T0}, s{S_T0}, {L_ML}")
    e(f"v_lshlrev_b32 v4, 3, v1")
    e(f"v_add_u32 v4, s{S_T0}, v4")
    g.nop(8)
    e(f"s_mov_b64 exec, s[{S_EX}:{S_EX+1}]")
    for dt in range(8):
        e(f"ds_write_b128 v3, {vr(V_O+4*dt,4)} offset:{dt*64}")
    e(f"ds_write_b64 v4, {vr(V_M,2)}")
    e("s_mov_b64 exec, -1")
    e("s_waitcnt lgkmcnt(0)")
    e("s_branch L_tail")

    g.lab("L_helper")
    H_W = 64
    H_F = 128
    H_WO = 192
    H_G = 224
    e("s_waitcnt lgkmcnt(0)")
    e(f"s_load_dword s{S_E}, s[{S_WS}:{S_WS+1}], {WS_E}")
    build_srd(g, SRD_WS, S_WS, WS_SIZE)
    build_srd(g, SRD_X, S_X, 2048)
    build_srd(g, SRD_WO, S_WO, 0x400000)
    build_srd(g, SRD_OUT, S_OUT, 2048)
    e(f"s_sub_u32 s{S_T5}, s{S_WAVE}, 4")
    e(f"s_lshl_b32 s{S_T5}, s{S_T5}, 12")
    e(f"s_add_u32 s{S_T5}, s{S_T5}, {L_STG}")
    S_STG = S_T5
    e(f"s_cmp_eq_u32 s{S_WAVE}, 6"); e("s_cbranch_scc1 L_w6")
    e(f"s_cmp_eq_u32 s{S_WAVE}, 7"); e("s_cbranch_scc1 L_w7")
    e(f"s_cmp_eq_u32 s{S_WAVE}, 5"); e("s_cbranch_scc1 L_w5setup")
    build_srd(g, SRD_W, S_WQ, 0x400000)
    e(f"s_mov_b32 s{S_T0}, 8192")
    e(f"s_and_b32 s{S_T1}, s2, 7"); e(f"s_lshl_b32 s{S_T1}, s{S_T1}, 9")
    e(f"s_lshr_b32 s{S_T2}, s2, 3"); e(f"s_lshl_b32 s{S_T2}, s{S_T2}, 4")
    e(f"s_add_u32 s{S_T1}, s{S_T1}, s{S_T2}")
    e(f"s_mov_b32 s{S_T3}, {L_XN4}")
    e("s_branch L_slice")
    g.lab("L_w5setup")
    build_srd(g, SRD_W, S_W1, 512*3584)
    e(f"s_lshr_b32 s{S_T2}, s2, 3")
    e(f"s_cmp_ge_u32 s{S_T2}, 14"); e("s_cbranch_scc1 L_hb1")
    e(f"s_mov_b32 s{S_T0}, 3584")
    e(f"s_and_b32 s{S_T1}, s2, 7"); e(f"s_mul_i32 s{S_T1}, s{S_T1}, 14")
    e(f"s_add_u32 s{S_T1}, s{S_T1}, s{S_T2}"); e(f"s_lshl_b32 s{S_T1}, s{S_T1}, 4")
    e(f"s_mov_b32 s{S_T3}, {L_XN5}")
    g.lab("L_slice")
    e("v_lshlrev_b32 v1, 4, v0")
    e(f"buffer_load_dwordx4 v[8:11], v1, s[{SRD_X}:{SRD_X+3}], 0 offen")
    e(f"buffer_load_dwordx4 v[12:15], v1, s[{SRD_X}:{SRD_X+3}], 0 offen offset:1024")
    e("v_lshrrev_b32 v2, 1, v0")
    e(f"v_mul_lo_u32 v2, v2, s{S_T0}")
    e("v_and_b32 v3, 1, v0")
    e("v_lshl_add_u32 v2, v3, 4, v2")
    e(f"s_lshl_b32 s{S_SOFF}, s{S_T1}, 1")
    e(f"s_lshl_b32 s{S_RS32}, s{S_T0}, 5")
    for i in range(16):
        e(f"buffer_load_dwordx4 {vr(H_W+4*i,4)}, v2, s[{SRD_W}:{SRD_W+3}], s{S_SOFF} offen")
        if i < 15:
            e(f"s_add_u32 s{S_SOFF}, s{S_SOFF}, s{S_RS32}")
    e("s_waitcnt vmcnt(16)")
    X0, X1 = 16, 24
    for b, (src, dst) in enumerate(((8, X0), (12, X1))):
        for i in range(4):
            e(f"v_lshlrev_b32 v{dst+2*i}, 16, v{src+i}")
            e(f"v_and_b32 v{dst+2*i+1}, 0xffff0000, v{src+i}")
    SU = 32
    for b, dst in enumerate((X0, X1)):
        e(f"v_add_f32 v{SU+b}, v{dst}, v{dst+1}")
        for i in range(2, 8):
            e(f"v_add_f32 v{SU+b}, v{SU+b}, v{dst+i}")
    def wave_sum2(a):
        row_ror_reduce(g, [a, a+1], "v_add_f32", [1, 2, 4, 8])
        rows_reduce_multi(g, [a, a+1], [a+2, a+3], "v_add_f32")
    wave_sum2(SU)
    e(f"s_mov_b32 s{S_T4}, 0x3b000000")
    e(f"v_mul_f32 v{SU}, s{S_T4}, v{SU}")
    e(f"v_mul_f32 v{SU+1}, s{S_T4}, v{SU+1}")
    VA = 36
    for b, dst in enumerate((X0, X1)):
        e(f"v_sub_f32 v40, v{dst}, v{SU+b}")
        e(f"v_mul_f32 v{VA+b}, v40, v40")
        for i in range(1, 8):
            e(f"v_sub_f32 v40, v{dst+i}, v{SU+b}")
            e(f"v_fmac_f32 v{VA+b}, v40, v40")
    wave_sum2(VA)
    e(f"v_mul_f32 v{VA}, s{S_T4}, v{VA}")
    e(f"v_mul_f32 v{VA+1}, s{S_T4}, v{VA+1}")
    e(f"v_cvt_pk_bf16_f32 v40, v{SU}, v{SU+1}")
    e(f"v_cvt_pk_bf16_f32 v41, v{VA}, v{VA+1}")
    e(f"v_lshlrev_b32 v{SU}, 16, v40"); e(f"v_and_b32 v{SU+1}, 0xffff0000, v40")
    e(f"v_lshlrev_b32 v{VA}, 16, v41"); e(f"v_and_b32 v{VA+1}, 0xffff0000, v41")
    e(f"v_add_f32 v{VA}, 0x3727c5ac, v{VA}"); e(f"v_add_f32 v{VA+1}, 0x3727c5ac, v{VA+1}")
    e(f"v_cvt_pk_bf16_f32 v41, v{VA}, v{VA+1}")
    e(f"v_lshlrev_b32 v{VA}, 16, v41"); e(f"v_and_b32 v{VA+1}, 0xffff0000, v41")
    e(f"v_sqrt_f32 v{VA}, v{VA}"); e(f"v_sqrt_f32 v{VA+1}, v{VA+1}")
    g.nop(1)
    e(f"v_cvt_pk_bf16_f32 v41, v{VA}, v{VA+1}")
    e(f"v_lshlrev_b32 v{VA}, 16, v41"); e(f"v_and_b32 v{VA+1}, 0xffff0000, v41")
    e(f"v_rcp_f32 v38, v{VA}"); e(f"v_rcp_f32 v39, v{VA+1}")
    for b, dst in enumerate((X0, X1)):
        for i in range(8):
            e(f"v_sub_f32 v{dst+i}, v{dst+i}, v{SU+b}")
        for i in range(4):
            e(f"v_cvt_pk_bf16_f32 v40, v{dst+2*i}, v{dst+2*i+1}")
            e(f"v_lshlrev_b32 v{dst+2*i}, 16, v40"); e(f"v_and_b32 v{dst+2*i+1}, 0xffff0000, v40")
        for i in range(8):
            e(f"v_mul_f32 v41, v{dst+i}, v{38+b}")
            e(f"v_fma_f32 v42, -v41, v{VA+b}, v{dst+i}")
            e(f"v_fma_f32 v{dst+i}, v42, v{38+b}, v41")
        for i in range(4):
            e(f"v_cvt_pk_bf16_f32 v{44+4*b+i}, v{dst+2*i}, v{dst+2*i+1}")
    e("v_lshlrev_b32 v1, 4, v0")
    e(f"v_add_u32 v1, s{S_T3}, v1")
    e("ds_write_b128 v1, v[44:47]")
    e("ds_write_b128 v1, v[48:51] offset:1024")
    e("v_lshlrev_b32 v1, 4, v0")
    e(f"v_add_u32 v1, s{S_STG}, v1")
    e("v_lshrrev_b32 v2, 4, v0")
    e("v_bfe_u32 v3, v0, 2, 2")
    e("v_lshl_add_u32 v3, v2, 3, v3")
    e("v_and_b32 v4, 3, v0")
    e("v_lshlrev_b32 v5, 5, v3")
    e("v_lshl_add_u32 v5, v4, 3, v5")
    e(f"v_add_u32 v5, s{S_STG}, v5")
    e("v_and_b32 v6, 1, v0")
    e("v_lshlrev_b32 v6, 10, v6")
    e("v_lshl_add_u32 v6, v2, 4, v6")
    e(f"v_add_u32 v6, s{S_T3}, v6")
    ACC = 52
    for pc in range(4):
        e(f"s_waitcnt vmcnt({12-4*pc})")
        for i in range(4):
            e(f"ds_write_b128 v1, {vr(H_W+16*pc+4*i,4)} offset:{i*1024}")
        for ks in range(4):
            e(f"ds_read_b128 {vr(16+4*ks,4)}, v6 offset:{(128*pc+32*ks)*2}")
            e(f"ds_read_b64_tr_b16 {vr(32+4*ks,2)}, v5 offset:{ks*1024}")
            e(f"ds_read_b64_tr_b16 {vr(32+4*ks+2,2)}, v5 offset:{ks*1024+128}")
        e("s_waitcnt lgkmcnt(0)")
        for ks in range(4):
            c = "0" if (pc == 0 and ks == 0) else vr(ACC, 4)
            e(f"v_mfma_f32_16x16x32_bf16 {vr(ACC,4)}, {vr(16+4*ks,4)}, {vr(32+4*ks,4)}, {c}")
    g.nop(10)
    e("s_waitcnt lgkmcnt(0)")
    e(f"s_mul_i32 s{S_TAG}, s{S_E}, 1664525")
    e(f"s_add_u32 s{S_TAG}, s{S_TAG}, 1013904223")
    e(f"s_cmp_eq_u32 s{S_WAVE}, 5"); e("s_cbranch_scc1 L_w5post")
    e(f"v_and_b32 v1, 15, v0")
    e(f"v_add_u32 v1, s{S_T1}, v1")
    e("v_lshlrev_b32 v1, 3, v1")
    e(f"v_mov_b32 v8, v{ACC}"); e(f"v_mov_b32 v9, s{S_TAG}")
    e(f"v_mov_b32 v10, v{ACC+1}"); e(f"v_mov_b32 v11, s{S_TAG}")
    e(f"s_mov_b32 s{S_T0}, {WS_Q}"); e(f"s_mov_b32 s{S_T2}, {WS_Q+4096*8}")
    e("s_mov_b64 exec, 0xffff")
    e(f"buffer_store_dwordx2 v[8:9], v1, s[{SRD_WS}:{SRD_WS+3}], s{S_T0} offen sc1")
    e(f"buffer_store_dwordx2 v[10:11], v1, s[{SRD_WS}:{SRD_WS+3}], s{S_T2} offen sc1")
    e("s_mov_b64 exec, -1")
    stamp(g, 1, ST)
    e(f"s_lshl_b32 s{S_T0}, s{S_B}, 12"); e(f"s_lshl_b32 s{S_T2}, s{S_HKV}, 9")
    e(f"s_add_u32 s{S_T0}, s{S_T0}, s{S_T2}"); e(f"s_lshl_b32 s{S_T0}, s{S_T0}, 3")
    e(f"s_add_u32 s{S_T0}, s{S_T0}, {WS_Q}")
    e("v_lshlrev_b32 v1, 6, v0")
    def ql():
        for i in range(4):
            e(f"buffer_load_dwordx4 {vr(16+4*i,4)}, v1, s[{SRD_WS}:{SRD_WS+3}], s{S_T0} offen offset:{16*i} sc1")
    poll(g, "q", ql, [17, 19, 21, 23, 25, 27, 29, 31], 8)
    for i in range(4):
        e(f"v_cvt_pk_bf16_f32 v{12+i}, v{16+4*i}, v{18+4*i}")
    e("v_lshlrev_b32 v1, 4, v0")
    e(f"v_add_u32 v1, {L_Q}, v1")
    e("ds_write_b128 v1, v[12:15]")
    e("s_waitcnt lgkmcnt(0)")
    stamp(g, 2, ST)
    e("s_branch L_hb1")
    g.lab("L_w5post")
    e(f"v_cvt_pk_bf16_f32 v8, v{ACC}, v{ACC+1}")
    e("v_lshlrev_b32 v10, 16, v8"); e("v_and_b32 v11, 0xffff0000, v8")
    e(f"s_mov_b32 s{S_T0}, {L2E:#x}")
    for r in (10, 11):
        e(f"v_mul_f32 v12, s{S_T0}, v{r}")
        e(f"v_exp_f32 v12, -v12")
        g.nop(1)
        e(f"v_add_f32 v12, 1.0, v12")
        e(f"v_rcp_f32 v12, v12")
        g.nop(1)
        e(f"v_mul_f32 v{r}, v{r}, v12")
    e(f"v_and_b32 v1, 15, v0")
    e(f"v_add_u32 v1, s{S_T1}, v1")
    e("v_lshlrev_b32 v1, 3, v1")
    e(f"v_mov_b32 v8, v10"); e(f"v_mov_b32 v9, s{S_TAG}")
    e(f"v_mov_b32 v10, v11"); e(f"v_mov_b32 v11, s{S_TAG}")
    e(f"s_mov_b32 s{S_T0}, {WS_H}"); e(f"s_mov_b32 s{S_T2}, {WS_H+1792*8}")
    e("s_mov_b64 exec, 0xffff")
    e(f"buffer_store_dwordx2 v[8:9], v1, s[{SRD_WS}:{SRD_WS+3}], s{S_T0} offen sc1")
    e(f"buffer_store_dwordx2 v[10:11], v1, s[{SRD_WS}:{SRD_WS+3}], s{S_T2} offen sc1")
    e("s_mov_b64 exec, -1")
    e("s_branch L_hb1")

    g.lab("L_w6")
    build_srd(g, SRD_W, S_W2, 1792*1024)
    e(f"s_sub_u32 s{S_T0}, s2, 128")
    e(f"s_cmp_ge_u32 s{S_T0}, 112")
    e(f"s_cselect_b32 s{S_T4}, 0, 1")
    e("s_cbranch_scc1 L_w6_b1")
    e(f"s_lshr_b32 s{S_T1}, s{S_T0}, 2")
    e(f"s_and_b32 s{S_T2}, s{S_T0}, 3")
    e("v_lshrrev_b32 v2, 3, v0"); e("v_lshlrev_b32 v2, 10, v2")
    e("v_and_b32 v3, 7, v0"); e("v_lshl_add_u32 v2, v3, 4, v2")
    e(f"s_lshl_b32 s{S_SOFF}, s{S_T1}, 16")
    e(f"s_lshl_b32 s{S_T3}, s{S_T2}, 8")
    e(f"s_add_u32 s{S_SOFF}, s{S_SOFF}, s{S_T3}")
    for ks in range(2):
        for ch in range(2):
            for u in range(4):
                idx = (ks * 2 + ch) * 4 + u
                e(f"s_add_u32 s{S_T3}, s{S_SOFF}, {(32*ks+8*u)*1024}")
                e(f"buffer_load_dwordx4 {vr(H_W+4*idx,4)}, v2, s[{SRD_W}:{SRD_W+3}], s{S_T3} offen offset:{ch*128}")
    g.lab("L_w6_b1")
    e("s_waitcnt lgkmcnt(0)")
    e(f"s_mul_i32 s{S_TAG}, s{S_E}, 1664525")
    e(f"s_add_u32 s{S_TAG}, s{S_TAG}, 1013904223")
    e("s_barrier")
    e(f"s_cmp_eq_u32 s{S_T4}, 0"); e("s_cbranch_scc1 L_wo")
    e("v_lshlrev_b32 v1, 4, v0")
    e(f"v_add_u32 v1, s{S_STG}, v1")
    e("v_lshrrev_b32 v2, 4, v0"); e("v_bfe_u32 v3, v0, 2, 2"); e("v_lshl_add_u32 v3, v2, 3, v3"); e("v_and_b32 v4, 3, v0")
    e("v_lshlrev_b32 v5, 7, v3"); e("v_lshl_add_u32 v5, v4, 3, v5"); e(f"v_add_u32 v5, s{S_STG}, v5")
    e("s_waitcnt vmcnt(0)")
    for ks in range(2):
        for ch in range(2):
            pc = ks * 2 + ch
            for u in range(4):
                e(f"ds_write_b128 v1, {vr(H_W+16*pc+4*u,4)} offset:{u*1024}")
            for c in range(4):
                f = H_F + 4 * (ks * 8 + ch * 4 + c)
                e(f"ds_read_b64_tr_b16 {vr(f,2)}, v5 offset:{c*32}")
                e(f"ds_read_b64_tr_b16 {vr(f+2,2)}, v5 offset:{c*32+512}")
            e("s_waitcnt lgkmcnt(0)")
    e("v_lshrrev_b32 v6, 5, v0")
    e(f"v_mul_u32_u24 v6, {1792*8}, v6")
    e("v_and_b32 v7, 31, v0")
    e("v_lshl_add_u32 v6, v7, 4, v6")
    e(f"s_lshl_b32 s{S_T0}, s{S_T1}, 9"); e(f"s_add_u32 s{S_T0}, s{S_T0}, {WS_H}")
    def hl():
        e(f"buffer_load_dwordx4 v[16:19], v6, s[{SRD_WS}:{SRD_WS+3}], s{S_T0} offen sc1")
    poll(g, "h", hl, [17, 19], 8)
    e("v_cvt_pk_bf16_f32 v12, v16, v18")
    e("v_lshlrev_b32 v7, 2, v0")
    e(f"v_add_u32 v7, {L_H}, v7")
    e("ds_write_b32 v7, v12")
    e("v_and_b32 v6, 1, v0"); e("v_lshlrev_b32 v6, 7, v6"); e("v_lshl_add_u32 v6, v2, 4, v6"); e(f"v_add_u32 v6, {L_H}, v6")
    e("ds_read_b128 v[16:19], v6")
    e("ds_read_b128 v[20:23], v6 offset:64")
    e("s_waitcnt lgkmcnt(0)")
    for c in range(8):
        e(f"v_mfma_f32_16x16x32_bf16 {vr(H_W+4*c,4)}, v[16:19], {vr(H_F+4*c,4)}, 0")
    for c in range(8):
        e(f"v_mfma_f32_16x16x32_bf16 {vr(H_W+4*c,4)}, v[20:23], {vr(H_F+32+4*c,4)}, {vr(H_W+4*c,4)}")
    g.nop(10)
    e("v_and_b32 v1, 15, v0"); e("v_lshlrev_b32 v1, 3, v1")
    e(f"s_lshl_b32 s{S_T0}, s{S_T1}, 13")
    e(f"s_lshl_b32 s{S_T3}, s{S_T2}, 10")
    e(f"s_add_u32 s{S_T0}, s{S_T0}, s{S_T3}"); e(f"s_add_u32 s{S_T0}, s{S_T0}, {WS_F}")
    e(f"s_add_u32 s{S_T3}, s{S_T0}, 4096")
    e(f"v_mov_b32 v9, s{S_TAG}"); e(f"v_mov_b32 v11, s{S_TAG}")
    e("s_mov_b64 exec, 0xffff")
    for c in range(8):
        e(f"v_mov_b32 v8, v{H_W+4*c}"); e(f"v_mov_b32 v10, v{H_W+4*c+1}")
        e(f"buffer_store_dwordx2 v[8:9], v1, s[{SRD_WS}:{SRD_WS+3}], s{S_T0} offen offset:{c*128} sc1")
        e(f"buffer_store_dwordx2 v[10:11], v1, s[{SRD_WS}:{SRD_WS+3}], s{S_T3} offen offset:{c*128} sc1")
        g.nop(2)
    e("s_mov_b64 exec, -1")
    e("s_branch L_wo")

    g.lab("L_w7")
    if o["prefetch_code"]:
        e(f"s_getpc_b64 s[{S_T0}:{S_T0+1}]")
        g.lab("L_pcbase")
        e(f"s_sub_u32 s{S_T0}, s{S_T0}, L_pcbase-{KN}_kernel")
        e(f"s_subb_u32 s{S_T0+1}, s{S_T0+1}, 0")
        e("v_lshlrev_b32 v1, 6, v0")
        e("CODE_PREFETCH_PLACEHOLDER")
    e("s_waitcnt lgkmcnt(0)")
    e(f"s_mul_i32 s{S_TAG}, s{S_E}, 1664525")
    e(f"s_add_u32 s{S_TAG}, s{S_TAG}, 1013904223")
    g.lab("L_hb1")
    e("s_waitcnt lgkmcnt(0)")
    e(f"s_mul_i32 s{S_TAG}, s{S_E}, 1664525")
    e(f"s_add_u32 s{S_TAG}, s{S_TAG}, 1013904223")
    e("s_barrier")
    g.lab("L_wo")
    e(f"s_lshr_b32 s{S_T0}, s{S_SPLIT}, 2")
    e(f"s_lshl_b32 s{S_T1}, s{S_HKV}, 2"); e(f"s_add_u32 s{S_T1}, s{S_T1}, s{S_T0}")
    e(f"s_lshl_b32 s{S_SOFF}, s{S_T1}, 17")
    e(f"s_and_b32 s{S_T2}, s{S_SPLIT}, 3"); e(f"s_lshl_b32 s{S_T2}, s{S_T2}, 8")
    e(f"s_add_u32 s{S_SOFF}, s{S_SOFF}, s{S_T2}")
    e(f"s_sub_u32 s{S_T2}, s{S_WAVE}, 4"); e(f"s_lshl_b32 s{S_T2}, s{S_T2}, 6")
    e(f"s_add_u32 s{S_SOFF}, s{S_SOFF}, s{S_T2}")
    e("v_lshrrev_b32 v2, 2, v0"); e("v_lshlrev_b32 v2, 10, v2"); e("v_and_b32 v3, 3, v0"); e("v_lshl_add_u32 v2, v3, 4, v2")
    for u in range(8):
        e(f"buffer_load_dwordx4 {vr(H_W+4*u,4)}, v2, s[{SRD_WO}:{SRD_WO+3}], s{S_SOFF} offen")
        if u < 7:
            e(f"s_add_u32 s{S_SOFF}, s{S_SOFF}, {16*1024}")
    e("v_lshlrev_b32 v1, 4, v0"); e(f"v_add_u32 v1, s{S_STG}, v1")
    e("v_lshrrev_b32 v2, 4, v0"); e("v_bfe_u32 v3, v0, 2, 2"); e("v_lshl_add_u32 v3, v2, 3, v3"); e("v_and_b32 v4, 3, v0")
    e("v_lshlrev_b32 v5, 6, v3"); e("v_lshl_add_u32 v5, v4, 3, v5"); e(f"v_add_u32 v5, s{S_STG}, v5")
    e("s_waitcnt vmcnt(0)")
    for pc in range(2):
        for u in range(4):
            e(f"ds_write_b128 v1, {vr(H_W+16*pc+4*u,4)} offset:{u*1024}")
        for ks in range(2):
            for ct in range(2):
                f = H_WO + 4 * ((pc * 2 + ks) * 2 + ct)
                e(f"ds_read_b64_tr_b16 {vr(f,2)}, v5 offset:{ks*2048+ct*32}")
                e(f"ds_read_b64_tr_b16 {vr(f+2,2)}, v5 offset:{ks*2048+ct*32+256}")
        e("s_waitcnt lgkmcnt(0)")
    e(f"s_cmp_lg_u32 s{S_WAVE}, 7"); e("s_cbranch_scc1 L_hb2")
    e("s_cmp_ge_u32 s2, 32"); e("s_cbranch_scc1 L_hb2")
    e("v_lshrrev_b32 v2, 5, v0"); e("v_bfe_u32 v3, v0, 3, 2"); e("v_and_b32 v4, 7, v0")
    e(f"v_mul_u32_u24 v5, {7*2*512*8}, v3")
    e("v_lshl_add_u32 v5, v2, 12, v5")
    e("v_lshl_add_u32 v5, v4, 4, v5")
    e(f"s_lshl_b32 s{S_T0}, s2, 7")
    e(f"v_add_u32 v5, s{S_T0}, v5")
    def fl():
        for i in range(7):
            e(f"s_mov_b32 s{S_T1}, {WS_F + i*8192}")
            e(f"buffer_load_dwordx4 {vr(16+4*i,4)}, v5, s[{SRD_WS}:{SRD_WS+3}], s{S_T1} offen sc1")
    e("v_lshlrev_b32 v6, 10, v2"); e("v_lshl_add_u32 v6, v4, 2, v6"); e(f"s_lshl_b32 s{S_T1}, s2, 5"); e(f"v_add_u32 v6, s{S_T1}, v6")
    e(f"buffer_load_dword v{H_G+2}, v6, s[{SRD_X}:{SRD_X+3}], 0 offen")
    poll(g, "f", fl, [16+4*i+1 for i in range(7)] + [16+4*i+3 for i in range(7)], 8)
    for i in range(1, 7):
        e(f"v_add_f32 v16, v16, v{16+4*i}"); e(f"v_add_f32 v18, v18, v{18+4*i}")
    g.nop(2)
    e("v_add_f32_dpp v16, v16, v16 row_ror:8 row_mask:0xf bank_mask:0xf")
    e("v_add_f32_dpp v18, v18, v18 row_ror:8 row_mask:0xf bank_mask:0xf")
    e("v_mov_b32 v20, v16"); e("v_mov_b32 v21, v18"); g.nop(2)
    e("v_permlane16_swap_b32 v16, v20"); e("v_permlane16_swap_b32 v18, v21"); g.nop(1)
    e("v_add_f32 v16, v16, v20"); e("v_add_f32 v18, v18, v21")
    e("v_cvt_pk_bf16_f32 v8, v16, v18")
    e("v_lshlrev_b32 v10, 16, v8"); e("v_and_b32 v11, 0xffff0000, v8")
    e(f"s_mov_b32 s{S_T0}, {L2E:#x}")
    for r in (10, 11):
        e(f"v_mul_f32 v12, s{S_T0}, v{r}")
        e(f"v_exp_f32 v12, -v12"); g.nop(1)
        e(f"v_add_f32 v12, 1.0, v12")
        e(f"v_rcp_f32 v12, v12"); g.nop(1)
        e(f"v_mul_f32 v{r}, v{r}, v12")
    e("v_cvt_pk_bf16_f32 v8, v10, v11")
    e(f"v_lshlrev_b32 v{H_G}, 16, v8"); e(f"v_and_b32 v{H_G+1}, 0xffff0000, v8")
    g.lab("L_hb2")
    stamp(g, 3, ST)

    g.lab("L_tail")
    e("s_barrier")
    stamp(g, 4, ST)
    e(f"s_lshr_b32 s{S_T0}, s{S_WAVE}, 1")
    e(f"s_and_b32 s{S_T1}, s{S_WAVE}, 1"); e(f"s_lshl_b32 s{S_T1}, s{S_T1}, 6")
    e(f"v_add_u32 v1, s{S_T1}, v0")
    e(f"s_lshl_b32 s{S_T2}, s{S_T0}, 9")
    e("v_lshlrev_b32 v2, 2, v1"); e(f"v_add_u32 v2, s{S_T2}, v2")
    e(f"s_lshl_b32 s{S_T3}, s{S_T0}, 3"); e(f"s_add_u32 s{S_T3}, s{S_T3}, {L_ML}")
    e(f"v_mov_b32 v3, s{S_T3}")
    e(f"v_add_u32 v4, {RING}, v2"); e(f"v_add_u32 v5, {2*RING}, v2"); e(f"v_add_u32 v6, {3*RING}, v2")
    e("ds_read_b32 v8, v2"); e("ds_read_b32 v9, v4"); e("ds_read_b32 v10, v5"); e("ds_read_b32 v11, v6")
    for w in range(4):
        e(f"ds_read_b64 {vr(12+2*w,2)}, v3 offset:{w*32}")
    e(f"s_mov_b32 s{S_C0}, {L2E:#x}")
    e("s_waitcnt lgkmcnt(0)")
    e("v_max3_f32 v20, v12, v14, v16"); e("v_max_f32 v20, v20, v18")
    for w in range(4):
        e(f"v_sub_f32 v{12+2*w}, v{12+2*w}, v20"); e(f"v_mul_f32 v{12+2*w}, s{S_C0}, v{12+2*w}")
    for w in range(4):
        e(f"v_exp_f32 v{12+2*w}, v{12+2*w}")
    g.nop(1)
    e("v_mul_f32 v8, v8, v12"); e("v_mul_f32 v22, v13, v12")
    for w in range(1, 4):
        e(f"v_fmac_f32 v8, v{8+w}, v{12+2*w}"); e(f"v_fmac_f32 v22, v{13+2*w}, v{12+2*w}")
    e(f"v_mov_b32 v9, s{S_TAG}"); e(f"v_mov_b32 v21, s{S_TAG}"); e(f"v_mov_b32 v23, s{S_TAG}")
    e(f"s_lshl_b32 s{S_T2}, s{S_PAIR}, 4"); e(f"s_add_u32 s{S_T2}, s{S_T2}, s{S_SPLIT}")
    e(f"s_lshl_b32 s{S_T2}, s{S_T2}, 2"); e(f"s_add_u32 s{S_T2}, s{S_T2}, s{S_T0}")
    e(f"s_lshl_b32 s{S_T2}, s{S_T2}, 10"); e(f"s_add_u32 s{S_T2}, s{S_T2}, {WS_P}")
    e("v_lshlrev_b32 v1, 3, v1")
    e(f"buffer_store_dwordx2 v[8:9], v1, s[{SRD_WS}:{SRD_WS+3}], s{S_T2} offen sc1")
    e(f"s_cmp_lg_u32 s{S_T1}, 0"); e("s_cbranch_scc1 L_t2")
    e(f"s_lshl_b32 s{S_T2}, s{S_PAIR}, 2"); e(f"s_add_u32 s{S_T2}, s{S_T2}, s{S_T0}")
    e(f"s_lshl_b32 s{S_T2}, s{S_T2}, 4"); e(f"s_add_u32 s{S_T2}, s{S_T2}, s{S_SPLIT}")
    e(f"s_lshl_b32 s{S_T2}, s{S_T2}, 4"); e(f"s_add_u32 s{S_T2}, s{S_T2}, {WS_ML}")
    e("v_mov_b32 v2, 0")
    e("s_mov_b64 exec, 1")
    e(f"buffer_store_dwordx4 v[20:23], v2, s[{SRD_WS}:{SRD_WS+3}], s{S_T2} offen sc1")
    e("s_mov_b64 exec, -1")
    g.lab("L_t2")
    stamp(g, 5, ST)
    e(f"s_lshr_b32 s{S_T0}, s{S_SPLIT}, 2")
    e("v_lshrrev_b32 v2, 2, v0"); e("v_and_b32 v3, 3, v0")
    e("v_lshlrev_b32 v4, 12, v2")
    e("v_lshl_add_u32 v4, v3, 5, v4")
    e(f"s_lshl_b32 s{S_T1}, s{S_PAIR}, 16")
    e(f"s_lshl_b32 s{S_T2}, s{S_T0}, 10"); e(f"s_add_u32 s{S_T1}, s{S_T1}, s{S_T2}")
    e(f"s_lshl_b32 s{S_T2}, s{S_WAVE}, 7"); e(f"s_add_u32 s{S_T1}, s{S_T1}, s{S_T2}")
    e(f"s_add_u32 s{S_T1}, s{S_T1}, {WS_P}")
    e("v_lshlrev_b32 v5, 4, v2")
    e(f"s_lshl_b32 s{S_T2}, s{S_PAIR}, 2"); e(f"s_add_u32 s{S_T2}, s{S_T2}, s{S_T0}")
    e(f"s_lshl_b32 s{S_T2}, s{S_T2}, 8"); e(f"s_add_u32 s{S_T2}, s{S_T2}, {WS_ML}")
    def pl():
        e(f"buffer_load_dwordx4 v[8:11], v4, s[{SRD_WS}:{SRD_WS+3}], s{S_T1} offen sc1")
        e(f"buffer_load_dwordx4 v[12:15], v4, s[{SRD_WS}:{SRD_WS+3}], s{S_T1} offen offset:16 sc1")
        e(f"buffer_load_dwordx4 v[16:19], v5, s[{SRD_WS}:{SRD_WS+3}], s{S_T2} offen sc1")
    poll(g, "p", pl, [9, 11, 13, 15, 17, 19], 24)
    stamp(g, 6, ST)
    e("v_mov_b32 v20, v16")
    row_ror_reduce(g, [20], "v_max_f32", [4, 8])
    rows_reduce(g, 20, 21, "v_max_f32")
    e(f"s_mov_b32 s{S_C0}, {L2E:#x}")
    e("v_sub_f32 v16, v16, v20"); e(f"v_mul_f32 v16, s{S_C0}, v16"); e("v_exp_f32 v16, v16"); g.nop(1)
    e("v_mul_f32 v18, v18, v16")
    e("v_mul_f32 v8, v8, v16"); e("v_mul_f32 v10, v10, v16"); e("v_mul_f32 v12, v12, v16"); e("v_mul_f32 v14, v14, v16")
    row_ror_reduce(g, [8, 10, 12, 14, 18], "v_add_f32", [4, 8])
    rows_reduce_multi(g, [8, 10, 12, 14, 18], [26, 27, 28, 29, 30], "v_add_f32")
    e("v_rcp_f32 v19, v18"); g.nop(1)
    for r in (8, 10, 12, 14):
        e(f"v_mul_f32 v20, v{r}, v19"); e(f"v_fma_f32 v21, -v20, v18, v{r}"); e(f"v_fma_f32 v{r}, v21, v19, v20")
    e("v_cvt_pk_bf16_f32 v22, v8, v10"); e("v_cvt_pk_bf16_f32 v23, v12, v14")
    e(f"s_lshl_b32 s{S_T2}, s{S_WAVE}, 5"); e(f"s_add_u32 s{S_T2}, s{S_T2}, {L_OB}")
    e(f"v_lshlrev_b32 v3, 3, v3"); e(f"v_add_u32 v3, s{S_T2}, v3")
    e("s_mov_b64 exec, 0xf")
    e("ds_write_b64 v3, v[22:23]")
    e("s_mov_b64 exec, -1")
    e("s_waitcnt lgkmcnt(0)")
    e("s_barrier")
    e(f"s_cmp_lt_u32 s{S_WAVE}, 4"); e("s_cbranch_scc1 L_fin")
    e("v_lshrrev_b32 v2, 4, v0"); e("v_lshlrev_b32 v2, 4, v2"); e(f"v_add_u32 v2, {L_OB}, v2")
    for kk in range(4):
        e(f"ds_read_b128 {vr(8+4*kk,4)}, v2 offset:{kk*64}")
    e("s_waitcnt lgkmcnt(0)")
    for kk in range(4):
        for ct in range(2):
            c = "0" if kk == 0 else vr(24+4*ct, 4)
            e(f"v_mfma_f32_16x16x32_bf16 {vr(24+4*ct,4)}, {vr(8+4*kk,4)}, {vr(H_WO+4*(kk*2+ct),4)}, {c}")
    e(f"s_lshr_b32 s{S_T0}, s{S_SPLIT}, 2")
    e(f"s_lshl_b32 s{S_T1}, s{S_HKV}, 2"); e(f"s_add_u32 s{S_T1}, s{S_T1}, s{S_T0}")
    e(f"s_lshl_b32 s{S_T2}, s{S_B}, 5"); e(f"s_add_u32 s{S_T1}, s{S_T1}, s{S_T2}")
    e(f"s_lshl_b32 s{S_T1}, s{S_T1}, 12")
    e(f"s_and_b32 s{S_T2}, s{S_SPLIT}, 3"); e(f"s_lshl_b32 s{S_T2}, s{S_T2}, 10"); e(f"s_add_u32 s{S_T1}, s{S_T1}, s{S_T2}")
    e(f"s_sub_u32 s{S_T2}, s{S_WAVE}, 4"); e(f"s_lshl_b32 s{S_T2}, s{S_T2}, 8"); e(f"s_add_u32 s{S_T1}, s{S_T1}, s{S_T2}")
    e(f"s_add_u32 s{S_T1}, s{S_T1}, {WS_S}")
    e("v_lshlrev_b32 v1, 3, v0")
    e("v_cmp_gt_u32 vcc, 16, v0")
    g.nop(6)
    e("v_cndmask_b32 v8, v28, v24, vcc")
    e(f"v_mov_b32 v9, s{S_TAG}")
    e("s_mov_b32 exec_hi, 0")
    e(f"buffer_store_dwordx2 v[8:9], v1, s[{SRD_WS}:{SRD_WS+3}], s{S_T1} offen sc1")
    e("s_mov_b64 exec, -1")
    stamp(g, 7, ST)
    e(f"s_cmp_lg_u32 s{S_WAVE}, 7"); e("s_cbranch_scc1 L_fin")
    e("s_cmp_ge_u32 s2, 32"); e("s_cbranch_scc1 L_fin")
    e("v_lshrrev_b32 v2, 5, v0"); e("v_bfe_u32 v3, v0, 3, 2"); e("v_and_b32 v4, 7, v0")
    e("v_lshlrev_b32 v5, 17, v2")
    e("v_lshl_add_u32 v5, v3, 15, v5")
    e("v_lshl_add_u32 v5, v4, 4, v5")
    e(f"s_lshl_b32 s{S_T0}, s2, 7"); e(f"v_add_u32 v5, s{S_T0}, v5")
    e("v_lshlrev_b32 v6, 10, v2"); e("v_lshl_add_u32 v6, v4, 2, v6"); e(f"s_lshl_b32 s{S_T1}, s2, 5"); e(f"v_add_u32 v6, s{S_T1}, v6")
    def sl():
        for i in range(8):
            e(f"s_mov_b32 s{S_T1}, {WS_S + i*4096}")
            e(f"buffer_load_dwordx4 {vr(16+4*i,4)}, v5, s[{SRD_WS}:{SRD_WS+3}], s{S_T1} offen sc1")
    poll(g, "s", sl, [16+4*i+1 for i in range(8)] + [16+4*i+3 for i in range(8)], 8)
    stamp(g, 8, ST)
    for i in range(1, 8):
        e(f"v_add_f32 v16, v16, v{16+4*i}"); e(f"v_add_f32 v18, v18, v{18+4*i}")
    g.nop(2)
    e("v_add_f32_dpp v16, v16, v16 row_ror:8 row_mask:0xf bank_mask:0xf")
    e("v_add_f32_dpp v18, v18, v18 row_ror:8 row_mask:0xf bank_mask:0xf")
    e("v_mov_b32 v20, v16"); e("v_mov_b32 v21, v18"); g.nop(2)
    e("v_permlane16_swap_b32 v16, v20"); e("v_permlane16_swap_b32 v18, v21"); g.nop(1)
    e("v_add_f32 v16, v16, v20"); e("v_add_f32 v18, v18, v21")
    e("v_cvt_pk_bf16_f32 v8, v16, v18")
    e("v_lshlrev_b32 v10, 16, v8"); e("v_and_b32 v11, 0xffff0000, v8")
    e(f"v_mul_f32 v10, v10, v{H_G}"); e(f"v_mul_f32 v11, v11, v{H_G+1}")
    e("v_cvt_pk_bf16_f32 v8, v10, v11")
    e("v_lshlrev_b32 v10, 16, v8"); e("v_and_b32 v11, 0xffff0000, v8")
    e(f"v_lshlrev_b32 v12, 16, v{H_G+2}"); e(f"v_and_b32 v13, 0xffff0000, v{H_G+2}")
    e("v_add_f32 v10, v10, v12"); e("v_add_f32 v11, v11, v13")
    e("v_cvt_pk_bf16_f32 v8, v10, v11")
    e("s_mov_b32 exec_lo, 0xff"); e("s_mov_b32 exec_hi, 0xff")
    e(f"buffer_store_dword v8, v6, s[{SRD_OUT}:{SRD_OUT+3}], 0 offen")
    e("s_mov_b64 exec, -1")
    e("s_cmp_lg_u32 s2, 0"); e("s_cbranch_scc1 L_fin")
    e(f"v_mov_b32 v8, s{S_TAG}"); e("v_mov_b32 v1, 0")
    e("s_mov_b64 exec, 1")
    e(f"buffer_store_dword v8, v1, s[{SRD_WS}:{SRD_WS+3}], 0 offen sc1")
    e("s_mov_b64 exec, -1")
    g.lab("L_fin")
    if ST:
        stamp(g, 9, ST)
        e("s_waitcnt lgkmcnt(0)")
        e(f"s_lshl_b32 s{S_T0}, s2, 3"); e(f"s_add_u32 s{S_T0}, s{S_T0}, s{S_WAVE}"); e(f"s_lshl_b32 s{S_T0}, s{S_T0}, 6")
        e(f"s_add_u32 s{S_T0}, s{S_T0}, {WS_DBG}")
        e("v_mov_b32 v1, 0")
        e("s_mov_b64 exec, 1")
        for i in range(10):
            e(f"v_mov_b32 v2, s{S_ST0+2*i}")
            e(f"buffer_store_dword v2, v1, s[{SRD_WS}:{SRD_WS+3}], s{S_T0} offen offset:{4*i}")
            g.nop(1)
    g.lab("L_end")
    e("s_endpgm")
    g.lab("L_code_end")
    g.L.append('.section .rodata,"a"')
    g.L.append(".p2align 6")
    g.L.append(f".amdhsa_kernel {KN}_kernel")
    for s in ["next_free_vgpr 232", "next_free_sgpr 100", "accum_offset 232", "group_segment_fixed_size 0", "kernarg_size 88",
              "user_sgpr_count 2", "user_sgpr_kernarg_segment_ptr 1", "system_sgpr_workgroup_id_x 1",
              "float_denorm_mode_32 3", "float_denorm_mode_16_64 3"]:
        g.L.append("  .amdhsa_" + s)
    g.L.append(".end_amdhsa_kernel")
    txt = "\n".join(g.L) + "\n"
    pf = []
    for i in range(o.get("pf_kib", 16) // 4):
        pf.append(f"  v_min_u32 v3, L_code_end-{KN}_kernel-4, v1")
        pf.append(f"  global_load_dword v230, v3, s[{S_T0}:{S_T0+1}]")
        pf.append(f"  v_add_u32 v1, 4096, v1")
    txt = txt.replace("  CODE_PREFETCH_PLACEHOLDER", "\n".join(pf))
    return txt

if __name__ == "__main__":
    import json
    opt = json.loads(sys.argv[2]) if len(sys.argv) > 2 else {}
    open(sys.argv[1], "w").write(gen(opt))
```

```python
import sys
KN = "recurrent_scan__gqa_block_cached__dense_activation_silu__decode"

WS_E   = 0x0
WS_Q   = 0x200000
WS_H   = 0x240000
WS_ML  = 0x28000
WS_F   = 0x30000
WS_S   = 0x80000
WS_P   = 0x100000
WS_CNT = 0x2A0000
WS_DBG = 0x300000
WS_SIZE = 0x400000

RING   = 32768
L_STG  = 0x20000
L_XN4  = 0x24000
L_XN5  = 0x24800
L_Q    = 0x25000
L_H    = 0x25400
L_OB   = 0x25600
L_ML   = 0x25800
LDS_BYTES = 0x26000

L2E = 0x3fb8aa3b
SCALE = 0x3db504f3
NEG_INF = 0xff800000

DEBUG_TO = True
class G:
    def __init__(self):
        self.L = []
        self.uid = 0
    def e(self, s):
        self.L.append("  " + s)
    def lab(self, s):
        self.L.append(s + ":")
    def new(self, p):
        self.uid += 1
        return f"L_{p}_{self.uid}"
    def nop(self, n):
        while n > 0:
            k = min(n, 16)
            self.e(f"s_nop {k-1}")
            n -= k

def vr(a, n=None):
    return f"v{a}" if n is None else f"v[{a}:{a+n-1}]"
def sr(a, n=None):
    return f"s{a}" if n is None else f"s[{a}:{a+n-1}]"

S_WAVE = 3
S_X, S_K, S_V, S_WQ, S_WO, S_BX, S_W1, S_W2 = 4, 6, 8, 10, 12, 14, 16, 18
S_OUT, S_DBG, S_WS = 20, 22, 24
S_TAG, S_E = 26, 27
SRD_K, SRD_V, SRD_WS, SRD_W, SRD_X, SRD_OUT, SRD_WO = 28, 32, 36, 40, 44, 48, 52
S_PAIR, S_SPLIT, S_B, S_HKV = 56, 57, 58, 59
S_T0, S_T1, S_T2, S_T3, S_T4, S_T5 = 60, 61, 62, 63, 64, 65
S_RETRY = 66
S_OFF = 67
S_RB = 68
S_PB = 69
S_CNT = 70
S_SOFF = 71
S_RS32 = 72
S_EX = 74
S_ST0 = 76
S_C0 = 96
S_C1 = 97
S_ROT = 98
S_NEXT = 99

def build_srd(g, d, ptr, size):
    g.e(f"s_mov_b32 s{d}, s{ptr}")
    g.e(f"s_and_b32 s{d+1}, s{ptr+1}, 0xffff")
    g.e(f"s_mov_b32 s{d+2}, {size:#x}")
    g.e(f"s_mov_b32 s{d+3}, 0x20000")

def rows_reduce(g, v, t, op):
    for sw in ("v_permlane16_swap_b32", "v_permlane32_swap_b32"):
        g.e(f"v_mov_b32 v{t}, v{v}")
        g.nop(2)
        g.e(f"{sw} v{v}, v{t}")
        g.nop(1)
        g.e(f"{op} v{v}, v{v}, v{t}")

def rows_reduce_multi(g, vs, ts, op):
    for sw in ("v_permlane16_swap_b32", "v_permlane32_swap_b32"):
        for v, t in zip(vs, ts):
            g.e(f"v_mov_b32 v{t}, v{v}")
        g.nop(max(0, 3 - len(vs)) if len(vs) < 3 else 0)
        if len(vs) >= 3: pass
        g.nop(1)
        for v, t in zip(vs, ts):
            g.e(f"{sw} v{v}, v{t}")
        g.nop(1)
        for v, t in zip(vs, ts):
            g.e(f"{op} v{v}, v{v}, v{t}")
        g.nop(1)

def row_ror_reduce(g, vs, op, rors):
    for r in rors:
        g.nop(2)
        for v in vs:
            g.e(f"{op}_dpp v{v}, v{v}, v{v} row_ror:{r} row_mask:0xf bank_mask:0xf")
            if len(vs) == 1:
                pass
    g.nop(1)

POLL_IDS = {"q": 0, "h": 1, "f": 2, "p": 3, "s": 4}
def poll(g, name, issue_loads, tag_regs, tmp, dbgword=None, sleep=1):
    L = g.new("poll_" + name); D = g.new("polld_" + name); TO = g.new("pollto_" + name)
    g.e(f"s_mov_b32 s{S_RETRY}, 0x40000")
    g.lab(L)
    issue_loads()
    g.e("s_waitcnt vmcnt(0)")
    g.e(f"v_xor_b32 v{tmp}, s{S_TAG}, v{tag_regs[0]}")
    for t in tag_regs[1:]:
        g.e(f"v_xor_b32 v{tmp+1}, s{S_TAG}, v{t}")
        g.e(f"v_or_b32 v{tmp}, v{tmp}, v{tmp+1}")
    g.e(f"v_cmp_ne_u32 vcc, 0, v{tmp}")
    g.e(f"s_cbranch_vccz {D}")
    g.e(f"s_sub_u32 s{S_RETRY}, s{S_RETRY}, 1")
    g.e(f"s_cbranch_scc1 {TO}")
    g.e(f"s_sleep {sleep}")
    g.e(f"s_branch {L}")
    g.lab(TO)
    if DEBUG_TO:
        g.e(f"v_mov_b32 v{tmp}, {4*POLL_IDS[name]}")
        g.e(f"v_mov_b32 v{tmp+1}, s2")
        g.e(f"v_add_u32 v{tmp+1}, 0x1000, v{tmp+1}")
        g.e(f"global_store_dword v{tmp}, v{tmp+1}, s[{S_DBG}:{S_DBG+1}]")
    g.lab(D)

def stamp(g, idx, on):
    if on:
        g.e(f"s_memrealtime s[{S_ST0+2*idx}:{S_ST0+2*idx+1}]")

def gen(opt=None):
    o = dict(pattern="grp16", rot=512*1024, xmap=False, stamps=False, ntiles=16, prefetch_code=True, stage=99, b0=False, thr=16, prio=True, dyn=True, sthr=12, wnt=1)
    if opt: o.update(opt)
    ST = bool(o["stamps"])
    STT = o["stamps"] is True
    STA = o["stamps"] == "A"
    STP = o["stamps"] == "P"
    STF = o["stamps"] == "F"
    STL = o["stamps"] == "L"
    g = G(); e = g.e
    g.L.append(f"; @launch grid=(256,1,1) block=(512,1,1) lds={LDS_BYTES}")
    g.L.append('.amdgcn_target "amdgcn-amd-amdhsa--gfx950"')
    g.L.append(".text")
    g.L.append(f".globl {KN}_kernel")
    g.L.append(".p2align 8")
    g.L.append(f".type {KN}_kernel,@function")
    g.lab(f"{KN}_kernel")
    e("s_cmp_ge_u32 s2, 256")
    e("s_cbranch_scc1 L_end")
    stamp(g, 0, ST)
    e(f"s_load_dwordx16 s[4:19], s[0:1], 0")
    e(f"s_load_dwordx4 s[20:23], s[0:1], 64")
    e(f"s_load_dwordx2 s[24:25], s[0:1], 80")
    e("v_lshrrev_b32 v1, 6, v0")
    e("v_and_b32 v0, 63, v0")
    e(f"v_readfirstlane_b32 s{S_WAVE}, v1")
    if o["xmap"]:
        e(f"s_and_b32 s{S_T0}, s2, 7"); e(f"s_lshl_b32 s{S_T0}, s{S_T0}, 5"); e(f"s_lshr_b32 s{S_T1}, s2, 3")
        e(f"s_add_u32 s{S_T0}, s{S_T0}, s{S_T1}")
        e(f"s_lshr_b32 s{S_PAIR}, s{S_T0}, 4"); e(f"s_and_b32 s{S_SPLIT}, s{S_T0}, 15")
    else:
        e(f"s_lshr_b32 s{S_PAIR}, s2, 4"); e(f"s_and_b32 s{S_SPLIT}, s2, 15")
    e(f"s_lshr_b32 s{S_B}, s{S_PAIR}, 3"); e(f"s_and_b32 s{S_HKV}, s{S_PAIR}, 7")
    e(f"s_cmp_ge_u32 s{S_WAVE}, 4")
    e("s_cbranch_scc1 L_helper")

    V_KD, V_VD, V_KR, V_VR = 8, 12, 14, 18
    V_Q, V_O = 28, 44
    RK = (76, 140); RV = (108, 172)
    V_S, V_A, V_P = 204, 212, 220
    V_M, V_L, V_AL, V_NM, V_MX, V_T = 224, 225, 226, 227, 228, 229
    e("v_lshrrev_b32 v1, 4, v0")
    e("v_and_b32 v2, 15, v0")
    e("v_lshlrev_b32 v3, 8, v1")
    e("v_xor_b32 v4, v2, v1")
    for n in range(4):
        e(f"v_xor_b32 v5, {4*n}, v4")
        e(f"v_lshl_add_u32 v{V_KD+n}, v5, 4, v3")
    e("v_lshlrev_b32 v4, 1, v1")
    e("v_xor_b32 v4, v2, v4")
    for n in range(2):
        e(f"v_xor_b32 v5, {8*n}, v4")
        e(f"v_lshl_add_u32 v{V_VD+n}, v5, 4, v3")
    e(f"s_lshl_b32 s{S_RB}, s{S_WAVE}, 15")
    e(f"s_lshl_b32 s{S_PB}, s{S_PAIR}, 23")
    if o["pattern"] == "grp16":
        e(f"s_lshl_b32 s{S_OFF}, s{S_SPLIT}, 2"); e(f"s_add_u32 s{S_OFF}, s{S_OFF}, s{S_WAVE}")
        e(f"s_lshl_b32 s{S_OFF}, s{S_OFF}, 13")
        STEP = 16 * 4 * 8192
    else:
        e(f"s_lshl_b32 s{S_OFF}, s{S_SPLIT}, 6"); e(f"s_add_u32 s{S_OFF}, s{S_OFF}, s{S_WAVE}")
        e(f"s_lshl_b32 s{S_OFF}, s{S_OFF}, 13")
        STEP = 4 * 8192
    e(f"s_mul_i32 s{S_ROT}, s{S_PAIR}, {o['rot']}")
    e(f"s_add_u32 s{S_OFF}, s{S_OFF}, s{S_ROT}")
    e("s_waitcnt lgkmcnt(0)")
    stamp(g, 4, STA)
    e(f"s_load_dword s{S_E}, s[{S_WS}:{S_WS+1}], {WS_E}")
    build_srd(g, SRD_K, S_K, 0x8000000)
    build_srd(g, SRD_V, S_V, 0x8000000)

    def tile_addr():
        e(f"s_and_b32 s{S_SOFF}, s{S_OFF}, 0x7fffff")
        e(f"s_add_u32 s{S_SOFF}, s{S_SOFF}, s{S_PB}")
    def issue(which, slot):
        srd = SRD_K if which == 0 else SRD_V
        for half in range(2):
            off = slot * 16384 + which * 8192 + half * 4096
            e(f"s_add_u32 m0, s{S_RB}, {off}")
            if half == 0:
                e(f"s_mov_b32 s{S_T0}, s{S_SOFF}")
            else:
                e(f"s_add_u32 s{S_T0}, s{S_SOFF}, 4096")
            for i in range(4):
                n = half * 4 + i
                vo = (V_KD + (n & 3)) if which == 0 else (V_VD + (n & 1))
                e(f"buffer_load_dwordx4 v{vo}, s[{srd}:{srd+3}], s{S_T0} offen offset:{i*1024} nt lds")
    if o["b0"]:
        e("s_barrier")
    THR = o["thr"]
    nissued = 0
    for slot in range(2):
        tile_addr()
        for which in range(2):
            if nissued + 8 > THR:
                e(f"s_waitcnt vmcnt({THR - 8})")
                stamp(g, 3 + nissued // 8, STP)
            issue(which, slot)
            nissued += 8
        e(f"s_add_u32 s{S_OFF}, s{S_OFF}, {STEP}")
    stamp(g, 5, STA)
    e("v_and_b32 v1, 15, v0")
    e("v_lshrrev_b32 v2, 4, v0")
    e("v_xor_b32 v3, v2, v1")
    e(f"v_lshlrev_b32 v4, 8, v1")
    e(f"v_add_u32 v4, s{S_RB}, v4")
    for kk in range(4):
        e(f"v_xor_b32 v5, {4*kk}, v3")
        e(f"v_lshl_add_u32 v{V_KR+kk}, v5, 4, v4")
    e("v_lshrrev_b32 v1, 2, v0")
    e("v_and_b32 v2, 7, v1")
    e("v_and_b32 v3, 3, v0")
    e("v_lshlrev_b32 v4, 8, v1")
    e("v_lshl_add_u32 v4, v3, 3, v4")
    e(f"v_add_u32 v4, s{S_RB}, v4")
    e("v_add_u32 v4, 8192, v4")
    for dt in range(8):
        e(f"v_xor_b32 v5, {dt}, v2")
        e(f"v_lshl_add_u32 v{V_VR+dt}, v5, 5, v4")
    for i in range(32):
        e(f"v_mov_b32 v{V_O+i}, 0")
    for i in range(16):
        e(f"v_mov_b32 v{V_Q+i}, 0")
    e(f"v_mov_b32 v{V_M}, {NEG_INF:#x}")
    e(f"v_mov_b32 v{V_L}, 0")
    build_srd(g, SRD_WS, S_WS, WS_SIZE)
    build_srd(g, SRD_X, S_X, 2048)
    build_srd(g, SRD_WO, S_WO, 0x400000)
    build_srd(g, SRD_OUT, S_OUT, 2048)

    def load(rs, slot, do_issue, wK, wV, thr=None, pst=None):
        e(f"s_waitcnt vmcnt({wK})")
        for T in range(2):
            for kk in range(4):
                e(f"ds_read_b128 {vr(RK[rs]+16*T+4*kk,4)}, v{V_KR+kk} offset:{slot*16384+T*4096}")
        e("s_waitcnt lgkmcnt(0)")
        if do_issue:
            tile_addr()
            if thr is not None and thr < 32: e(f"s_waitcnt vmcnt({thr-8})")
            if pst is not None: stamp(g, pst, STP)
            issue(0, slot)
        e(f"s_waitcnt vmcnt({wV})")
        for dt in range(8):
            for T in range(2):
                e(f"ds_read_b64_tr_b16 {vr(RV[rs]+4*dt+2*T,2)}, v{V_VR+dt} offset:{slot*16384+T*4096}")
        e("s_waitcnt lgkmcnt(0)")
        if do_issue:
            if thr is not None and thr < 32: e(f"s_waitcnt vmcnt({thr-8})")
            if pst is not None: stamp(g, pst+1, STP)
            issue(1, slot)
            e(f"s_add_u32 s{S_OFF}, s{S_OFF}, {STEP}")

    def compute(rs):
        KF, VF = RK[rs], RV[rs]
        for kk in range(4):
            for T in range(2):
                c = "0" if kk == 0 else vr(V_S+4*T, 4)
                e(f"v_mfma_f32_16x16x32_bf16 {vr(V_S+4*T,4)}, {vr(KF+16*T+4*kk,4)}, {vr(V_Q+4*kk,4)}, {c}")
        g.nop(8)
        t = V_T
        for i in range(4):
            e(f"v_cvt_pk_bf16_f32 v{t+i}, v{V_S+2*i}, v{V_S+2*i+1}")
        for i in range(4):
            e(f"v_lshlrev_b32 v{V_A+2*i}, 16, v{t+i}")
            e(f"v_and_b32 v{V_A+2*i+1}, 0xffff0000, v{t+i}")
        for i in range(8):
            e(f"v_mul_f32 v{V_A+i}, s{S_C1}, v{V_A+i}")
        for i in range(4):
            e(f"v_cvt_pk_bf16_f32 v{t+i}, v{V_A+2*i}, v{V_A+2*i+1}")
        for i in range(4):
            e(f"v_lshlrev_b32 v{V_A+2*i}, 16, v{t+i}")
            e(f"v_and_b32 v{V_A+2*i+1}, 0xffff0000, v{t+i}")
        e(f"v_max3_f32 v{V_MX}, v{V_A}, v{V_A+1}, v{V_A+2}")
        e(f"v_max3_f32 v{V_MX}, v{V_MX}, v{V_A+3}, v{V_A+4}")
        e(f"v_max3_f32 v{V_MX}, v{V_MX}, v{V_A+5}, v{V_A+6}")
        e(f"v_max3_f32 v{V_MX}, v{V_MX}, v{V_A+7}, v{V_M}")
        rows_reduce(g, V_MX, t, "v_max_f32")
        e(f"v_sub_f32 v{V_AL}, v{V_M}, v{V_MX}")
        e(f"v_mul_f32 v{V_AL}, s{S_C0}, v{V_AL}")
        e(f"v_exp_f32 v{V_AL}, v{V_AL}")
        e(f"v_mov_b32 v{V_M}, v{V_MX}")
        e(f"v_mul_f32 v{V_NM}, s{S_C0}, v{V_MX}")
        for i in range(8):
            e(f"v_fma_f32 v{V_A+i}, v{V_A+i}, s{S_C0}, -v{V_NM}")
        for i in range(8):
            e(f"v_exp_f32 v{V_A+i}, v{V_A+i}")
        e(f"v_mul_f32 v{V_L}, v{V_L}, v{V_AL}")
        for i in range(16):
            e(f"v_pk_mul_f32 {vr(V_O+2*i,2)}, {vr(V_O+2*i,2)}, {vr(V_AL,2)} op_sel_hi:[1,0]")
        for i in range(4):
            e(f"v_cvt_pk_bf16_f32 v{V_P+i}, v{V_A+2*i}, v{V_A+2*i+1}")
        e(f"v_add_f32 v{t}, v{V_A}, v{V_A+1}")
        e(f"v_add_f32 v{t+1}, v{V_A+2}, v{V_A+3}")
        e(f"v_add_f32 v{t+2}, v{V_A+4}, v{V_A+5}")
        e(f"v_add_f32 v{t+3}, v{V_A+6}, v{V_A+7}")
        e(f"v_add_f32 v{t}, v{t}, v{t+1}")
        e(f"v_add_f32 v{t+2}, v{t+2}, v{t+3}")
        e(f"v_add_f32 v{t}, v{t}, v{t+2}")
        e(f"v_add_f32 v{V_L}, v{V_L}, v{t}")
        for dt in range(8):
            e(f"v_mfma_f32_16x16x32_bf16 {vr(V_O+4*dt,4)}, {vr(VF+4*dt,4)}, {vr(V_P,4)}, {vr(V_O+4*dt,4)}")

    load(0, 0, True, 24, 24, THR, 7)
    load(1, 1, True, 24, 24, THR, None)
    e("s_waitcnt lgkmcnt(0)")
    e(f"s_mul_i32 s{S_TAG}, s{S_E}, 1664525")
    e(f"s_add_u32 s{S_TAG}, s{S_TAG}, 1013904223")
    stamp(g, 1, ST)
    e("s_barrier")
    stamp(g, 2, ST)
    e("v_and_b32 v1, 15, v0")
    e("v_lshrrev_b32 v2, 4, v0")
    e("v_lshlrev_b32 v1, 8, v1")
    e("v_lshl_add_u32 v1, v2, 4, v1")
    e(f"v_add_u32 v1, {L_Q}, v1")
    e(f"s_mov_b32 s{S_EX}, 0x000f000f"); e(f"s_mov_b32 s{S_EX+1}, 0x000f000f")
    e(f"s_mov_b64 exec, s[{S_EX}:{S_EX+1}]")
    for kk in range(4):
        e(f"ds_read_b128 {vr(V_Q+4*kk,4)}, v1 offset:{kk*64}")
    e("s_mov_b64 exec, -1")
    e(f"s_mov_b32 s{S_C0}, {L2E:#x}")
    e(f"s_mov_b32 s{S_C1}, {SCALE:#x}")
    e("s_waitcnt lgkmcnt(0)")

    NT = o["ntiles"]
    STHR = o.get("sthr", 32)
    if not o["dyn"]:
        nloop = (NT - 4) // 2
        if STL:
            for it in range(nloop):
                compute(0); load(0, 0, True, 24, 24, STHR)
                compute(1); load(1, 1, True, 24, 24, STHR)
                if it < 5: stamp(g, 4 + it, True)
        else:
            e(f"s_mov_b32 s{S_CNT}, {nloop}")
            g.lab("L_loop")
            compute(0); load(0, 0, True, 24, 24, STHR)
            compute(1); load(1, 1, True, 24, 24, STHR)
            e(f"s_sub_u32 s{S_CNT}, s{S_CNT}, 1")
            e(f"s_cmp_lg_u32 s{S_CNT}, 0")
            e("s_cbranch_scc1 L_loop")
        compute(0); load(0, 0, False, 24, 16)
        compute(1); load(1, 1, False, 8, 0)
        compute(0)
        compute(1)
    else:
        NSTAT = 5 * 64
        V_TK, V_ONE, V_CA = 233, 234, 235
        cap = min(STHR, 24) - 8
        e(f"s_sub_u32 s{S_NEXT}, s{S_OFF}, s{S_ROT}")
        e(f"s_lshr_b32 s{S_NEXT}, s{S_NEXT}, 13")
        e(f"s_sub_u32 s{S_NEXT}, s{S_NEXT}, {NSTAT}")
        e(f"v_mov_b32 v{V_TK}, s{S_NEXT}")
        e(f"v_mov_b32 v{V_ONE}, 1")
        e(f"s_lshl_b32 s{S_T0}, s{S_PAIR}, 8"); e(f"s_add_u32 s{S_T0}, s{S_T0}, {WS_CNT}")
        e(f"v_mov_b32 v{V_CA}, s{S_T0}")
        e(f"s_mov_b32 s{S_CNT}, 0")
        def readK(rs, slot):
            for T in range(2):
                for kk in range(4):
                    e(f"ds_read_b128 {vr(RK[rs]+16*T+4*kk,4)}, v{V_KR+kk} offset:{slot*16384+T*4096}")
            e("s_waitcnt lgkmcnt(0)")
        def readV(rs, slot):
            for dt in range(8):
                for T in range(2):
                    e(f"ds_read_b64_tr_b16 {vr(RV[rs]+4*dt+2*T,2)}, v{V_VR+dt} offset:{slot*16384+T*4096}")
            e("s_waitcnt lgkmcnt(0)")
        def dload(sg):
            e("s_waitcnt vmcnt(25)")
            readK(sg, sg)
            e(f"s_waitcnt vmcnt({cap})")
            e(f"v_readfirstlane_b32 s{S_NEXT}, v{V_TK}")
            e(f"s_add_u32 s{S_NEXT}, s{S_NEXT}, {NSTAT}")
            e(f"s_cmp_ge_u32 s{S_NEXT}, 1024")
            e(f"s_cbranch_scc1 L_drain{sg}")
            e("s_mov_b64 exec, 1")
            e(f"global_atomic_add v{V_TK}, v{V_CA}, v{V_ONE}, s[{S_WS}:{S_WS+1}] sc0")
            e("s_mov_b64 exec, -1")
            e(f"s_lshl_b32 s{S_OFF}, s{S_NEXT}, 13")
            e(f"s_add_u32 s{S_OFF}, s{S_OFF}, s{S_ROT}")
            tile_addr(); issue(0, sg)
            e("s_waitcnt vmcnt(26)")
            readV(sg, sg)
            e(f"s_waitcnt vmcnt({cap})")
            issue(1, sg)
            e(f"s_add_u32 s{S_CNT}, s{S_CNT}, 1")
        g.lab("L_loop")
        compute(0); dload(0)
        compute(1); dload(1)
        e("s_branch L_loop")
        for sg in range(2):
            g.lab(f"L_drain{sg}")
            e("s_waitcnt vmcnt(16)")
            readV(sg, sg)
            compute(1 - sg)
            e("s_waitcnt vmcnt(8)")
            readK(1 - sg, 1 - sg)
            e("s_waitcnt vmcnt(0)")
            readV(1 - sg, 1 - sg)
            if sg == 0:
                e("s_branch L_final")
        g.lab("L_final")
        compute(0)
        compute(1)
        if STL: e(f"s_mov_b32 s{S_ST0+8}, s{S_CNT}")
    stamp(g, 3, ST and not STP)
    rows_reduce(g, V_L, V_T, "v_add_f32")
    e("v_and_b32 v1, 15, v0")
    e("v_lshrrev_b32 v2, 4, v0")
    e("v_lshlrev_b32 v3, 9, v1")
    e("v_lshl_add_u32 v3, v2, 4, v3")
    e(f"v_add_u32 v3, s{S_RB}, v3")
    e(f"s_lshl_b32 s{S_T0}, s{S_WAVE}, 5")
    e(f"s_add_u32 s{S_T0}, s{S_T0}, {L_ML}")
    e(f"v_lshlrev_b32 v4, 3, v1")
    e(f"v_add_u32 v4, s{S_T0}, v4")
    g.nop(8)
    e(f"s_mov_b64 exec, s[{S_EX}:{S_EX+1}]")
    for dt in range(8):
        e(f"ds_write_b128 v3, {vr(V_O+4*dt,4)} offset:{dt*64}")
    e(f"ds_write_b64 v4, {vr(V_M,2)}")
    e("s_mov_b64 exec, -1")
    e("s_waitcnt lgkmcnt(0)")
    e("s_branch L_tail")

    g.lab("L_helper")
    H_W = 64
    H_F = 128
    H_WO = 192
    H_G = 224
    S_STG = S_T5
    if o["prio"]:
        e("s_setprio 3")
    e(f"s_sub_u32 s{S_T5}, s{S_WAVE}, 4")
    e(f"s_lshl_b32 s{S_T5}, s{S_T5}, 12")
    e(f"s_add_u32 s{S_T5}, s{S_T5}, {L_STG}")
    e(f"s_cmp_ge_u32 s{S_WAVE}, 6"); e("s_cbranch_scc1 L_w67")
    e(f"s_and_b32 s{S_T2}, s2, 3")
    e(f"s_lshr_b32 s{S_T1}, s2, 2")
    e("v_lshrrev_b32 v2, 3, v0")
    e("v_and_b32 v3, 7, v0")
    e("v_lshlrev_b32 v1, 4, v0")
    e(f"s_cmp_eq_u32 s{S_WAVE}, 5"); e("s_cbranch_scc1 L_w5setup")
    e(f"s_mov_b32 s{S_T0}, 8192")
    e(f"s_mov_b32 s{S_T3}, {L_XN4}")
    e(f"s_mov_b32 s{S_C0}, {WS_Q}"); e(f"s_mov_b32 s{S_C1}, {4096*8}")
    e("s_waitcnt lgkmcnt(0)")
    build_srd(g, SRD_W, S_WQ, 0x400000)
    if o["dyn"]:
        e(f"s_and_b32 s{S_T4}, s2, 30"); e(f"s_cmp_lg_u32 s{S_T4}, 0"); e("s_cbranch_scc1 L_slice")
        e(f"s_and_b32 s{S_T4}, s2, 1"); e(f"s_lshl_b32 s{S_T4}, s{S_T4}, 3")
        e(f"s_lshr_b32 s{S_SOFF}, s2, 5"); e(f"s_add_u32 s{S_T4}, s{S_T4}, s{S_SOFF}")
        e(f"s_lshl_b32 s{S_T4}, s{S_T4}, 8"); e(f"s_add_u32 s{S_T4}, s{S_T4}, {WS_CNT}")
        e(f"v_mov_b32 v4, s{S_T4}"); e("v_mov_b32 v5, 0")
        e("s_mov_b64 exec, 1")
        e(f"global_store_dword v4, v5, s[{S_WS}:{S_WS+1}] sc1")
        e("s_mov_b64 exec, -1")
    e("s_branch L_slice")
    g.lab("L_w5setup")
    e(f"s_mov_b32 s{S_T0}, 3584")
    e(f"s_mov_b32 s{S_T3}, {L_XN5}")
    e(f"s_mov_b32 s{S_C0}, {WS_H}"); e(f"s_mov_b32 s{S_C1}, {1792*8}")
    e("s_waitcnt lgkmcnt(0)")
    build_srd(g, SRD_W, S_W1, 512*3584)
    e(f"s_cmp_ge_u32 s2, 112"); e("s_cbranch_scc1 L_hb0")
    g.lab("L_slice")
    stamp(g, 4, STA)
    build_srd(g, SRD_X, S_X, 2048)
    e(f"buffer_load_dwordx4 v[8:11], v1, s[{SRD_X}:{SRD_X+3}], 0 offen")
    e(f"buffer_load_dwordx4 v[12:15], v1, s[{SRD_X}:{SRD_X+3}], 0 offen offset:1024")
    e(f"v_mul_lo_u32 v2, v2, s{S_T0}")
    e("v_lshl_add_u32 v2, v3, 4, v2")
    e(f"s_lshl_b32 s{S_SOFF}, s{S_T2}, 7"); e(f"s_mul_i32 s{S_SOFF}, s{S_SOFF}, s{S_T0}")
    e(f"s_lshl_b32 s{S_T4}, s{S_T1}, 7"); e(f"s_add_u32 s{S_SOFF}, s{S_SOFF}, s{S_T4}")
    e(f"s_lshl_b32 s{S_RS32}, s{S_T0}, 3")
    for i in range(16):
        e(f"buffer_load_dwordx4 {vr(H_W+4*i,4)}, v2, s[{SRD_W}:{SRD_W+3}], s{S_SOFF} offen" + (" nt" if o.get("wnt") else ""))
        if i < 15:
            e(f"s_add_u32 s{S_SOFF}, s{S_SOFF}, s{S_RS32}")
    stamp(g, 5, STA)
    if o["b0"]:
        e("s_barrier")
    e(f"s_load_dword s{S_E}, s[{S_WS}:{S_WS+1}], {WS_E}")
    build_srd(g, SRD_WS, S_WS, WS_SIZE)
    build_srd(g, SRD_WO, S_WO, 0x400000)
    build_srd(g, SRD_OUT, S_OUT, 2048)
    e("s_waitcnt vmcnt(16)")
    stamp(g, 6, STA)
    X0, X1 = 16, 24
    for b, (src, dst) in enumerate(((8, X0), (12, X1))):
        for i in range(4):
            e(f"v_lshlrev_b32 v{dst+2*i}, 16, v{src+i}")
            e(f"v_and_b32 v{dst+2*i+1}, 0xffff0000, v{src+i}")
    SU = 32
    for b, dst in enumerate((X0, X1)):
        e(f"v_add_f32 v{SU+b}, v{dst}, v{dst+1}")
        for i in range(2, 8):
            e(f"v_add_f32 v{SU+b}, v{SU+b}, v{dst+i}")
    def wave_sum2(a):
        row_ror_reduce(g, [a, a+1], "v_add_f32", [1, 2, 4, 8])
        rows_reduce_multi(g, [a, a+1], [a+2, a+3], "v_add_f32")
    wave_sum2(SU)
    e(f"s_mov_b32 s{S_T4}, 0x3b000000")
    e(f"v_mul_f32 v{SU}, s{S_T4}, v{SU}")
    e(f"v_mul_f32 v{SU+1}, s{S_T4}, v{SU+1}")
    VA = 36
    for b, dst in enumerate((X0, X1)):
        e(f"v_sub_f32 v40, v{dst}, v{SU+b}")
        e(f"v_mul_f32 v{VA+b}, v40, v40")
        for i in range(1, 8):
            e(f"v_sub_f32 v40, v{dst+i}, v{SU+b}")
            e(f"v_fmac_f32 v{VA+b}, v40, v40")
    wave_sum2(VA)
    e(f"v_mul_f32 v{VA}, s{S_T4}, v{VA}")
    e(f"v_mul_f32 v{VA+1}, s{S_T4}, v{VA+1}")
    e(f"v_cvt_pk_bf16_f32 v40, v{SU}, v{SU+1}")
    e(f"v_cvt_pk_bf16_f32 v41, v{VA}, v{VA+1}")
    e(f"v_lshlrev_b32 v{SU}, 16, v40"); e(f"v_and_b32 v{SU+1}, 0xffff0000, v40")
    e(f"v_lshlrev_b32 v{VA}, 16, v41"); e(f"v_and_b32 v{VA+1}, 0xffff0000, v41")
    e(f"v_add_f32 v{VA}, 0x3727c5ac, v{VA}"); e(f"v_add_f32 v{VA+1}, 0x3727c5ac, v{VA+1}")
    e(f"v_cvt_pk_bf16_f32 v41, v{VA}, v{VA+1}")
    e(f"v_lshlrev_b32 v{VA}, 16, v41"); e(f"v_and_b32 v{VA+1}, 0xffff0000, v41")
    e(f"v_sqrt_f32 v{VA}, v{VA}"); e(f"v_sqrt_f32 v{VA+1}, v{VA+1}")
    g.nop(1)
    e(f"v_cvt_pk_bf16_f32 v41, v{VA}, v{VA+1}")
    e(f"v_lshlrev_b32 v{VA}, 16, v41"); e(f"v_and_b32 v{VA+1}, 0xffff0000, v41")
    e(f"v_rcp_f32 v38, v{VA}"); e(f"v_rcp_f32 v39, v{VA+1}")
    for b, dst in enumerate((X0, X1)):
        for i in range(8):
            e(f"v_sub_f32 v{dst+i}, v{dst+i}, v{SU+b}")
        for i in range(4):
            e(f"v_cvt_pk_bf16_f32 v40, v{dst+2*i}, v{dst+2*i+1}")
            e(f"v_lshlrev_b32 v{dst+2*i}, 16, v40"); e(f"v_and_b32 v{dst+2*i+1}, 0xffff0000, v40")
        for i in range(8):
            e(f"v_mul_f32 v41, v{dst+i}, v{38+b}")
            e(f"v_fma_f32 v42, -v41, v{VA+b}, v{dst+i}")
            e(f"v_fma_f32 v{dst+i}, v42, v{38+b}, v41")
        for i in range(4):
            e(f"v_cvt_pk_bf16_f32 v{44+4*b+i}, v{dst+2*i}, v{dst+2*i+1}")
    e("v_lshlrev_b32 v1, 4, v0")
    e(f"v_add_u32 v1, s{S_T3}, v1")
    e("ds_write_b128 v1, v[44:47]")
    e("ds_write_b128 v1, v[48:51] offset:1024")
    e("v_lshlrev_b32 v1, 4, v0")
    e(f"v_add_u32 v1, s{S_STG}, v1")
    e("v_lshrrev_b32 v2, 4, v0")
    e("v_bfe_u32 v3, v0, 2, 2")
    e("v_lshl_add_u32 v3, v2, 3, v3")
    e("v_and_b32 v4, 3, v0")
    e("v_lshlrev_b32 v5, 7, v3")
    e("v_lshl_add_u32 v5, v4, 3, v5")
    e(f"v_add_u32 v5, s{S_STG}, v5")
    e("v_and_b32 v6, 1, v0")
    e("v_lshlrev_b32 v6, 10, v6")
    e("v_lshl_add_u32 v6, v2, 4, v6")
    e(f"s_lshl_b32 s{S_T4}, s{S_T2}, 8"); e(f"s_add_u32 s{S_T4}, s{S_T4}, s{S_T3}")
    e(f"v_add_u32 v6, s{S_T4}, v6")
    ACC = 48
    stamp(g, 7, STA)
    if STA:
        e("s_waitcnt vmcnt(0)")
        stamp(g, 8, STA)
    for pc in range(4):
        e(f"ds_read_b128 {vr(16+4*pc,4)}, v6 offset:{64*pc}")
    for pc in range(4):
        e(f"s_waitcnt vmcnt({12-4*pc})")
        for i in range(4):
            e(f"ds_write_b128 v1, {vr(H_W+16*pc+4*i,4)} offset:{i*1024}")
        for c in range(4):
            e(f"ds_read_b64_tr_b16 {vr(32+4*c,2)}, v5 offset:{c*32}")
            e(f"ds_read_b64_tr_b16 {vr(32+4*c+2,2)}, v5 offset:{c*32+512}")
        e("s_waitcnt lgkmcnt(0)")
        for c in range(4):
            cc = "0" if pc == 0 else vr(ACC+4*c, 4)
            e(f"v_mfma_f32_16x16x32_bf16 {vr(ACC+4*c,4)}, {vr(16+4*pc,4)}, {vr(32+4*c,4)}, {cc}")
    e(f"s_mul_i32 s{S_TAG}, s{S_E}, 1664525")
    e(f"s_add_u32 s{S_TAG}, s{S_TAG}, 1013904223")
    e(f"s_lshl_b32 s{S_T0}, s{S_T2}, 1"); e(f"s_mul_i32 s{S_T0}, s{S_T0}, s{S_C1}")
    e(f"s_add_u32 s{S_T0}, s{S_T0}, s{S_C0}")
    e(f"s_lshl_b32 s{S_T4}, s{S_T1}, 9"); e(f"s_add_u32 s{S_T0}, s{S_T0}, s{S_T4}")
    e(f"s_add_u32 s{S_T4}, s{S_T0}, s{S_C1}")
    e("v_lshlrev_b32 v1, 3, v0")
    e(f"v_mov_b32 v9, s{S_TAG}"); e(f"v_mov_b32 v11, s{S_TAG}")
    g.nop(4)
    for c in range(4):
        if c < 2:
            e(f"s_mov_b32 exec_lo, {0xffff << (16*c):#x}"); e("s_mov_b32 exec_hi, 0")
        else:
            e("s_mov_b32 exec_lo, 0"); e(f"s_mov_b32 exec_hi, {0xffff << (16*(c-2)):#x}")
        e(f"v_mov_b32 v8, v{ACC+4*c}"); e(f"v_mov_b32 v10, v{ACC+4*c+1}")
    e("s_mov_b64 exec, -1")
    e(f"buffer_store_dwordx2 v[8:9], v1, s[{SRD_WS}:{SRD_WS+3}], s{S_T0} offen sc1")
    e(f"buffer_store_dwordx2 v[10:11], v1, s[{SRD_WS}:{SRD_WS+3}], s{S_T4} offen sc1")
    stamp(g, 1, ST)
    e("s_branch L_qg")
    g.lab("L_w67")
    e("s_waitcnt lgkmcnt(0)")
    e(f"s_load_dword s{S_E}, s[{S_WS}:{S_WS+1}], {WS_E}")
    build_srd(g, SRD_WS, S_WS, WS_SIZE)
    build_srd(g, SRD_X, S_X, 2048)
    build_srd(g, SRD_WO, S_WO, 0x400000)
    build_srd(g, SRD_OUT, S_OUT, 2048)
    e(f"s_cmp_eq_u32 s{S_WAVE}, 7"); e("s_cbranch_scc1 L_w7")
    e("s_branch L_qg")
    g.lab("L_w6")
    if o.get("prio_after") is not None:
        e(f"s_setprio {o['prio_after']}")
    build_srd(g, SRD_W, S_W2, 1792*1024)
    e(f"s_sub_u32 s{S_T0}, s2, 128")
    e(f"s_cmp_ge_u32 s{S_T0}, 112")
    e("s_cbranch_scc1 L_wo")
    e(f"s_lshr_b32 s{S_T1}, s{S_T0}, 2")
    e(f"s_and_b32 s{S_T2}, s{S_T0}, 3")
    e("v_lshrrev_b32 v2, 3, v0"); e("v_lshlrev_b32 v2, 10, v2")
    e("v_and_b32 v3, 7, v0"); e("v_lshl_add_u32 v2, v3, 4, v2")
    e(f"s_lshl_b32 s{S_SOFF}, s{S_T1}, 16")
    e(f"s_lshl_b32 s{S_T3}, s{S_T2}, 8")
    e(f"s_add_u32 s{S_SOFF}, s{S_SOFF}, s{S_T3}")
    for ks in range(2):
        for ch in range(2):
            for u in range(4):
                idx = (ks * 2 + ch) * 4 + u
                e(f"s_add_u32 s{S_T3}, s{S_SOFF}, {(32*ks+8*u)*1024}")
                e(f"buffer_load_dwordx4 {vr(H_W+4*idx,4)}, v2, s[{SRD_W}:{SRD_W+3}], s{S_T3} offen offset:{ch*128}" + (" nt" if o.get("wnt") else ""))
    stamp(g, 4, STF)
    e("v_lshlrev_b32 v1, 4, v0")
    e(f"v_add_u32 v1, s{S_STG}, v1")
    e("v_lshrrev_b32 v2, 4, v0"); e("v_bfe_u32 v3, v0, 2, 2"); e("v_lshl_add_u32 v3, v2, 3, v3"); e("v_and_b32 v4, 3, v0")
    e("v_lshlrev_b32 v5, 7, v3"); e("v_lshl_add_u32 v5, v4, 3, v5"); e(f"v_add_u32 v5, s{S_STG}, v5")
    e("s_waitcnt vmcnt(0)")
    stamp(g, 5, STF)
    for ks in range(2):
        for ch in range(2):
            pc = ks * 2 + ch
            for u in range(4):
                e(f"ds_write_b128 v1, {vr(H_W+16*pc+4*u,4)} offset:{u*1024}")
            for c in range(4):
                f = H_F + 4 * (ks * 8 + ch * 4 + c)
                e(f"ds_read_b64_tr_b16 {vr(f,2)}, v5 offset:{c*32}")
                e(f"ds_read_b64_tr_b16 {vr(f+2,2)}, v5 offset:{c*32+512}")
            e("s_waitcnt lgkmcnt(0)")
    e("v_lshrrev_b32 v6, 5, v0")
    e(f"v_mul_u32_u24 v6, {1792*8}, v6")
    e("v_and_b32 v7, 31, v0")
    e("v_lshl_add_u32 v6, v7, 4, v6")
    e(f"s_lshl_b32 s{S_T0}, s{S_T1}, 9"); e(f"s_add_u32 s{S_T0}, s{S_T0}, {WS_H}")
    def hl():
        for r4 in range(4):
            e(f"s_add_u32 s{S_T3}, s{S_T0}, {r4*2*1792*8}")
            e(f"buffer_load_dwordx4 {vr(16+4*r4,4)}, v6, s[{SRD_WS}:{SRD_WS+3}], s{S_T3} offen sc1")
    stamp(g, 6, STF)
    poll(g, "h", hl, [17+2*i for i in range(8)], 8)
    stamp(g, 7, STF)
    e("v_add_f32 v16, v16, v20"); e("v_add_f32 v18, v18, v22"); e("v_add_f32 v24, v24, v28"); e("v_add_f32 v26, v26, v30")
    e("v_add_f32 v16, v16, v24"); e("v_add_f32 v18, v18, v26")
    e("v_cvt_pk_bf16_f32 v8, v16, v18")
    e("v_lshlrev_b32 v10, 16, v8"); e("v_and_b32 v11, 0xffff0000, v8")
    e(f"s_mov_b32 s{S_T0}, {L2E:#x}")
    for r in (10, 11):
        e(f"v_mul_f32 v12, s{S_T0}, v{r}")
        e(f"v_exp_f32 v12, -v12"); g.nop(1)
        e(f"v_add_f32 v12, 1.0, v12")
        e(f"v_rcp_f32 v12, v12"); g.nop(1)
        e(f"v_mul_f32 v{r}, v{r}, v12")
    e("v_cvt_pk_bf16_f32 v12, v10, v11")
    e("v_lshlrev_b32 v7, 2, v0")
    e(f"v_add_u32 v7, {L_H}, v7")
    e("ds_write_b32 v7, v12")
    e("v_and_b32 v6, 1, v0"); e("v_lshlrev_b32 v6, 7, v6"); e("v_lshl_add_u32 v6, v2, 4, v6"); e(f"v_add_u32 v6, {L_H}, v6")
    e("ds_read_b128 v[16:19], v6")
    e("ds_read_b128 v[20:23], v6 offset:64")
    e("s_waitcnt lgkmcnt(0)")
    for c in range(8):
        e(f"v_mfma_f32_16x16x32_bf16 {vr(H_W+4*c,4)}, v[16:19], {vr(H_F+4*c,4)}, 0")
    for c in range(8):
        e(f"v_mfma_f32_16x16x32_bf16 {vr(H_W+4*c,4)}, v[20:23], {vr(H_F+32+4*c,4)}, {vr(H_W+4*c,4)}")
    g.nop(10)
    e("v_and_b32 v1, 15, v0"); e("v_lshlrev_b32 v1, 3, v1")
    e(f"s_lshl_b32 s{S_T0}, s{S_T1}, 13")
    e(f"s_lshl_b32 s{S_T3}, s{S_T2}, 10")
    e(f"s_add_u32 s{S_T0}, s{S_T0}, s{S_T3}"); e(f"s_add_u32 s{S_T0}, s{S_T0}, {WS_F}")
    e(f"s_add_u32 s{S_T3}, s{S_T0}, 4096")
    e(f"v_mov_b32 v9, s{S_TAG}"); e(f"v_mov_b32 v11, s{S_TAG}")
    e("s_mov_b64 exec, 0xffff")
    for c in range(8):
        e(f"v_mov_b32 v8, v{H_W+4*c}"); e(f"v_mov_b32 v10, v{H_W+4*c+1}")
        e(f"buffer_store_dwordx2 v[8:9], v1, s[{SRD_WS}:{SRD_WS+3}], s{S_T0} offen offset:{c*128} sc1")
        e(f"buffer_store_dwordx2 v[10:11], v1, s[{SRD_WS}:{SRD_WS+3}], s{S_T3} offen offset:{c*128} sc1")
        g.nop(2)
    e("s_mov_b64 exec, -1")
    stamp(g, 8, STF)
    e("s_branch L_wo")

    g.lab("L_w7")
    if o["prefetch_code"]:
        e(f"s_getpc_b64 s[{S_T0}:{S_T0+1}]")
        g.lab("L_pcbase")
        e(f"s_sub_u32 s{S_T0}, s{S_T0}, L_pcbase-{KN}_kernel")
        e(f"s_subb_u32 s{S_T0+1}, s{S_T0+1}, 0")
        e("v_lshlrev_b32 v1, 6, v0")
        e("CODE_PREFETCH_PLACEHOLDER")
    e("s_branch L_qg")
    g.lab("L_hb0")
    e(f"s_load_dword s{S_E}, s[{S_WS}:{S_WS+1}], {WS_E}")
    build_srd(g, SRD_WS, S_WS, WS_SIZE)
    build_srd(g, SRD_X, S_X, 2048)
    build_srd(g, SRD_WO, S_WO, 0x400000)
    build_srd(g, SRD_OUT, S_OUT, 2048)
    g.lab("L_qg")
    e("s_waitcnt lgkmcnt(0)")
    e(f"s_mul_i32 s{S_TAG}, s{S_E}, 1664525")
    e(f"s_add_u32 s{S_TAG}, s{S_TAG}, 1013904223")
    e(f"s_lshl_b32 s{S_T0}, s{S_B}, 12"); e(f"s_lshl_b32 s{S_T2}, s{S_HKV}, 9")
    e(f"s_add_u32 s{S_T0}, s{S_T0}, s{S_T2}")
    e(f"s_sub_u32 s{S_T2}, s{S_WAVE}, 4"); e(f"s_lshl_b32 s{S_T1}, s{S_T2}, 7")
    e(f"s_add_u32 s{S_T0}, s{S_T0}, s{S_T1}"); e(f"s_lshl_b32 s{S_T0}, s{S_T0}, 3")
    e(f"s_add_u32 s{S_T0}, s{S_T0}, {WS_Q}")
    e("v_lshlrev_b32 v1, 4, v0")
    def ql():
        for rb in range(4):
            e(f"s_add_u32 s{S_T1}, s{S_T0}, {rb*2*4096*8}")
            e(f"buffer_load_dwordx4 {vr(16+4*rb,4)}, v1, s[{SRD_WS}:{SRD_WS+3}], s{S_T1} offen sc1")
    poll(g, "q", ql, [17+2*i for i in range(8)], 8, sleep=o.get("qsleep", 4))
    e("v_add_f32 v16, v16, v20"); e("v_add_f32 v18, v18, v22"); e("v_add_f32 v24, v24, v28"); e("v_add_f32 v26, v26, v30")
    e("v_add_f32 v16, v16, v24"); e("v_add_f32 v18, v18, v26")
    e("v_cvt_pk_bf16_f32 v12, v16, v18")
    e(f"s_lshl_b32 s{S_T2}, s{S_T2}, 8"); e(f"s_add_u32 s{S_T2}, s{S_T2}, {L_Q}")
    e("v_lshlrev_b32 v1, 2, v0"); e(f"v_add_u32 v1, s{S_T2}, v1")
    e("ds_write_b32 v1, v12")
    e("s_waitcnt lgkmcnt(0)")
    stamp(g, 2, ST)
    e("s_barrier")
    e(f"s_cmp_eq_u32 s{S_WAVE}, 6"); e("s_cbranch_scc1 L_w6")
    g.lab("L_wo")
    if o.get("prio_after") is not None:
        e(f"s_setprio {o['prio_after']}")
    e(f"s_lshr_b32 s{S_T0}, s{S_SPLIT}, 2")
    e(f"s_lshl_b32 s{S_T1}, s{S_HKV}, 2"); e(f"s_add_u32 s{S_T1}, s{S_T1}, s{S_T0}")
    e(f"s_lshl_b32 s{S_SOFF}, s{S_T1}, 17")
    e(f"s_and_b32 s{S_T2}, s{S_SPLIT}, 3"); e(f"s_lshl_b32 s{S_T2}, s{S_T2}, 8")
    e(f"s_add_u32 s{S_SOFF}, s{S_SOFF}, s{S_T2}")
    e(f"s_sub_u32 s{S_T2}, s{S_WAVE}, 4"); e(f"s_lshl_b32 s{S_T2}, s{S_T2}, 6")
    e(f"s_add_u32 s{S_SOFF}, s{S_SOFF}, s{S_T2}")
    e("v_lshrrev_b32 v2, 2, v0"); e("v_lshlrev_b32 v2, 10, v2"); e("v_and_b32 v3, 3, v0"); e("v_lshl_add_u32 v2, v3, 4, v2")
    for u in range(8):
        e(f"buffer_load_dwordx4 {vr(H_W+4*u,4)}, v2, s[{SRD_WO}:{SRD_WO+3}], s{S_SOFF} offen" + (" nt" if o.get("wnt") else ""))
        if u < 7:
            e(f"s_add_u32 s{S_SOFF}, s{S_SOFF}, {16*1024}")
    e("v_lshlrev_b32 v1, 4, v0"); e(f"v_add_u32 v1, s{S_STG}, v1")
    e("v_lshrrev_b32 v2, 4, v0"); e("v_bfe_u32 v3, v0, 2, 2"); e("v_lshl_add_u32 v3, v2, 3, v3"); e("v_and_b32 v4, 3, v0")
    e("v_lshlrev_b32 v5, 6, v3"); e("v_lshl_add_u32 v5, v4, 3, v5"); e(f"v_add_u32 v5, s{S_STG}, v5")
    e("s_waitcnt vmcnt(0)")
    for pc in range(2):
        for u in range(4):
            e(f"ds_write_b128 v1, {vr(H_W+16*pc+4*u,4)} offset:{u*1024}")
        for ks in range(2):
            for ct in range(2):
                f = H_WO + 4 * ((pc * 2 + ks) * 2 + ct)
                e(f"ds_read_b64_tr_b16 {vr(f,2)}, v5 offset:{ks*2048+ct*32}")
                e(f"ds_read_b64_tr_b16 {vr(f+2,2)}, v5 offset:{ks*2048+ct*32+256}")
        e("s_waitcnt lgkmcnt(0)")
    e(f"s_cmp_lg_u32 s{S_WAVE}, 7"); e("s_cbranch_scc1 L_hb2")
    e("s_cmp_ge_u32 s2, 32"); e("s_cbranch_scc1 L_hb2")
    e("v_lshrrev_b32 v2, 5, v0"); e("v_bfe_u32 v3, v0, 3, 2"); e("v_and_b32 v4, 7, v0")
    e(f"v_mul_u32_u24 v5, {7*2*512*8}, v3")
    e("v_lshl_add_u32 v5, v2, 12, v5")
    e("v_lshl_add_u32 v5, v4, 4, v5")
    e(f"s_lshl_b32 s{S_T0}, s2, 7")
    e(f"v_add_u32 v5, s{S_T0}, v5")
    def fl():
        for i in range(7):
            e(f"s_mov_b32 s{S_T1}, {WS_F + i*8192}")
            e(f"buffer_load_dwordx4 {vr(16+4*i,4)}, v5, s[{SRD_WS}:{SRD_WS+3}], s{S_T1} offen sc1")
    e("v_lshlrev_b32 v6, 10, v2"); e("v_lshl_add_u32 v6, v4, 2, v6"); e(f"s_lshl_b32 s{S_T1}, s2, 5"); e(f"v_add_u32 v6, s{S_T1}, v6")
    e(f"buffer_load_dword v{H_G+2}, v6, s[{SRD_X}:{SRD_X+3}], 0 offen")
    poll(g, "f", fl, [16+4*i+1 for i in range(7)] + [16+4*i+3 for i in range(7)], 8)
    for i in range(1, 7):
        e(f"v_add_f32 v16, v16, v{16+4*i}"); e(f"v_add_f32 v18, v18, v{18+4*i}")
    g.nop(2)
    e("v_add_f32_dpp v16, v16, v16 row_ror:8 row_mask:0xf bank_mask:0xf")
    e("v_add_f32_dpp v18, v18, v18 row_ror:8 row_mask:0xf bank_mask:0xf")
    e("v_mov_b32 v20, v16"); e("v_mov_b32 v21, v18"); g.nop(2)
    e("v_permlane16_swap_b32 v16, v20"); e("v_permlane16_swap_b32 v18, v21"); g.nop(1)
    e("v_add_f32 v16, v16, v20"); e("v_add_f32 v18, v18, v21")
    e("v_cvt_pk_bf16_f32 v8, v16, v18")
    e("v_lshlrev_b32 v10, 16, v8"); e("v_and_b32 v11, 0xffff0000, v8")
    e(f"s_mov_b32 s{S_T0}, {L2E:#x}")
    for r in (10, 11):
        e(f"v_mul_f32 v12, s{S_T0}, v{r}")
        e(f"v_exp_f32 v12, -v12"); g.nop(1)
        e(f"v_add_f32 v12, 1.0, v12")
        e(f"v_rcp_f32 v12, v12"); g.nop(1)
        e(f"v_mul_f32 v{r}, v{r}, v12")
    e("v_cvt_pk_bf16_f32 v8, v10, v11")
    e(f"v_lshlrev_b32 v{H_G}, 16, v8"); e(f"v_and_b32 v{H_G+1}, 0xffff0000, v8")
    g.lab("L_hb2")
    stamp(g, 3, ST)

    g.lab("L_tail")
    e("s_barrier")
    stamp(g, 4, STT)
    e(f"s_lshr_b32 s{S_T0}, s{S_WAVE}, 1")
    e(f"s_and_b32 s{S_T1}, s{S_WAVE}, 1"); e(f"s_lshl_b32 s{S_T1}, s{S_T1}, 6")
    e(f"v_add_u32 v1, s{S_T1}, v0")
    e(f"s_lshl_b32 s{S_T2}, s{S_T0}, 9")
    e("v_lshlrev_b32 v2, 2, v1"); e(f"v_add_u32 v2, s{S_T2}, v2")
    e(f"s_lshl_b32 s{S_T3}, s{S_T0}, 3"); e(f"s_add_u32 s{S_T3}, s{S_T3}, {L_ML}")
    e(f"v_mov_b32 v3, s{S_T3}")
    e(f"v_add_u32 v4, {RING}, v2"); e(f"v_add_u32 v5, {2*RING}, v2"); e(f"v_add_u32 v6, {3*RING}, v2")
    e("ds_read_b32 v8, v2"); e("ds_read_b32 v9, v4"); e("ds_read_b32 v10, v5"); e("ds_read_b32 v11, v6")
    for w in range(4):
        e(f"ds_read_b64 {vr(12+2*w,2)}, v3 offset:{w*32}")
    e(f"s_mov_b32 s{S_C0}, {L2E:#x}")
    e("s_waitcnt lgkmcnt(0)")
    e("v_max3_f32 v20, v12, v14, v16"); e("v_max_f32 v20, v20, v18")
    for w in range(4):
        e(f"v_sub_f32 v{12+2*w}, v{12+2*w}, v20"); e(f"v_mul_f32 v{12+2*w}, s{S_C0}, v{12+2*w}")
    for w in range(4):
        e(f"v_exp_f32 v{12+2*w}, v{12+2*w}")
    g.nop(1)
    e("v_mul_f32 v8, v8, v12"); e("v_mul_f32 v22, v13, v12")
    for w in range(1, 4):
        e(f"v_fmac_f32 v8, v{8+w}, v{12+2*w}"); e(f"v_fmac_f32 v22, v{13+2*w}, v{12+2*w}")
    e(f"v_mov_b32 v9, s{S_TAG}"); e(f"v_mov_b32 v21, s{S_TAG}"); e(f"v_mov_b32 v23, s{S_TAG}")
    e(f"s_lshl_b32 s{S_T2}, s{S_PAIR}, 4"); e(f"s_add_u32 s{S_T2}, s{S_T2}, s{S_SPLIT}")
    e(f"s_lshl_b32 s{S_T2}, s{S_T2}, 2"); e(f"s_add_u32 s{S_T2}, s{S_T2}, s{S_T0}")
    e(f"s_lshl_b32 s{S_T2}, s{S_T2}, 10"); e(f"s_add_u32 s{S_T2}, s{S_T2}, {WS_P}")
    e("v_lshlrev_b32 v1, 3, v1")
    e(f"buffer_store_dwordx2 v[8:9], v1, s[{SRD_WS}:{SRD_WS+3}], s{S_T2} offen sc1")
    e(f"s_cmp_lg_u32 s{S_T1}, 0"); e("s_cbranch_scc1 L_t2")
    e(f"s_lshl_b32 s{S_T2}, s{S_PAIR}, 2"); e(f"s_add_u32 s{S_T2}, s{S_T2}, s{S_T0}")
    e(f"s_lshl_b32 s{S_T2}, s{S_T2}, 4"); e(f"s_add_u32 s{S_T2}, s{S_T2}, s{S_SPLIT}")
    e(f"s_lshl_b32 s{S_T2}, s{S_T2}, 4"); e(f"s_add_u32 s{S_T2}, s{S_T2}, {WS_ML}")
    e("v_mov_b32 v2, 0")
    e("s_mov_b64 exec, 1")
    e(f"buffer_store_dwordx4 v[20:23], v2, s[{SRD_WS}:{SRD_WS+3}], s{S_T2} offen sc1")
    e("s_mov_b64 exec, -1")
    g.lab("L_t2")
    stamp(g, 5, STT)
    e(f"s_lshr_b32 s{S_T0}, s{S_SPLIT}, 2")
    e("v_lshrrev_b32 v2, 2, v0"); e("v_and_b32 v3, 3, v0")
    e("v_lshlrev_b32 v4, 12, v2")
    e("v_lshl_add_u32 v4, v3, 5, v4")
    e(f"s_lshl_b32 s{S_T1}, s{S_PAIR}, 16")
    e(f"s_lshl_b32 s{S_T2}, s{S_T0}, 10"); e(f"s_add_u32 s{S_T1}, s{S_T1}, s{S_T2}")
    e(f"s_lshl_b32 s{S_T2}, s{S_WAVE}, 7"); e(f"s_add_u32 s{S_T1}, s{S_T1}, s{S_T2}")
    e(f"s_add_u32 s{S_T1}, s{S_T1}, {WS_P}")
    e("v_lshlrev_b32 v5, 4, v2")
    e(f"s_lshl_b32 s{S_T2}, s{S_PAIR}, 2"); e(f"s_add_u32 s{S_T2}, s{S_T2}, s{S_T0}")
    e(f"s_lshl_b32 s{S_T2}, s{S_T2}, 8"); e(f"s_add_u32 s{S_T2}, s{S_T2}, {WS_ML}")
    def pl():
        e(f"buffer_load_dwordx4 v[8:11], v4, s[{SRD_WS}:{SRD_WS+3}], s{S_T1} offen sc1")
        e(f"buffer_load_dwordx4 v[12:15], v4, s[{SRD_WS}:{SRD_WS+3}], s{S_T1} offen offset:16 sc1")
        e(f"buffer_load_dwordx4 v[16:19], v5, s[{SRD_WS}:{SRD_WS+3}], s{S_T2} offen sc1")
    poll(g, "p", pl, [9, 11, 13, 15, 17, 19], 24)
    stamp(g, 6, STT)
    e("v_mov_b32 v20, v16")
    row_ror_reduce(g, [20], "v_max_f32", [4, 8])
    rows_reduce(g, 20, 21, "v_max_f32")
    e(f"s_mov_b32 s{S_C0}, {L2E:#x}")
    e("v_sub_f32 v16, v16, v20"); e(f"v_mul_f32 v16, s{S_C0}, v16"); e("v_exp_f32 v16, v16"); g.nop(1)
    e("v_mul_f32 v18, v18, v16")
    e("v_mul_f32 v8, v8, v16"); e("v_mul_f32 v10, v10, v16"); e("v_mul_f32 v12, v12, v16"); e("v_mul_f32 v14, v14, v16")
    row_ror_reduce(g, [8, 10, 12, 14, 18], "v_add_f32", [4, 8])
    rows_reduce_multi(g, [8, 10, 12, 14, 18], [26, 27, 28, 29, 30], "v_add_f32")
    e("v_rcp_f32 v19, v18"); g.nop(1)
    for r in (8, 10, 12, 14):
        e(f"v_mul_f32 v20, v{r}, v19"); e(f"v_fma_f32 v21, -v20, v18, v{r}"); e(f"v_fma_f32 v{r}, v21, v19, v20")
    e("v_cvt_pk_bf16_f32 v22, v8, v10"); e("v_cvt_pk_bf16_f32 v23, v12, v14")
    e(f"s_lshl_b32 s{S_T2}, s{S_WAVE}, 5"); e(f"s_add_u32 s{S_T2}, s{S_T2}, {L_OB}")
    e(f"v_lshlrev_b32 v3, 3, v3"); e(f"v_add_u32 v3, s{S_T2}, v3")
    e("s_mov_b64 exec, 0xf")
    e("ds_write_b64 v3, v[22:23]")
    e("s_mov_b64 exec, -1")
    e("s_waitcnt lgkmcnt(0)")
    e("s_barrier")
    e(f"s_cmp_lt_u32 s{S_WAVE}, 4"); e("s_cbranch_scc1 L_fin")
    e("v_lshrrev_b32 v2, 4, v0"); e("v_lshlrev_b32 v2, 4, v2"); e(f"v_add_u32 v2, {L_OB}, v2")
    for kk in range(4):
        e(f"ds_read_b128 {vr(8+4*kk,4)}, v2 offset:{kk*64}")
    e("s_waitcnt lgkmcnt(0)")
    for kk in range(4):
        for ct in range(2):
            c = "0" if kk == 0 else vr(24+4*ct, 4)
            e(f"v_mfma_f32_16x16x32_bf16 {vr(24+4*ct,4)}, {vr(8+4*kk,4)}, {vr(H_WO+4*(kk*2+ct),4)}, {c}")
    e(f"s_lshr_b32 s{S_T0}, s{S_SPLIT}, 2")
    e(f"s_lshl_b32 s{S_T1}, s{S_HKV}, 2"); e(f"s_add_u32 s{S_T1}, s{S_T1}, s{S_T0}")
    e(f"s_lshl_b32 s{S_T2}, s{S_B}, 5"); e(f"s_add_u32 s{S_T1}, s{S_T1}, s{S_T2}")
    e(f"s_lshl_b32 s{S_T1}, s{S_T1}, 12")
    e(f"s_and_b32 s{S_T2}, s{S_SPLIT}, 3"); e(f"s_lshl_b32 s{S_T2}, s{S_T2}, 10"); e(f"s_add_u32 s{S_T1}, s{S_T1}, s{S_T2}")
    e(f"s_sub_u32 s{S_T2}, s{S_WAVE}, 4"); e(f"s_lshl_b32 s{S_T2}, s{S_T2}, 8"); e(f"s_add_u32 s{S_T1}, s{S_T1}, s{S_T2}")
    e(f"s_add_u32 s{S_T1}, s{S_T1}, {WS_S}")
    e("v_lshlrev_b32 v1, 3, v0")
    e("v_cmp_gt_u32 vcc, 16, v0")
    g.nop(6)
    e("v_cndmask_b32 v8, v28, v24, vcc")
    e(f"v_mov_b32 v9, s{S_TAG}")
    e("s_mov_b32 exec_hi, 0")
    e(f"buffer_store_dwordx2 v[8:9], v1, s[{SRD_WS}:{SRD_WS+3}], s{S_T1} offen sc1")
    e("s_mov_b64 exec, -1")
    stamp(g, 7, STT)
    e(f"s_cmp_lg_u32 s{S_WAVE}, 7"); e("s_cbranch_scc1 L_fin")
    e("s_cmp_ge_u32 s2, 32"); e("s_cbranch_scc1 L_fin")
    e("v_lshrrev_b32 v2, 5, v0"); e("v_bfe_u32 v3, v0, 3, 2"); e("v_and_b32 v4, 7, v0")
    e("v_lshlrev_b32 v5, 17, v2")
    e("v_lshl_add_u32 v5, v3, 15, v5")
    e("v_lshl_add_u32 v5, v4, 4, v5")
    e(f"s_lshl_b32 s{S_T0}, s2, 7"); e(f"v_add_u32 v5, s{S_T0}, v5")
    e("v_lshlrev_b32 v6, 10, v2"); e("v_lshl_add_u32 v6, v4, 2, v6"); e(f"s_lshl_b32 s{S_T1}, s2, 5"); e(f"v_add_u32 v6, s{S_T1}, v6")
    def sl():
        for i in range(8):
            e(f"s_mov_b32 s{S_T1}, {WS_S + i*4096}")
            e(f"buffer_load_dwordx4 {vr(16+4*i,4)}, v5, s[{SRD_WS}:{SRD_WS+3}], s{S_T1} offen sc1")
    poll(g, "s", sl, [16+4*i+1 for i in range(8)] + [16+4*i+3 for i in range(8)], 8)
    stamp(g, 8, STT)
    for i in range(1, 8):
        e(f"v_add_f32 v16, v16, v{16+4*i}"); e(f"v_add_f32 v18, v18, v{18+4*i}")
    g.nop(2)
    e("v_add_f32_dpp v16, v16, v16 row_ror:8 row_mask:0xf bank_mask:0xf")
    e("v_add_f32_dpp v18, v18, v18 row_ror:8 row_mask:0xf bank_mask:0xf")
    e("v_mov_b32 v20, v16"); e("v_mov_b32 v21, v18"); g.nop(2)
    e("v_permlane16_swap_b32 v16, v20"); e("v_permlane16_swap_b32 v18, v21"); g.nop(1)
    e("v_add_f32 v16, v16, v20"); e("v_add_f32 v18, v18, v21")
    e("v_cvt_pk_bf16_f32 v8, v16, v18")
    e("v_lshlrev_b32 v10, 16, v8"); e("v_and_b32 v11, 0xffff0000, v8")
    e(f"v_mul_f32 v10, v10, v{H_G}"); e(f"v_mul_f32 v11, v11, v{H_G+1}")
    e("v_cvt_pk_bf16_f32 v8, v10, v11")
    e("v_lshlrev_b32 v10, 16, v8"); e("v_and_b32 v11, 0xffff0000, v8")
    e(f"v_lshlrev_b32 v12, 16, v{H_G+2}"); e(f"v_and_b32 v13, 0xffff0000, v{H_G+2}")
    e("v_add_f32 v10, v10, v12"); e("v_add_f32 v11, v11, v13")
    e("v_cvt_pk_bf16_f32 v8, v10, v11")
    e("s_mov_b32 exec_lo, 0xff"); e("s_mov_b32 exec_hi, 0xff")
    e(f"buffer_store_dword v8, v6, s[{SRD_OUT}:{SRD_OUT+3}], 0 offen")
    e("s_mov_b64 exec, -1")
    e("s_cmp_lg_u32 s2, 0"); e("s_cbranch_scc1 L_fin")
    e(f"v_mov_b32 v8, s{S_TAG}"); e("v_mov_b32 v1, 0")
    e("s_mov_b64 exec, 1")
    e(f"buffer_store_dword v8, v1, s[{SRD_WS}:{SRD_WS+3}], 0 offen sc1")
    e("s_mov_b64 exec, -1")
    g.lab("L_fin")
    if ST:
        stamp(g, 9, ST)
        e("s_waitcnt lgkmcnt(0)")
        e(f"s_lshl_b32 s{S_T0}, s2, 3"); e(f"s_add_u32 s{S_T0}, s{S_T0}, s{S_WAVE}"); e(f"s_lshl_b32 s{S_T0}, s{S_T0}, 6")
        e(f"s_add_u32 s{S_T0}, s{S_T0}, {WS_DBG}")
        e("v_mov_b32 v1, 0")
        e("s_mov_b64 exec, 1")
        for i in range(10):
            e(f"v_mov_b32 v2, s{S_ST0+2*i}")
            e(f"buffer_store_dword v2, v1, s[{SRD_WS}:{SRD_WS+3}], s{S_T0} offen offset:{4*i}")
            g.nop(1)
    g.lab("L_end")
    e("s_endpgm")
    g.lab("L_code_end")
    g.L.append('.section .rodata,"a"')
    g.L.append(".p2align 6")
    g.L.append(f".amdhsa_kernel {KN}_kernel")
    for s in ["next_free_vgpr 240", "next_free_sgpr 102", "accum_offset 240", "group_segment_fixed_size 0", "kernarg_size 88",
              "user_sgpr_count 2", "user_sgpr_kernarg_segment_ptr 1", "system_sgpr_workgroup_id_x 1",
              "float_denorm_mode_32 3", "float_denorm_mode_16_64 3"]:
        g.L.append("  .amdhsa_" + s)
    g.L.append(".end_amdhsa_kernel")
    txt = "\n".join(g.L) + "\n"
    pf = []
    for i in range(o.get("pf_kib", 16) // 4):
        pf.append(f"  v_min_u32 v3, L_code_end-{KN}_kernel-4, v1")
        pf.append(f"  global_load_dword v230, v3, s[{S_T0}:{S_T0+1}]")
        pf.append(f"  v_add_u32 v1, 4096, v1")
    txt = txt.replace("  CODE_PREFETCH_PLACEHOLDER", "\n".join(pf))
    return txt

if __name__ == "__main__":
    import json
    opt = json.loads(sys.argv[2]) if len(sys.argv) > 2 else {}
    open(sys.argv[1], "w").write(gen(opt))
```

```python
import sys
KN = "recurrent_scan__gqa_block_cached__dense_activation_silu__decode"

WS_E   = 0x0
WS_Q   = 0x200000
WS_H   = 0x240000
WS_ML  = 0x28000
WS_F   = 0x30000
WS_S   = 0x80000
WS_P   = 0x100000
WS_CNT = 0x2A0000
WS_DBG = 0x300000
WS_SIZE = 0x400000

RING   = 32768
L_STG  = 0x20000
L_XN4  = 0x24000
L_XN5  = 0x24800
L_Q    = 0x25000
L_H    = 0x25400
L_OB   = 0x25600
L_ML   = 0x25800
LDS_BYTES = 0x26000

L2E = 0x3fb8aa3b
SCALE = 0x3db504f3
NEG_INF = 0xff800000

DEBUG_TO = True
class G:
    def __init__(self):
        self.L = []
        self.uid = 0
    def e(self, s):
        self.L.append("  " + s)
    def lab(self, s):
        self.L.append(s + ":")
    def new(self, p):
        self.uid += 1
        return f"L_{p}_{self.uid}"
    def nop(self, n):
        while n > 0:
            k = min(n, 16)
            self.e(f"s_nop {k-1}")
            n -= k

def vr(a, n=None):
    return f"v{a}" if n is None else f"v[{a}:{a+n-1}]"
def sr(a, n=None):
    return f"s{a}" if n is None else f"s[{a}:{a+n-1}]"

S_WAVE = 3
S_X, S_K, S_V, S_WQ, S_WO, S_BX, S_W1, S_W2 = 4, 6, 8, 10, 12, 14, 16, 18
S_OUT, S_DBG, S_WS = 20, 22, 24
S_TAG, S_E = 26, 27
SRD_K, SRD_V, SRD_WS, SRD_W, SRD_X, SRD_OUT, SRD_WO = 28, 32, 36, 40, 44, 48, 52
S_PAIR, S_SPLIT, S_B, S_HKV = 56, 57, 58, 59
S_T0, S_T1, S_T2, S_T3, S_T4, S_T5 = 60, 61, 62, 63, 64, 65
S_RETRY = 66
S_OFF = 67
S_RB = 68
S_PB = 69
S_CNT = 70
S_SOFF = 71
S_RS32 = 72
S_EX = 74
S_ST0 = 76
S_C0 = 96
S_C1 = 97
S_ROT = 98
S_NEXT = 99

def build_srd(g, d, ptr, size):
    g.e(f"s_mov_b32 s{d}, s{ptr}")
    g.e(f"s_and_b32 s{d+1}, s{ptr+1}, 0xffff")
    g.e(f"s_mov_b32 s{d+2}, {size:#x}")
    g.e(f"s_mov_b32 s{d+3}, 0x20000")

def rows_reduce(g, v, t, op):
    for sw in ("v_permlane16_swap_b32", "v_permlane32_swap_b32"):
        g.e(f"v_mov_b32 v{t}, v{v}")
        g.nop(2)
        g.e(f"{sw} v{v}, v{t}")
        g.nop(1)
        g.e(f"{op} v{v}, v{v}, v{t}")

def rows_reduce_multi(g, vs, ts, op):
    for sw in ("v_permlane16_swap_b32", "v_permlane32_swap_b32"):
        for v, t in zip(vs, ts):
            g.e(f"v_mov_b32 v{t}, v{v}")
        g.nop(max(0, 3 - len(vs)) if len(vs) < 3 else 0)
        if len(vs) >= 3: pass
        g.nop(1)
        for v, t in zip(vs, ts):
            g.e(f"{sw} v{v}, v{t}")
        g.nop(1)
        for v, t in zip(vs, ts):
            g.e(f"{op} v{v}, v{v}, v{t}")
        g.nop(1)

def row_ror_reduce(g, vs, op, rors):
    for r in rors:
        g.nop(2)
        for v in vs:
            g.e(f"{op}_dpp v{v}, v{v}, v{v} row_ror:{r} row_mask:0xf bank_mask:0xf")
            if len(vs) == 1:
                pass
    g.nop(1)

POLL_IDS = {"q": 0, "h": 1, "f": 2, "p": 3, "s": 4}
def poll(g, name, issue_loads, tag_regs, tmp, dbgword=None, sleep=1):
    L = g.new("poll_" + name); D = g.new("polld_" + name); TO = g.new("pollto_" + name)
    g.e(f"s_mov_b32 s{S_RETRY}, 0x40000")
    g.lab(L)
    issue_loads()
    g.e("s_waitcnt vmcnt(0)")
    g.e(f"v_xor_b32 v{tmp}, s{S_TAG}, v{tag_regs[0]}")
    for t in tag_regs[1:]:
        g.e(f"v_xor_b32 v{tmp+1}, s{S_TAG}, v{t}")
        g.e(f"v_or_b32 v{tmp}, v{tmp}, v{tmp+1}")
    g.e(f"v_cmp_ne_u32 vcc, 0, v{tmp}")
    g.e(f"s_cbranch_vccz {D}")
    g.e(f"s_sub_u32 s{S_RETRY}, s{S_RETRY}, 1")
    g.e(f"s_cbranch_scc1 {TO}")
    g.e(f"s_sleep {sleep}")
    g.e(f"s_branch {L}")
    g.lab(TO)
    if DEBUG_TO:
        g.e(f"v_mov_b32 v{tmp}, {4*POLL_IDS[name]}")
        g.e(f"v_mov_b32 v{tmp+1}, s2")
        g.e(f"v_add_u32 v{tmp+1}, 0x1000, v{tmp+1}")
        g.e(f"global_store_dword v{tmp}, v{tmp+1}, s[{S_DBG}:{S_DBG+1}]")
    g.lab(D)

def dstamp(g, word, on, tmpv=(236, 237), sp=(92, 93)):
    if not on: return
    g.e(f"s_memrealtime s[{sp[0]}:{sp[1]}]")
    g.e("s_waitcnt lgkmcnt(0)")
    g.e(f"v_mov_b32 v{tmpv[0]}, {4*word}")
    g.e(f"v_mov_b32 v{tmpv[1]}, s{sp[0]}")
    g.e("s_mov_b64 s[94:95], exec")
    g.e("s_mov_b64 exec, 1")
    g.e(f"global_atomic_umax v{tmpv[0]}, v{tmpv[1]}, s[{S_DBG}:{S_DBG+1}]")
    g.e("s_mov_b64 exec, s[94:95]")

def stamp(g, idx, on):
    if on:
        g.e(f"s_memrealtime s[{S_ST0+2*idx}:{S_ST0+2*idx+1}]")

def gen(opt=None):
    o = dict(pattern="grp16", rot=512*1024, xmap=False, stamps=False, ntiles=16, prefetch_code=True, stage=99, b0=False, thr=16, prio=True, dyn=True, sthr=12, wnt=1)
    if opt: o.update(opt)
    DS = bool(o.get("dstamps"))
    ST = bool(o["stamps"])
    STT = o["stamps"] is True
    STA = o["stamps"] == "A"
    STP = o["stamps"] == "P"
    STF = o["stamps"] == "F"
    STL = o["stamps"] == "L"
    g = G(); e = g.e
    g.L.append(f"; @launch grid=(256,1,1) block=(512,1,1) lds={LDS_BYTES}")
    g.L.append('.amdgcn_target "amdgcn-amd-amdhsa--gfx950"')
    g.L.append(".text")
    g.L.append(f".globl {KN}_kernel")
    g.L.append(".p2align 8")
    g.L.append(f".type {KN}_kernel,@function")
    g.lab(f"{KN}_kernel")
    e("s_cmp_ge_u32 s2, 256")
    e("s_cbranch_scc1 L_end")
    stamp(g, 0, ST)
    if DS: e("s_memrealtime s[90:91]")
    e(f"s_load_dwordx16 s[4:19], s[0:1], 0")
    e(f"s_load_dwordx4 s[20:23], s[0:1], 64")
    e(f"s_load_dwordx2 s[24:25], s[0:1], 80")
    e("v_lshrrev_b32 v1, 6, v0")
    e("v_and_b32 v0, 63, v0")
    e(f"v_readfirstlane_b32 s{S_WAVE}, v1")
    if o["xmap"]:
        e(f"s_and_b32 s{S_T0}, s2, 7"); e(f"s_lshl_b32 s{S_T0}, s{S_T0}, 5"); e(f"s_lshr_b32 s{S_T1}, s2, 3")
        e(f"s_add_u32 s{S_T0}, s{S_T0}, s{S_T1}")
        e(f"s_lshr_b32 s{S_PAIR}, s{S_T0}, 4"); e(f"s_and_b32 s{S_SPLIT}, s{S_T0}, 15")
    else:
        e(f"s_lshr_b32 s{S_PAIR}, s2, 4"); e(f"s_and_b32 s{S_SPLIT}, s2, 15")
    e(f"s_lshr_b32 s{S_B}, s{S_PAIR}, 3"); e(f"s_and_b32 s{S_HKV}, s{S_PAIR}, 7")
    e(f"s_cmp_ge_u32 s{S_WAVE}, 4")
    e("s_cbranch_scc1 L_helper")

    V_KD, V_VD, V_KR, V_VR = 8, 12, 14, 18
    V_Q, V_O = 28, 44
    RK = (76, 140); RV = (108, 172)
    V_S, V_A, V_P = 204, 212, 220
    V_M, V_L, V_AL, V_NM, V_MX, V_T = 224, 225, 226, 227, 228, 229
    e("v_lshrrev_b32 v1, 4, v0")
    e("v_and_b32 v2, 15, v0")
    e("v_lshlrev_b32 v3, 8, v1")
    e("v_xor_b32 v4, v2, v1")
    for n in range(4):
        e(f"v_xor_b32 v5, {4*n}, v4")
        e(f"v_lshl_add_u32 v{V_KD+n}, v5, 4, v3")
    e("v_lshlrev_b32 v4, 1, v1")
    e("v_xor_b32 v4, v2, v4")
    for n in range(2):
        e(f"v_xor_b32 v5, {8*n}, v4")
        e(f"v_lshl_add_u32 v{V_VD+n}, v5, 4, v3")
    e(f"s_lshl_b32 s{S_RB}, s{S_WAVE}, 15")
    e(f"s_lshl_b32 s{S_PB}, s{S_PAIR}, 23")
    if o["pattern"] == "grp16":
        e(f"s_lshl_b32 s{S_OFF}, s{S_SPLIT}, 2"); e(f"s_add_u32 s{S_OFF}, s{S_OFF}, s{S_WAVE}")
        e(f"s_lshl_b32 s{S_OFF}, s{S_OFF}, 13")
        STEP = 16 * 4 * 8192
    else:
        e(f"s_lshl_b32 s{S_OFF}, s{S_SPLIT}, 6"); e(f"s_add_u32 s{S_OFF}, s{S_OFF}, s{S_WAVE}")
        e(f"s_lshl_b32 s{S_OFF}, s{S_OFF}, 13")
        STEP = 4 * 8192
    e(f"s_mul_i32 s{S_ROT}, s{S_PAIR}, {o['rot']}")
    e(f"s_add_u32 s{S_OFF}, s{S_OFF}, s{S_ROT}")
    e("s_waitcnt lgkmcnt(0)")
    stamp(g, 4, STA)
    e(f"s_load_dword s{S_E}, s[{S_WS}:{S_WS+1}], {WS_E}")
    build_srd(g, SRD_K, S_K, 0x8000000)
    build_srd(g, SRD_V, S_V, 0x8000000)

    def tile_addr():
        e(f"s_and_b32 s{S_SOFF}, s{S_OFF}, 0x7fffff")
        e(f"s_add_u32 s{S_SOFF}, s{S_SOFF}, s{S_PB}")
    def issue(which, slot):
        srd = SRD_K if which == 0 else SRD_V
        for half in range(2):
            off = slot * 16384 + which * 8192 + half * 4096
            e(f"s_add_u32 m0, s{S_RB}, {off}")
            if half == 0:
                e(f"s_mov_b32 s{S_T0}, s{S_SOFF}")
            else:
                e(f"s_add_u32 s{S_T0}, s{S_SOFF}, 4096")
            for i in range(4):
                n = half * 4 + i
                vo = (V_KD + (n & 3)) if which == 0 else (V_VD + (n & 1))
                e(f"buffer_load_dwordx4 v{vo}, s[{srd}:{srd+3}], s{S_T0} offen offset:{i*1024} nt lds")
    if o["b0"]:
        e("s_barrier")
    THR = o["thr"]
    nissued = 0
    for slot in range(2):
        tile_addr()
        for which in range(2):
            if nissued + 8 > THR:
                e(f"s_waitcnt vmcnt({THR - 8})")
                stamp(g, 3 + nissued // 8, STP)
            issue(which, slot)
            nissued += 8
        e(f"s_add_u32 s{S_OFF}, s{S_OFF}, {STEP}")
    stamp(g, 5, STA)
    e("v_and_b32 v1, 15, v0")
    e("v_lshrrev_b32 v2, 4, v0")
    e("v_xor_b32 v3, v2, v1")
    e(f"v_lshlrev_b32 v4, 8, v1")
    e(f"v_add_u32 v4, s{S_RB}, v4")
    for kk in range(4):
        e(f"v_xor_b32 v5, {4*kk}, v3")
        e(f"v_lshl_add_u32 v{V_KR+kk}, v5, 4, v4")
    e("v_lshrrev_b32 v1, 2, v0")
    e("v_and_b32 v2, 7, v1")
    e("v_and_b32 v3, 3, v0")
    e("v_lshlrev_b32 v4, 8, v1")
    e("v_lshl_add_u32 v4, v3, 3, v4")
    e(f"v_add_u32 v4, s{S_RB}, v4")
    e("v_add_u32 v4, 8192, v4")
    for dt in range(8):
        e(f"v_xor_b32 v5, {dt}, v2")
        e(f"v_lshl_add_u32 v{V_VR+dt}, v5, 5, v4")
    for i in range(32):
        e(f"v_mov_b32 v{V_O+i}, 0")
    for i in range(16):
        e(f"v_mov_b32 v{V_Q+i}, 0")
    e(f"v_mov_b32 v{V_M}, {NEG_INF:#x}")
    e(f"v_mov_b32 v{V_L}, 0")
    build_srd(g, SRD_WS, S_WS, WS_SIZE)
    build_srd(g, SRD_X, S_X, 2048)
    build_srd(g, SRD_WO, S_WO, 0x400000)
    build_srd(g, SRD_OUT, S_OUT, 2048)

    def load(rs, slot, do_issue, wK, wV, thr=None, pst=None):
        e(f"s_waitcnt vmcnt({wK})")
        for T in range(2):
            for kk in range(4):
                e(f"ds_read_b128 {vr(RK[rs]+16*T+4*kk,4)}, v{V_KR+kk} offset:{slot*16384+T*4096}")
        e("s_waitcnt lgkmcnt(0)")
        if do_issue:
            tile_addr()
            if thr is not None and thr < 32: e(f"s_waitcnt vmcnt({thr-8})")
            if pst is not None: stamp(g, pst, STP)
            issue(0, slot)
        e(f"s_waitcnt vmcnt({wV})")
        for dt in range(8):
            for T in range(2):
                e(f"ds_read_b64_tr_b16 {vr(RV[rs]+4*dt+2*T,2)}, v{V_VR+dt} offset:{slot*16384+T*4096}")
        e("s_waitcnt lgkmcnt(0)")
        if do_issue:
            if thr is not None and thr < 32: e(f"s_waitcnt vmcnt({thr-8})")
            if pst is not None: stamp(g, pst+1, STP)
            issue(1, slot)
            e(f"s_add_u32 s{S_OFF}, s{S_OFF}, {STEP}")

    def compute(rs):
        KF, VF = RK[rs], RV[rs]
        for kk in range(4):
            for T in range(2):
                c = "0" if kk == 0 else vr(V_S+4*T, 4)
                e(f"v_mfma_f32_16x16x32_bf16 {vr(V_S+4*T,4)}, {vr(KF+16*T+4*kk,4)}, {vr(V_Q+4*kk,4)}, {c}")
        g.nop(8)
        t = V_T
        for i in range(4):
            e(f"v_cvt_pk_bf16_f32 v{t+i}, v{V_S+2*i}, v{V_S+2*i+1}")
        for i in range(4):
            e(f"v_lshlrev_b32 v{V_A+2*i}, 16, v{t+i}")
            e(f"v_and_b32 v{V_A+2*i+1}, 0xffff0000, v{t+i}")
        for i in range(8):
            e(f"v_mul_f32 v{V_A+i}, s{S_C1}, v{V_A+i}")
        for i in range(4):
            e(f"v_cvt_pk_bf16_f32 v{t+i}, v{V_A+2*i}, v{V_A+2*i+1}")
        for i in range(4):
            e(f"v_lshlrev_b32 v{V_A+2*i}, 16, v{t+i}")
            e(f"v_and_b32 v{V_A+2*i+1}, 0xffff0000, v{t+i}")
        e(f"v_max3_f32 v{V_MX}, v{V_A}, v{V_A+1}, v{V_A+2}")
        e(f"v_max3_f32 v{V_MX}, v{V_MX}, v{V_A+3}, v{V_A+4}")
        e(f"v_max3_f32 v{V_MX}, v{V_MX}, v{V_A+5}, v{V_A+6}")
        e(f"v_max3_f32 v{V_MX}, v{V_MX}, v{V_A+7}, v{V_M}")
        rows_reduce(g, V_MX, t, "v_max_f32")
        e(f"v_sub_f32 v{V_AL}, v{V_M}, v{V_MX}")
        e(f"v_mul_f32 v{V_AL}, s{S_C0}, v{V_AL}")
        e(f"v_exp_f32 v{V_AL}, v{V_AL}")
        e(f"v_mov_b32 v{V_M}, v{V_MX}")
        e(f"v_mul_f32 v{V_NM}, s{S_C0}, v{V_MX}")
        for i in range(8):
            e(f"v_fma_f32 v{V_A+i}, v{V_A+i}, s{S_C0}, -v{V_NM}")
        for i in range(8):
            e(f"v_exp_f32 v{V_A+i}, v{V_A+i}")
        e(f"v_mul_f32 v{V_L}, v{V_L}, v{V_AL}")
        for i in range(16):
            e(f"v_pk_mul_f32 {vr(V_O+2*i,2)}, {vr(V_O+2*i,2)}, {vr(V_AL,2)} op_sel_hi:[1,0]")
        for i in range(4):
            e(f"v_cvt_pk_bf16_f32 v{V_P+i}, v{V_A+2*i}, v{V_A+2*i+1}")
        e(f"v_add_f32 v{t}, v{V_A}, v{V_A+1}")
        e(f"v_add_f32 v{t+1}, v{V_A+2}, v{V_A+3}")
        e(f"v_add_f32 v{t+2}, v{V_A+4}, v{V_A+5}")
        e(f"v_add_f32 v{t+3}, v{V_A+6}, v{V_A+7}")
        e(f"v_add_f32 v{t}, v{t}, v{t+1}")
        e(f"v_add_f32 v{t+2}, v{t+2}, v{t+3}")
        e(f"v_add_f32 v{t}, v{t}, v{t+2}")
        e(f"v_add_f32 v{V_L}, v{V_L}, v{t}")
        for dt in range(8):
            e(f"v_mfma_f32_16x16x32_bf16 {vr(V_O+4*dt,4)}, {vr(VF+4*dt,4)}, {vr(V_P,4)}, {vr(V_O+4*dt,4)}")

    load(0, 0, True, 24, 24, THR, 7)
    load(1, 1, True, 24, 24, THR, None)
    e("s_waitcnt lgkmcnt(0)")
    e(f"s_mul_i32 s{S_TAG}, s{S_E}, 1664525")
    e(f"s_add_u32 s{S_TAG}, s{S_TAG}, 1013904223")
    stamp(g, 1, ST)
    e("s_barrier")
    stamp(g, 2, ST)
    if DS:
        LX = g.new("ds")
        e(f"s_cmp_lg_u32 s{S_WAVE}, 0"); e(f"s_cbranch_scc1 {LX}")
        e("s_memrealtime s[88:89]")
        g.lab(LX)
    e("v_and_b32 v1, 15, v0")
    e("v_lshrrev_b32 v2, 4, v0")
    e("v_lshlrev_b32 v1, 8, v1")
    e("v_lshl_add_u32 v1, v2, 4, v1")
    e(f"v_add_u32 v1, {L_Q}, v1")
    e(f"s_mov_b32 s{S_EX}, 0x000f000f"); e(f"s_mov_b32 s{S_EX+1}, 0x000f000f")
    e(f"s_mov_b64 exec, s[{S_EX}:{S_EX+1}]")
    for kk in range(4):
        e(f"ds_read_b128 {vr(V_Q+4*kk,4)}, v1 offset:{kk*64}")
    e("s_mov_b64 exec, -1")
    e(f"s_mov_b32 s{S_C0}, {L2E:#x}")
    e(f"s_mov_b32 s{S_C1}, {SCALE:#x}")
    e("s_waitcnt lgkmcnt(0)")

    NT = o["ntiles"]
    STHR = o.get("sthr", 32)
    if not o["dyn"]:
        nloop = (NT - 4) // 2
        if STL:
            for it in range(nloop):
                compute(0); load(0, 0, True, 24, 24, STHR)
                compute(1); load(1, 1, True, 24, 24, STHR)
                if it < 5: stamp(g, 4 + it, True)
        else:
            e(f"s_mov_b32 s{S_CNT}, {nloop}")
            g.lab("L_loop")
            compute(0); load(0, 0, True, 24, 24, STHR)
            compute(1); load(1, 1, True, 24, 24, STHR)
            e(f"s_sub_u32 s{S_CNT}, s{S_CNT}, 1")
            e(f"s_cmp_lg_u32 s{S_CNT}, 0")
            e("s_cbranch_scc1 L_loop")
        compute(0); load(0, 0, False, 24, 16)
        compute(1); load(1, 1, False, 8, 0)
        compute(0)
        compute(1)
    else:
        NSTAT = 5 * 64
        V_TK, V_ONE, V_CA = 233, 234, 235
        cap = min(STHR, 24) - 8
        e(f"s_sub_u32 s{S_NEXT}, s{S_OFF}, s{S_ROT}")
        e(f"s_lshr_b32 s{S_NEXT}, s{S_NEXT}, 13")
        e(f"s_sub_u32 s{S_NEXT}, s{S_NEXT}, {NSTAT}")
        e(f"v_mov_b32 v{V_TK}, s{S_NEXT}")
        e(f"v_mov_b32 v{V_ONE}, 1")
        e(f"s_lshl_b32 s{S_T0}, s{S_PAIR}, 8"); e(f"s_add_u32 s{S_T0}, s{S_T0}, {WS_CNT}")
        e(f"v_mov_b32 v{V_CA}, s{S_T0}")
        e(f"s_mov_b32 s{S_CNT}, 0")
        def readK(rs, slot):
            for T in range(2):
                for kk in range(4):
                    e(f"ds_read_b128 {vr(RK[rs]+16*T+4*kk,4)}, v{V_KR+kk} offset:{slot*16384+T*4096}")
            e("s_waitcnt lgkmcnt(0)")
        def readV(rs, slot):
            for dt in range(8):
                for T in range(2):
                    e(f"ds_read_b64_tr_b16 {vr(RV[rs]+4*dt+2*T,2)}, v{V_VR+dt} offset:{slot*16384+T*4096}")
            e("s_waitcnt lgkmcnt(0)")
        def dload(sg):
            e("s_waitcnt vmcnt(25)")
            readK(sg, sg)
            e(f"s_waitcnt vmcnt({cap})")
            e(f"v_readfirstlane_b32 s{S_NEXT}, v{V_TK}")
            e(f"s_add_u32 s{S_NEXT}, s{S_NEXT}, {NSTAT}")
            e(f"s_cmp_ge_u32 s{S_NEXT}, 1024")
            e(f"s_cbranch_scc1 L_drain{sg}")
            e("s_mov_b64 exec, 1")
            e(f"global_atomic_add v{V_TK}, v{V_CA}, v{V_ONE}, s[{S_WS}:{S_WS+1}] sc0")
            e("s_mov_b64 exec, -1")
            e(f"s_lshl_b32 s{S_OFF}, s{S_NEXT}, 13")
            e(f"s_add_u32 s{S_OFF}, s{S_OFF}, s{S_ROT}")
            tile_addr(); issue(0, sg)
            e("s_waitcnt vmcnt(26)")
            readV(sg, sg)
            e(f"s_waitcnt vmcnt({cap})")
            issue(1, sg)
            e(f"s_add_u32 s{S_CNT}, s{S_CNT}, 1")
        g.lab("L_loop")
        compute(0); dload(0)
        compute(1); dload(1)
        e("s_branch L_loop")
        for sg in range(2):
            g.lab(f"L_drain{sg}")
            e("s_waitcnt vmcnt(16)")
            readV(sg, sg)
            compute(1 - sg)
            e("s_waitcnt vmcnt(8)")
            readK(1 - sg, 1 - sg)
            e("s_waitcnt vmcnt(0)")
            readV(1 - sg, 1 - sg)
            if sg == 0:
                e("s_branch L_final")
        g.lab("L_final")
        compute(0)
        compute(1)
        if STL: e(f"s_mov_b32 s{S_ST0+8}, s{S_CNT}")
    stamp(g, 3, ST and not STP)
    rows_reduce(g, V_L, V_T, "v_add_f32")
    e("v_and_b32 v1, 15, v0")
    e("v_lshrrev_b32 v2, 4, v0")
    e("v_lshlrev_b32 v3, 9, v1")
    e("v_lshl_add_u32 v3, v2, 4, v3")
    e(f"v_add_u32 v3, s{S_RB}, v3")
    e(f"s_lshl_b32 s{S_T0}, s{S_WAVE}, 5")
    e(f"s_add_u32 s{S_T0}, s{S_T0}, {L_ML}")
    e(f"v_lshlrev_b32 v4, 3, v1")
    e(f"v_add_u32 v4, s{S_T0}, v4")
    g.nop(8)
    e(f"s_mov_b64 exec, s[{S_EX}:{S_EX+1}]")
    for dt in range(8):
        e(f"ds_write_b128 v3, {vr(V_O+4*dt,4)} offset:{dt*64}")
    e(f"ds_write_b64 v4, {vr(V_M,2)}")
    e("s_mov_b64 exec, -1")
    e("s_waitcnt lgkmcnt(0)")
    e("s_branch L_tail")

    g.lab("L_helper")
    H_W = 64
    H_F = 128
    H_WO = 192
    H_G = 224
    S_STG = S_T5
    if o["prio"]:
        e("s_setprio 3")
    e(f"s_sub_u32 s{S_T5}, s{S_WAVE}, 4")
    e(f"s_lshl_b32 s{S_T5}, s{S_T5}, 12")
    e(f"s_add_u32 s{S_T5}, s{S_T5}, {L_STG}")
    e(f"s_cmp_ge_u32 s{S_WAVE}, 6"); e("s_cbranch_scc1 L_w67")
    e(f"s_and_b32 s{S_T2}, s2, 3")
    e(f"s_lshr_b32 s{S_T1}, s2, 2")
    e("v_lshrrev_b32 v2, 3, v0")
    e("v_and_b32 v3, 7, v0")
    e("v_lshlrev_b32 v1, 4, v0")
    e(f"s_cmp_eq_u32 s{S_WAVE}, 5"); e("s_cbranch_scc1 L_w5setup")
    e(f"s_mov_b32 s{S_T0}, 8192")
    e(f"s_mov_b32 s{S_T3}, {L_XN4}")
    e(f"s_mov_b32 s{S_C0}, {WS_Q}"); e(f"s_mov_b32 s{S_C1}, {4096*8}")
    e("s_waitcnt lgkmcnt(0)")
    build_srd(g, SRD_W, S_WQ, 0x400000)
    if o["dyn"]:
        e(f"s_and_b32 s{S_T4}, s2, 30"); e(f"s_cmp_lg_u32 s{S_T4}, 0"); e("s_cbranch_scc1 L_slice")
        e(f"s_and_b32 s{S_T4}, s2, 1"); e(f"s_lshl_b32 s{S_T4}, s{S_T4}, 3")
        e(f"s_lshr_b32 s{S_SOFF}, s2, 5"); e(f"s_add_u32 s{S_T4}, s{S_T4}, s{S_SOFF}")
        e(f"s_lshl_b32 s{S_T4}, s{S_T4}, 8"); e(f"s_add_u32 s{S_T4}, s{S_T4}, {WS_CNT}")
        e(f"v_mov_b32 v4, s{S_T4}"); e("v_mov_b32 v5, 0")
        e("s_mov_b64 exec, 1")
        e(f"global_store_dword v4, v5, s[{S_WS}:{S_WS+1}] sc1")
        e("s_mov_b64 exec, -1")
    e("s_branch L_slice")
    g.lab("L_w5setup")
    e(f"s_mov_b32 s{S_T0}, 3584")
    e(f"s_mov_b32 s{S_T3}, {L_XN5}")
    e(f"s_mov_b32 s{S_C0}, {WS_H}"); e(f"s_mov_b32 s{S_C1}, {1792*8}")
    e("s_waitcnt lgkmcnt(0)")
    build_srd(g, SRD_W, S_W1, 512*3584)
    e(f"s_cmp_ge_u32 s2, 112"); e("s_cbranch_scc1 L_hb0")
    g.lab("L_slice")
    stamp(g, 4, STA)
    build_srd(g, SRD_X, S_X, 2048)
    e(f"buffer_load_dwordx4 v[8:11], v1, s[{SRD_X}:{SRD_X+3}], 0 offen")
    e(f"buffer_load_dwordx4 v[12:15], v1, s[{SRD_X}:{SRD_X+3}], 0 offen offset:1024")
    e(f"v_mul_lo_u32 v2, v2, s{S_T0}")
    e("v_lshl_add_u32 v2, v3, 4, v2")
    e(f"s_lshl_b32 s{S_SOFF}, s{S_T2}, 7"); e(f"s_mul_i32 s{S_SOFF}, s{S_SOFF}, s{S_T0}")
    e(f"s_lshl_b32 s{S_T4}, s{S_T1}, 7"); e(f"s_add_u32 s{S_SOFF}, s{S_SOFF}, s{S_T4}")
    e(f"s_lshl_b32 s{S_RS32}, s{S_T0}, 3")
    for i in range(16):
        e(f"buffer_load_dwordx4 {vr(H_W+4*i,4)}, v2, s[{SRD_W}:{SRD_W+3}], s{S_SOFF} offen" + (" nt" if o.get("wnt") else ""))
        if i < 15:
            e(f"s_add_u32 s{S_SOFF}, s{S_SOFF}, s{S_RS32}")
    stamp(g, 5, STA)
    if o["b0"]:
        e("s_barrier")
    e(f"s_load_dword s{S_E}, s[{S_WS}:{S_WS+1}], {WS_E}")
    build_srd(g, SRD_WS, S_WS, WS_SIZE)
    build_srd(g, SRD_WO, S_WO, 0x400000)
    build_srd(g, SRD_OUT, S_OUT, 2048)
    e("s_waitcnt vmcnt(16)")
    stamp(g, 6, STA)
    X0, X1 = 16, 24
    for b, (src, dst) in enumerate(((8, X0), (12, X1))):
        for i in range(4):
            e(f"v_lshlrev_b32 v{dst+2*i}, 16, v{src+i}")
            e(f"v_and_b32 v{dst+2*i+1}, 0xffff0000, v{src+i}")
    SU = 32
    for b, dst in enumerate((X0, X1)):
        e(f"v_add_f32 v{SU+b}, v{dst}, v{dst+1}")
        for i in range(2, 8):
            e(f"v_add_f32 v{SU+b}, v{SU+b}, v{dst+i}")
    def wave_sum2(a):
        row_ror_reduce(g, [a, a+1], "v_add_f32", [1, 2, 4, 8])
        rows_reduce_multi(g, [a, a+1], [a+2, a+3], "v_add_f32")
    wave_sum2(SU)
    e(f"s_mov_b32 s{S_T4}, 0x3b000000")
    e(f"v_mul_f32 v{SU}, s{S_T4}, v{SU}")
    e(f"v_mul_f32 v{SU+1}, s{S_T4}, v{SU+1}")
    VA = 36
    for b, dst in enumerate((X0, X1)):
        e(f"v_sub_f32 v40, v{dst}, v{SU+b}")
        e(f"v_mul_f32 v{VA+b}, v40, v40")
        for i in range(1, 8):
            e(f"v_sub_f32 v40, v{dst+i}, v{SU+b}")
            e(f"v_fmac_f32 v{VA+b}, v40, v40")
    wave_sum2(VA)
    e(f"v_mul_f32 v{VA}, s{S_T4}, v{VA}")
    e(f"v_mul_f32 v{VA+1}, s{S_T4}, v{VA+1}")
    e(f"v_cvt_pk_bf16_f32 v40, v{SU}, v{SU+1}")
    e(f"v_cvt_pk_bf16_f32 v41, v{VA}, v{VA+1}")
    e(f"v_lshlrev_b32 v{SU}, 16, v40"); e(f"v_and_b32 v{SU+1}, 0xffff0000, v40")
    e(f"v_lshlrev_b32 v{VA}, 16, v41"); e(f"v_and_b32 v{VA+1}, 0xffff0000, v41")
    e(f"v_add_f32 v{VA}, 0x3727c5ac, v{VA}"); e(f"v_add_f32 v{VA+1}, 0x3727c5ac, v{VA+1}")
    e(f"v_cvt_pk_bf16_f32 v41, v{VA}, v{VA+1}")
    e(f"v_lshlrev_b32 v{VA}, 16, v41"); e(f"v_and_b32 v{VA+1}, 0xffff0000, v41")
    e(f"v_sqrt_f32 v{VA}, v{VA}"); e(f"v_sqrt_f32 v{VA+1}, v{VA+1}")
    g.nop(1)
    e(f"v_cvt_pk_bf16_f32 v41, v{VA}, v{VA+1}")
    e(f"v_lshlrev_b32 v{VA}, 16, v41"); e(f"v_and_b32 v{VA+1}, 0xffff0000, v41")
    e(f"v_rcp_f32 v38, v{VA}"); e(f"v_rcp_f32 v39, v{VA+1}")
    for b, dst in enumerate((X0, X1)):
        for i in range(8):
            e(f"v_sub_f32 v{dst+i}, v{dst+i}, v{SU+b}")
        for i in range(4):
            e(f"v_cvt_pk_bf16_f32 v40, v{dst+2*i}, v{dst+2*i+1}")
            e(f"v_lshlrev_b32 v{dst+2*i}, 16, v40"); e(f"v_and_b32 v{dst+2*i+1}, 0xffff0000, v40")
        for i in range(8):
            e(f"v_mul_f32 v41, v{dst+i}, v{38+b}")
            e(f"v_fma_f32 v42, -v41, v{VA+b}, v{dst+i}")
            e(f"v_fma_f32 v{dst+i}, v42, v{38+b}, v41")
        for i in range(4):
            e(f"v_cvt_pk_bf16_f32 v{44+4*b+i}, v{dst+2*i}, v{dst+2*i+1}")
    e("v_lshlrev_b32 v1, 4, v0")
    e(f"v_add_u32 v1, s{S_T3}, v1")
    e("ds_write_b128 v1, v[44:47]")
    e("ds_write_b128 v1, v[48:51] offset:1024")
    e("v_lshlrev_b32 v1, 4, v0")
    e(f"v_add_u32 v1, s{S_STG}, v1")
    e("v_lshrrev_b32 v2, 4, v0")
    e("v_bfe_u32 v3, v0, 2, 2")
    e("v_lshl_add_u32 v3, v2, 3, v3")
    e("v_and_b32 v4, 3, v0")
    e("v_lshlrev_b32 v5, 7, v3")
    e("v_lshl_add_u32 v5, v4, 3, v5")
    e(f"v_add_u32 v5, s{S_STG}, v5")
    e("v_and_b32 v6, 1, v0")
    e("v_lshlrev_b32 v6, 10, v6")
    e("v_lshl_add_u32 v6, v2, 4, v6")
    e(f"s_lshl_b32 s{S_T4}, s{S_T2}, 8"); e(f"s_add_u32 s{S_T4}, s{S_T4}, s{S_T3}")
    e(f"v_add_u32 v6, s{S_T4}, v6")
    ACC = 48
    stamp(g, 7, STA)
    if STA:
        e("s_waitcnt vmcnt(0)")
        stamp(g, 8, STA)
    for pc in range(4):
        e(f"ds_read_b128 {vr(16+4*pc,4)}, v6 offset:{64*pc}")
    for pc in range(4):
        e(f"s_waitcnt vmcnt({12-4*pc})")
        for i in range(4):
            e(f"ds_write_b128 v1, {vr(H_W+16*pc+4*i,4)} offset:{i*1024}")
        for c in range(4):
            e(f"ds_read_b64_tr_b16 {vr(32+4*c,2)}, v5 offset:{c*32}")
            e(f"ds_read_b64_tr_b16 {vr(32+4*c+2,2)}, v5 offset:{c*32+512}")
        e("s_waitcnt lgkmcnt(0)")
        for c in range(4):
            cc = "0" if pc == 0 else vr(ACC+4*c, 4)
            e(f"v_mfma_f32_16x16x32_bf16 {vr(ACC+4*c,4)}, {vr(16+4*pc,4)}, {vr(32+4*c,4)}, {cc}")
    e(f"s_mul_i32 s{S_TAG}, s{S_E}, 1664525")
    e(f"s_add_u32 s{S_TAG}, s{S_TAG}, 1013904223")
    e(f"s_lshl_b32 s{S_T0}, s{S_T2}, 1"); e(f"s_mul_i32 s{S_T0}, s{S_T0}, s{S_C1}")
    e(f"s_add_u32 s{S_T0}, s{S_T0}, s{S_C0}")
    e(f"s_lshl_b32 s{S_T4}, s{S_T1}, 9"); e(f"s_add_u32 s{S_T0}, s{S_T0}, s{S_T4}")
    e(f"s_add_u32 s{S_T4}, s{S_T0}, s{S_C1}")
    e("v_lshlrev_b32 v1, 3, v0")
    e(f"v_mov_b32 v9, s{S_TAG}"); e(f"v_mov_b32 v11, s{S_TAG}")
    g.nop(4)
    for c in range(4):
        if c < 2:
            e(f"s_mov_b32 exec_lo, {0xffff << (16*c):#x}"); e("s_mov_b32 exec_hi, 0")
        else:
            e("s_mov_b32 exec_lo, 0"); e(f"s_mov_b32 exec_hi, {0xffff << (16*(c-2)):#x}")
        e(f"v_mov_b32 v8, v{ACC+4*c}"); e(f"v_mov_b32 v10, v{ACC+4*c+1}")
    e("s_mov_b64 exec, -1")
    e(f"buffer_store_dwordx2 v[8:9], v1, s[{SRD_WS}:{SRD_WS+3}], s{S_T0} offen sc1")
    e(f"buffer_store_dwordx2 v[10:11], v1, s[{SRD_WS}:{SRD_WS+3}], s{S_T4} offen sc1")
    stamp(g, 1, ST)
    e("s_branch L_qg")
    g.lab("L_w67")
    e("s_waitcnt lgkmcnt(0)")
    e(f"s_load_dword s{S_E}, s[{S_WS}:{S_WS+1}], {WS_E}")
    build_srd(g, SRD_WS, S_WS, WS_SIZE)
    build_srd(g, SRD_X, S_X, 2048)
    build_srd(g, SRD_WO, S_WO, 0x400000)
    build_srd(g, SRD_OUT, S_OUT, 2048)
    e(f"s_cmp_eq_u32 s{S_WAVE}, 7"); e("s_cbranch_scc1 L_w7")
    e("s_branch L_qg")
    g.lab("L_w6")
    if o.get("prio_after") is not None:
        e(f"s_setprio {o['prio_after']}")
    build_srd(g, SRD_W, S_W2, 1792*1024)
    e(f"s_sub_u32 s{S_T0}, s2, 128")
    e(f"s_cmp_ge_u32 s{S_T0}, 112")
    e("s_cbranch_scc1 L_wo")
    e(f"s_lshr_b32 s{S_T1}, s{S_T0}, 2")
    e(f"s_and_b32 s{S_T2}, s{S_T0}, 3")
    e("v_lshrrev_b32 v2, 3, v0"); e("v_lshlrev_b32 v2, 10, v2")
    e("v_and_b32 v3, 7, v0"); e("v_lshl_add_u32 v2, v3, 4, v2")
    e(f"s_lshl_b32 s{S_SOFF}, s{S_T1}, 16")
    e(f"s_lshl_b32 s{S_T3}, s{S_T2}, 8")
    e(f"s_add_u32 s{S_SOFF}, s{S_SOFF}, s{S_T3}")
    for ks in range(2):
        for ch in range(2):
            for u in range(4):
                idx = (ks * 2 + ch) * 4 + u
                e(f"s_add_u32 s{S_T3}, s{S_SOFF}, {(32*ks+8*u)*1024}")
                e(f"buffer_load_dwordx4 {vr(H_W+4*idx,4)}, v2, s[{SRD_W}:{SRD_W+3}], s{S_T3} offen offset:{ch*128}" + (" nt" if o.get("wnt") else ""))
    stamp(g, 4, STF)
    e("v_lshlrev_b32 v1, 4, v0")
    e(f"v_add_u32 v1, s{S_STG}, v1")
    e("v_lshrrev_b32 v2, 4, v0"); e("v_bfe_u32 v3, v0, 2, 2"); e("v_lshl_add_u32 v3, v2, 3, v3"); e("v_and_b32 v4, 3, v0")
    e("v_lshlrev_b32 v5, 7, v3"); e("v_lshl_add_u32 v5, v4, 3, v5"); e(f"v_add_u32 v5, s{S_STG}, v5")
    e("s_waitcnt vmcnt(0)")
    stamp(g, 5, STF)
    for ks in range(2):
        for ch in range(2):
            pc = ks * 2 + ch
            for u in range(4):
                e(f"ds_write_b128 v1, {vr(H_W+16*pc+4*u,4)} offset:{u*1024}")
            for c in range(4):
                f = H_F + 4 * (ks * 8 + ch * 4 + c)
                e(f"ds_read_b64_tr_b16 {vr(f,2)}, v5 offset:{c*32}")
                e(f"ds_read_b64_tr_b16 {vr(f+2,2)}, v5 offset:{c*32+512}")
            e("s_waitcnt lgkmcnt(0)")
    e("v_lshrrev_b32 v6, 5, v0")
    e(f"v_mul_u32_u24 v6, {1792*8}, v6")
    e("v_and_b32 v7, 31, v0")
    e("v_lshl_add_u32 v6, v7, 4, v6")
    e(f"s_lshl_b32 s{S_T0}, s{S_T1}, 9"); e(f"s_add_u32 s{S_T0}, s{S_T0}, {WS_H}")
    def hl():
        for r4 in range(4):
            e(f"s_add_u32 s{S_T3}, s{S_T0}, {r4*2*1792*8}")
            e(f"buffer_load_dwordx4 {vr(16+4*r4,4)}, v6, s[{SRD_WS}:{SRD_WS+3}], s{S_T3} offen sc1")
    stamp(g, 6, STF)
    poll(g, "h", hl, [17+2*i for i in range(8)], 8)
    stamp(g, 7, STF)
    e("v_add_f32 v16, v16, v20"); e("v_add_f32 v18, v18, v22"); e("v_add_f32 v24, v24, v28"); e("v_add_f32 v26, v26, v30")
    e("v_add_f32 v16, v16, v24"); e("v_add_f32 v18, v18, v26")
    e("v_cvt_pk_bf16_f32 v8, v16, v18")
    e("v_lshlrev_b32 v10, 16, v8"); e("v_and_b32 v11, 0xffff0000, v8")
    e(f"s_mov_b32 s{S_T0}, {L2E:#x}")
    for r in (10, 11):
        e(f"v_mul_f32 v12, s{S_T0}, v{r}")
        e(f"v_exp_f32 v12, -v12"); g.nop(1)
        e(f"v_add_f32 v12, 1.0, v12")
        e(f"v_rcp_f32 v12, v12"); g.nop(1)
        e(f"v_mul_f32 v{r}, v{r}, v12")
    e("v_cvt_pk_bf16_f32 v12, v10, v11")
    e("v_lshlrev_b32 v7, 2, v0")
    e(f"v_add_u32 v7, {L_H}, v7")
    e("ds_write_b32 v7, v12")
    e("v_and_b32 v6, 1, v0"); e("v_lshlrev_b32 v6, 7, v6"); e("v_lshl_add_u32 v6, v2, 4, v6"); e(f"v_add_u32 v6, {L_H}, v6")
    e("ds_read_b128 v[16:19], v6")
    e("ds_read_b128 v[20:23], v6 offset:64")
    e("s_waitcnt lgkmcnt(0)")
    for c in range(8):
        e(f"v_mfma_f32_16x16x32_bf16 {vr(H_W+4*c,4)}, v[16:19], {vr(H_F+4*c,4)}, 0")
    for c in range(8):
        e(f"v_mfma_f32_16x16x32_bf16 {vr(H_W+4*c,4)}, v[20:23], {vr(H_F+32+4*c,4)}, {vr(H_W+4*c,4)}")
    g.nop(10)
    e("v_and_b32 v1, 15, v0"); e("v_lshlrev_b32 v1, 3, v1")
    e(f"s_lshl_b32 s{S_T0}, s{S_T1}, 13")
    e(f"s_lshl_b32 s{S_T3}, s{S_T2}, 10")
    e(f"s_add_u32 s{S_T0}, s{S_T0}, s{S_T3}"); e(f"s_add_u32 s{S_T0}, s{S_T0}, {WS_F}")
    e(f"s_add_u32 s{S_T3}, s{S_T0}, 4096")
    e(f"v_mov_b32 v9, s{S_TAG}"); e(f"v_mov_b32 v11, s{S_TAG}")
    e("s_mov_b64 exec, 0xffff")
    for c in range(8):
        e(f"v_mov_b32 v8, v{H_W+4*c}"); e(f"v_mov_b32 v10, v{H_W+4*c+1}")
        e(f"buffer_store_dwordx2 v[8:9], v1, s[{SRD_WS}:{SRD_WS+3}], s{S_T0} offen offset:{c*128} sc1")
        e(f"buffer_store_dwordx2 v[10:11], v1, s[{SRD_WS}:{SRD_WS+3}], s{S_T3} offen offset:{c*128} sc1")
        g.nop(2)
    e("s_mov_b64 exec, -1")
    stamp(g, 8, STF)
    e("s_branch L_wo")

    g.lab("L_w7")
    if o["prefetch_code"]:
        e(f"s_getpc_b64 s[{S_T0}:{S_T0+1}]")
        g.lab("L_pcbase")
        e(f"s_sub_u32 s{S_T0}, s{S_T0}, L_pcbase-{KN}_kernel")
        e(f"s_subb_u32 s{S_T0+1}, s{S_T0+1}, 0")
        e("v_lshlrev_b32 v1, 6, v0")
        e("CODE_PREFETCH_PLACEHOLDER")
    e("s_branch L_qg")
    g.lab("L_hb0")
    e(f"s_load_dword s{S_E}, s[{S_WS}:{S_WS+1}], {WS_E}")
    build_srd(g, SRD_WS, S_WS, WS_SIZE)
    build_srd(g, SRD_X, S_X, 2048)
    build_srd(g, SRD_WO, S_WO, 0x400000)
    build_srd(g, SRD_OUT, S_OUT, 2048)
    g.lab("L_qg")
    e("s_waitcnt lgkmcnt(0)")
    e(f"s_mul_i32 s{S_TAG}, s{S_E}, 1664525")
    e(f"s_add_u32 s{S_TAG}, s{S_TAG}, 1013904223")
    e(f"s_lshl_b32 s{S_T0}, s{S_B}, 12"); e(f"s_lshl_b32 s{S_T2}, s{S_HKV}, 9")
    e(f"s_add_u32 s{S_T0}, s{S_T0}, s{S_T2}")
    e(f"s_sub_u32 s{S_T2}, s{S_WAVE}, 4"); e(f"s_lshl_b32 s{S_T1}, s{S_T2}, 7")
    e(f"s_add_u32 s{S_T0}, s{S_T0}, s{S_T1}"); e(f"s_lshl_b32 s{S_T0}, s{S_T0}, 3")
    e(f"s_add_u32 s{S_T0}, s{S_T0}, {WS_Q}")
    e("v_lshlrev_b32 v1, 4, v0")
    def ql():
        for rb in range(4):
            e(f"s_add_u32 s{S_T1}, s{S_T0}, {rb*2*4096*8}")
            e(f"buffer_load_dwordx4 {vr(16+4*rb,4)}, v1, s[{SRD_WS}:{SRD_WS+3}], s{S_T1} offen sc1")
    poll(g, "q", ql, [17+2*i for i in range(8)], 8, sleep=o.get("qsleep", 4))
    e("v_add_f32 v16, v16, v20"); e("v_add_f32 v18, v18, v22"); e("v_add_f32 v24, v24, v28"); e("v_add_f32 v26, v26, v30")
    e("v_add_f32 v16, v16, v24"); e("v_add_f32 v18, v18, v26")
    e("v_cvt_pk_bf16_f32 v12, v16, v18")
    e(f"s_lshl_b32 s{S_T2}, s{S_T2}, 8"); e(f"s_add_u32 s{S_T2}, s{S_T2}, {L_Q}")
    e("v_lshlrev_b32 v1, 2, v0"); e(f"v_add_u32 v1, s{S_T2}, v1")
    e("ds_write_b32 v1, v12")
    e("s_waitcnt lgkmcnt(0)")
    stamp(g, 2, ST)
    e("s_barrier")
    e(f"s_cmp_eq_u32 s{S_WAVE}, 6"); e("s_cbranch_scc1 L_w6")
    g.lab("L_wo")
    if o.get("prio_after") is not None:
        e(f"s_setprio {o['prio_after']}")
    e(f"s_lshr_b32 s{S_T0}, s{S_SPLIT}, 2")
    e(f"s_lshl_b32 s{S_T1}, s{S_HKV}, 2"); e(f"s_add_u32 s{S_T1}, s{S_T1}, s{S_T0}")
    e(f"s_lshl_b32 s{S_SOFF}, s{S_T1}, 17")
    e(f"s_and_b32 s{S_T2}, s{S_SPLIT}, 3"); e(f"s_lshl_b32 s{S_T2}, s{S_T2}, 8")
    e(f"s_add_u32 s{S_SOFF}, s{S_SOFF}, s{S_T2}")
    e(f"s_sub_u32 s{S_T2}, s{S_WAVE}, 4"); e(f"s_lshl_b32 s{S_T2}, s{S_T2}, 6")
    e(f"s_add_u32 s{S_SOFF}, s{S_SOFF}, s{S_T2}")
    e("v_lshrrev_b32 v2, 2, v0"); e("v_lshlrev_b32 v2, 10, v2"); e("v_and_b32 v3, 3, v0"); e("v_lshl_add_u32 v2, v3, 4, v2")
    for u in range(8):
        e(f"buffer_load_dwordx4 {vr(H_W+4*u,4)}, v2, s[{SRD_WO}:{SRD_WO+3}], s{S_SOFF} offen" + (" nt" if o.get("wnt") else ""))
        if u < 7:
            e(f"s_add_u32 s{S_SOFF}, s{S_SOFF}, {16*1024}")
    e("v_lshlrev_b32 v1, 4, v0"); e(f"v_add_u32 v1, s{S_STG}, v1")
    e("v_lshrrev_b32 v2, 4, v0"); e("v_bfe_u32 v3, v0, 2, 2"); e("v_lshl_add_u32 v3, v2, 3, v3"); e("v_and_b32 v4, 3, v0")
    e("v_lshlrev_b32 v5, 6, v3"); e("v_lshl_add_u32 v5, v4, 3, v5"); e(f"v_add_u32 v5, s{S_STG}, v5")
    e("s_waitcnt vmcnt(0)")
    for pc in range(2):
        for u in range(4):
            e(f"ds_write_b128 v1, {vr(H_W+16*pc+4*u,4)} offset:{u*1024}")
        for ks in range(2):
            for ct in range(2):
                f = H_WO + 4 * ((pc * 2 + ks) * 2 + ct)
                e(f"ds_read_b64_tr_b16 {vr(f,2)}, v5 offset:{ks*2048+ct*32}")
                e(f"ds_read_b64_tr_b16 {vr(f+2,2)}, v5 offset:{ks*2048+ct*32+256}")
        e("s_waitcnt lgkmcnt(0)")
    e(f"s_cmp_lg_u32 s{S_WAVE}, 7"); e("s_cbranch_scc1 L_hb2")
    e("s_cmp_ge_u32 s2, 32"); e("s_cbranch_scc1 L_hb2")
    e("v_lshrrev_b32 v2, 5, v0"); e("v_bfe_u32 v3, v0, 3, 2"); e("v_and_b32 v4, 7, v0")
    e(f"v_mul_u32_u24 v5, {7*2*512*8}, v3")
    e("v_lshl_add_u32 v5, v2, 12, v5")
    e("v_lshl_add_u32 v5, v4, 4, v5")
    e(f"s_lshl_b32 s{S_T0}, s2, 7")
    e(f"v_add_u32 v5, s{S_T0}, v5")
    def fl():
        for i in range(7):
            e(f"s_mov_b32 s{S_T1}, {WS_F + i*8192}")
            e(f"buffer_load_dwordx4 {vr(16+4*i,4)}, v5, s[{SRD_WS}:{SRD_WS+3}], s{S_T1} offen sc1")
    e("v_lshlrev_b32 v6, 10, v2"); e("v_lshl_add_u32 v6, v4, 2, v6"); e(f"s_lshl_b32 s{S_T1}, s2, 5"); e(f"v_add_u32 v6, s{S_T1}, v6")
    e(f"buffer_load_dword v{H_G+2}, v6, s[{SRD_X}:{SRD_X+3}], 0 offen")
    poll(g, "f", fl, [16+4*i+1 for i in range(7)] + [16+4*i+3 for i in range(7)], 8)
    for i in range(1, 7):
        e(f"v_add_f32 v16, v16, v{16+4*i}"); e(f"v_add_f32 v18, v18, v{18+4*i}")
    g.nop(2)
    e("v_add_f32_dpp v16, v16, v16 row_ror:8 row_mask:0xf bank_mask:0xf")
    e("v_add_f32_dpp v18, v18, v18 row_ror:8 row_mask:0xf bank_mask:0xf")
    e("v_mov_b32 v20, v16"); e("v_mov_b32 v21, v18"); g.nop(2)
    e("v_permlane16_swap_b32 v16, v20"); e("v_permlane16_swap_b32 v18, v21"); g.nop(1)
    e("v_add_f32 v16, v16, v20"); e("v_add_f32 v18, v18, v21")
    e("v_cvt_pk_bf16_f32 v8, v16, v18")
    e("v_lshlrev_b32 v10, 16, v8"); e("v_and_b32 v11, 0xffff0000, v8")
    e(f"s_mov_b32 s{S_T0}, {L2E:#x}")
    for r in (10, 11):
        e(f"v_mul_f32 v12, s{S_T0}, v{r}")
        e(f"v_exp_f32 v12, -v12"); g.nop(1)
        e(f"v_add_f32 v12, 1.0, v12")
        e(f"v_rcp_f32 v12, v12"); g.nop(1)
        e(f"v_mul_f32 v{r}, v{r}, v12")
    e("v_cvt_pk_bf16_f32 v8, v10, v11")
    e(f"v_lshlrev_b32 v{H_G}, 16, v8"); e(f"v_and_b32 v{H_G+1}, 0xffff0000, v8")
    g.lab("L_hb2")
    stamp(g, 3, ST)

    g.lab("L_tail")
    if DS:
        LX = g.new("ds")
        e(f"s_cmp_lg_u32 s{S_WAVE}, 0"); e(f"s_cbranch_scc1 {LX}")
        dstamp(g, 2, True)
        e("v_mov_b32 v236, 12"); e("v_mov_b32 v237, s88")
        e("s_mov_b64 exec, 1")
        e(f"global_atomic_umax v236, v237, s[{S_DBG}:{S_DBG+1}]")
        e("s_mov_b64 exec, -1")
        e("s_not_b32 s90, s90")
        e("v_mov_b32 v236, 0"); e("v_mov_b32 v237, s90")
        e("s_mov_b64 exec, 1")
        e(f"global_atomic_umax v236, v237, s[{S_DBG}:{S_DBG+1}]")
        e("s_mov_b64 exec, -1")
        g.lab(LX)
    e("s_barrier")
    stamp(g, 4, STT)
    e(f"s_lshr_b32 s{S_T0}, s{S_WAVE}, 1")
    e(f"s_and_b32 s{S_T1}, s{S_WAVE}, 1"); e(f"s_lshl_b32 s{S_T1}, s{S_T1}, 6")
    e(f"v_add_u32 v1, s{S_T1}, v0")
    e(f"s_lshl_b32 s{S_T2}, s{S_T0}, 9")
    e("v_lshlrev_b32 v2, 2, v1"); e(f"v_add_u32 v2, s{S_T2}, v2")
    e(f"s_lshl_b32 s{S_T3}, s{S_T0}, 3"); e(f"s_add_u32 s{S_T3}, s{S_T3}, {L_ML}")
    e(f"v_mov_b32 v3, s{S_T3}")
    e(f"v_add_u32 v4, {RING}, v2"); e(f"v_add_u32 v5, {2*RING}, v2"); e(f"v_add_u32 v6, {3*RING}, v2")
    e("ds_read_b32 v8, v2"); e("ds_read_b32 v9, v4"); e("ds_read_b32 v10, v5"); e("ds_read_b32 v11, v6")
    for w in range(4):
        e(f"ds_read_b64 {vr(12+2*w,2)}, v3 offset:{w*32}")
    e(f"s_mov_b32 s{S_C0}, {L2E:#x}")
    e("s_waitcnt lgkmcnt(0)")
    e("v_max3_f32 v20, v12, v14, v16"); e("v_max_f32 v20, v20, v18")
    for w in range(4):
        e(f"v_sub_f32 v{12+2*w}, v{12+2*w}, v20"); e(f"v_mul_f32 v{12+2*w}, s{S_C0}, v{12+2*w}")
    for w in range(4):
        e(f"v_exp_f32 v{12+2*w}, v{12+2*w}")
    g.nop(1)
    e("v_mul_f32 v8, v8, v12"); e("v_mul_f32 v22, v13, v12")
    for w in range(1, 4):
        e(f"v_fmac_f32 v8, v{8+w}, v{12+2*w}"); e(f"v_fmac_f32 v22, v{13+2*w}, v{12+2*w}")
    e(f"v_mov_b32 v9, s{S_TAG}"); e(f"v_mov_b32 v21, s{S_TAG}"); e(f"v_mov_b32 v23, s{S_TAG}")
    e(f"s_lshl_b32 s{S_T2}, s{S_PAIR}, 4"); e(f"s_add_u32 s{S_T2}, s{S_T2}, s{S_SPLIT}")
    e(f"s_lshl_b32 s{S_T2}, s{S_T2}, 2"); e(f"s_add_u32 s{S_T2}, s{S_T2}, s{S_T0}")
    e(f"s_lshl_b32 s{S_T2}, s{S_T2}, 10"); e(f"s_add_u32 s{S_T2}, s{S_T2}, {WS_P}")
    e("v_lshlrev_b32 v1, 3, v1")
    e(f"buffer_store_dwordx2 v[8:9], v1, s[{SRD_WS}:{SRD_WS+3}], s{S_T2} offen sc1")
    e(f"s_cmp_lg_u32 s{S_T1}, 0"); e("s_cbranch_scc1 L_t2")
    e(f"s_lshl_b32 s{S_T2}, s{S_PAIR}, 2"); e(f"s_add_u32 s{S_T2}, s{S_T2}, s{S_T0}")
    e(f"s_lshl_b32 s{S_T2}, s{S_T2}, 4"); e(f"s_add_u32 s{S_T2}, s{S_T2}, s{S_SPLIT}")
    e(f"s_lshl_b32 s{S_T2}, s{S_T2}, 4"); e(f"s_add_u32 s{S_T2}, s{S_T2}, {WS_ML}")
    e("v_mov_b32 v2, 0")
    e("s_mov_b64 exec, 1")
    e(f"buffer_store_dwordx4 v[20:23], v2, s[{SRD_WS}:{SRD_WS+3}], s{S_T2} offen sc1")
    e("s_mov_b64 exec, -1")
    g.lab("L_t2")
    stamp(g, 5, STT)
    e(f"s_lshr_b32 s{S_T0}, s{S_SPLIT}, 2")
    e("v_lshrrev_b32 v2, 2, v0"); e("v_and_b32 v3, 3, v0")
    e("v_lshlrev_b32 v4, 12, v2")
    e("v_lshl_add_u32 v4, v3, 5, v4")
    e(f"s_lshl_b32 s{S_T1}, s{S_PAIR}, 16")
    e(f"s_lshl_b32 s{S_T2}, s{S_T0}, 10"); e(f"s_add_u32 s{S_T1}, s{S_T1}, s{S_T2}")
    e(f"s_lshl_b32 s{S_T2}, s{S_WAVE}, 7"); e(f"s_add_u32 s{S_T1}, s{S_T1}, s{S_T2}")
    e(f"s_add_u32 s{S_T1}, s{S_T1}, {WS_P}")
    e("v_lshlrev_b32 v5, 4, v2")
    e(f"s_lshl_b32 s{S_T2}, s{S_PAIR}, 2"); e(f"s_add_u32 s{S_T2}, s{S_T2}, s{S_T0}")
    e(f"s_lshl_b32 s{S_T2}, s{S_T2}, 8"); e(f"s_add_u32 s{S_T2}, s{S_T2}, {WS_ML}")
    def pl():
        e(f"buffer_load_dwordx4 v[8:11], v4, s[{SRD_WS}:{SRD_WS+3}], s{S_T1} offen sc1")
        e(f"buffer_load_dwordx4 v[12:15], v4, s[{SRD_WS}:{SRD_WS+3}], s{S_T1} offen offset:16 sc1")
        e(f"buffer_load_dwordx4 v[16:19], v5, s[{SRD_WS}:{SRD_WS+3}], s{S_T2} offen sc1")
    poll(g, "p", pl, [9, 11, 13, 15, 17, 19], 24)
    stamp(g, 6, STT)
    e("v_mov_b32 v20, v16")
    row_ror_reduce(g, [20], "v_max_f32", [4, 8])
    rows_reduce(g, 20, 21, "v_max_f32")
    e(f"s_mov_b32 s{S_C0}, {L2E:#x}")
    e("v_sub_f32 v16, v16, v20"); e(f"v_mul_f32 v16, s{S_C0}, v16"); e("v_exp_f32 v16, v16"); g.nop(1)
    e("v_mul_f32 v18, v18, v16")
    e("v_mul_f32 v8, v8, v16"); e("v_mul_f32 v10, v10, v16"); e("v_mul_f32 v12, v12, v16"); e("v_mul_f32 v14, v14, v16")
    row_ror_reduce(g, [8, 10, 12, 14, 18], "v_add_f32", [4, 8])
    rows_reduce_multi(g, [8, 10, 12, 14, 18], [26, 27, 28, 29, 30], "v_add_f32")
    e("v_rcp_f32 v19, v18"); g.nop(1)
    for r in (8, 10, 12, 14):
        e(f"v_mul_f32 v20, v{r}, v19"); e(f"v_fma_f32 v21, -v20, v18, v{r}"); e(f"v_fma_f32 v{r}, v21, v19, v20")
    e("v_cvt_pk_bf16_f32 v22, v8, v10"); e("v_cvt_pk_bf16_f32 v23, v12, v14")
    e(f"s_lshl_b32 s{S_T2}, s{S_WAVE}, 5"); e(f"s_add_u32 s{S_T2}, s{S_T2}, {L_OB}")
    e(f"v_lshlrev_b32 v3, 3, v3"); e(f"v_add_u32 v3, s{S_T2}, v3")
    e("s_mov_b64 exec, 0xf")
    e("ds_write_b64 v3, v[22:23]")
    e("s_mov_b64 exec, -1")
    e("s_waitcnt lgkmcnt(0)")
    e("s_barrier")
    e(f"s_cmp_lt_u32 s{S_WAVE}, 4"); e("s_cbranch_scc1 L_fin")
    e("v_lshrrev_b32 v2, 4, v0"); e("v_lshlrev_b32 v2, 4, v2"); e(f"v_add_u32 v2, {L_OB}, v2")
    for kk in range(4):
        e(f"ds_read_b128 {vr(8+4*kk,4)}, v2 offset:{kk*64}")
    e("s_waitcnt lgkmcnt(0)")
    for kk in range(4):
        for ct in range(2):
            c = "0" if kk == 0 else vr(24+4*ct, 4)
            e(f"v_mfma_f32_16x16x32_bf16 {vr(24+4*ct,4)}, {vr(8+4*kk,4)}, {vr(H_WO+4*(kk*2+ct),4)}, {c}")
    e(f"s_lshr_b32 s{S_T0}, s{S_SPLIT}, 2")
    e(f"s_lshl_b32 s{S_T1}, s{S_HKV}, 2"); e(f"s_add_u32 s{S_T1}, s{S_T1}, s{S_T0}")
    e(f"s_lshl_b32 s{S_T2}, s{S_B}, 5"); e(f"s_add_u32 s{S_T1}, s{S_T1}, s{S_T2}")
    e(f"s_lshl_b32 s{S_T1}, s{S_T1}, 12")
    e(f"s_and_b32 s{S_T2}, s{S_SPLIT}, 3"); e(f"s_lshl_b32 s{S_T2}, s{S_T2}, 10"); e(f"s_add_u32 s{S_T1}, s{S_T1}, s{S_T2}")
    e(f"s_sub_u32 s{S_T2}, s{S_WAVE}, 4"); e(f"s_lshl_b32 s{S_T2}, s{S_T2}, 8"); e(f"s_add_u32 s{S_T1}, s{S_T1}, s{S_T2}")
    e(f"s_add_u32 s{S_T1}, s{S_T1}, {WS_S}")
    e("v_lshlrev_b32 v1, 3, v0")
    e("v_cmp_gt_u32 vcc, 16, v0")
    g.nop(6)
    e("v_cndmask_b32 v8, v28, v24, vcc")
    e(f"v_mov_b32 v9, s{S_TAG}")
    e("s_mov_b32 exec_hi, 0")
    e(f"buffer_store_dwordx2 v[8:9], v1, s[{SRD_WS}:{SRD_WS+3}], s{S_T1} offen sc1")
    e("s_mov_b64 exec, -1")
    stamp(g, 7, STT)
    e(f"s_cmp_lg_u32 s{S_WAVE}, 7"); e("s_cbranch_scc1 L_fin")
    e("s_cmp_ge_u32 s2, 32"); e("s_cbranch_scc1 L_fin")
    e("v_lshrrev_b32 v2, 5, v0"); e("v_bfe_u32 v3, v0, 3, 2"); e("v_and_b32 v4, 7, v0")
    e("v_lshlrev_b32 v5, 17, v2")
    e("v_lshl_add_u32 v5, v3, 15, v5")
    e("v_lshl_add_u32 v5, v4, 4, v5")
    e(f"s_lshl_b32 s{S_T0}, s2, 7"); e(f"v_add_u32 v5, s{S_T0}, v5")
    e("v_lshlrev_b32 v6, 10, v2"); e("v_lshl_add_u32 v6, v4, 2, v6"); e(f"s_lshl_b32 s{S_T1}, s2, 5"); e(f"v_add_u32 v6, s{S_T1}, v6")
    def sl():
        for i in range(8):
            e(f"s_mov_b32 s{S_T1}, {WS_S + i*4096}")
            e(f"buffer_load_dwordx4 {vr(16+4*i,4)}, v5, s[{SRD_WS}:{SRD_WS+3}], s{S_T1} offen sc1")
    poll(g, "s", sl, [16+4*i+1 for i in range(8)] + [16+4*i+3 for i in range(8)], 8)
    stamp(g, 8, STT)
    for i in range(1, 8):
        e(f"v_add_f32 v16, v16, v{16+4*i}"); e(f"v_add_f32 v18, v18, v{18+4*i}")
    g.nop(2)
    e("v_add_f32_dpp v16, v16, v16 row_ror:8 row_mask:0xf bank_mask:0xf")
    e("v_add_f32_dpp v18, v18, v18 row_ror:8 row_mask:0xf bank_mask:0xf")
    e("v_mov_b32 v20, v16"); e("v_mov_b32 v21, v18"); g.nop(2)
    e("v_permlane16_swap_b32 v16, v20"); e("v_permlane16_swap_b32 v18, v21"); g.nop(1)
    e("v_add_f32 v16, v16, v20"); e("v_add_f32 v18, v18, v21")
    e("v_cvt_pk_bf16_f32 v8, v16, v18")
    e("v_lshlrev_b32 v10, 16, v8"); e("v_and_b32 v11, 0xffff0000, v8")
    e(f"v_mul_f32 v10, v10, v{H_G}"); e(f"v_mul_f32 v11, v11, v{H_G+1}")
    e("v_cvt_pk_bf16_f32 v8, v10, v11")
    e("v_lshlrev_b32 v10, 16, v8"); e("v_and_b32 v11, 0xffff0000, v8")
    e(f"v_lshlrev_b32 v12, 16, v{H_G+2}"); e(f"v_and_b32 v13, 0xffff0000, v{H_G+2}")
    e("v_add_f32 v10, v10, v12"); e("v_add_f32 v11, v11, v13")
    e("v_cvt_pk_bf16_f32 v8, v10, v11")
    e("s_mov_b32 exec_lo, 0xff"); e("s_mov_b32 exec_hi, 0xff")
    e(f"buffer_store_dword v8, v6, s[{SRD_OUT}:{SRD_OUT+3}], 0 offen")
    e("s_mov_b64 exec, -1")
    if DS: dstamp(g, 1, True)
    e("s_cmp_lg_u32 s2, 0"); e("s_cbranch_scc1 L_fin")
    e(f"v_mov_b32 v8, s{S_TAG}"); e("v_mov_b32 v1, 0")
    e("s_mov_b64 exec, 1")
    e(f"buffer_store_dword v8, v1, s[{SRD_WS}:{SRD_WS+3}], 0 offen sc1")
    e("s_mov_b64 exec, -1")
    g.lab("L_fin")
    if ST:
        stamp(g, 9, ST)
        e("s_waitcnt lgkmcnt(0)")
        e(f"s_lshl_b32 s{S_T0}, s2, 3"); e(f"s_add_u32 s{S_T0}, s{S_T0}, s{S_WAVE}"); e(f"s_lshl_b32 s{S_T0}, s{S_T0}, 6")
        e(f"s_add_u32 s{S_T0}, s{S_T0}, {WS_DBG}")
        e("v_mov_b32 v1, 0")
        e("s_mov_b64 exec, 1")
        for i in range(10):
            e(f"v_mov_b32 v2, s{S_ST0+2*i}")
            e(f"buffer_store_dword v2, v1, s[{SRD_WS}:{SRD_WS+3}], s{S_T0} offen offset:{4*i}")
            g.nop(1)
    g.lab("L_end")
    e("s_endpgm")
    g.lab("L_code_end")
    g.L.append('.section .rodata,"a"')
    g.L.append(".p2align 6")
    g.L.append(f".amdhsa_kernel {KN}_kernel")
    for s in ["next_free_vgpr 240", "next_free_sgpr 102", "accum_offset 240", "group_segment_fixed_size 0", "kernarg_size 88",
              "user_sgpr_count 2", "user_sgpr_kernarg_segment_ptr 1", "system_sgpr_workgroup_id_x 1",
              "float_denorm_mode_32 3", "float_denorm_mode_16_64 3"]:
        g.L.append("  .amdhsa_" + s)
    g.L.append(".end_amdhsa_kernel")
    txt = "\n".join(g.L) + "\n"
    pf = []
    for i in range(o.get("pf_kib", 16) // 4):
        pf.append(f"  v_min_u32 v3, L_code_end-{KN}_kernel-4, v1")
        pf.append(f"  global_load_dword v230, v3, s[{S_T0}:{S_T0+1}]")
        pf.append(f"  v_add_u32 v1, 4096, v1")
    txt = txt.replace("  CODE_PREFETCH_PLACEHOLDER", "\n".join(pf))
    return txt

if __name__ == "__main__":
    import json
    opt = json.loads(sys.argv[2]) if len(sys.argv) > 2 else {}
    open(sys.argv[1], "w").write(gen(opt))
```

```python
import sys
KN = "recurrent_scan__gqa_block_cached__dense_activation_silu__decode"

WS_E   = 0x0
WS_Q   = 0x200000
WS_H   = 0x240000
WS_ML  = 0x28000
WS_F   = 0x30000
WS_S   = 0x80000
WS_P   = 0x400000
WS_CNT = 0x2A0000
WS_DBG = 0x300000
WS_SIZE = 0x800000

RING   = 32768
L_STG  = 0x20000
L_XN4  = 0x24000
L_XN5  = 0x24800
L_Q    = 0x25000
L_H    = 0x25400
L_OB   = 0x25600
L_ML   = 0x25800
L_FLAG = 0x25900
LDS_BYTES = 0x26000

L2E = 0x3fb8aa3b
SCALE = 0x3db504f3
NEG_INF = 0xff800000

DEBUG_TO = True
class G:
    def __init__(self):
        self.L = []
        self.uid = 0
    def e(self, s):
        self.L.append("  " + s)
    def lab(self, s):
        self.L.append(s + ":")
    def new(self, p):
        self.uid += 1
        return f"L_{p}_{self.uid}"
    def nop(self, n):
        while n > 0:
            k = min(n, 16)
            self.e(f"s_nop {k-1}")
            n -= k

def vr(a, n=None):
    return f"v{a}" if n is None else f"v[{a}:{a+n-1}]"
def sr(a, n=None):
    return f"s{a}" if n is None else f"s[{a}:{a+n-1}]"

S_WAVE = 3
S_X, S_K, S_V, S_WQ, S_WO, S_BX, S_W1, S_W2 = 4, 6, 8, 10, 12, 14, 16, 18
S_OUT, S_DBG, S_WS = 20, 22, 24
S_TAG, S_E = 26, 27
SRD_K, SRD_V, SRD_WS, SRD_W, SRD_X, SRD_OUT, SRD_WO = 28, 32, 36, 40, 44, 48, 52
S_PAIR, S_SPLIT, S_B, S_HKV = 56, 57, 58, 59
S_T0, S_T1, S_T2, S_T3, S_T4, S_T5 = 60, 61, 62, 63, 64, 65
S_RETRY = 66
S_OFF = 67
S_RB = 68
S_PB = 69
S_CNT = 70
S_SOFF = 71
S_RS32 = 72
S_EX = 74
S_ST0 = 76
S_C0 = 96
S_C1 = 97
S_ROT = 98
S_NEXT = 99

def build_srd(g, d, ptr, size):
    g.e(f"s_mov_b32 s{d}, s{ptr}")
    g.e(f"s_and_b32 s{d+1}, s{ptr+1}, 0xffff")
    g.e(f"s_mov_b32 s{d+2}, {size:#x}")
    g.e(f"s_mov_b32 s{d+3}, 0x20000")

def rows_reduce(g, v, t, op):
    for sw in ("v_permlane16_swap_b32", "v_permlane32_swap_b32"):
        g.e(f"v_mov_b32 v{t}, v{v}")
        g.nop(2)
        g.e(f"{sw} v{v}, v{t}")
        g.nop(1)
        g.e(f"{op} v{v}, v{v}, v{t}")

def rows_reduce_multi(g, vs, ts, op):
    for sw in ("v_permlane16_swap_b32", "v_permlane32_swap_b32"):
        for v, t in zip(vs, ts):
            g.e(f"v_mov_b32 v{t}, v{v}")
        g.nop(max(0, 3 - len(vs)) if len(vs) < 3 else 0)
        if len(vs) >= 3: pass
        g.nop(1)
        for v, t in zip(vs, ts):
            g.e(f"{sw} v{v}, v{t}")
        g.nop(1)
        for v, t in zip(vs, ts):
            g.e(f"{op} v{v}, v{v}, v{t}")
        g.nop(1)

def row_ror_reduce(g, vs, op, rors):
    for r in rors:
        g.nop(2)
        for v in vs:
            g.e(f"{op}_dpp v{v}, v{v}, v{v} row_ror:{r} row_mask:0xf bank_mask:0xf")
            if len(vs) == 1:
                pass
    g.nop(1)

POLL_IDS = {"q": 0, "h": 1, "f": 2, "p": 3, "s": 4}
def poll(g, name, issue_loads, tag_regs, tmp, dbgword=None, sleep=1):
    L = g.new("poll_" + name); D = g.new("polld_" + name); TO = g.new("pollto_" + name)
    g.e(f"s_mov_b32 s{S_RETRY}, 0x40000")
    g.lab(L)
    issue_loads()
    g.e("s_waitcnt vmcnt(0)")
    g.e(f"v_xor_b32 v{tmp}, s{S_TAG}, v{tag_regs[0]}")
    for t in tag_regs[1:]:
        g.e(f"v_xor_b32 v{tmp+1}, s{S_TAG}, v{t}")
        g.e(f"v_or_b32 v{tmp}, v{tmp}, v{tmp+1}")
    g.e(f"v_cmp_ne_u32 vcc, 0, v{tmp}")
    g.e(f"s_cbranch_vccz {D}")
    g.e("s_mov_b64 exec, vcc")
    g.e(f"s_sub_u32 s{S_RETRY}, s{S_RETRY}, 1")
    g.e(f"s_cbranch_scc1 {TO}")
    g.e(f"s_sleep {sleep}")
    g.e(f"s_branch {L}")
    g.lab(TO)
    if DEBUG_TO:
        g.e(f"v_mov_b32 v{tmp}, {4*POLL_IDS[name]}")
        g.e(f"v_mov_b32 v{tmp+1}, s2")
        g.e(f"v_add_u32 v{tmp+1}, 0x1000, v{tmp+1}")
        g.e(f"global_store_dword v{tmp}, v{tmp+1}, s[{S_DBG}:{S_DBG+1}]")
    g.lab(D)
    g.e("s_mov_b64 exec, -1")

PUB = {"mode": "store"}
def pub2(g, vdata, voff, soff, imm=0):
    off = f" offset:{imm}" if imm else ""
    if PUB["mode"] == "atomic":
        g.e(f"buffer_atomic_swap_x2 v[{vdata}:{vdata+1}], v{voff}, s[{SRD_WS}:{SRD_WS+3}], {soff} offen{off}")
    elif PUB["mode"] == "atomic_sc1":
        g.e(f"buffer_atomic_swap_x2 v[{vdata}:{vdata+1}], v{voff}, s[{SRD_WS}:{SRD_WS+3}], {soff} offen{off} sc1")
    elif PUB["mode"] == "store_sc01":
        g.e(f"buffer_store_dwordx2 v[{vdata}:{vdata+1}], v{voff}, s[{SRD_WS}:{SRD_WS+3}], {soff} offen{off} sc0 sc1")
    else:
        g.e(f"buffer_store_dwordx2 v[{vdata}:{vdata+1}], v{voff}, s[{SRD_WS}:{SRD_WS+3}], {soff} offen{off} sc1")

def poll2(g, name, issue, nloads, tags, on_ok, A, B, tmp, stagger=10):
    L = g.new("p2_" + name); D = g.new("p2d_" + name); TO = g.new("p2to_" + name)
    W = "s[100:101]"
    def check(base):
        tr = tags(base)
        g.e(f"s_mov_b64 exec, {W}")
        g.e(f"v_xor_b32 v{tmp}, s{S_TAG}, v{tr[0]}")
        for t in tr[1:]:
            g.e(f"v_xor_b32 v{tmp+1}, s{S_TAG}, v{t}")
            g.e(f"v_or_b32 v{tmp}, v{tmp}, v{tmp+1}")
        g.e(f"v_cmp_ne_u32 vcc, 0, v{tmp}")
        g.e(f"s_andn2_b64 exec, {W}, vcc")
        SK = g.new("p2s")
        g.e(f"s_cbranch_execz {SK}")
        on_ok(base)
        g.lab(SK)
        g.e(f"s_mov_b64 {W}, vcc")
        g.e(f"s_cbranch_vccz {D}")
        g.e(f"s_mov_b64 exec, {W}")
    g.e(f"s_mov_b32 s{S_RETRY}, 0x40000")
    g.e(f"s_mov_b64 {W}, -1")
    issue(A)
    g.e(f"s_sleep {stagger}")
    g.lab(L)
    issue(B)
    g.e(f"s_waitcnt vmcnt({nloads})")
    check(A)
    issue(A)
    g.e(f"s_waitcnt vmcnt({nloads})")
    check(B)
    g.e(f"s_sub_u32 s{S_RETRY}, s{S_RETRY}, 1")
    g.e(f"s_cbranch_scc0 {L}")
    if DEBUG_TO:
        g.e(f"v_mov_b32 v{tmp}, {4*POLL_IDS[name]}")
        g.e(f"v_mov_b32 v{tmp+1}, s2")
        g.e(f"v_add_u32 v{tmp+1}, 0x1000, v{tmp+1}")
        g.e(f"global_store_dword v{tmp}, v{tmp+1}, s[{S_DBG}:{S_DBG+1}]")
    g.lab(D)
    g.e("s_mov_b64 exec, -1")

def dstamp(g, word, on, tmpv=(236, 237), sp=(92, 93)):
    if not on: return
    g.e(f"s_memrealtime s[{sp[0]}:{sp[1]}]")
    g.e("s_waitcnt lgkmcnt(0)")
    g.e(f"v_mov_b32 v{tmpv[0]}, {4*word}")
    g.e(f"v_mov_b32 v{tmpv[1]}, s{sp[0]}")
    g.e("s_mov_b64 s[94:95], exec")
    g.e("s_mov_b64 exec, 1")
    g.e(f"global_atomic_umax v{tmpv[0]}, v{tmpv[1]}, s[{S_DBG}:{S_DBG+1}]")
    g.e("s_mov_b64 exec, s[94:95]")

def stamp(g, idx, on):
    if on:
        g.e(f"s_memrealtime s[{S_ST0+2*idx}:{S_ST0+2*idx+1}]")

def gen(opt=None):
    o = dict(pattern="grp16", rot=512*1024, xmap=False, stamps=False, ntiles=16, prefetch_code=True, stage=99, b0=True, thr=16, prio=True, dyn=True, sthr=24, wnt=1, ns=10, poll2=False, copies=1, wofl="")
    if opt: o.update(opt)
    DS = False
    DS2 = bool(o.get("dstamps"))
    ST = bool(o["stamps"])
    STT = o["stamps"] is True
    STA = o["stamps"] == "A"
    STP = o["stamps"] == "P"
    STF = o["stamps"] == "F"
    STL = o["stamps"] == "L"
    PUB["mode"] = o.get("pub", "store")
    g = G(); e = g.e
    g.L.append(f"; @launch grid=(256,1,1) block=(512,1,1) lds={LDS_BYTES}")
    g.L.append('.amdgcn_target "amdgcn-amd-amdhsa--gfx950"')
    g.L.append(".text")
    g.L.append(f".globl {KN}_kernel")
    g.L.append(".p2align 8")
    g.L.append(f".type {KN}_kernel,@function")
    g.lab(f"{KN}_kernel")
    e("s_cmp_ge_u32 s2, 256")
    e("s_cbranch_scc1 L_end")
    stamp(g, 0, ST)
    if DS2: e("s_memrealtime s[90:91]")
    e(f"s_load_dwordx16 s[4:19], s[0:1], 0")
    e(f"s_load_dwordx4 s[20:23], s[0:1], 64")
    e(f"s_load_dwordx2 s[24:25], s[0:1], 80")
    e("v_lshrrev_b32 v1, 6, v0")
    e("v_and_b32 v0, 63, v0")
    e(f"v_readfirstlane_b32 s{S_WAVE}, v1")
    if o["xmap"]:
        e(f"s_and_b32 s{S_T0}, s2, 7"); e(f"s_lshl_b32 s{S_T0}, s{S_T0}, 5"); e(f"s_lshr_b32 s{S_T1}, s2, 3")
        e(f"s_add_u32 s{S_T0}, s{S_T0}, s{S_T1}")
        e(f"s_lshr_b32 s{S_PAIR}, s{S_T0}, 4"); e(f"s_and_b32 s{S_SPLIT}, s{S_T0}, 15")
    else:
        e(f"s_lshr_b32 s{S_PAIR}, s2, 4"); e(f"s_and_b32 s{S_SPLIT}, s2, 15")
    e(f"s_lshr_b32 s{S_B}, s{S_PAIR}, 3"); e(f"s_and_b32 s{S_HKV}, s{S_PAIR}, 7")
    e(f"s_cmp_ge_u32 s{S_WAVE}, 4")
    e("s_cbranch_scc1 L_helper")

    V_KD, V_VD, V_KR, V_VR = 8, 12, 14, 18
    V_Q, V_O = 28, 44
    RK = (76, 140); RV = (108, 172)
    V_S, V_A, V_P = 204, 212, 220
    V_M, V_L, V_AL, V_NM, V_MX, V_T = 224, 225, 226, 227, 228, 229
    e("v_lshrrev_b32 v1, 4, v0")
    e("v_and_b32 v2, 15, v0")
    e("v_lshlrev_b32 v3, 8, v1")
    e("v_xor_b32 v4, v2, v1")
    for n in range(4):
        e(f"v_xor_b32 v5, {4*n}, v4")
        e(f"v_lshl_add_u32 v{V_KD+n}, v5, 4, v3")
    e("v_lshlrev_b32 v4, 1, v1")
    e("v_xor_b32 v4, v2, v4")
    for n in range(2):
        e(f"v_xor_b32 v5, {8*n}, v4")
        e(f"v_lshl_add_u32 v{V_VD+n}, v5, 4, v3")
    e(f"s_lshl_b32 s{S_RB}, s{S_WAVE}, 15")
    e(f"s_lshl_b32 s{S_PB}, s{S_PAIR}, 23")
    if o["pattern"] == "grp16":
        e(f"s_lshl_b32 s{S_OFF}, s{S_SPLIT}, 2"); e(f"s_add_u32 s{S_OFF}, s{S_OFF}, s{S_WAVE}")
        e(f"s_lshl_b32 s{S_OFF}, s{S_OFF}, 13")
        STEP = 16 * 4 * 8192
    else:
        e(f"s_lshl_b32 s{S_OFF}, s{S_SPLIT}, 6"); e(f"s_add_u32 s{S_OFF}, s{S_OFF}, s{S_WAVE}")
        e(f"s_lshl_b32 s{S_OFF}, s{S_OFF}, 13")
        STEP = 4 * 8192
    e(f"s_mul_i32 s{S_ROT}, s{S_PAIR}, {o['rot']}")
    e(f"s_add_u32 s{S_OFF}, s{S_OFF}, s{S_ROT}")
    e("s_waitcnt lgkmcnt(0)")
    stamp(g, 4, STA)
    e(f"s_load_dword s{S_E}, s[{S_WS}:{S_WS+1}], {WS_E}")
    build_srd(g, SRD_K, S_K, 0x8000000)
    build_srd(g, SRD_V, S_V, 0x8000000)

    def tile_addr():
        e(f"s_and_b32 s{S_SOFF}, s{S_OFF}, 0x7fffff")
        e(f"s_add_u32 s{S_SOFF}, s{S_SOFF}, s{S_PB}")
    def issue(which, slot):
        srd = SRD_K if which == 0 else SRD_V
        for half in range(2):
            off = slot * 16384 + which * 8192 + half * 4096
            e(f"s_add_u32 m0, s{S_RB}, {off}")
            if half == 0:
                e(f"s_mov_b32 s{S_T0}, s{S_SOFF}")
            else:
                e(f"s_add_u32 s{S_T0}, s{S_SOFF}, 4096")
            for i in range(4):
                n = half * 4 + i
                vo = (V_KD + (n & 3)) if which == 0 else (V_VD + (n & 1))
                fl = o.get("kfl" if which == 0 else "vfl", " nt")
                e(f"buffer_load_dwordx4 v{vo}, s[{srd}:{srd+3}], s{S_T0} offen offset:{i*1024}{fl} lds")
    THR = o["thr"]
    nissued = 0
    for slot in range(2):
        tile_addr()
        for which in range(2):
            if o["b0"] and nissued == o.get("b0at", 8):
                e("s_barrier")
            if nissued + 8 > THR:
                e(f"s_waitcnt vmcnt({THR - 8})")
                stamp(g, 3 + nissued // 8, STP)
            issue(which, slot)
            nissued += 8
        e(f"s_add_u32 s{S_OFF}, s{S_OFF}, {STEP}")
    stamp(g, 5, STA)
    e("v_and_b32 v1, 15, v0")
    e("v_lshrrev_b32 v2, 4, v0")
    e("v_xor_b32 v3, v2, v1")
    e(f"v_lshlrev_b32 v4, 8, v1")
    e(f"v_add_u32 v4, s{S_RB}, v4")
    for kk in range(4):
        e(f"v_xor_b32 v5, {4*kk}, v3")
        e(f"v_lshl_add_u32 v{V_KR+kk}, v5, 4, v4")
    e("v_lshrrev_b32 v1, 2, v0")
    e("v_and_b32 v2, 7, v1")
    e("v_and_b32 v3, 3, v0")
    e("v_lshlrev_b32 v4, 8, v1")
    e("v_lshl_add_u32 v4, v3, 3, v4")
    e(f"v_add_u32 v4, s{S_RB}, v4")
    e("v_add_u32 v4, 8192, v4")
    for dt in range(8):
        e(f"v_xor_b32 v5, {dt}, v2")
        e(f"v_lshl_add_u32 v{V_VR+dt}, v5, 5, v4")
    for i in range(32):
        e(f"v_mov_b32 v{V_O+i}, 0")
    for i in range(16):
        e(f"v_mov_b32 v{V_Q+i}, 0")
    e(f"v_mov_b32 v{V_M}, {NEG_INF:#x}")
    for r in (236, 237, 238, 239): e(f"v_mov_b32 v{r}, 0")
    e(f"v_mov_b32 v{V_L}, 0")
    build_srd(g, SRD_WS, S_WS, WS_SIZE)
    build_srd(g, SRD_X, S_X, 2048)
    build_srd(g, SRD_WO, S_WO, 0x400000)
    build_srd(g, SRD_OUT, S_OUT, 2048)

    def load(rs, slot, do_issue, wK, wV, thr=None, pst=None):
        e(f"s_waitcnt vmcnt({wK})")
        for T in range(2):
            for kk in range(4):
                if not o.get("noread"): e(f"ds_read_b128 {vr(RK[rs]+16*T+4*kk,4)}, v{V_KR+kk} offset:{slot*16384+T*4096}")
        e("s_waitcnt lgkmcnt(0)")
        if do_issue:
            tile_addr()
            if thr is not None and thr < 32: e(f"s_waitcnt vmcnt({thr-8})")
            if pst is not None: stamp(g, pst, STP)
            issue(0, slot)
        e(f"s_waitcnt vmcnt({wV})")
        for dt in range(8):
            for T in range(2):
                if not o.get("noread"): e(f"ds_read_b64_tr_b16 {vr(RV[rs]+4*dt+2*T,2)}, v{V_VR+dt} offset:{slot*16384+T*4096}")
        e("s_waitcnt lgkmcnt(0)")
        if do_issue:
            if thr is not None and thr < 32: e(f"s_waitcnt vmcnt({thr-8})")
            if pst is not None: stamp(g, pst+1, STP)
            issue(1, slot)
            e(f"s_add_u32 s{S_OFF}, s{S_OFF}, {STEP}")

    def compute(rs):
        if o.get("nocompute"): return
        KF, VF = RK[rs], RV[rs]
        for kk in range(4):
            for T in range(2):
                c = "0" if kk == 0 else vr(V_S+4*T, 4)
                e(f"v_mfma_f32_16x16x32_bf16 {vr(V_S+4*T,4)}, {vr(KF+16*T+4*kk,4)}, {vr(V_Q+4*kk,4)}, {c}")
        g.nop(8)
        t = V_T
        for i in range(4):
            e(f"v_cvt_pk_bf16_f32 v{t+i}, v{V_S+2*i}, v{V_S+2*i+1}")
        for i in range(4):
            e(f"v_lshlrev_b32 v{V_A+2*i}, 16, v{t+i}")
            e(f"v_and_b32 v{V_A+2*i+1}, 0xffff0000, v{t+i}")
        for i in range(8):
            e(f"v_mul_f32 v{V_A+i}, s{S_C1}, v{V_A+i}")
        for i in range(4):
            e(f"v_cvt_pk_bf16_f32 v{t+i}, v{V_A+2*i}, v{V_A+2*i+1}")
        for i in range(4):
            e(f"v_lshlrev_b32 v{V_A+2*i}, 16, v{t+i}")
            e(f"v_and_b32 v{V_A+2*i+1}, 0xffff0000, v{t+i}")
        e(f"v_max3_f32 v{V_MX}, v{V_A}, v{V_A+1}, v{V_A+2}")
        e(f"v_max3_f32 v{V_MX}, v{V_MX}, v{V_A+3}, v{V_A+4}")
        e(f"v_max3_f32 v{V_MX}, v{V_MX}, v{V_A+5}, v{V_A+6}")
        e(f"v_max3_f32 v{V_MX}, v{V_MX}, v{V_A+7}, v{V_M}")
        rows_reduce(g, V_MX, t, "v_max_f32")
        e(f"v_sub_f32 v{V_AL}, v{V_M}, v{V_MX}")
        e(f"v_mul_f32 v{V_AL}, s{S_C0}, v{V_AL}")
        e(f"v_exp_f32 v{V_AL}, v{V_AL}")
        e(f"v_mov_b32 v{V_M}, v{V_MX}")
        e(f"v_mul_f32 v{V_NM}, s{S_C0}, v{V_MX}")
        for i in range(8):
            e(f"v_fma_f32 v{V_A+i}, v{V_A+i}, s{S_C0}, -v{V_NM}")
        for i in range(8):
            e(f"v_exp_f32 v{V_A+i}, v{V_A+i}")
        e(f"v_mul_f32 v{V_L}, v{V_L}, v{V_AL}")
        for i in range(16):
            e(f"v_pk_mul_f32 {vr(V_O+2*i,2)}, {vr(V_O+2*i,2)}, {vr(V_AL,2)} op_sel_hi:[1,0]")
        for i in range(4):
            e(f"v_cvt_pk_bf16_f32 v{V_P+i}, v{V_A+2*i}, v{V_A+2*i+1}")
        e(f"v_add_f32 v{t}, v{V_A}, v{V_A+1}")
        e(f"v_add_f32 v{t+1}, v{V_A+2}, v{V_A+3}")
        e(f"v_add_f32 v{t+2}, v{V_A+4}, v{V_A+5}")
        e(f"v_add_f32 v{t+3}, v{V_A+6}, v{V_A+7}")
        e(f"v_add_f32 v{t}, v{t}, v{t+1}")
        e(f"v_add_f32 v{t+2}, v{t+2}, v{t+3}")
        e(f"v_add_f32 v{t}, v{t}, v{t+2}")
        e(f"v_add_f32 v{V_L}, v{V_L}, v{t}")
        for dt in range(8):
            e(f"v_mfma_f32_16x16x32_bf16 {vr(V_O+4*dt,4)}, {vr(VF+4*dt,4)}, {vr(V_P,4)}, {vr(V_O+4*dt,4)}")

    load(0, 0, True, 24, 24, THR, 7)
    load(1, 1, True, 24, 24, THR, None)
    e("s_waitcnt lgkmcnt(0)")
    e(f"s_mul_i32 s{S_TAG}, s{S_E}, 1664525")
    e(f"s_add_u32 s{S_TAG}, s{S_TAG}, 1013904223")
    stamp(g, 1, ST)
    e("s_barrier")
    if DS2: e("s_memrealtime s[86:87]")
    stamp(g, 2, ST)
    if DS:
        LX = g.new("ds")
        e(f"s_cmp_lg_u32 s{S_WAVE}, 0"); e(f"s_cbranch_scc1 {LX}")
        e("s_memrealtime s[88:89]")
        g.lab(LX)
    e("v_and_b32 v1, 15, v0")
    e("v_lshrrev_b32 v2, 4, v0")
    e("v_lshlrev_b32 v1, 8, v1")
    e("v_lshl_add_u32 v1, v2, 4, v1")
    e(f"v_add_u32 v1, {L_Q}, v1")
    e(f"s_mov_b32 s{S_EX}, 0x000f000f"); e(f"s_mov_b32 s{S_EX+1}, 0x000f000f")
    e(f"s_mov_b64 exec, s[{S_EX}:{S_EX+1}]")
    for kk in range(4):
        e(f"ds_read_b128 {vr(V_Q+4*kk,4)}, v1 offset:{kk*64}")
    e("s_mov_b64 exec, -1")
    e(f"s_mov_b32 s{S_C0}, {L2E:#x}")
    e(f"s_mov_b32 s{S_C1}, {SCALE:#x}")
    e("s_waitcnt lgkmcnt(0)")

    NT = o["ntiles"]
    STHR = o.get("sthr", 32)
    if not o["dyn"]:
        nloop = (NT - 4) // 2
        if STL:
            for it in range(nloop):
                compute(0); load(0, 0, True, 24, 24, STHR)
                compute(1); load(1, 1, True, 24, 24, STHR)
                if it < 5: stamp(g, 4 + it, True)
        else:
            e(f"s_mov_b32 s{S_CNT}, {nloop}")
            g.lab("L_loop")
            compute(0); load(0, 0, True, 24, 24, STHR)
            compute(1); load(1, 1, True, 24, 24, STHR)
            e(f"s_sub_u32 s{S_CNT}, s{S_CNT}, 1")
            e(f"s_cmp_lg_u32 s{S_CNT}, 0")
            e("s_cbranch_scc1 L_loop")
        compute(0); load(0, 0, False, 24, 16)
        compute(1); load(1, 1, False, 8, 0)
        compute(0)
        compute(1)
    else:
        NS = o.get("ns", 5)
        NSTAT = NS * 64
        V_TK, V_ONE, V_CA = 233, 234, 235
        cap = min(STHR, 24) - 8
        e(f"s_sub_u32 s{S_NEXT}, s{S_OFF}, s{S_ROT}")
        e(f"s_lshr_b32 s{S_NEXT}, s{S_NEXT}, 13")
        e(f"s_sub_u32 s{S_NEXT}, s{S_NEXT}, {NSTAT}")
        e(f"s_add_u32 s95, s{S_NEXT}, {NSTAT}")
        e(f"v_mov_b32 v{V_TK}, s{S_NEXT}")
        e(f"v_mov_b32 v{V_ONE}, 1")
        e(f"s_lshl_b32 s{S_T0}, s{S_PAIR}, 8"); e(f"s_add_u32 s{S_T0}, s{S_T0}, {WS_CNT}")
        e(f"v_mov_b32 v{V_CA}, s{S_T0}")
        e(f"s_mov_b32 s{S_CNT}, 0"); e("s_mov_b32 s73, 0")
        def readK(rs, slot):
            if o.get("noread"): return
            for T in range(2):
                for kk in range(4):
                    e(f"ds_read_b128 {vr(RK[rs]+16*T+4*kk,4)}, v{V_KR+kk} offset:{slot*16384+T*4096}")
            e("s_waitcnt lgkmcnt(0)")
        def readV(rs, slot):
            if o.get("noread"): return
            for dt in range(8):
                for T in range(2):
                    e(f"ds_read_b64_tr_b16 {vr(RV[rs]+4*dt+2*T,2)}, v{V_VR+dt} offset:{slot*16384+T*4096}")
            e("s_waitcnt lgkmcnt(0)")
        def dload(sg):
            e("s_waitcnt vmcnt(25)")
            readK(sg, sg)
            e(f"s_waitcnt vmcnt({cap})")
            e(f"v_readfirstlane_b32 s{S_NEXT}, v{V_TK}")
            e(f"s_add_u32 s{S_NEXT}, s{S_NEXT}, {NSTAT}")
            e(f"s_cmp_ge_u32 s{S_NEXT}, 1024")
            e(f"s_cbranch_scc1 L_drain{sg}")
            if NS > 5:
                LA = g.new("tka"); LB = g.new("tkb")
                e(f"s_add_u32 s95, s95, 64")
                e(f"s_cmp_ge_u32 s95, {NSTAT}"); e(f"s_cbranch_scc1 {LA}")
                e(f"s_sub_u32 s{S_T0}, s95, {NSTAT}")
                e(f"v_mov_b32 v{V_TK}, s{S_T0}")
                e(f"s_branch {LB}")
                g.lab(LA)
            e("s_mov_b64 exec, 1")
            e(f"global_atomic_add v{V_TK}, v{V_CA}, v{V_ONE}, s[{S_WS}:{S_WS+1}] sc0")
            e("s_mov_b64 exec, -1")
            if NS > 5: g.lab(LB)
            e(f"s_lshl_b32 s{S_OFF}, s{S_NEXT}, 13")
            e(f"s_add_u32 s{S_OFF}, s{S_OFF}, s{S_ROT}")
            tile_addr(); issue(0, sg)
            e("s_waitcnt vmcnt(26)")
            readV(sg, sg)
            e(f"s_waitcnt vmcnt({cap})")
            issue(1, sg)
            e(f"s_add_u32 s{S_CNT}, s{S_CNT}, 1")
        S_DR, S_E0, S_EM = 73, 92, 94
        S_PREV, S_NP = 92, 93
        NPA = o.get("npa", 0); NPC = o.get("npc", 112)
        def do_atomic():
            e("s_mov_b64 exec, 1")
            e(f"global_atomic_add v{V_TK}, v{V_CA}, v{V_ONE}, s[{S_WS}:{S_WS+1}] sc0")
            e("s_mov_b64 exec, -1")
        def ticket(faillabel, np_check=False):
            e(f"v_readfirstlane_b32 s{S_NEXT}, v{V_TK}")
            e(f"s_add_u32 s{S_NEXT}, s{S_NEXT}, {NSTAT}")
            e(f"s_cmp_ge_u32 s{S_NEXT}, 1024")
            e(f"s_cbranch_scc1 {faillabel}")
            LB = g.new("tkb")
            if np_check and NPA:
                LN = g.new("tkn")
                e(f"s_sub_u32 s{S_T0}, s{S_NEXT}, s{S_PREV}")
                e(f"s_mov_b32 s{S_PREV}, s{S_NEXT}")
                e(f"s_mul_i32 s{S_T0}, s{S_T0}, {NPA}")
                e(f"s_add_u32 s{S_T0}, s{S_T0}, s{S_NEXT}")
                e(f"s_cmp_le_u32 s{S_T0}, {1024 + NPC}"); e(f"s_cbranch_scc1 {LN}")
                e(f"s_mov_b32 s{S_NP}, 1")
                e(f"s_branch {LB}")
                g.lab(LN)
            elif NPA:
                e(f"s_mov_b32 s{S_PREV}, s{S_NEXT}")
            if NS > 5:
                LA = g.new("tka")
                e(f"s_add_u32 s95, s95, 64")
                e(f"s_cmp_ge_u32 s95, {NSTAT}"); e(f"s_cbranch_scc1 {LA}")
                e(f"s_sub_u32 s{S_T0}, s95, {NSTAT}")
                e(f"v_mov_b32 v{V_TK}, s{S_T0}")
                e(f"s_branch {LB}")
                g.lab(LA)
            do_atomic()
            g.lab(LB)
            e(f"s_lshl_b32 s{S_OFF}, s{S_NEXT}, 13")
            e(f"s_add_u32 s{S_OFF}, s{S_OFF}, s{S_ROT}")
            tile_addr()
        if o.get("single", True):
            e(f"s_mov_b32 s{S_NP}, 0")
            compute(0)
            e("s_waitcnt vmcnt(24)")
            readK(0, 0)
            ticket("L_ldone")
            issue(0, 0)
            e("s_waitcnt vmcnt(24)")
            readV(0, 0)
            issue(1, 0)
            compute(1)
            e("s_waitcnt vmcnt(24)")
            readK(1, 1)
            e("s_waitcnt vmcnt(16)")
            readV(1, 1)
            compute(0)
            compute(1)
            g.lab("L_loop")
            e("s_waitcnt vmcnt(8)")
            readK(0, 0)
            if NPA:
                e(f"s_cmp_eq_u32 s{S_NP}, 1"); e("s_cbranch_scc1 L_np")
            ticket("L_last", True)
            issue(0, 0)
            e("s_waitcnt vmcnt(8)")
            readV(0, 0)
            issue(1, 0)
            e(f"s_add_u32 s{S_CNT}, s{S_CNT}, 1")
            g.lab("L_comp")
            compute(0)
            e(f"s_cmp_eq_u32 s{S_DR}, 0"); e("s_cbranch_scc1 L_loop")
            if NPA:
                e(f"s_cmp_eq_u32 s{S_DR}, 1"); e("s_cbranch_scc1 L_ldone")
                do_atomic()
                e("s_waitcnt vmcnt(0)")
                e(f"v_readfirstlane_b32 s{S_NEXT}, v{V_TK}")
                e(f"s_add_u32 s{S_NEXT}, s{S_NEXT}, {NSTAT}")
                e(f"s_cmp_ge_u32 s{S_NEXT}, 1024"); e("s_cbranch_scc1 L_ldone")
                e(f"s_lshl_b32 s{S_OFF}, s{S_NEXT}, 13")
                e(f"s_add_u32 s{S_OFF}, s{S_OFF}, s{S_ROT}")
                tile_addr(); issue(0, 0); issue(1, 0)
                e(f"s_add_u32 s{S_CNT}, s{S_CNT}, 1")
                e(f"s_mov_b32 s{S_DR}, 0")
                e("s_branch L_loop")
                g.lab("L_np")
                e(f"s_mov_b32 s{S_DR}, 2")
                e("s_waitcnt vmcnt(0)")
                readV(0, 0)
                e("s_branch L_comp")
            else:
                e("s_branch L_ldone")
            g.lab("L_last")
            e(f"s_mov_b32 s{S_DR}, 1")
            e("s_waitcnt vmcnt(0)")
            readV(0, 0)
            e("s_branch L_comp")
        else:
            e(f"s_mov_b32 s{S_E0}, 0"); e(f"s_mov_b32 s{S_E0+1}, 0"); e(f"s_mov_b32 s{S_EM}, 0")
            g.lab("L_loop")
            for sg in range(2):
                compute(sg)
                e(f"s_cmp_eq_u32 s{S_E0+sg}, 1"); e(f"s_cbranch_scc1 L_empty{sg}")
                e(f"s_cmp_eq_u32 s{S_DR}, 1"); e(f"s_cbranch_scc1 L_dw{sg}")
                e("s_waitcnt vmcnt(24)")
                readK(sg, sg)
                e(f"s_waitcnt vmcnt({cap})")
                ticket(f"L_noref{sg}")
                issue(0, sg)
                e("s_waitcnt vmcnt(24)")
                readV(sg, sg)
                e(f"s_waitcnt vmcnt({cap})")
                issue(1, sg)
                e(f"s_add_u32 s{S_CNT}, s{S_CNT}, 1")
                e(f"s_branch L_next{sg}")
                g.lab(f"L_dw{sg}")
                e("s_waitcnt vmcnt(0)")
                readK(sg, sg)
                g.lab(f"L_noref{sg}")
                e(f"s_mov_b32 s{S_DR}, 1"); e(f"s_mov_b32 s{S_E0+sg}, 1")
                e("s_waitcnt vmcnt(16)")
                readV(sg, sg)
                e(f"s_branch L_next{sg}")
                g.lab(f"L_empty{sg}")
                e(f"s_add_u32 s{S_EM}, s{S_EM}, 1")
                e(f"s_cmp_eq_u32 s{S_EM}, 2"); e("s_cbranch_scc1 L_ldone")
                g.lab(f"L_next{sg}")
            e("s_branch L_loop")
        g.lab("L_ldone")
        if STL: e(f"s_mov_b32 s{S_ST0+8}, s{S_CNT}")
    stamp(g, 3, ST and not STP)
    if DS2: e("s_memrealtime s[88:89]")
    rows_reduce(g, V_L, V_T, "v_add_f32")
    e("v_and_b32 v1, 15, v0")
    e("v_lshrrev_b32 v2, 4, v0")
    e("v_lshlrev_b32 v3, 9, v1")
    e("v_lshl_add_u32 v3, v2, 4, v3")
    e(f"v_add_u32 v3, s{S_RB}, v3")
    e(f"s_lshl_b32 s{S_T0}, s{S_WAVE}, 5")
    e(f"s_add_u32 s{S_T0}, s{S_T0}, {L_ML}")
    e(f"v_lshlrev_b32 v4, 3, v1")
    e(f"v_add_u32 v4, s{S_T0}, v4")
    g.nop(8)
    e(f"s_mov_b64 exec, s[{S_EX}:{S_EX+1}]")
    for dt in range(8):
        e(f"ds_write_b128 v3, {vr(V_O+4*dt,4)} offset:{dt*64}")
    e(f"ds_write_b64 v4, {vr(V_M,2)}")
    e("s_mov_b64 exec, -1")
    e(f"s_mov_b64 s[{S_T2}:{S_T2+1}], s[{S_X}:{S_X+1}]")
    for r in (228, 229, 231, 232, 233, 234, 235): e(f"v_mov_b32 v{r}, 0")
    e("s_waitcnt lgkmcnt(0)")
    e("s_branch L_tail")

    g.lab("L_helper")
    H_W = 64
    H_F = 128
    H_WO = 192
    H_G = 224
    S_STG = S_T5
    if o.get("skipA"):
        e("s_waitcnt lgkmcnt(0)")
        e(f"s_load_dword s{S_E}, s[{S_WS}:{S_WS+1}], {WS_E}")
        build_srd(g, SRD_WS, S_WS, WS_SIZE); build_srd(g, SRD_X, S_X, 2048); build_srd(g, SRD_WO, S_WO, 0x400000); build_srd(g, SRD_OUT, S_OUT, 2048)
        build_srd(g, SRD_W, S_WQ, 0x400000)
        e("s_waitcnt lgkmcnt(0)")
        e(f"s_mul_i32 s{S_TAG}, s{S_E}, 1664525"); e(f"s_add_u32 s{S_TAG}, s{S_TAG}, 1013904223")
        if o["b0"]: e("s_barrier")
        e("s_barrier")
        e("s_branch L_hb2")
    if o["prio"]:
        e("s_setprio 3")
    e(f"s_sub_u32 s{S_T5}, s{S_WAVE}, 4")
    e(f"s_lshl_b32 s{S_T5}, s{S_T5}, 12")
    e(f"s_add_u32 s{S_T5}, s{S_T5}, {L_STG}")
    e(f"s_cmp_ge_u32 s{S_WAVE}, 6"); e("s_cbranch_scc1 L_w67")
    e(f"s_and_b32 s{S_T2}, s2, 3")
    e(f"s_lshr_b32 s{S_T1}, s2, 2")
    e("v_lshrrev_b32 v2, 3, v0")
    e("v_and_b32 v3, 7, v0")
    e("v_lshlrev_b32 v1, 4, v0")
    e(f"s_cmp_eq_u32 s{S_WAVE}, 5"); e("s_cbranch_scc1 L_w5setup")
    e(f"s_mov_b32 s{S_T0}, 8192")
    e(f"s_mov_b32 s{S_T3}, {L_XN4}")
    e(f"s_mov_b32 s{S_C0}, {WS_Q}"); e(f"s_mov_b32 s{S_C1}, {4096*8}")
    e("s_waitcnt lgkmcnt(0)")
    build_srd(g, SRD_W, S_WQ, 0x400000)
    if o["dyn"]:
        e(f"s_and_b32 s{S_T4}, s2, 30"); e(f"s_cmp_lg_u32 s{S_T4}, 0"); e("s_cbranch_scc1 L_slice")
        e(f"s_and_b32 s{S_T4}, s2, 1"); e(f"s_lshl_b32 s{S_T4}, s{S_T4}, 3")
        e(f"s_lshr_b32 s{S_SOFF}, s2, 5"); e(f"s_add_u32 s{S_T4}, s{S_T4}, s{S_SOFF}")
        e(f"s_lshl_b32 s{S_T4}, s{S_T4}, 8"); e(f"s_add_u32 s{S_T4}, s{S_T4}, {WS_CNT}")
        e(f"v_mov_b32 v4, s{S_T4}"); e("v_mov_b32 v5, 0")
        e("s_mov_b64 exec, 1")
        e(f"global_store_dword v4, v5, s[{S_WS}:{S_WS+1}] sc1")
        e("s_mov_b64 exec, -1")
    e("s_branch L_slice")
    g.lab("L_w5setup")
    e(f"s_mov_b32 s{S_T0}, 3584")
    e(f"s_mov_b32 s{S_T3}, {L_XN5}")
    e(f"s_mov_b32 s{S_C0}, {WS_H}"); e(f"s_mov_b32 s{S_C1}, {1792*8}")
    e("s_waitcnt lgkmcnt(0)")
    build_srd(g, SRD_W, S_W1, 512*3584)
    e(f"s_cmp_ge_u32 s2, 112"); e("s_cbranch_scc1 L_hb0")
    g.lab("L_slice")
    stamp(g, 4, STA)
    build_srd(g, SRD_X, S_X, 2048)
    e(f"buffer_load_dwordx4 v[8:11], v1, s[{SRD_X}:{SRD_X+3}], 0 offen")
    e(f"buffer_load_dwordx4 v[12:15], v1, s[{SRD_X}:{SRD_X+3}], 0 offen offset:1024")
    e(f"v_mul_lo_u32 v2, v2, s{S_T0}")
    e("v_lshl_add_u32 v2, v3, 4, v2")
    e(f"s_lshl_b32 s{S_SOFF}, s{S_T2}, 7"); e(f"s_mul_i32 s{S_SOFF}, s{S_SOFF}, s{S_T0}")
    e(f"s_lshl_b32 s{S_T4}, s{S_T1}, 7"); e(f"s_add_u32 s{S_SOFF}, s{S_SOFF}, s{S_T4}")
    e(f"s_lshl_b32 s{S_RS32}, s{S_T0}, 3")
    for i in range(16):
        e(f"buffer_load_dwordx4 {vr(H_W+4*i,4)}, v2, s[{SRD_W}:{SRD_W+3}], s{S_SOFF} offen" + (" nt" if o.get("wnt") else ""))
        if i < 15:
            e(f"s_add_u32 s{S_SOFF}, s{S_SOFF}, s{S_RS32}")
    stamp(g, 5, STA)
    if o["b0"]:
        e("s_barrier")
    e(f"s_load_dword s{S_E}, s[{S_WS}:{S_WS+1}], {WS_E}")
    build_srd(g, SRD_WS, S_WS, WS_SIZE)
    build_srd(g, SRD_WO, S_WO, 0x400000)
    build_srd(g, SRD_OUT, S_OUT, 2048)
    e("s_waitcnt vmcnt(16)")
    stamp(g, 6, STA)
    X0, X1 = 16, 24
    for b, (src, dst) in enumerate(((8, X0), (12, X1))):
        for i in range(4):
            e(f"v_lshlrev_b32 v{dst+2*i}, 16, v{src+i}")
            e(f"v_and_b32 v{dst+2*i+1}, 0xffff0000, v{src+i}")
    SU = 32
    for b, dst in enumerate((X0, X1)):
        e(f"v_add_f32 v{SU+b}, v{dst}, v{dst+1}")
        for i in range(2, 8):
            e(f"v_add_f32 v{SU+b}, v{SU+b}, v{dst+i}")
    def wave_sum2(a):
        row_ror_reduce(g, [a, a+1], "v_add_f32", [1, 2, 4, 8])
        rows_reduce_multi(g, [a, a+1], [a+2, a+3], "v_add_f32")
    wave_sum2(SU)
    e(f"s_mov_b32 s{S_T4}, 0x3b000000")
    e(f"v_mul_f32 v{SU}, s{S_T4}, v{SU}")
    e(f"v_mul_f32 v{SU+1}, s{S_T4}, v{SU+1}")
    VA = 36
    for b, dst in enumerate((X0, X1)):
        e(f"v_sub_f32 v40, v{dst}, v{SU+b}")
        e(f"v_mul_f32 v{VA+b}, v40, v40")
        for i in range(1, 8):
            e(f"v_sub_f32 v40, v{dst+i}, v{SU+b}")
            e(f"v_fmac_f32 v{VA+b}, v40, v40")
    wave_sum2(VA)
    e(f"v_mul_f32 v{VA}, s{S_T4}, v{VA}")
    e(f"v_mul_f32 v{VA+1}, s{S_T4}, v{VA+1}")
    e(f"v_cvt_pk_bf16_f32 v40, v{SU}, v{SU+1}")
    e(f"v_cvt_pk_bf16_f32 v41, v{VA}, v{VA+1}")
    e(f"v_lshlrev_b32 v{SU}, 16, v40"); e(f"v_and_b32 v{SU+1}, 0xffff0000, v40")
    e(f"v_lshlrev_b32 v{VA}, 16, v41"); e(f"v_and_b32 v{VA+1}, 0xffff0000, v41")
    e(f"v_add_f32 v{VA}, 0x3727c5ac, v{VA}"); e(f"v_add_f32 v{VA+1}, 0x3727c5ac, v{VA+1}")
    e(f"v_cvt_pk_bf16_f32 v41, v{VA}, v{VA+1}")
    e(f"v_lshlrev_b32 v{VA}, 16, v41"); e(f"v_and_b32 v{VA+1}, 0xffff0000, v41")
    e(f"v_sqrt_f32 v{VA}, v{VA}"); e(f"v_sqrt_f32 v{VA+1}, v{VA+1}")
    g.nop(1)
    e(f"v_cvt_pk_bf16_f32 v41, v{VA}, v{VA+1}")
    e(f"v_lshlrev_b32 v{VA}, 16, v41"); e(f"v_and_b32 v{VA+1}, 0xffff0000, v41")
    e(f"v_rcp_f32 v38, v{VA}"); e(f"v_rcp_f32 v39, v{VA+1}")
    for b, dst in enumerate((X0, X1)):
        for i in range(8):
            e(f"v_sub_f32 v{dst+i}, v{dst+i}, v{SU+b}")
        for i in range(4):
            e(f"v_cvt_pk_bf16_f32 v40, v{dst+2*i}, v{dst+2*i+1}")
            e(f"v_lshlrev_b32 v{dst+2*i}, 16, v40"); e(f"v_and_b32 v{dst+2*i+1}, 0xffff0000, v40")
        for i in range(8):
            e(f"v_mul_f32 v41, v{dst+i}, v{38+b}")
            e(f"v_fma_f32 v42, -v41, v{VA+b}, v{dst+i}")
            e(f"v_fma_f32 v{dst+i}, v42, v{38+b}, v41")
        for i in range(4):
            e(f"v_cvt_pk_bf16_f32 v{44+4*b+i}, v{dst+2*i}, v{dst+2*i+1}")
    e("v_lshlrev_b32 v1, 4, v0")
    e(f"v_add_u32 v1, s{S_T3}, v1")
    e("ds_write_b128 v1, v[44:47]")
    e("ds_write_b128 v1, v[48:51] offset:1024")
    e("v_lshlrev_b32 v1, 4, v0")
    e(f"v_add_u32 v1, s{S_STG}, v1")
    e("v_lshrrev_b32 v2, 4, v0")
    e("v_bfe_u32 v3, v0, 2, 2")
    e("v_lshl_add_u32 v3, v2, 3, v3")
    e("v_and_b32 v4, 3, v0")
    e("v_lshlrev_b32 v5, 7, v3")
    e("v_lshl_add_u32 v5, v4, 3, v5")
    e(f"v_add_u32 v5, s{S_STG}, v5")
    e("v_and_b32 v6, 1, v0")
    e("v_lshlrev_b32 v6, 10, v6")
    e("v_lshl_add_u32 v6, v2, 4, v6")
    e(f"s_lshl_b32 s{S_T4}, s{S_T2}, 8"); e(f"s_add_u32 s{S_T4}, s{S_T4}, s{S_T3}")
    e(f"v_add_u32 v6, s{S_T4}, v6")
    ACC = 48
    stamp(g, 7, STA)
    if STA:
        e("s_waitcnt vmcnt(0)")
        stamp(g, 8, STA)
    for pc in range(4):
        e(f"ds_read_b128 {vr(16+4*pc,4)}, v6 offset:{64*pc}")
    for pc in range(4):
        e(f"s_waitcnt vmcnt({12-4*pc})")
        for i in range(4):
            e(f"ds_write_b128 v1, {vr(H_W+16*pc+4*i,4)} offset:{i*1024}")
        for c in range(4):
            e(f"ds_read_b64_tr_b16 {vr(32+4*c,2)}, v5 offset:{c*32}")
            e(f"ds_read_b64_tr_b16 {vr(32+4*c+2,2)}, v5 offset:{c*32+512}")
        e("s_waitcnt lgkmcnt(0)")
        for c in range(4):
            cc = "0" if pc == 0 else vr(ACC+4*c, 4)
            e(f"v_mfma_f32_16x16x32_bf16 {vr(ACC+4*c,4)}, {vr(16+4*pc,4)}, {vr(32+4*c,4)}, {cc}")
    e(f"s_mul_i32 s{S_TAG}, s{S_E}, 1664525")
    e(f"s_add_u32 s{S_TAG}, s{S_TAG}, 1013904223")
    e(f"s_lshl_b32 s{S_T0}, s{S_T2}, 1"); e(f"s_mul_i32 s{S_T0}, s{S_T0}, s{S_C1}")
    e(f"s_add_u32 s{S_T0}, s{S_T0}, s{S_C0}")
    e(f"s_lshl_b32 s{S_T4}, s{S_T1}, 9"); e(f"s_add_u32 s{S_T0}, s{S_T0}, s{S_T4}")
    e(f"s_add_u32 s{S_T4}, s{S_T0}, s{S_C1}")
    e("v_lshlrev_b32 v1, 3, v0")
    e(f"v_mov_b32 v9, s{S_TAG}"); e(f"v_mov_b32 v11, s{S_TAG}")
    g.nop(4)
    for c in range(4):
        if c < 2:
            e(f"s_mov_b32 exec_lo, {0xffff << (16*c):#x}"); e("s_mov_b32 exec_hi, 0")
        else:
            e("s_mov_b32 exec_lo, 0"); e(f"s_mov_b32 exec_hi, {0xffff << (16*(c-2)):#x}")
        e(f"v_mov_b32 v8, v{ACC+4*c}"); e(f"v_mov_b32 v10, v{ACC+4*c+1}")
    e("s_mov_b64 exec, -1")
    pub2(g, 8, 1, f"s{S_T0}")
    pub2(g, 10, 1, f"s{S_T4}")
    stamp(g, 1, ST)
    e("s_branch L_qg")
    g.lab("L_w67")
    if o["b0"]:
        e("s_barrier")
    e("s_waitcnt lgkmcnt(0)")
    e(f"s_load_dword s{S_E}, s[{S_WS}:{S_WS+1}], {WS_E}")
    build_srd(g, SRD_WS, S_WS, WS_SIZE)
    build_srd(g, SRD_X, S_X, 2048)
    build_srd(g, SRD_WO, S_WO, 0x400000)
    build_srd(g, SRD_OUT, S_OUT, 2048)
    e(f"s_cmp_eq_u32 s{S_WAVE}, 7"); e("s_cbranch_scc1 L_w7")
    e("s_branch L_qg")
    g.lab("L_w6")
    if o.get("prio_after") is not None:
        e(f"s_setprio {o['prio_after']}")
    build_srd(g, SRD_W, S_W2, 1792*1024)
    e(f"s_sub_u32 s{S_T0}, s2, 128")
    e(f"s_cmp_ge_u32 s{S_T0}, 112")
    e("s_cbranch_scc1 L_wo")
    e(f"s_lshr_b32 s{S_T1}, s{S_T0}, 2")
    e(f"s_and_b32 s{S_T2}, s{S_T0}, 3")
    e("v_lshrrev_b32 v2, 3, v0"); e("v_lshlrev_b32 v2, 10, v2")
    e("v_and_b32 v3, 7, v0"); e("v_lshl_add_u32 v2, v3, 4, v2")
    e(f"s_lshl_b32 s{S_SOFF}, s{S_T1}, 16")
    e(f"s_lshl_b32 s{S_T3}, s{S_T2}, 8")
    e(f"s_add_u32 s{S_SOFF}, s{S_SOFF}, s{S_T3}")
    for ks in range(2):
        for ch in range(2):
            for u in range(4):
                idx = (ks * 2 + ch) * 4 + u
                e(f"s_add_u32 s{S_T3}, s{S_SOFF}, {(32*ks+8*u)*1024}")
                e(f"buffer_load_dwordx4 {vr(H_W+4*idx,4)}, v2, s[{SRD_W}:{SRD_W+3}], s{S_T3} offen offset:{ch*128}" + (" nt" if o.get("wnt") else ""))
    stamp(g, 4, STF)
    e("v_lshlrev_b32 v1, 4, v0")
    e(f"v_add_u32 v1, s{S_STG}, v1")
    e("v_lshrrev_b32 v2, 4, v0"); e("v_bfe_u32 v3, v0, 2, 2"); e("v_lshl_add_u32 v3, v2, 3, v3"); e("v_and_b32 v4, 3, v0")
    e("v_lshlrev_b32 v5, 7, v3"); e("v_lshl_add_u32 v5, v4, 3, v5"); e(f"v_add_u32 v5, s{S_STG}, v5")
    e("s_waitcnt vmcnt(0)")
    stamp(g, 5, STF)
    for ks in range(2):
        for ch in range(2):
            pc = ks * 2 + ch
            for u in range(4):
                e(f"ds_write_b128 v1, {vr(H_W+16*pc+4*u,4)} offset:{u*1024}")
            for c in range(4):
                f = H_F + 4 * (ks * 8 + ch * 4 + c)
                e(f"ds_read_b64_tr_b16 {vr(f,2)}, v5 offset:{c*32}")
                e(f"ds_read_b64_tr_b16 {vr(f+2,2)}, v5 offset:{c*32+512}")
            e("s_waitcnt lgkmcnt(0)")
    e("v_lshrrev_b32 v6, 5, v0")
    e(f"v_mul_u32_u24 v6, {1792*8}, v6")
    e("v_and_b32 v7, 31, v0")
    e("v_lshl_add_u32 v6, v7, 4, v6")
    e(f"s_lshl_b32 s{S_T0}, s{S_T1}, 9"); e(f"s_add_u32 s{S_T0}, s{S_T0}, {WS_H}")
    def hl():
        for r4 in range(4):
            e(f"s_add_u32 s{S_T3}, s{S_T0}, {r4*2*1792*8}")
            e(f"buffer_load_dwordx4 {vr(16+4*r4,4)}, v6, s[{SRD_WS}:{SRD_WS+3}], s{S_T3} offen sc1")
    stamp(g, 6, STF)
    poll(g, "h", hl, [17+2*i for i in range(8)], 8, sleep=8)
    stamp(g, 7, STF)
    e("v_add_f32 v16, v16, v20"); e("v_add_f32 v18, v18, v22"); e("v_add_f32 v24, v24, v28"); e("v_add_f32 v26, v26, v30")
    e("v_add_f32 v16, v16, v24"); e("v_add_f32 v18, v18, v26")
    e("v_cvt_pk_bf16_f32 v8, v16, v18")
    e("v_lshlrev_b32 v10, 16, v8"); e("v_and_b32 v11, 0xffff0000, v8")
    e(f"s_mov_b32 s{S_T0}, {L2E:#x}")
    for r in (10, 11):
        e(f"v_mul_f32 v12, s{S_T0}, v{r}")
        e(f"v_exp_f32 v12, -v12"); g.nop(1)
        e(f"v_add_f32 v12, 1.0, v12")
        e(f"v_rcp_f32 v12, v12"); g.nop(1)
        e(f"v_mul_f32 v{r}, v{r}, v12")
    e("v_cvt_pk_bf16_f32 v12, v10, v11")
    e("v_lshlrev_b32 v7, 2, v0")
    e(f"v_add_u32 v7, {L_H}, v7")
    e("ds_write_b32 v7, v12")
    e("v_and_b32 v6, 1, v0"); e("v_lshlrev_b32 v6, 7, v6"); e("v_lshl_add_u32 v6, v2, 4, v6"); e(f"v_add_u32 v6, {L_H}, v6")
    e("ds_read_b128 v[16:19], v6")
    e("ds_read_b128 v[20:23], v6 offset:64")
    e("s_waitcnt lgkmcnt(0)")
    for c in range(8):
        e(f"v_mfma_f32_16x16x32_bf16 {vr(H_W+4*c,4)}, v[16:19], {vr(H_F+4*c,4)}, 0")
    for c in range(8):
        e(f"v_mfma_f32_16x16x32_bf16 {vr(H_W+4*c,4)}, v[20:23], {vr(H_F+32+4*c,4)}, {vr(H_W+4*c,4)}")
    g.nop(10)
    e("v_and_b32 v1, 15, v0"); e("v_lshlrev_b32 v1, 3, v1")
    e(f"s_lshl_b32 s{S_T0}, s{S_T1}, 13")
    e(f"s_lshl_b32 s{S_T3}, s{S_T2}, 10")
    e(f"s_add_u32 s{S_T0}, s{S_T0}, s{S_T3}"); e(f"s_add_u32 s{S_T0}, s{S_T0}, {WS_F}")
    e(f"s_add_u32 s{S_T3}, s{S_T0}, 4096")
    e(f"v_mov_b32 v9, s{S_TAG}"); e(f"v_mov_b32 v11, s{S_TAG}")
    e("s_mov_b64 exec, 0xffff")
    for c in range(8):
        e(f"v_mov_b32 v8, v{H_W+4*c}"); e(f"v_mov_b32 v10, v{H_W+4*c+1}")
        e(f"buffer_store_dwordx2 v[8:9], v1, s[{SRD_WS}:{SRD_WS+3}], s{S_T0} offen offset:{c*128} sc1")
        e(f"buffer_store_dwordx2 v[10:11], v1, s[{SRD_WS}:{SRD_WS+3}], s{S_T3} offen offset:{c*128} sc1")
        g.nop(2)
    e("s_mov_b64 exec, -1")
    stamp(g, 8, STF)
    e("s_branch L_wo")

    g.lab("L_w7")
    if o["prefetch_code"]:
        e(f"s_getpc_b64 s[{S_T0}:{S_T0+1}]")
        g.lab("L_pcbase")
        e(f"s_sub_u32 s{S_T0}, s{S_T0}, L_pcbase-{KN}_kernel")
        e(f"s_subb_u32 s{S_T0+1}, s{S_T0+1}, 0")
        e("v_lshlrev_b32 v1, 6, v0")
        e("CODE_PREFETCH_PLACEHOLDER")
    e("s_branch L_qg")
    g.lab("L_hb0")
    if o["b0"]:
        e("s_barrier")
    e(f"s_load_dword s{S_E}, s[{S_WS}:{S_WS+1}], {WS_E}")
    build_srd(g, SRD_WS, S_WS, WS_SIZE)
    build_srd(g, SRD_X, S_X, 2048)
    build_srd(g, SRD_WO, S_WO, 0x400000)
    build_srd(g, SRD_OUT, S_OUT, 2048)
    g.lab("L_qg")
    e("s_waitcnt lgkmcnt(0)")
    e(f"s_mul_i32 s{S_TAG}, s{S_E}, 1664525")
    e(f"s_add_u32 s{S_TAG}, s{S_TAG}, 1013904223")
    e(f"s_lshl_b32 s{S_T0}, s{S_B}, 12"); e(f"s_lshl_b32 s{S_T2}, s{S_HKV}, 9")
    e(f"s_add_u32 s{S_T0}, s{S_T0}, s{S_T2}")
    e(f"s_sub_u32 s{S_T2}, s{S_WAVE}, 4"); e(f"s_lshl_b32 s{S_T1}, s{S_T2}, 7")
    e(f"s_add_u32 s{S_T0}, s{S_T0}, s{S_T1}"); e(f"s_lshl_b32 s{S_T0}, s{S_T0}, 3")
    e(f"s_add_u32 s{S_T0}, s{S_T0}, {WS_Q}")
    if o.get("qflag", True):
        LW = g.new("qfw"); LG = g.new("qfg")
        e(f"v_mov_b32 v2, {L_FLAG}")
        e(f"s_cmp_lg_u32 s{S_WAVE}, 4"); e(f"s_cbranch_scc1 {LW}")
        e(f"v_mov_b32 v3, s{S_TAG}")
        e("ds_write_b32 v2, v3")
        e(f"s_branch {LG}")
        g.lab(LW)
        e(f"s_mov_b32 s{S_RETRY}, 0x100000")
        LW2 = g.new("qfw2")
        g.lab(LW2)
        e("ds_read_b32 v3, v2")
        e("s_waitcnt lgkmcnt(0)")
        e(f"v_readfirstlane_b32 s{S_T1}, v3")
        e(f"s_cmp_eq_u32 s{S_T1}, s{S_TAG}"); e(f"s_cbranch_scc1 {LG}")
        e(f"s_sub_u32 s{S_RETRY}, s{S_RETRY}, 1"); e(f"s_cbranch_scc1 {LG}")
        e("s_sleep 2")
        e(f"s_branch {LW2}")
        g.lab(LG)
    e("v_lshlrev_b32 v1, 4, v0")
    def ql():
        for rb in range(4):
            e(f"s_add_u32 s{S_T1}, s{S_T0}, {rb*2*4096*8}")
            e(f"buffer_load_dwordx4 {vr(16+4*rb,4)}, v1, s[{SRD_WS}:{SRD_WS+3}], s{S_T1} offen sc1")
    poll(g, "q", ql, [17+2*i for i in range(8)], 8, sleep=o.get("qsleep", 4))
    e("v_add_f32 v16, v16, v20"); e("v_add_f32 v18, v18, v22"); e("v_add_f32 v24, v24, v28"); e("v_add_f32 v26, v26, v30")
    e("v_add_f32 v16, v16, v24"); e("v_add_f32 v18, v18, v26")
    e("v_cvt_pk_bf16_f32 v12, v16, v18")
    e(f"s_lshl_b32 s{S_T2}, s{S_T2}, 8"); e(f"s_add_u32 s{S_T2}, s{S_T2}, {L_Q}")
    e("v_lshlrev_b32 v1, 2, v0"); e(f"v_add_u32 v1, s{S_T2}, v1")
    e("ds_write_b32 v1, v12")
    e("s_waitcnt lgkmcnt(0)")
    stamp(g, 2, ST)
    e("s_barrier")
    if o.get("skiphelp"):
        e("s_branch L_hb2")
    e(f"s_cmp_eq_u32 s{S_WAVE}, 6"); e("s_cbranch_scc1 L_w6")
    g.lab("L_wo")
    if o.get("prio_after") is not None:
        e(f"s_setprio {o['prio_after']}")
    e(f"s_and_b32 s{S_T0}, s{S_SPLIT}, 3")
    e(f"s_lshl_b32 s{S_T1}, s{S_HKV}, 2"); e(f"s_add_u32 s{S_T1}, s{S_T1}, s{S_T0}")
    e(f"s_lshl_b32 s{S_SOFF}, s{S_T1}, 17")
    e(f"s_lshr_b32 s{S_T2}, s{S_SPLIT}, 2"); e(f"s_lshl_b32 s{S_T2}, s{S_T2}, 8")
    e(f"s_add_u32 s{S_SOFF}, s{S_SOFF}, s{S_T2}")
    e(f"s_sub_u32 s{S_T2}, s{S_WAVE}, 4"); e(f"s_lshl_b32 s{S_T2}, s{S_T2}, 6")
    e(f"s_add_u32 s{S_SOFF}, s{S_SOFF}, s{S_T2}")
    e("v_lshrrev_b32 v2, 2, v0"); e("v_lshlrev_b32 v2, 10, v2"); e("v_and_b32 v3, 3, v0"); e("v_lshl_add_u32 v2, v3, 4, v2")
    for u in range(8):
        e(f"buffer_load_dwordx4 {vr(H_W+4*u,4)}, v2, s[{SRD_WO}:{SRD_WO+3}], s{S_SOFF} offen" + o.get("wofl", " nt"))
        if u < 7:
            e(f"s_add_u32 s{S_SOFF}, s{S_SOFF}, {16*1024}")
    e("v_lshlrev_b32 v1, 4, v0"); e(f"v_add_u32 v1, s{S_STG}, v1")
    e("v_lshrrev_b32 v2, 4, v0"); e("v_bfe_u32 v3, v0, 2, 2"); e("v_lshl_add_u32 v3, v2, 3, v3"); e("v_and_b32 v4, 3, v0")
    e("v_lshlrev_b32 v5, 6, v3"); e("v_lshl_add_u32 v5, v4, 3, v5"); e(f"v_add_u32 v5, s{S_STG}, v5")
    e("s_waitcnt vmcnt(0)")
    for pc in range(2):
        for u in range(4):
            e(f"ds_write_b128 v1, {vr(H_W+16*pc+4*u,4)} offset:{u*1024}")
        for ks in range(2):
            for ct in range(2):
                f = H_WO + 4 * ((pc * 2 + ks) * 2 + ct)
                e(f"ds_read_b64_tr_b16 {vr(f,2)}, v5 offset:{ks*2048+ct*32}")
                e(f"ds_read_b64_tr_b16 {vr(f+2,2)}, v5 offset:{ks*2048+ct*32+256}")
        e("s_waitcnt lgkmcnt(0)")
    e(f"s_cmp_lg_u32 s{S_WAVE}, 7"); e("s_cbranch_scc1 L_hb2")
    e("s_cmp_ge_u32 s2, 32"); e("s_cbranch_scc1 L_hb2")
    e("v_lshrrev_b32 v2, 5, v0"); e("v_bfe_u32 v3, v0, 3, 2"); e("v_and_b32 v4, 7, v0")
    e(f"v_mul_u32_u24 v5, {7*2*512*8}, v3")
    e("v_lshl_add_u32 v5, v2, 12, v5")
    e("v_lshl_add_u32 v5, v4, 4, v5")
    e(f"s_lshl_b32 s{S_T0}, s2, 7")
    e(f"v_add_u32 v5, s{S_T0}, v5")
    def fl():
        for i in range(7):
            e(f"s_mov_b32 s{S_T1}, {WS_F + i*8192}")
            e(f"buffer_load_dwordx4 {vr(16+4*i,4)}, v5, s[{SRD_WS}:{SRD_WS+3}], s{S_T1} offen sc1")
    e("v_lshlrev_b32 v6, 10, v2"); e("v_lshl_add_u32 v6, v4, 2, v6"); e(f"s_lshl_b32 s{S_T1}, s2, 5"); e(f"v_add_u32 v6, s{S_T1}, v6")
    e(f"buffer_load_dword v{H_G+2}, v6, s[{SRD_X}:{SRD_X+3}], 0 offen")
    poll(g, "f", fl, [16+4*i+1 for i in range(7)] + [16+4*i+3 for i in range(7)], 8, sleep=16)
    for i in range(1, 7):
        e(f"v_add_f32 v16, v16, v{16+4*i}"); e(f"v_add_f32 v18, v18, v{18+4*i}")
    g.nop(2)
    e("v_add_f32_dpp v16, v16, v16 row_ror:8 row_mask:0xf bank_mask:0xf")
    e("v_add_f32_dpp v18, v18, v18 row_ror:8 row_mask:0xf bank_mask:0xf")
    e("v_mov_b32 v20, v16"); e("v_mov_b32 v21, v18"); g.nop(2)
    e("v_permlane16_swap_b32 v16, v20"); e("v_permlane16_swap_b32 v18, v21"); g.nop(1)
    e("v_add_f32 v16, v16, v20"); e("v_add_f32 v18, v18, v21")
    e("v_cvt_pk_bf16_f32 v8, v16, v18")
    e("v_lshlrev_b32 v10, 16, v8"); e("v_and_b32 v11, 0xffff0000, v8")
    e(f"s_mov_b32 s{S_T0}, {L2E:#x}")
    for r in (10, 11):
        e(f"v_mul_f32 v12, s{S_T0}, v{r}")
        e(f"v_exp_f32 v12, -v12"); g.nop(1)
        e(f"v_add_f32 v12, 1.0, v12")
        e(f"v_rcp_f32 v12, v12"); g.nop(1)
        e(f"v_mul_f32 v{r}, v{r}, v12")
    e("v_cvt_pk_bf16_f32 v8, v10, v11")
    e(f"v_lshlrev_b32 v{H_G}, 16, v8"); e(f"v_and_b32 v{H_G+1}, 0xffff0000, v8")
    g.lab("L_hb2")
    e(f"s_sub_u32 s{S_T0}, s{S_WAVE}, 4")
    e(f"s_lshl_b32 s{S_T1}, s{S_T0}, 9")
    e("v_lshlrev_b32 v232, 2, v0"); e(f"v_add_u32 v232, s{S_T1}, v232")
    e(f"v_add_u32 v233, {2*RING}, v232")
    e(f"s_lshl_b32 s{S_T1}, s{S_T0}, 3"); e(f"s_add_u32 s{S_T1}, s{S_T1}, {L_ML}")
    e(f"v_mov_b32 v234, s{S_T1}")
    e("v_lshrrev_b32 v231, 4, v0"); e("v_lshlrev_b32 v231, 8, v231")
    e("v_and_b32 v235, 15, v0"); e("v_lshl_add_u32 v235, v235, 3, v231")
    e("v_lshrrev_b32 v231, 1, v0"); e("v_and_b32 v231, 7, v231"); e("v_lshlrev_b32 v231, 8, v231")
    e("v_and_b32 v228, 1, v0"); e("v_lshl_add_u32 v231, v228, 3, v231"); e("v_add_u32 v231, 128, v231")
    e(f"s_lshl_b32 s67, s{S_PAIR}, 4"); e(f"s_add_u32 s67, s67, s{S_SPLIT}")
    e(f"s_lshl_b32 s67, s67, 2"); e(f"s_add_u32 s67, s67, s{S_T0}")
    e(f"s_lshl_b32 s67, s67, 11"); e(f"s_add_u32 s67, s67, {WS_P}")
    e(f"s_add_u32 s68, s67, {2 << 20}")
    e("v_lshrrev_b32 v236, 4, v0"); e("v_lshlrev_b32 v236, 4, v236"); e(f"v_add_u32 v236, {L_OB}, v236")
    e("v_lshlrev_b32 v237, 3, v0")
    e(f"s_and_b32 s{S_T2}, s{S_SPLIT}, 3")
    e(f"s_lshl_b32 s69, s{S_HKV}, 2"); e(f"s_add_u32 s69, s69, s{S_T2}")
    e(f"s_lshl_b32 s{S_T2}, s{S_B}, 5"); e(f"s_add_u32 s69, s69, s{S_T2}")
    e(f"s_lshl_b32 s69, s69, 12")
    e(f"s_lshr_b32 s{S_T2}, s{S_SPLIT}, 2"); e(f"s_lshl_b32 s{S_T2}, s{S_T2}, 10"); e(f"s_add_u32 s69, s69, s{S_T2}")
    e(f"s_lshl_b32 s{S_T2}, s{S_T0}, 8"); e(f"s_add_u32 s69, s69, s{S_T2}")
    e(f"s_add_u32 s69, s69, {WS_S}")
    e("v_lshrrev_b32 v2, 5, v0"); e("v_bfe_u32 v3, v0, 3, 2"); e("v_and_b32 v4, 7, v0")
    e("v_lshlrev_b32 v238, 17, v2"); e("v_lshl_add_u32 v238, v3, 15, v238"); e("v_lshl_add_u32 v238, v4, 4, v238")
    e(f"s_lshl_b32 s{S_T0}, s2, 7"); e(f"v_add_u32 v238, s{S_T0}, v238")
    e("v_lshlrev_b32 v239, 10, v2"); e("v_lshl_add_u32 v239, v4, 2, v239"); e(f"s_lshl_b32 s{S_T1}, s2, 5"); e(f"v_add_u32 v239, s{S_T1}, v239")
    e(f"v_mov_b32 v41, s{S_TAG}"); e(f"v_mov_b32 v43, s{S_TAG}"); e(f"v_mov_b32 v45, s{S_TAG}"); e(f"v_mov_b32 v47, s{S_TAG}")
    e(f"s_mov_b32 s{S_C0}, {L2E:#x}")
    if o.get("pretouch"):
        fl = "" if o["pretouch"] == 1 else " sc1"
        e(f"buffer_load_dword v227, v235, s[{SRD_WS}:{SRD_WS+3}], s67 offen{fl}")
        e(f"buffer_load_dword v227, v235, s[{SRD_WS}:{SRD_WS+3}], s67 offen offset:1152{fl}")
        e(f"buffer_load_dword v227, v237, s[{SRD_WS}:{SRD_WS+3}], s69 offen{fl}")
    if o.get("tailpf", True):
        e(f"s_getpc_b64 s[{S_T2}:{S_T2+1}]")
        g.lab("L_pc2")
        e(f"s_add_u32 s{S_T2}, s{S_T2}, L_tail-L_pc2"); e(f"s_addc_u32 s{S_T2+1}, s{S_T2+1}, 0")
        e("v_lshlrev_b32 v229, 6, v0")
        e(f"v_min_u32 v229, L_code_end-L_tail-4, v229")
    stamp(g, 3, ST)

    g.lab("L_tail")
    if DS:
        LX = g.new("ds")
        e(f"s_cmp_lg_u32 s{S_WAVE}, 0"); e(f"s_cbranch_scc1 {LX}")
        dstamp(g, 2, True)
        e("v_mov_b32 v236, 12"); e("v_mov_b32 v237, s88")
        e("s_mov_b64 exec, 1")
        e(f"global_atomic_umax v236, v237, s[{S_DBG}:{S_DBG+1}]")
        e("s_mov_b64 exec, -1")
        e("s_not_b32 s90, s90")
        e("v_mov_b32 v236, 0"); e("v_mov_b32 v237, s90")
        e("s_mov_b64 exec, 1")
        e(f"global_atomic_umax v236, v237, s[{S_DBG}:{S_DBG+1}]")
        e("s_mov_b64 exec, -1")
        g.lab(LX)
    e("s_barrier")
    stamp(g, 4, STT)
    e(f"s_cmp_lt_u32 s{S_WAVE}, 4"); e("s_cbranch_scc1 L_t2")
    e("ds_read_b32 v8, v232"); e("ds_read_b32 v9, v232 offset:256")
    e("ds_read_b32 v10, v232 offset:32768"); e("ds_read_b32 v11, v232 offset:33024")
    e("ds_read_b32 v12, v233"); e("ds_read_b32 v13, v233 offset:256")
    e("ds_read_b32 v14, v233 offset:32768"); e("ds_read_b32 v15, v233 offset:33024")
    for w in range(4):
        e(f"ds_read_b64 {vr(16+2*w,2)}, v234 offset:{w*32}")
    if o.get("tailpf", True):
        e(f"global_load_dword v230, v229, s[{S_T2}:{S_T2+1}]")
    e("v_cmp_eq_u32 vcc, 1, v228")
    e("s_waitcnt lgkmcnt(0)")
    e("v_max3_f32 v44, v16, v18, v20"); e("v_max_f32 v44, v44, v22")
    for w in range(4):
        e(f"v_sub_f32 v{16+2*w}, v{16+2*w}, v44")
    for w in range(4):
        e(f"v_mul_f32 v{16+2*w}, s{S_C0}, v{16+2*w}")
    for w in range(4):
        e(f"v_exp_f32 v{16+2*w}, v{16+2*w}")
    g.nop(1)
    e("v_mul_f32 v40, v8, v16"); e("v_mul_f32 v42, v9, v16"); e("v_mul_f32 v46, v17, v16")
    for w in range(1, 4):
        e(f"v_fmac_f32 v40, v{8+2*w}, v{16+2*w}"); e(f"v_fmac_f32 v42, v{9+2*w}, v{16+2*w}"); e(f"v_fmac_f32 v46, v{17+2*w}, v{16+2*w}")
    dests = ["s67", "s68"] if o.get("copies", 2) == 2 else ["s67"]
    e("v_cndmask_b32 v44, v44, v46, vcc")
    for d in dests:
        pub2(g, 40, 235, d)
        pub2(g, 42, 235, d, 1024)
    e("s_mov_b64 exec, 0xffff")
    for d in dests:
        pub2(g, 44, 231, d)
    e("s_mov_b64 exec, -1")
    if o.get("diagH") == 1:
        stamp(g, 1, True)
        e("s_waitcnt vmcnt(0)")
        stamp(g, 2, True)
    g.lab("L_t2")
    stamp(g, 5, STT)
    e(f"s_and_b32 s{S_T0}, s{S_SPLIT}, 3")
    e("v_lshrrev_b32 v2, 2, v0"); e("v_and_b32 v3, 3, v0")
    e("v_lshlrev_b32 v5, 13, v2")
    e("v_lshl_add_u32 v4, v3, 5, v5")
    e("v_add_u32 v5, 128, v5")
    e(f"s_lshl_b32 s{S_T1}, s{S_PAIR}, 17")
    e(f"s_lshl_b32 s{S_T2}, s{S_T0}, 11"); e(f"s_add_u32 s{S_T1}, s{S_T1}, s{S_T2}")
    e(f"s_lshl_b32 s{S_T2}, s{S_WAVE}, 8"); e(f"s_add_u32 s{S_T1}, s{S_T1}, s{S_T2}")
    e(f"s_add_u32 s{S_T1}, s{S_T1}, {WS_P}")
    if o.get("copies", 2) == 2:
        e(f"s_lshr_b32 s{S_T2}, s{S_SPLIT}, 2"); e(f"s_and_b32 s{S_T2}, s{S_T2}, 1"); e(f"s_lshl_b32 s{S_T2}, s{S_T2}, 21")
        e(f"s_add_u32 s{S_T1}, s{S_T1}, s{S_T2}")
    e(f"s_mov_b32 s{S_T2}, s{S_T1}")
    if o.get("poll2", True):
        def pl(base):
            e(f"buffer_load_dwordx4 {vr(base,4)}, v4, s[{SRD_WS}:{SRD_WS+3}], s{S_T1} offen sc1")
            e(f"buffer_load_dwordx4 {vr(base+4,4)}, v4, s[{SRD_WS}:{SRD_WS+3}], s{S_T1} offen offset:16 sc1")
            e(f"buffer_load_dwordx4 {vr(base+8,4)}, v5, s[{SRD_WS}:{SRD_WS+3}], s{S_T2} offen sc1")
        def pok(base):
            for i in range(6):
                e(f"v_mov_b32 v{8+2*i}, v{base+2*i}")
        poll2(g, "p", pl, 3, lambda base: [base+1+2*i for i in range(6)], pok, 48, 60, 24, stagger=o.get("stagger", 10))
    else:
        def pl():
            e(f"buffer_load_dwordx4 v[8:11], v4, s[{SRD_WS}:{SRD_WS+3}], s{S_T1} offen sc1")
            e(f"buffer_load_dwordx4 v[12:15], v4, s[{SRD_WS}:{SRD_WS+3}], s{S_T1} offen offset:16 sc1")
            e(f"buffer_load_dwordx4 v[16:19], v5, s[{SRD_WS}:{SRD_WS+3}], s{S_T2} offen sc1")
        poll(g, "p", pl, [9, 11, 13, 15, 17, 19], 24, sleep=o.get("psleep", 1))
    stamp(g, 6, STT)
    e("v_mov_b32 v20, v16")
    row_ror_reduce(g, [20], "v_max_f32", [4, 8])
    rows_reduce(g, 20, 21, "v_max_f32")
    e(f"s_mov_b32 s{S_C0}, {L2E:#x}")
    e("v_sub_f32 v16, v16, v20"); e(f"v_mul_f32 v16, s{S_C0}, v16"); e("v_exp_f32 v16, v16"); g.nop(1)
    e("v_mul_f32 v18, v18, v16")
    e("v_mul_f32 v8, v8, v16"); e("v_mul_f32 v10, v10, v16"); e("v_mul_f32 v12, v12, v16"); e("v_mul_f32 v14, v14, v16")
    row_ror_reduce(g, [8, 10, 12, 14, 18], "v_add_f32", [4, 8])
    rows_reduce_multi(g, [8, 10, 12, 14, 18], [26, 27, 28, 29, 30], "v_add_f32")
    e("v_rcp_f32 v19, v18"); g.nop(1)
    for r in (8, 10, 12, 14):
        e(f"v_mul_f32 v20, v{r}, v19"); e(f"v_fma_f32 v21, -v20, v18, v{r}"); e(f"v_fma_f32 v{r}, v21, v19, v20")
    e("v_cvt_pk_bf16_f32 v22, v8, v10"); e("v_cvt_pk_bf16_f32 v23, v12, v14")
    e(f"s_lshl_b32 s{S_T2}, s{S_WAVE}, 5"); e(f"s_add_u32 s{S_T2}, s{S_T2}, {L_OB}")
    e(f"v_lshlrev_b32 v3, 3, v3"); e(f"v_add_u32 v3, s{S_T2}, v3")
    e("s_mov_b64 exec, 0xf")
    e("ds_write_b64 v3, v[22:23]")
    e("s_mov_b64 exec, -1")
    e("s_waitcnt lgkmcnt(0)")
    e("s_barrier")
    e(f"s_cmp_lt_u32 s{S_WAVE}, 4"); e("s_cbranch_scc1 L_fin")
    for kk in range(4):
        e(f"ds_read_b128 {vr(8+4*kk,4)}, v236 offset:{kk*64}")
    e("v_cmp_gt_u32 vcc, 16, v0")
    e(f"v_mov_b32 v9, s{S_TAG}") if False else None
    e("s_waitcnt lgkmcnt(0)")
    for kk in range(4):
        for ct in range(2):
            c = "0" if kk == 0 else vr(24+4*ct, 4)
            e(f"v_mfma_f32_16x16x32_bf16 {vr(24+4*ct,4)}, {vr(8+4*kk,4)}, {vr(H_WO+4*(kk*2+ct),4)}, {c}")
    g.nop(8)
    e("v_cndmask_b32 v40, v28, v24, vcc")
    e("s_mov_b32 exec_hi, 0")
    pub2(g, 40, 237, "s69")
    e("s_mov_b64 exec, -1")
    if o.get("diagH") == 2:
        stamp(g, 1, True)
        e("s_waitcnt vmcnt(0)")
        stamp(g, 2, True)
    stamp(g, 7, STT)
    e(f"s_cmp_lg_u32 s{S_WAVE}, 7"); e("s_cbranch_scc1 L_fin")
    e("s_cmp_ge_u32 s2, 32"); e("s_cbranch_scc1 L_fin")
    TMPS = 10
    if o.get("poll2", True):
        def sl(base):
            for i in range(8):
                e(f"s_mov_b32 s{S_T1}, {WS_S + i*4096}")
                e(f"buffer_load_dwordx4 {vr(base+4*i,4)}, v238, s[{SRD_WS}:{SRD_WS+3}], s{S_T1} offen sc1")
        def sok(base):
            e(f"v_add_f32 v16, v{base}, v{base+4}"); e(f"v_add_f32 v18, v{base+2}, v{base+6}")
            for i in range(2, 8):
                e(f"v_add_f32 v16, v16, v{base+4*i}"); e(f"v_add_f32 v18, v18, v{base+4*i+2}")
        poll2(g, "s", sl, 8, lambda base: [base+1+2*i for i in range(16)], sok, 64, 96, 8, stagger=o.get("stagger", 10))
        stamp(g, 8, STT)
    else:
        def sl():
            for i in range(8):
                e(f"s_mov_b32 s{S_T1}, {WS_S + i*4096}")
                e(f"buffer_load_dwordx4 {vr(16+4*i,4)}, v238, s[{SRD_WS}:{SRD_WS+3}], s{S_T1} offen sc1")
        poll(g, "s", sl, [16+4*i+1 for i in range(8)] + [16+4*i+3 for i in range(8)], 8)
        stamp(g, 8, STT)
        for i in range(1, 8):
            e(f"v_add_f32 v16, v16, v{16+4*i}"); e(f"v_add_f32 v18, v18, v{18+4*i}")
    g.nop(2)
    e("v_add_f32_dpp v16, v16, v16 row_ror:8 row_mask:0xf bank_mask:0xf")
    e("v_add_f32_dpp v18, v18, v18 row_ror:8 row_mask:0xf bank_mask:0xf")
    e("v_mov_b32 v20, v16"); e("v_mov_b32 v21, v18"); g.nop(2)
    e("v_permlane16_swap_b32 v16, v20"); e("v_permlane16_swap_b32 v18, v21"); g.nop(1)
    e("v_add_f32 v16, v16, v20"); e("v_add_f32 v18, v18, v21")
    e("v_cvt_pk_bf16_f32 v8, v16, v18")
    e("v_lshlrev_b32 v10, 16, v8"); e("v_and_b32 v11, 0xffff0000, v8")
    e(f"v_mul_f32 v10, v10, v{H_G}"); e(f"v_mul_f32 v11, v11, v{H_G+1}")
    e("v_cvt_pk_bf16_f32 v8, v10, v11")
    e("v_lshlrev_b32 v10, 16, v8"); e("v_and_b32 v11, 0xffff0000, v8")
    e(f"v_lshlrev_b32 v12, 16, v{H_G+2}"); e(f"v_and_b32 v13, 0xffff0000, v{H_G+2}")
    e("v_add_f32 v10, v10, v12"); e("v_add_f32 v11, v11, v13")
    e("v_cvt_pk_bf16_f32 v8, v10, v11")
    e("s_mov_b32 exec_lo, 0xff"); e("s_mov_b32 exec_hi, 0xff")
    e(f"buffer_store_dword v8, v239, s[{SRD_OUT}:{SRD_OUT+3}], 0 offen")
    e("s_mov_b64 exec, -1")
    if DS: dstamp(g, 1, True)
    e("s_cmp_lg_u32 s2, 0"); e("s_cbranch_scc1 L_fin")
    e(f"v_mov_b32 v8, s{S_TAG}"); e("v_mov_b32 v1, 0")
    e("s_mov_b64 exec, 1")
    e(f"buffer_store_dword v8, v1, s[{SRD_WS}:{SRD_WS+3}], 0 offen sc1")
    e("s_mov_b64 exec, -1")
    g.lab("L_fin")
    if DS2:
        LX = g.new("ds2"); LY = g.new("ds2y")
        e("s_memrealtime s[84:85]")
        e("s_waitcnt lgkmcnt(0)")
        e("s_mov_b64 exec, 1")
        e(f"s_cmp_eq_u32 s{S_WAVE}, 7"); e(f"s_cbranch_scc1 {LY}")
        e(f"s_cmp_lg_u32 s{S_WAVE}, 0"); e(f"s_cbranch_scc1 {LX}")
        e("s_cmp_ge_u32 s2, 3"); e(f"s_cbranch_scc1 {LX}")
        e("s_mul_i32 s83, s2, 12")
        e("v_mov_b32 v1, s83")
        e("v_mov_b32 v2, s90"); e("v_mov_b32 v3, s86"); e("v_mov_b32 v4, s88")
        e(f"global_store_dwordx3 v1, v[2:4], s[{S_DBG}:{S_DBG+1}]")
        e(f"s_branch {LX}")
        g.lab(LY)
        e("s_cmp_ge_u32 s2, 7"); e(f"s_cbranch_scc1 {LX}")
        e("s_lshl_b32 s83, s2, 2"); e("s_add_u32 s83, s83, 36")
        e("v_mov_b32 v1, s83"); e("v_mov_b32 v2, s84")
        e(f"global_store_dword v1, v2, s[{S_DBG}:{S_DBG+1}]")
        g.lab(LX)
    if ST:
        stamp(g, 9, ST)
        e("s_waitcnt lgkmcnt(0)")
        e(f"s_lshl_b32 s{S_T0}, s2, 3"); e(f"s_add_u32 s{S_T0}, s{S_T0}, s{S_WAVE}"); e(f"s_lshl_b32 s{S_T0}, s{S_T0}, 6")
        e(f"s_add_u32 s{S_T0}, s{S_T0}, {WS_DBG}")
        e("v_mov_b32 v1, 0")
        e("s_mov_b64 exec, 1")
        for i in range(10):
            e(f"v_mov_b32 v2, s{S_ST0+2*i}")
            e(f"buffer_store_dword v2, v1, s[{SRD_WS}:{SRD_WS+3}], s{S_T0} offen offset:{4*i}")
            g.nop(1)
    g.lab("L_end")
    e("s_endpgm")
    g.lab("L_code_end")
    g.L.append('.section .rodata,"a"')
    g.L.append(".p2align 6")
    g.L.append(f".amdhsa_kernel {KN}_kernel")
    for s in ["next_free_vgpr 240", "next_free_sgpr 102", "accum_offset 240", "group_segment_fixed_size 0", "kernarg_size 88",
              "user_sgpr_count 2", "user_sgpr_kernarg_segment_ptr 1", "system_sgpr_workgroup_id_x 1",
              "float_denorm_mode_32 3", "float_denorm_mode_16_64 3"]:
        g.L.append("  .amdhsa_" + s)
    g.L.append(".end_amdhsa_kernel")
    txt = "\n".join(g.L) + "\n"
    lf = o.get("ldflags")
    if lf:
        out = []
        for ln in txt.split("\n"):
            if "buffer_load_dword" in ln and ln.rstrip().endswith(" sc1") and " lds" not in ln:
                ln = ln.rstrip()[:-4] + " " + lf
            out.append(ln)
        txt = "\n".join(out)
    pf = []
    for i in range(o.get("pf_kib", 20) // 4):
        pf.append(f"  v_min_u32 v3, L_code_end-{KN}_kernel-4, v1")
        pf.append(f"  global_load_dword v230, v3, s[{S_T0}:{S_T0+1}]")
        pf.append(f"  v_add_u32 v1, 4096, v1")
    txt = txt.replace("  CODE_PREFETCH_PLACEHOLDER", "\n".join(pf))
    return txt

if __name__ == "__main__":
    import json
    opt = json.loads(sys.argv[2]) if len(sys.argv) > 2 else {}
    open(sys.argv[1], "w").write(gen(opt))
```

```python
import sys
KN = "recurrent_scan__gqa_block_cached__dense_activation_silu__decode"

WS_E   = 0x0
WS_Q   = 0x200000
WS_H   = 0x240000
WS_ML  = 0x28000
WS_F   = 0x30000
WS_S   = 0x80000
WS_P   = 0x400000
WS_CNT = 0x2A0000
WS_DBG = 0x300000
WS_SIZE = 0x800000

RING   = 32768
L_STG  = 0x20000
L_XN4  = 0x24000
L_XN5  = 0x24800
L_Q    = 0x25000
L_H    = 0x25400
L_OB   = 0x25600
L_ML   = 0x25800
L_FLAG = 0x25900
LDS_BYTES = 0x26000

L2E = 0x3fb8aa3b
SCALE = 0x3db504f3
NEG_INF = 0xff800000

DEBUG_TO = True
class G:
    def __init__(self):
        self.L = []
        self.uid = 0
    def e(self, s):
        self.L.append("  " + s)
    def lab(self, s):
        self.L.append(s + ":")
    def new(self, p):
        self.uid += 1
        return f"L_{p}_{self.uid}"
    def nop(self, n):
        while n > 0:
            k = min(n, 16)
            self.e(f"s_nop {k-1}")
            n -= k

def vr(a, n=None):
    return f"v{a}" if n is None else f"v[{a}:{a+n-1}]"
def sr(a, n=None):
    return f"s{a}" if n is None else f"s[{a}:{a+n-1}]"

S_WAVE = 3
S_X, S_K, S_V, S_WQ, S_WO, S_BX, S_W1, S_W2 = 4, 6, 8, 10, 12, 14, 16, 18
S_OUT, S_DBG, S_WS = 20, 22, 24
S_TAG, S_E = 26, 27
SRD_K, SRD_V, SRD_WS, SRD_W, SRD_X, SRD_OUT, SRD_WO = 28, 32, 36, 40, 44, 48, 52
S_PAIR, S_SPLIT, S_B, S_HKV = 56, 57, 58, 59
S_T0, S_T1, S_T2, S_T3, S_T4, S_T5 = 60, 61, 62, 63, 64, 65
S_RETRY = 66
S_OFF = 67
S_RB = 68
S_PB = 69
S_CNT = 70
S_SOFF = 71
S_RS32 = 72
S_EX = 74
S_ST0 = 76
S_C0 = 96
S_C1 = 97
S_ROT = 98
S_NEXT = 99

def build_srd(g, d, ptr, size):
    g.e(f"s_mov_b32 s{d}, s{ptr}")
    g.e(f"s_and_b32 s{d+1}, s{ptr+1}, 0xffff")
    g.e(f"s_mov_b32 s{d+2}, {size:#x}")
    g.e(f"s_mov_b32 s{d+3}, 0x20000")

def rows_reduce(g, v, t, op):
    for sw in ("v_permlane16_swap_b32", "v_permlane32_swap_b32"):
        g.e(f"v_mov_b32 v{t}, v{v}")
        g.nop(2)
        g.e(f"{sw} v{v}, v{t}")
        g.nop(1)
        g.e(f"{op} v{v}, v{v}, v{t}")

def rows_reduce_multi(g, vs, ts, op):
    for sw in ("v_permlane16_swap_b32", "v_permlane32_swap_b32"):
        for v, t in zip(vs, ts):
            g.e(f"v_mov_b32 v{t}, v{v}")
        g.nop(max(0, 3 - len(vs)) if len(vs) < 3 else 0)
        if len(vs) >= 3: pass
        g.nop(1)
        for v, t in zip(vs, ts):
            g.e(f"{sw} v{v}, v{t}")
        g.nop(1)
        for v, t in zip(vs, ts):
            g.e(f"{op} v{v}, v{v}, v{t}")
        g.nop(1)

def row_ror_reduce(g, vs, op, rors):
    for r in rors:
        g.nop(2)
        for v in vs:
            g.e(f"{op}_dpp v{v}, v{v}, v{v} row_ror:{r} row_mask:0xf bank_mask:0xf")
            if len(vs) == 1:
                pass
    g.nop(1)

POLL_IDS = {"q": 0, "h": 1, "f": 2, "p": 3, "s": 4}
def poll(g, name, issue_loads, tag_regs, tmp, dbgword=None, sleep=1):
    L = g.new("poll_" + name); D = g.new("polld_" + name); TO = g.new("pollto_" + name)
    g.e(f"s_mov_b32 s{S_RETRY}, 0x40000")
    g.lab(L)
    issue_loads()
    g.e("s_waitcnt vmcnt(0)")
    g.e(f"v_xor_b32 v{tmp}, s{S_TAG}, v{tag_regs[0]}")
    for t in tag_regs[1:]:
        g.e(f"v_xor_b32 v{tmp+1}, s{S_TAG}, v{t}")
        g.e(f"v_or_b32 v{tmp}, v{tmp}, v{tmp+1}")
    g.e(f"v_cmp_ne_u32 vcc, 0, v{tmp}")
    g.e(f"s_cbranch_vccz {D}")
    g.e("s_mov_b64 exec, vcc")
    g.e(f"s_sub_u32 s{S_RETRY}, s{S_RETRY}, 1")
    g.e(f"s_cbranch_scc1 {TO}")
    g.e(f"s_sleep {sleep}")
    g.e(f"s_branch {L}")
    g.lab(TO)
    if DEBUG_TO:
        g.e(f"v_mov_b32 v{tmp}, {4*POLL_IDS[name]}")
        g.e(f"v_mov_b32 v{tmp+1}, s2")
        g.e(f"v_add_u32 v{tmp+1}, 0x1000, v{tmp+1}")
        g.e(f"global_store_dword v{tmp}, v{tmp+1}, s[{S_DBG}:{S_DBG+1}]")
    g.lab(D)
    g.e("s_mov_b64 exec, -1")

PUB = {"mode": "store"}
def pub2(g, vdata, voff, soff, imm=0):
    off = f" offset:{imm}" if imm else ""
    if PUB["mode"] == "atomic":
        g.e(f"buffer_atomic_swap_x2 v[{vdata}:{vdata+1}], v{voff}, s[{SRD_WS}:{SRD_WS+3}], {soff} offen{off}")
    elif PUB["mode"] == "atomic_sc1":
        g.e(f"buffer_atomic_swap_x2 v[{vdata}:{vdata+1}], v{voff}, s[{SRD_WS}:{SRD_WS+3}], {soff} offen{off} sc1")
    elif PUB["mode"] == "store_sc01":
        g.e(f"buffer_store_dwordx2 v[{vdata}:{vdata+1}], v{voff}, s[{SRD_WS}:{SRD_WS+3}], {soff} offen{off} sc0 sc1")
    else:
        g.e(f"buffer_store_dwordx2 v[{vdata}:{vdata+1}], v{voff}, s[{SRD_WS}:{SRD_WS+3}], {soff} offen{off} sc1")

def poll2(g, name, issue, nloads, tags, on_ok, A, B, tmp, stagger=10):
    L = g.new("p2_" + name); D = g.new("p2d_" + name); TO = g.new("p2to_" + name)
    W = "s[100:101]"
    def check(base):
        tr = tags(base)
        g.e(f"s_mov_b64 exec, {W}")
        g.e(f"v_xor_b32 v{tmp}, s{S_TAG}, v{tr[0]}")
        for t in tr[1:]:
            g.e(f"v_xor_b32 v{tmp+1}, s{S_TAG}, v{t}")
            g.e(f"v_or_b32 v{tmp}, v{tmp}, v{tmp+1}")
        g.e(f"v_cmp_ne_u32 vcc, 0, v{tmp}")
        g.e(f"s_andn2_b64 exec, {W}, vcc")
        SK = g.new("p2s")
        g.e(f"s_cbranch_execz {SK}")
        on_ok(base)
        g.lab(SK)
        g.e(f"s_mov_b64 {W}, vcc")
        g.e(f"s_cbranch_vccz {D}")
        g.e(f"s_mov_b64 exec, {W}")
    g.e(f"s_mov_b32 s{S_RETRY}, 0x40000")
    g.e(f"s_mov_b64 {W}, -1")
    issue(A)
    g.e(f"s_sleep {stagger}")
    g.lab(L)
    issue(B)
    g.e(f"s_waitcnt vmcnt({nloads})")
    check(A)
    issue(A)
    g.e(f"s_waitcnt vmcnt({nloads})")
    check(B)
    g.e(f"s_sub_u32 s{S_RETRY}, s{S_RETRY}, 1")
    g.e(f"s_cbranch_scc0 {L}")
    if DEBUG_TO:
        g.e(f"v_mov_b32 v{tmp}, {4*POLL_IDS[name]}")
        g.e(f"v_mov_b32 v{tmp+1}, s2")
        g.e(f"v_add_u32 v{tmp+1}, 0x1000, v{tmp+1}")
        g.e(f"global_store_dword v{tmp}, v{tmp+1}, s[{S_DBG}:{S_DBG+1}]")
    g.lab(D)
    g.e("s_mov_b64 exec, -1")

def dstamp(g, word, on, tmpv=(236, 237), sp=(92, 93)):
    if not on: return
    g.e(f"s_memrealtime s[{sp[0]}:{sp[1]}]")
    g.e("s_waitcnt lgkmcnt(0)")
    g.e(f"v_mov_b32 v{tmpv[0]}, {4*word}")
    g.e(f"v_mov_b32 v{tmpv[1]}, s{sp[0]}")
    g.e("s_mov_b64 s[94:95], exec")
    g.e("s_mov_b64 exec, 1")
    g.e(f"global_atomic_umax v{tmpv[0]}, v{tmpv[1]}, s[{S_DBG}:{S_DBG+1}]")
    g.e("s_mov_b64 exec, s[94:95]")

def stamp(g, idx, on):
    if on:
        g.e(f"s_memrealtime s[{S_ST0+2*idx}:{S_ST0+2*idx+1}]")

def gen(opt=None):
    o = dict(pattern="grp16", rot=512*1024, xmap=False, stamps=False, ntiles=16, prefetch_code=True, stage=99, b0=True, thr=16, prio=True, dyn=True, sthr=24, wnt=1, ns=10, poll2=False, copies=1, wofl="")
    if opt: o.update(opt)
    DS = False
    DS2 = bool(o.get("dstamps"))
    ST = bool(o["stamps"])
    STT = o["stamps"] is True
    STA = o["stamps"] == "A"
    STP = o["stamps"] == "P"
    STF = o["stamps"] == "F"
    STX = o["stamps"] == "X"
    STL = o["stamps"] == "L"
    PUB["mode"] = o.get("pub", "store")
    g = G(); e = g.e
    g.L.append(f"; @launch grid=(256,1,1) block=(512,1,1) lds={LDS_BYTES}")
    g.L.append('.amdgcn_target "amdgcn-amd-amdhsa--gfx950"')
    g.L.append(".text")
    g.L.append(f".globl {KN}_kernel")
    g.L.append(".p2align 8")
    g.L.append(f".type {KN}_kernel,@function")
    g.lab(f"{KN}_kernel")
    e("s_cmp_ge_u32 s2, 256")
    e("s_cbranch_scc1 L_end")
    stamp(g, 0, ST)
    if DS2: e("s_memrealtime s[90:91]")
    e(f"s_load_dwordx16 s[4:19], s[0:1], 0")
    e(f"s_load_dwordx4 s[20:23], s[0:1], 64")
    e(f"s_load_dwordx2 s[24:25], s[0:1], 80")
    e("v_lshrrev_b32 v1, 6, v0")
    e("v_and_b32 v0, 63, v0")
    e(f"v_readfirstlane_b32 s{S_WAVE}, v1")
    if o["xmap"]:
        e(f"s_and_b32 s{S_T0}, s2, 7"); e(f"s_lshl_b32 s{S_T0}, s{S_T0}, 5"); e(f"s_lshr_b32 s{S_T1}, s2, 3")
        e(f"s_add_u32 s{S_T0}, s{S_T0}, s{S_T1}")
        e(f"s_lshr_b32 s{S_PAIR}, s{S_T0}, 4"); e(f"s_and_b32 s{S_SPLIT}, s{S_T0}, 15")
    else:
        e(f"s_lshr_b32 s{S_PAIR}, s2, 4"); e(f"s_and_b32 s{S_SPLIT}, s2, 15")
    e(f"s_lshr_b32 s{S_B}, s{S_PAIR}, 3"); e(f"s_and_b32 s{S_HKV}, s{S_PAIR}, 7")
    e(f"s_cmp_ge_u32 s{S_WAVE}, 4")
    e("s_cbranch_scc1 L_helper")

    V_KD, V_VD, V_KR, V_VR = 8, 12, 14, 18
    V_Q, V_O = 28, 44
    RK = (76, 140); RV = (108, 172)
    V_S, V_A, V_P = 204, 212, 220
    V_M, V_L, V_AL, V_NM, V_MX, V_T = 224, 225, 226, 227, 228, 229
    e("v_lshrrev_b32 v1, 4, v0")
    e("v_and_b32 v2, 15, v0")
    e("v_lshlrev_b32 v3, 8, v1")
    e("v_xor_b32 v4, v2, v1")
    for n in range(4):
        e(f"v_xor_b32 v5, {4*n}, v4")
        e(f"v_lshl_add_u32 v{V_KD+n}, v5, 4, v3")
    e("v_lshlrev_b32 v4, 1, v1")
    e("v_xor_b32 v4, v2, v4")
    for n in range(2):
        e(f"v_xor_b32 v5, {8*n}, v4")
        e(f"v_lshl_add_u32 v{V_VD+n}, v5, 4, v3")
    e(f"s_lshl_b32 s{S_RB}, s{S_WAVE}, 15")
    e(f"s_lshl_b32 s{S_PB}, s{S_PAIR}, 23")
    if o["pattern"] == "grp16":
        e(f"s_lshl_b32 s{S_OFF}, s{S_SPLIT}, 2"); e(f"s_add_u32 s{S_OFF}, s{S_OFF}, s{S_WAVE}")
        e(f"s_lshl_b32 s{S_OFF}, s{S_OFF}, 13")
        STEP = 16 * 4 * 8192
    else:
        e(f"s_lshl_b32 s{S_OFF}, s{S_SPLIT}, 6"); e(f"s_add_u32 s{S_OFF}, s{S_OFF}, s{S_WAVE}")
        e(f"s_lshl_b32 s{S_OFF}, s{S_OFF}, 13")
        STEP = 4 * 8192
    e(f"s_mul_i32 s{S_ROT}, s{S_PAIR}, {o['rot']}")
    e(f"s_add_u32 s{S_OFF}, s{S_OFF}, s{S_ROT}")
    e("s_waitcnt lgkmcnt(0)")
    stamp(g, 4, STA)
    e(f"s_load_dword s{S_E}, s[{S_WS}:{S_WS+1}], {WS_E}")
    build_srd(g, SRD_K, S_K, 0x8000000)
    build_srd(g, SRD_V, S_V, 0x8000000)

    def tile_addr():
        e(f"s_and_b32 s{S_SOFF}, s{S_OFF}, 0x7fffff")
        e(f"s_add_u32 s{S_SOFF}, s{S_SOFF}, s{S_PB}")
    def issue(which, slot):
        srd = SRD_K if which == 0 else SRD_V
        for half in range(2):
            off = slot * 16384 + which * 8192 + half * 4096
            e(f"s_add_u32 m0, s{S_RB}, {off}")
            if half == 0:
                e(f"s_mov_b32 s{S_T0}, s{S_SOFF}")
            else:
                e(f"s_add_u32 s{S_T0}, s{S_SOFF}, 4096")
            for i in range(4):
                n = half * 4 + i
                vo = (V_KD + (n & 3)) if which == 0 else (V_VD + (n & 1))
                fl = o.get("kfl" if which == 0 else "vfl", " nt")
                e(f"buffer_load_dwordx4 v{vo}, s[{srd}:{srd+3}], s{S_T0} offen offset:{i*1024}{fl} lds")
    THR = o["thr"]
    nissued = 0
    for slot in range(2):
        tile_addr()
        for which in range(2):
            if o["b0"] and nissued == o.get("b0at", 8):
                e("s_barrier")
            if nissued + 8 > THR:
                e(f"s_waitcnt vmcnt({THR - 8})")
                stamp(g, 3 + nissued // 8, STP)
            issue(which, slot)
            nissued += 8
        e(f"s_add_u32 s{S_OFF}, s{S_OFF}, {STEP}")
    stamp(g, 5, STA)
    e("v_and_b32 v1, 15, v0")
    e("v_lshrrev_b32 v2, 4, v0")
    e("v_xor_b32 v3, v2, v1")
    e(f"v_lshlrev_b32 v4, 8, v1")
    e(f"v_add_u32 v4, s{S_RB}, v4")
    for kk in range(4):
        e(f"v_xor_b32 v5, {4*kk}, v3")
        e(f"v_lshl_add_u32 v{V_KR+kk}, v5, 4, v4")
    e("v_lshrrev_b32 v1, 2, v0")
    e("v_and_b32 v2, 7, v1")
    e("v_and_b32 v3, 3, v0")
    e("v_lshlrev_b32 v4, 8, v1")
    e("v_lshl_add_u32 v4, v3, 3, v4")
    e(f"v_add_u32 v4, s{S_RB}, v4")
    e("v_add_u32 v4, 8192, v4")
    for dt in range(8):
        e(f"v_xor_b32 v5, {dt}, v2")
        e(f"v_lshl_add_u32 v{V_VR+dt}, v5, 5, v4")
    for i in range(32):
        e(f"v_mov_b32 v{V_O+i}, 0")
    for i in range(16):
        e(f"v_mov_b32 v{V_Q+i}, 0")
    e(f"v_mov_b32 v{V_M}, {NEG_INF:#x}")
    for r in (236, 237, 238, 239): e(f"v_mov_b32 v{r}, 0")
    e(f"v_mov_b32 v{V_L}, 0")
    build_srd(g, SRD_WS, S_WS, WS_SIZE)
    build_srd(g, SRD_X, S_X, 2048)
    build_srd(g, SRD_WO, S_WO, 0x400000)
    build_srd(g, SRD_OUT, S_OUT, 2048)

    def load(rs, slot, do_issue, wK, wV, thr=None, pst=None):
        e(f"s_waitcnt vmcnt({wK})")
        for T in range(2):
            for kk in range(4):
                if not o.get("noread"): e(f"ds_read_b128 {vr(RK[rs]+16*T+4*kk,4)}, v{V_KR+kk} offset:{slot*16384+T*4096}")
        e("s_waitcnt lgkmcnt(0)")
        if do_issue:
            tile_addr()
            if thr is not None and thr < 32: e(f"s_waitcnt vmcnt({thr-8})")
            if pst is not None: stamp(g, pst, STP)
            issue(0, slot)
        e(f"s_waitcnt vmcnt({wV})")
        for dt in range(8):
            for T in range(2):
                if not o.get("noread"): e(f"ds_read_b64_tr_b16 {vr(RV[rs]+4*dt+2*T,2)}, v{V_VR+dt} offset:{slot*16384+T*4096}")
        e("s_waitcnt lgkmcnt(0)")
        if do_issue:
            if thr is not None and thr < 32: e(f"s_waitcnt vmcnt({thr-8})")
            if pst is not None: stamp(g, pst+1, STP)
            issue(1, slot)
            e(f"s_add_u32 s{S_OFF}, s{S_OFF}, {STEP}")

    def compute(rs):
        if o.get("nocompute"): return
        KF, VF = RK[rs], RV[rs]
        for kk in range(4):
            for T in range(2):
                c = "0" if kk == 0 else vr(V_S+4*T, 4)
                e(f"v_mfma_f32_16x16x32_bf16 {vr(V_S+4*T,4)}, {vr(KF+16*T+4*kk,4)}, {vr(V_Q+4*kk,4)}, {c}")
        g.nop(8)
        t = V_T
        for i in range(4):
            e(f"v_cvt_pk_bf16_f32 v{t+i}, v{V_S+2*i}, v{V_S+2*i+1}")
        for i in range(4):
            e(f"v_lshlrev_b32 v{V_A+2*i}, 16, v{t+i}")
            e(f"v_and_b32 v{V_A+2*i+1}, 0xffff0000, v{t+i}")
        for i in range(8):
            e(f"v_mul_f32 v{V_A+i}, s{S_C1}, v{V_A+i}")
        for i in range(4):
            e(f"v_cvt_pk_bf16_f32 v{t+i}, v{V_A+2*i}, v{V_A+2*i+1}")
        for i in range(4):
            e(f"v_lshlrev_b32 v{V_A+2*i}, 16, v{t+i}")
            e(f"v_and_b32 v{V_A+2*i+1}, 0xffff0000, v{t+i}")
        e(f"v_max3_f32 v{V_MX}, v{V_A}, v{V_A+1}, v{V_A+2}")
        e(f"v_max3_f32 v{V_MX}, v{V_MX}, v{V_A+3}, v{V_A+4}")
        e(f"v_max3_f32 v{V_MX}, v{V_MX}, v{V_A+5}, v{V_A+6}")
        e(f"v_max3_f32 v{V_MX}, v{V_MX}, v{V_A+7}, v{V_M}")
        rows_reduce(g, V_MX, t, "v_max_f32")
        e(f"v_sub_f32 v{V_AL}, v{V_M}, v{V_MX}")
        e(f"v_mul_f32 v{V_AL}, s{S_C0}, v{V_AL}")
        e(f"v_exp_f32 v{V_AL}, v{V_AL}")
        e(f"v_mov_b32 v{V_M}, v{V_MX}")
        e(f"v_mul_f32 v{V_NM}, s{S_C0}, v{V_MX}")
        for i in range(8):
            e(f"v_fma_f32 v{V_A+i}, v{V_A+i}, s{S_C0}, -v{V_NM}")
        for i in range(8):
            e(f"v_exp_f32 v{V_A+i}, v{V_A+i}")
        e(f"v_mul_f32 v{V_L}, v{V_L}, v{V_AL}")
        for i in range(16):
            e(f"v_pk_mul_f32 {vr(V_O+2*i,2)}, {vr(V_O+2*i,2)}, {vr(V_AL,2)} op_sel_hi:[1,0]")
        for i in range(4):
            e(f"v_cvt_pk_bf16_f32 v{V_P+i}, v{V_A+2*i}, v{V_A+2*i+1}")
        e(f"v_add_f32 v{t}, v{V_A}, v{V_A+1}")
        e(f"v_add_f32 v{t+1}, v{V_A+2}, v{V_A+3}")
        e(f"v_add_f32 v{t+2}, v{V_A+4}, v{V_A+5}")
        e(f"v_add_f32 v{t+3}, v{V_A+6}, v{V_A+7}")
        e(f"v_add_f32 v{t}, v{t}, v{t+1}")
        e(f"v_add_f32 v{t+2}, v{t+2}, v{t+3}")
        e(f"v_add_f32 v{t}, v{t}, v{t+2}")
        e(f"v_add_f32 v{V_L}, v{V_L}, v{t}")
        for dt in range(8):
            e(f"v_mfma_f32_16x16x32_bf16 {vr(V_O+4*dt,4)}, {vr(VF+4*dt,4)}, {vr(V_P,4)}, {vr(V_O+4*dt,4)}")

    load(0, 0, True, 24, 24, THR, 7)
    load(1, 1, True, 24, 24, THR, None)
    e("s_waitcnt lgkmcnt(0)")
    e(f"s_mul_i32 s{S_TAG}, s{S_E}, 1664525")
    e(f"s_add_u32 s{S_TAG}, s{S_TAG}, 1013904223")
    stamp(g, 1, ST)
    e("s_barrier")
    if DS2: e("s_memrealtime s[86:87]")
    stamp(g, 2, ST)
    if DS:
        LX = g.new("ds")
        e(f"s_cmp_lg_u32 s{S_WAVE}, 0"); e(f"s_cbranch_scc1 {LX}")
        e("s_memrealtime s[88:89]")
        g.lab(LX)
    e("v_and_b32 v1, 15, v0")
    e("v_lshrrev_b32 v2, 4, v0")
    e("v_lshlrev_b32 v1, 8, v1")
    e("v_lshl_add_u32 v1, v2, 4, v1")
    e(f"v_add_u32 v1, {L_Q}, v1")
    e(f"s_mov_b32 s{S_EX}, 0x000f000f"); e(f"s_mov_b32 s{S_EX+1}, 0x000f000f")
    e(f"s_mov_b64 exec, s[{S_EX}:{S_EX+1}]")
    for kk in range(4):
        e(f"ds_read_b128 {vr(V_Q+4*kk,4)}, v1 offset:{kk*64}")
    e("s_mov_b64 exec, -1")
    e(f"s_mov_b32 s{S_C0}, {L2E:#x}")
    e(f"s_mov_b32 s{S_C1}, {SCALE:#x}")
    e("s_waitcnt lgkmcnt(0)")

    NT = o["ntiles"]
    STHR = o.get("sthr", 32)
    if not o["dyn"]:
        nloop = (NT - 4) // 2
        if STL:
            for it in range(nloop):
                compute(0); load(0, 0, True, 24, 24, STHR)
                compute(1); load(1, 1, True, 24, 24, STHR)
                if it < 5: stamp(g, 4 + it, True)
        else:
            e(f"s_mov_b32 s{S_CNT}, {nloop}")
            g.lab("L_loop")
            compute(0); load(0, 0, True, 24, 24, STHR)
            compute(1); load(1, 1, True, 24, 24, STHR)
            e(f"s_sub_u32 s{S_CNT}, s{S_CNT}, 1")
            e(f"s_cmp_lg_u32 s{S_CNT}, 0")
            e("s_cbranch_scc1 L_loop")
        compute(0); load(0, 0, False, 24, 16)
        compute(1); load(1, 1, False, 8, 0)
        compute(0)
        compute(1)
    else:
        NS = o.get("ns", 5)
        NSTAT = NS * 64
        V_TK, V_ONE, V_CA = 233, 234, 235
        cap = min(STHR, 24) - 8
        e(f"s_sub_u32 s{S_NEXT}, s{S_OFF}, s{S_ROT}")
        e(f"s_lshr_b32 s{S_NEXT}, s{S_NEXT}, 13")
        e(f"s_sub_u32 s{S_NEXT}, s{S_NEXT}, {NSTAT}")
        e(f"s_add_u32 s95, s{S_NEXT}, {NSTAT}")
        e(f"v_mov_b32 v{V_TK}, s{S_NEXT}")
        e(f"v_mov_b32 v{V_ONE}, 1")
        e(f"s_lshl_b32 s{S_T0}, s{S_PAIR}, 8"); e(f"s_add_u32 s{S_T0}, s{S_T0}, {WS_CNT}")
        e(f"v_mov_b32 v{V_CA}, s{S_T0}")
        e(f"s_mov_b32 s{S_CNT}, 0"); e("s_mov_b32 s73, 0")
        def readK(rs, slot):
            if o.get("noread"): return
            for T in range(2):
                for kk in range(4):
                    e(f"ds_read_b128 {vr(RK[rs]+16*T+4*kk,4)}, v{V_KR+kk} offset:{slot*16384+T*4096}")
            e("s_waitcnt lgkmcnt(0)")
        def readV(rs, slot):
            if o.get("noread"): return
            for dt in range(8):
                for T in range(2):
                    e(f"ds_read_b64_tr_b16 {vr(RV[rs]+4*dt+2*T,2)}, v{V_VR+dt} offset:{slot*16384+T*4096}")
            e("s_waitcnt lgkmcnt(0)")
        def dload(sg):
            e("s_waitcnt vmcnt(25)")
            readK(sg, sg)
            e(f"s_waitcnt vmcnt({cap})")
            e(f"v_readfirstlane_b32 s{S_NEXT}, v{V_TK}")
            e(f"s_add_u32 s{S_NEXT}, s{S_NEXT}, {NSTAT}")
            e(f"s_cmp_ge_u32 s{S_NEXT}, 1024")
            e(f"s_cbranch_scc1 L_drain{sg}")
            if NS > 5:
                LA = g.new("tka"); LB = g.new("tkb")
                e(f"s_add_u32 s95, s95, 64")
                e(f"s_cmp_ge_u32 s95, {NSTAT}"); e(f"s_cbranch_scc1 {LA}")
                e(f"s_sub_u32 s{S_T0}, s95, {NSTAT}")
                e(f"v_mov_b32 v{V_TK}, s{S_T0}")
                e(f"s_branch {LB}")
                g.lab(LA)
            e("s_mov_b64 exec, 1")
            e(f"global_atomic_add v{V_TK}, v{V_CA}, v{V_ONE}, s[{S_WS}:{S_WS+1}] sc0")
            e("s_mov_b64 exec, -1")
            if NS > 5: g.lab(LB)
            e(f"s_lshl_b32 s{S_OFF}, s{S_NEXT}, 13")
            e(f"s_add_u32 s{S_OFF}, s{S_OFF}, s{S_ROT}")
            tile_addr(); issue(0, sg)
            e("s_waitcnt vmcnt(26)")
            readV(sg, sg)
            e(f"s_waitcnt vmcnt({cap})")
            issue(1, sg)
            e(f"s_add_u32 s{S_CNT}, s{S_CNT}, 1")
        S_DR, S_E0, S_EM = 73, 92, 94
        S_PREV, S_NP = 92, 93
        NPA = o.get("npa", 0); NPC = o.get("npc", 112)
        def do_atomic():
            e("s_mov_b64 exec, 1")
            e(f"global_atomic_add v{V_TK}, v{V_CA}, v{V_ONE}, s[{S_WS}:{S_WS+1}] sc0")
            e("s_mov_b64 exec, -1")
        def ticket(faillabel, np_check=False):
            e(f"v_readfirstlane_b32 s{S_NEXT}, v{V_TK}")
            e(f"s_add_u32 s{S_NEXT}, s{S_NEXT}, {NSTAT}")
            e(f"s_cmp_ge_u32 s{S_NEXT}, 1024")
            e(f"s_cbranch_scc1 {faillabel}")
            LB = g.new("tkb")
            if np_check and NPA:
                LN = g.new("tkn")
                e(f"s_sub_u32 s{S_T0}, s{S_NEXT}, s{S_PREV}")
                e(f"s_mov_b32 s{S_PREV}, s{S_NEXT}")
                e(f"s_mul_i32 s{S_T0}, s{S_T0}, {NPA}")
                e(f"s_add_u32 s{S_T0}, s{S_T0}, s{S_NEXT}")
                e(f"s_cmp_le_u32 s{S_T0}, {1024 + NPC}"); e(f"s_cbranch_scc1 {LN}")
                e(f"s_mov_b32 s{S_NP}, 1")
                e(f"s_branch {LB}")
                g.lab(LN)
            elif NPA:
                e(f"s_mov_b32 s{S_PREV}, s{S_NEXT}")
            if NS > 5:
                LA = g.new("tka")
                e(f"s_add_u32 s95, s95, 64")
                e(f"s_cmp_ge_u32 s95, {NSTAT}"); e(f"s_cbranch_scc1 {LA}")
                e(f"s_sub_u32 s{S_T0}, s95, {NSTAT}")
                e(f"v_mov_b32 v{V_TK}, s{S_T0}")
                e(f"s_branch {LB}")
                g.lab(LA)
            do_atomic()
            g.lab(LB)
            e(f"s_lshl_b32 s{S_OFF}, s{S_NEXT}, 13")
            e(f"s_add_u32 s{S_OFF}, s{S_OFF}, s{S_ROT}")
            tile_addr()
        def consume(faillabel):
            e(f"v_readfirstlane_b32 s{S_NEXT}, v{V_TK}")
            e(f"s_add_u32 s{S_NEXT}, s{S_NEXT}, {NSTAT}")
            e(f"s_cmp_ge_u32 s{S_NEXT}, 1024")
            e(f"s_cbranch_scc1 {faillabel}")
            e(f"s_lshl_b32 s{S_OFF}, s{S_NEXT}, 13")
            e(f"s_add_u32 s{S_OFF}, s{S_OFF}, s{S_ROT}")
            tile_addr()
        def request():
            LB = g.new("rqb")
            if NS > 5:
                LA = g.new("rqa")
                e(f"s_add_u32 s95, s95, 64")
                e(f"s_cmp_ge_u32 s95, {NSTAT}"); e(f"s_cbranch_scc1 {LA}")
                e(f"s_sub_u32 s{S_T0}, s95, {NSTAT}")
                e(f"v_mov_b32 v{V_TK}, s{S_T0}")
                e(f"s_branch {LB}")
                g.lab(LA)
            do_atomic()
            g.lab(LB)
        if o.get("single", True) and o.get("late", True):
            compute(0)
            stamp(g, 4, STX)
            e("s_waitcnt vmcnt(24)")
            readK(0, 0)
            consume("L_ldone")
            issue(0, 0)
            e("s_waitcnt vmcnt(24)")
            readV(0, 0)
            issue(1, 0)
            stamp(g, 5, STX)
            compute(1)
            stamp(g, 6, STX)
            request()
            e("s_waitcnt vmcnt(24)")
            readK(1, 1)
            e("s_waitcnt vmcnt(16)")
            readV(1, 1)
            stamp(g, 7, STX)
            compute(0)
            compute(1)
            stamp(g, 8, STX)
            g.lab("L_loop")
            e("s_waitcnt vmcnt(8)")
            readK(0, 0)
            e("s_waitcnt vmcnt(0)")
            consume("L_last")
            issue(0, 0)
            readV(0, 0)
            issue(1, 0)
            e(f"s_add_u32 s{S_CNT}, s{S_CNT}, 1")
            if o["stamps"] == "R":
                for idx, c in ((4, 1), (5, 3), (6, 5), (7, 7), (8, 9)):
                    LS = g.new("rs")
                    e(f"s_cmp_lg_u32 s{S_CNT}, {c}"); e(f"s_cbranch_scc1 {LS}")
                    stamp(g, idx, True)
                    g.lab(LS)
            g.lab("L_comp")
            compute(0)
            e(f"s_cmp_eq_u32 s{S_DR}, 1"); e("s_cbranch_scc1 L_ldone")
            request()
            e("s_branch L_loop")
            g.lab("L_last")
            e(f"s_mov_b32 s{S_DR}, 1")
            readV(0, 0)
            e("s_branch L_comp")
        elif o.get("single", True):
            e(f"s_mov_b32 s{S_NP}, 0")
            compute(0)
            e("s_waitcnt vmcnt(24)")
            readK(0, 0)
            ticket("L_ldone")
            issue(0, 0)
            e("s_waitcnt vmcnt(24)")
            readV(0, 0)
            issue(1, 0)
            compute(1)
            e("s_waitcnt vmcnt(24)")
            readK(1, 1)
            e("s_waitcnt vmcnt(16)")
            readV(1, 1)
            compute(0)
            compute(1)
            g.lab("L_loop")
            e("s_waitcnt vmcnt(8)")
            readK(0, 0)
            ticket("L_last", True)
            issue(0, 0)
            e("s_waitcnt vmcnt(8)")
            readV(0, 0)
            issue(1, 0)
            e(f"s_add_u32 s{S_CNT}, s{S_CNT}, 1")
            g.lab("L_comp")
            compute(0)
            e(f"s_cmp_eq_u32 s{S_DR}, 0"); e("s_cbranch_scc1 L_loop")
            e("s_branch L_ldone")
            g.lab("L_last")
            e(f"s_mov_b32 s{S_DR}, 1")
            e("s_waitcnt vmcnt(0)")
            readV(0, 0)
            e("s_branch L_comp")
        else:
            e(f"s_mov_b32 s{S_E0}, 0"); e(f"s_mov_b32 s{S_E0+1}, 0"); e(f"s_mov_b32 s{S_EM}, 0")
            g.lab("L_loop")
            for sg in range(2):
                compute(sg)
                e(f"s_cmp_eq_u32 s{S_E0+sg}, 1"); e(f"s_cbranch_scc1 L_empty{sg}")
                e(f"s_cmp_eq_u32 s{S_DR}, 1"); e(f"s_cbranch_scc1 L_dw{sg}")
                e("s_waitcnt vmcnt(24)")
                readK(sg, sg)
                e(f"s_waitcnt vmcnt({cap})")
                ticket(f"L_noref{sg}")
                issue(0, sg)
                e("s_waitcnt vmcnt(24)")
                readV(sg, sg)
                e(f"s_waitcnt vmcnt({cap})")
                issue(1, sg)
                e(f"s_add_u32 s{S_CNT}, s{S_CNT}, 1")
                e(f"s_branch L_next{sg}")
                g.lab(f"L_dw{sg}")
                e("s_waitcnt vmcnt(0)")
                readK(sg, sg)
                g.lab(f"L_noref{sg}")
                e(f"s_mov_b32 s{S_DR}, 1"); e(f"s_mov_b32 s{S_E0+sg}, 1")
                e("s_waitcnt vmcnt(16)")
                readV(sg, sg)
                e(f"s_branch L_next{sg}")
                g.lab(f"L_empty{sg}")
                e(f"s_add_u32 s{S_EM}, s{S_EM}, 1")
                e(f"s_cmp_eq_u32 s{S_EM}, 2"); e("s_cbranch_scc1 L_ldone")
                g.lab(f"L_next{sg}")
            e("s_branch L_loop")
        g.lab("L_ldone")
        if STL: e(f"s_mov_b32 s{S_ST0+8}, s{S_CNT}")
    stamp(g, 3, ST and not STP)
    if DS2: e("s_memrealtime s[88:89]")
    rows_reduce(g, V_L, V_T, "v_add_f32")
    e("v_and_b32 v1, 15, v0")
    e("v_lshrrev_b32 v2, 4, v0")
    e("v_lshlrev_b32 v3, 9, v1")
    e("v_lshl_add_u32 v3, v2, 4, v3")
    e(f"v_add_u32 v3, s{S_RB}, v3")
    e(f"s_lshl_b32 s{S_T0}, s{S_WAVE}, 5")
    e(f"s_add_u32 s{S_T0}, s{S_T0}, {L_ML}")
    e(f"v_lshlrev_b32 v4, 3, v1")
    e(f"v_add_u32 v4, s{S_T0}, v4")
    g.nop(8)
    e(f"s_mov_b64 exec, s[{S_EX}:{S_EX+1}]")
    for dt in range(8):
        e(f"ds_write_b128 v3, {vr(V_O+4*dt,4)} offset:{dt*64}")
    e(f"ds_write_b64 v4, {vr(V_M,2)}")
    e("s_mov_b64 exec, -1")
    e(f"s_mov_b64 s[{S_T2}:{S_T2+1}], s[{S_X}:{S_X+1}]")
    for r in (228, 229, 231, 232, 233, 234, 235): e(f"v_mov_b32 v{r}, 0")
    e("s_waitcnt lgkmcnt(0)")
    e("s_branch L_tail")

    g.lab("L_helper")
    H_W = 64
    H_F = 128
    H_WO = 192
    H_G = 224
    S_STG = S_T5
    if o.get("skipA"):
        e("s_waitcnt lgkmcnt(0)")
        e(f"s_load_dword s{S_E}, s[{S_WS}:{S_WS+1}], {WS_E}")
        build_srd(g, SRD_WS, S_WS, WS_SIZE); build_srd(g, SRD_X, S_X, 2048); build_srd(g, SRD_WO, S_WO, 0x400000); build_srd(g, SRD_OUT, S_OUT, 2048)
        build_srd(g, SRD_W, S_WQ, 0x400000)
        e("s_waitcnt lgkmcnt(0)")
        e(f"s_mul_i32 s{S_TAG}, s{S_E}, 1664525"); e(f"s_add_u32 s{S_TAG}, s{S_TAG}, 1013904223")
        if o["b0"]: e("s_barrier")
        e("s_barrier")
        e("s_branch L_hb2")
    if o["prio"]:
        e("s_setprio 3")
    e(f"s_sub_u32 s{S_T5}, s{S_WAVE}, 4")
    e(f"s_lshl_b32 s{S_T5}, s{S_T5}, 12")
    e(f"s_add_u32 s{S_T5}, s{S_T5}, {L_STG}")
    e(f"s_cmp_ge_u32 s{S_WAVE}, 6"); e("s_cbranch_scc1 L_w67")
    e(f"s_and_b32 s{S_T2}, s2, 3")
    e(f"s_lshr_b32 s{S_T1}, s2, 2")
    e("v_lshrrev_b32 v2, 3, v0")
    e("v_and_b32 v3, 7, v0")
    e("v_lshlrev_b32 v1, 4, v0")
    e(f"s_cmp_eq_u32 s{S_WAVE}, 5"); e("s_cbranch_scc1 L_w5setup")
    e(f"s_mov_b32 s{S_T0}, 8192")
    e(f"s_mov_b32 s{S_T3}, {L_XN4}")
    e(f"s_mov_b32 s{S_C0}, {WS_Q}"); e(f"s_mov_b32 s{S_C1}, {4096*8}")
    e("s_waitcnt lgkmcnt(0)")
    build_srd(g, SRD_W, S_WQ, 0x400000)
    if o["dyn"]:
        e(f"s_and_b32 s{S_T4}, s2, 30"); e(f"s_cmp_lg_u32 s{S_T4}, 0"); e("s_cbranch_scc1 L_slice")
        e(f"s_and_b32 s{S_T4}, s2, 1"); e(f"s_lshl_b32 s{S_T4}, s{S_T4}, 3")
        e(f"s_lshr_b32 s{S_SOFF}, s2, 5"); e(f"s_add_u32 s{S_T4}, s{S_T4}, s{S_SOFF}")
        e(f"s_lshl_b32 s{S_T4}, s{S_T4}, 8"); e(f"s_add_u32 s{S_T4}, s{S_T4}, {WS_CNT}")
        e(f"v_mov_b32 v4, s{S_T4}"); e("v_mov_b32 v5, 0")
        e("s_mov_b64 exec, 1")
        e(f"global_store_dword v4, v5, s[{S_WS}:{S_WS+1}] sc1")
        e("s_mov_b64 exec, -1")
    e("s_branch L_slice")
    g.lab("L_w5setup")
    e(f"s_mov_b32 s{S_T0}, 3584")
    e(f"s_mov_b32 s{S_T3}, {L_XN5}")
    e(f"s_mov_b32 s{S_C0}, {WS_H}"); e(f"s_mov_b32 s{S_C1}, {1792*8}")
    e("s_waitcnt lgkmcnt(0)")
    build_srd(g, SRD_W, S_W1, 512*3584)
    e(f"s_cmp_ge_u32 s2, 112"); e("s_cbranch_scc1 L_hb0")
    g.lab("L_slice")
    stamp(g, 4, STA)
    build_srd(g, SRD_X, S_X, 2048)
    e(f"buffer_load_dwordx4 v[8:11], v1, s[{SRD_X}:{SRD_X+3}], 0 offen")
    e(f"buffer_load_dwordx4 v[12:15], v1, s[{SRD_X}:{SRD_X+3}], 0 offen offset:1024")
    e(f"v_mul_lo_u32 v2, v2, s{S_T0}")
    e("v_lshl_add_u32 v2, v3, 4, v2")
    e(f"s_lshl_b32 s{S_SOFF}, s{S_T2}, 7"); e(f"s_mul_i32 s{S_SOFF}, s{S_SOFF}, s{S_T0}")
    e(f"s_lshl_b32 s{S_T4}, s{S_T1}, 7"); e(f"s_add_u32 s{S_SOFF}, s{S_SOFF}, s{S_T4}")
    e(f"s_lshl_b32 s{S_RS32}, s{S_T0}, 3")
    for i in range(16):
        e(f"buffer_load_dwordx4 {vr(H_W+4*i,4)}, v2, s[{SRD_W}:{SRD_W+3}], s{S_SOFF} offen" + (" nt" if o.get("wnt") else ""))
        if i < 15:
            e(f"s_add_u32 s{S_SOFF}, s{S_SOFF}, s{S_RS32}")
    stamp(g, 5, STA)
    if o["b0"]:
        e("s_barrier")
    e(f"s_load_dword s{S_E}, s[{S_WS}:{S_WS+1}], {WS_E}")
    build_srd(g, SRD_WS, S_WS, WS_SIZE)
    build_srd(g, SRD_WO, S_WO, 0x400000)
    build_srd(g, SRD_OUT, S_OUT, 2048)
    e("s_waitcnt vmcnt(16)")
    stamp(g, 6, STA)
    X0, X1 = 16, 24
    for b, (src, dst) in enumerate(((8, X0), (12, X1))):
        for i in range(4):
            e(f"v_lshlrev_b32 v{dst+2*i}, 16, v{src+i}")
            e(f"v_and_b32 v{dst+2*i+1}, 0xffff0000, v{src+i}")
    SU = 32
    for b, dst in enumerate((X0, X1)):
        e(f"v_add_f32 v{SU+b}, v{dst}, v{dst+1}")
        for i in range(2, 8):
            e(f"v_add_f32 v{SU+b}, v{SU+b}, v{dst+i}")
    def wave_sum2(a):
        row_ror_reduce(g, [a, a+1], "v_add_f32", [1, 2, 4, 8])
        rows_reduce_multi(g, [a, a+1], [a+2, a+3], "v_add_f32")
    wave_sum2(SU)
    e(f"s_mov_b32 s{S_T4}, 0x3b000000")
    e(f"v_mul_f32 v{SU}, s{S_T4}, v{SU}")
    e(f"v_mul_f32 v{SU+1}, s{S_T4}, v{SU+1}")
    VA = 36
    for b, dst in enumerate((X0, X1)):
        e(f"v_sub_f32 v40, v{dst}, v{SU+b}")
        e(f"v_mul_f32 v{VA+b}, v40, v40")
        for i in range(1, 8):
            e(f"v_sub_f32 v40, v{dst+i}, v{SU+b}")
            e(f"v_fmac_f32 v{VA+b}, v40, v40")
    wave_sum2(VA)
    e(f"v_mul_f32 v{VA}, s{S_T4}, v{VA}")
    e(f"v_mul_f32 v{VA+1}, s{S_T4}, v{VA+1}")
    e(f"v_cvt_pk_bf16_f32 v40, v{SU}, v{SU+1}")
    e(f"v_cvt_pk_bf16_f32 v41, v{VA}, v{VA+1}")
    e(f"v_lshlrev_b32 v{SU}, 16, v40"); e(f"v_and_b32 v{SU+1}, 0xffff0000, v40")
    e(f"v_lshlrev_b32 v{VA}, 16, v41"); e(f"v_and_b32 v{VA+1}, 0xffff0000, v41")
    e(f"v_add_f32 v{VA}, 0x3727c5ac, v{VA}"); e(f"v_add_f32 v{VA+1}, 0x3727c5ac, v{VA+1}")
    e(f"v_cvt_pk_bf16_f32 v41, v{VA}, v{VA+1}")
    e(f"v_lshlrev_b32 v{VA}, 16, v41"); e(f"v_and_b32 v{VA+1}, 0xffff0000, v41")
    e(f"v_sqrt_f32 v{VA}, v{VA}"); e(f"v_sqrt_f32 v{VA+1}, v{VA+1}")
    g.nop(1)
    e(f"v_cvt_pk_bf16_f32 v41, v{VA}, v{VA+1}")
    e(f"v_lshlrev_b32 v{VA}, 16, v41"); e(f"v_and_b32 v{VA+1}, 0xffff0000, v41")
    e(f"v_rcp_f32 v38, v{VA}"); e(f"v_rcp_f32 v39, v{VA+1}")
    for b, dst in enumerate((X0, X1)):
        for i in range(8):
            e(f"v_sub_f32 v{dst+i}, v{dst+i}, v{SU+b}")
        for i in range(4):
            e(f"v_cvt_pk_bf16_f32 v40, v{dst+2*i}, v{dst+2*i+1}")
            e(f"v_lshlrev_b32 v{dst+2*i}, 16, v40"); e(f"v_and_b32 v{dst+2*i+1}, 0xffff0000, v40")
        for i in range(8):
            e(f"v_mul_f32 v41, v{dst+i}, v{38+b}")
            e(f"v_fma_f32 v42, -v41, v{VA+b}, v{dst+i}")
            e(f"v_fma_f32 v{dst+i}, v42, v{38+b}, v41")
        for i in range(4):
            e(f"v_cvt_pk_bf16_f32 v{44+4*b+i}, v{dst+2*i}, v{dst+2*i+1}")
    e("v_lshlrev_b32 v1, 4, v0")
    e(f"v_add_u32 v1, s{S_T3}, v1")
    e("ds_write_b128 v1, v[44:47]")
    e("ds_write_b128 v1, v[48:51] offset:1024")
    e("v_lshlrev_b32 v1, 4, v0")
    e(f"v_add_u32 v1, s{S_STG}, v1")
    e("v_lshrrev_b32 v2, 4, v0")
    e("v_bfe_u32 v3, v0, 2, 2")
    e("v_lshl_add_u32 v3, v2, 3, v3")
    e("v_and_b32 v4, 3, v0")
    e("v_lshlrev_b32 v5, 7, v3")
    e("v_lshl_add_u32 v5, v4, 3, v5")
    e(f"v_add_u32 v5, s{S_STG}, v5")
    e("v_and_b32 v6, 1, v0")
    e("v_lshlrev_b32 v6, 10, v6")
    e("v_lshl_add_u32 v6, v2, 4, v6")
    e(f"s_lshl_b32 s{S_T4}, s{S_T2}, 8"); e(f"s_add_u32 s{S_T4}, s{S_T4}, s{S_T3}")
    e(f"v_add_u32 v6, s{S_T4}, v6")
    ACC = 48
    stamp(g, 7, STA)
    if STA:
        e("s_waitcnt vmcnt(0)")
        stamp(g, 8, STA)
    for pc in range(4):
        e(f"ds_read_b128 {vr(16+4*pc,4)}, v6 offset:{64*pc}")
    for pc in range(4):
        e(f"s_waitcnt vmcnt({12-4*pc})")
        for i in range(4):
            e(f"ds_write_b128 v1, {vr(H_W+16*pc+4*i,4)} offset:{i*1024}")
        for c in range(4):
            e(f"ds_read_b64_tr_b16 {vr(32+4*c,2)}, v5 offset:{c*32}")
            e(f"ds_read_b64_tr_b16 {vr(32+4*c+2,2)}, v5 offset:{c*32+512}")
        e("s_waitcnt lgkmcnt(0)")
        for c in range(4):
            cc = "0" if pc == 0 else vr(ACC+4*c, 4)
            e(f"v_mfma_f32_16x16x32_bf16 {vr(ACC+4*c,4)}, {vr(16+4*pc,4)}, {vr(32+4*c,4)}, {cc}")
    e(f"s_mul_i32 s{S_TAG}, s{S_E}, 1664525")
    e(f"s_add_u32 s{S_TAG}, s{S_TAG}, 1013904223")
    e(f"s_lshl_b32 s{S_T0}, s{S_T2}, 1"); e(f"s_mul_i32 s{S_T0}, s{S_T0}, s{S_C1}")
    e(f"s_add_u32 s{S_T0}, s{S_T0}, s{S_C0}")
    e(f"s_lshl_b32 s{S_T4}, s{S_T1}, 9"); e(f"s_add_u32 s{S_T0}, s{S_T0}, s{S_T4}")
    e(f"s_add_u32 s{S_T4}, s{S_T0}, s{S_C1}")
    e("v_lshlrev_b32 v1, 3, v0")
    e(f"v_mov_b32 v9, s{S_TAG}"); e(f"v_mov_b32 v11, s{S_TAG}")
    g.nop(4)
    for c in range(4):
        if c < 2:
            e(f"s_mov_b32 exec_lo, {0xffff << (16*c):#x}"); e("s_mov_b32 exec_hi, 0")
        else:
            e("s_mov_b32 exec_lo, 0"); e(f"s_mov_b32 exec_hi, {0xffff << (16*(c-2)):#x}")
        e(f"v_mov_b32 v8, v{ACC+4*c}"); e(f"v_mov_b32 v10, v{ACC+4*c+1}")
    e("s_mov_b64 exec, -1")
    pub2(g, 8, 1, f"s{S_T0}")
    pub2(g, 10, 1, f"s{S_T4}")
    stamp(g, 1, ST)
    e("s_branch L_qg")
    g.lab("L_w67")
    if o["b0"]:
        e("s_barrier")
    e("s_waitcnt lgkmcnt(0)")
    e(f"s_load_dword s{S_E}, s[{S_WS}:{S_WS+1}], {WS_E}")
    build_srd(g, SRD_WS, S_WS, WS_SIZE)
    build_srd(g, SRD_X, S_X, 2048)
    build_srd(g, SRD_WO, S_WO, 0x400000)
    build_srd(g, SRD_OUT, S_OUT, 2048)
    e(f"s_cmp_eq_u32 s{S_WAVE}, 7"); e("s_cbranch_scc1 L_w7")
    e("s_branch L_qg")
    g.lab("L_w6")
    if o.get("prio_after") is not None:
        e(f"s_setprio {o['prio_after']}")
    build_srd(g, SRD_W, S_W2, 1792*1024)
    e(f"s_sub_u32 s{S_T0}, s2, 128")
    e(f"s_cmp_ge_u32 s{S_T0}, 112")
    e("s_cbranch_scc1 L_wo")
    e(f"s_lshr_b32 s{S_T1}, s{S_T0}, 2")
    e(f"s_and_b32 s{S_T2}, s{S_T0}, 3")
    e("v_lshrrev_b32 v2, 3, v0"); e("v_lshlrev_b32 v2, 10, v2")
    e("v_and_b32 v3, 7, v0"); e("v_lshl_add_u32 v2, v3, 4, v2")
    e(f"s_lshl_b32 s{S_SOFF}, s{S_T1}, 16")
    e(f"s_lshl_b32 s{S_T3}, s{S_T2}, 8")
    e(f"s_add_u32 s{S_SOFF}, s{S_SOFF}, s{S_T3}")
    for ks in range(2):
        for ch in range(2):
            for u in range(4):
                idx = (ks * 2 + ch) * 4 + u
                e(f"s_add_u32 s{S_T3}, s{S_SOFF}, {(32*ks+8*u)*1024}")
                e(f"buffer_load_dwordx4 {vr(H_W+4*idx,4)}, v2, s[{SRD_W}:{SRD_W+3}], s{S_T3} offen offset:{ch*128}" + (" nt" if o.get("wnt") else ""))
    stamp(g, 4, STF)
    e("v_lshlrev_b32 v1, 4, v0")
    e(f"v_add_u32 v1, s{S_STG}, v1")
    e("v_lshrrev_b32 v2, 4, v0"); e("v_bfe_u32 v3, v0, 2, 2"); e("v_lshl_add_u32 v3, v2, 3, v3"); e("v_and_b32 v4, 3, v0")
    e("v_lshlrev_b32 v5, 7, v3"); e("v_lshl_add_u32 v5, v4, 3, v5"); e(f"v_add_u32 v5, s{S_STG}, v5")
    e("s_waitcnt vmcnt(0)")
    stamp(g, 5, STF)
    for ks in range(2):
        for ch in range(2):
            pc = ks * 2 + ch
            for u in range(4):
                e(f"ds_write_b128 v1, {vr(H_W+16*pc+4*u,4)} offset:{u*1024}")
            for c in range(4):
                f = H_F + 4 * (ks * 8 + ch * 4 + c)
                e(f"ds_read_b64_tr_b16 {vr(f,2)}, v5 offset:{c*32}")
                e(f"ds_read_b64_tr_b16 {vr(f+2,2)}, v5 offset:{c*32+512}")
            e("s_waitcnt lgkmcnt(0)")
    e("v_lshrrev_b32 v6, 5, v0")
    e(f"v_mul_u32_u24 v6, {1792*8}, v6")
    e("v_and_b32 v7, 31, v0")
    e("v_lshl_add_u32 v6, v7, 4, v6")
    e(f"s_lshl_b32 s{S_T0}, s{S_T1}, 9"); e(f"s_add_u32 s{S_T0}, s{S_T0}, {WS_H}")
    def hl():
        for r4 in range(4):
            e(f"s_add_u32 s{S_T3}, s{S_T0}, {r4*2*1792*8}")
            e(f"buffer_load_dwordx4 {vr(16+4*r4,4)}, v6, s[{SRD_WS}:{SRD_WS+3}], s{S_T3} offen sc1")
    stamp(g, 6, STF)
    poll(g, "h", hl, [17+2*i for i in range(8)], 8, sleep=8)
    stamp(g, 7, STF)
    e("v_add_f32 v16, v16, v20"); e("v_add_f32 v18, v18, v22"); e("v_add_f32 v24, v24, v28"); e("v_add_f32 v26, v26, v30")
    e("v_add_f32 v16, v16, v24"); e("v_add_f32 v18, v18, v26")
    e("v_cvt_pk_bf16_f32 v8, v16, v18")
    e("v_lshlrev_b32 v10, 16, v8"); e("v_and_b32 v11, 0xffff0000, v8")
    e(f"s_mov_b32 s{S_T0}, {L2E:#x}")
    for r in (10, 11):
        e(f"v_mul_f32 v12, s{S_T0}, v{r}")
        e(f"v_exp_f32 v12, -v12"); g.nop(1)
        e(f"v_add_f32 v12, 1.0, v12")
        e(f"v_rcp_f32 v12, v12"); g.nop(1)
        e(f"v_mul_f32 v{r}, v{r}, v12")
    e("v_cvt_pk_bf16_f32 v12, v10, v11")
    e("v_lshlrev_b32 v7, 2, v0")
    e(f"v_add_u32 v7, {L_H}, v7")
    e("ds_write_b32 v7, v12")
    e("v_and_b32 v6, 1, v0"); e("v_lshlrev_b32 v6, 7, v6"); e("v_lshl_add_u32 v6, v2, 4, v6"); e(f"v_add_u32 v6, {L_H}, v6")
    e("ds_read_b128 v[16:19], v6")
    e("ds_read_b128 v[20:23], v6 offset:64")
    e("s_waitcnt lgkmcnt(0)")
    for c in range(8):
        e(f"v_mfma_f32_16x16x32_bf16 {vr(H_W+4*c,4)}, v[16:19], {vr(H_F+4*c,4)}, 0")
    for c in range(8):
        e(f"v_mfma_f32_16x16x32_bf16 {vr(H_W+4*c,4)}, v[20:23], {vr(H_F+32+4*c,4)}, {vr(H_W+4*c,4)}")
    g.nop(10)
    e("v_and_b32 v1, 15, v0"); e("v_lshlrev_b32 v1, 3, v1")
    e(f"s_lshl_b32 s{S_T0}, s{S_T1}, 13")
    e(f"s_lshl_b32 s{S_T3}, s{S_T2}, 10")
    e(f"s_add_u32 s{S_T0}, s{S_T0}, s{S_T3}"); e(f"s_add_u32 s{S_T0}, s{S_T0}, {WS_F}")
    e(f"s_add_u32 s{S_T3}, s{S_T0}, 4096")
    e(f"v_mov_b32 v9, s{S_TAG}"); e(f"v_mov_b32 v11, s{S_TAG}")
    e("s_mov_b64 exec, 0xffff")
    for c in range(8):
        e(f"v_mov_b32 v8, v{H_W+4*c}"); e(f"v_mov_b32 v10, v{H_W+4*c+1}")
        e(f"buffer_store_dwordx2 v[8:9], v1, s[{SRD_WS}:{SRD_WS+3}], s{S_T0} offen offset:{c*128} sc1")
        e(f"buffer_store_dwordx2 v[10:11], v1, s[{SRD_WS}:{SRD_WS+3}], s{S_T3} offen offset:{c*128} sc1")
        g.nop(2)
    e("s_mov_b64 exec, -1")
    stamp(g, 8, STF)
    e("s_branch L_wo")

    g.lab("L_w7")
    if o["prefetch_code"]:
        pfm = o.get("pfmask", 7)
        e(f"s_lshr_b32 s{S_T0}, s2, 3"); e(f"s_and_b32 s{S_T0}, s{S_T0}, {pfm}"); e(f"s_cmp_lg_u32 s{S_T0}, 0"); e("s_cbranch_scc1 L_qg")
        e(f"s_getpc_b64 s[{S_T0}:{S_T0+1}]")
        g.lab("L_pcbase")
        e(f"s_sub_u32 s{S_T0}, s{S_T0}, L_pcbase-{KN}_kernel")
        e(f"s_subb_u32 s{S_T0+1}, s{S_T0+1}, 0")
        e(f"v_lshlrev_b32 v1, {o.get('pfshift', 7)}, v0")
        e("CODE_PREFETCH_PLACEHOLDER")
    e("s_branch L_qg")
    g.lab("L_hb0")
    if o["b0"]:
        e("s_barrier")
    e(f"s_load_dword s{S_E}, s[{S_WS}:{S_WS+1}], {WS_E}")
    build_srd(g, SRD_WS, S_WS, WS_SIZE)
    build_srd(g, SRD_X, S_X, 2048)
    build_srd(g, SRD_WO, S_WO, 0x400000)
    build_srd(g, SRD_OUT, S_OUT, 2048)
    g.lab("L_qg")
    e("s_waitcnt lgkmcnt(0)")
    e(f"s_mul_i32 s{S_TAG}, s{S_E}, 1664525")
    e(f"s_add_u32 s{S_TAG}, s{S_TAG}, 1013904223")
    e(f"s_lshl_b32 s{S_T0}, s{S_B}, 12"); e(f"s_lshl_b32 s{S_T2}, s{S_HKV}, 9")
    e(f"s_add_u32 s{S_T0}, s{S_T0}, s{S_T2}")
    e(f"s_sub_u32 s{S_T2}, s{S_WAVE}, 4"); e(f"s_lshl_b32 s{S_T1}, s{S_T2}, 7")
    e(f"s_add_u32 s{S_T0}, s{S_T0}, s{S_T1}"); e(f"s_lshl_b32 s{S_T0}, s{S_T0}, 3")
    e(f"s_add_u32 s{S_T0}, s{S_T0}, {WS_Q}")
    if o.get("qflag", True):
        LW = g.new("qfw"); LG = g.new("qfg")
        e(f"v_mov_b32 v2, {L_FLAG}")
        e(f"s_cmp_lg_u32 s{S_WAVE}, 4"); e(f"s_cbranch_scc1 {LW}")
        e(f"v_mov_b32 v3, s{S_TAG}")
        e("ds_write_b32 v2, v3")
        e(f"s_branch {LG}")
        g.lab(LW)
        e(f"s_mov_b32 s{S_RETRY}, 0x100000")
        LW2 = g.new("qfw2")
        g.lab(LW2)
        e("ds_read_b32 v3, v2")
        e("s_waitcnt lgkmcnt(0)")
        e(f"v_readfirstlane_b32 s{S_T1}, v3")
        e(f"s_cmp_eq_u32 s{S_T1}, s{S_TAG}"); e(f"s_cbranch_scc1 {LG}")
        e(f"s_sub_u32 s{S_RETRY}, s{S_RETRY}, 1"); e(f"s_cbranch_scc1 {LG}")
        e("s_sleep 2")
        e(f"s_branch {LW2}")
        g.lab(LG)
    e("v_lshlrev_b32 v1, 4, v0")
    def ql():
        for rb in range(4):
            e(f"s_add_u32 s{S_T1}, s{S_T0}, {rb*2*4096*8}")
            e(f"buffer_load_dwordx4 {vr(16+4*rb,4)}, v1, s[{SRD_WS}:{SRD_WS+3}], s{S_T1} offen sc1")
    poll(g, "q", ql, [17+2*i for i in range(8)], 8, sleep=o.get("qsleep", 4))
    e("v_add_f32 v16, v16, v20"); e("v_add_f32 v18, v18, v22"); e("v_add_f32 v24, v24, v28"); e("v_add_f32 v26, v26, v30")
    e("v_add_f32 v16, v16, v24"); e("v_add_f32 v18, v18, v26")
    e("v_cvt_pk_bf16_f32 v12, v16, v18")
    e(f"s_lshl_b32 s{S_T2}, s{S_T2}, 8"); e(f"s_add_u32 s{S_T2}, s{S_T2}, {L_Q}")
    e("v_lshlrev_b32 v1, 2, v0"); e(f"v_add_u32 v1, s{S_T2}, v1")
    e("ds_write_b32 v1, v12")
    e("s_waitcnt lgkmcnt(0)")
    stamp(g, 2, ST)
    e("s_barrier")
    if o.get("skiphelp"):
        e("s_branch L_hb2")
    if not o.get("skipffn2"):
        e(f"s_cmp_eq_u32 s{S_WAVE}, 6"); e("s_cbranch_scc1 L_w6")
    g.lab("L_wo")
    if o.get("prio_after") is not None:
        e(f"s_setprio {o['prio_after']}")
    if o.get("skipwo"): e("s_branch L_wodone")
    e(f"s_and_b32 s{S_T0}, s{S_SPLIT}, 3")
    e(f"s_lshl_b32 s{S_T1}, s{S_HKV}, 2"); e(f"s_add_u32 s{S_T1}, s{S_T1}, s{S_T0}")
    e(f"s_lshl_b32 s{S_SOFF}, s{S_T1}, 17")
    e(f"s_lshr_b32 s{S_T2}, s{S_SPLIT}, 2"); e(f"s_lshl_b32 s{S_T2}, s{S_T2}, 8")
    e(f"s_add_u32 s{S_SOFF}, s{S_SOFF}, s{S_T2}")
    e(f"s_sub_u32 s{S_T2}, s{S_WAVE}, 4"); e(f"s_lshl_b32 s{S_T2}, s{S_T2}, 6")
    e(f"s_add_u32 s{S_SOFF}, s{S_SOFF}, s{S_T2}")
    e("v_lshrrev_b32 v2, 2, v0"); e("v_lshlrev_b32 v2, 10, v2"); e("v_and_b32 v3, 3, v0"); e("v_lshl_add_u32 v2, v3, 4, v2")
    for u in range(8):
        e(f"buffer_load_dwordx4 {vr(H_W+4*u,4)}, v2, s[{SRD_WO}:{SRD_WO+3}], s{S_SOFF} offen" + o.get("wofl", " nt"))
        if u < 7:
            e(f"s_add_u32 s{S_SOFF}, s{S_SOFF}, {16*1024}")
    e("v_lshlrev_b32 v1, 4, v0"); e(f"v_add_u32 v1, s{S_STG}, v1")
    e("v_lshrrev_b32 v2, 4, v0"); e("v_bfe_u32 v3, v0, 2, 2"); e("v_lshl_add_u32 v3, v2, 3, v3"); e("v_and_b32 v4, 3, v0")
    e("v_lshlrev_b32 v5, 6, v3"); e("v_lshl_add_u32 v5, v4, 3, v5"); e(f"v_add_u32 v5, s{S_STG}, v5")
    e("s_waitcnt vmcnt(0)")
    for pc in range(2):
        for u in range(4):
            e(f"ds_write_b128 v1, {vr(H_W+16*pc+4*u,4)} offset:{u*1024}")
        for ks in range(2):
            for ct in range(2):
                f = H_WO + 4 * ((pc * 2 + ks) * 2 + ct)
                e(f"ds_read_b64_tr_b16 {vr(f,2)}, v5 offset:{ks*2048+ct*32}")
                e(f"ds_read_b64_tr_b16 {vr(f+2,2)}, v5 offset:{ks*2048+ct*32+256}")
        e("s_waitcnt lgkmcnt(0)")
    g.lab("L_wodone")
    if o.get("skipffn2"): e("s_branch L_hb2")
    e(f"s_cmp_lg_u32 s{S_WAVE}, 7"); e("s_cbranch_scc1 L_hb2")
    e("s_cmp_ge_u32 s2, 32"); e("s_cbranch_scc1 L_hb2")
    e("v_lshrrev_b32 v2, 5, v0"); e("v_bfe_u32 v3, v0, 3, 2"); e("v_and_b32 v4, 7, v0")
    e(f"v_mul_u32_u24 v5, {7*2*512*8}, v3")
    e("v_lshl_add_u32 v5, v2, 12, v5")
    e("v_lshl_add_u32 v5, v4, 4, v5")
    e(f"s_lshl_b32 s{S_T0}, s2, 7")
    e(f"v_add_u32 v5, s{S_T0}, v5")
    def fl():
        for i in range(7):
            e(f"s_mov_b32 s{S_T1}, {WS_F + i*8192}")
            e(f"buffer_load_dwordx4 {vr(16+4*i,4)}, v5, s[{SRD_WS}:{SRD_WS+3}], s{S_T1} offen sc1")
    e("v_lshlrev_b32 v6, 10, v2"); e("v_lshl_add_u32 v6, v4, 2, v6"); e(f"s_lshl_b32 s{S_T1}, s2, 5"); e(f"v_add_u32 v6, s{S_T1}, v6")
    e(f"buffer_load_dword v{H_G+2}, v6, s[{SRD_X}:{SRD_X+3}], 0 offen")
    poll(g, "f", fl, [16+4*i+1 for i in range(7)] + [16+4*i+3 for i in range(7)], 8, sleep=16)
    for i in range(1, 7):
        e(f"v_add_f32 v16, v16, v{16+4*i}"); e(f"v_add_f32 v18, v18, v{18+4*i}")
    g.nop(2)
    e("v_add_f32_dpp v16, v16, v16 row_ror:8 row_mask:0xf bank_mask:0xf")
    e("v_add_f32_dpp v18, v18, v18 row_ror:8 row_mask:0xf bank_mask:0xf")
    e("v_mov_b32 v20, v16"); e("v_mov_b32 v21, v18"); g.nop(2)
    e("v_permlane16_swap_b32 v16, v20"); e("v_permlane16_swap_b32 v18, v21"); g.nop(1)
    e("v_add_f32 v16, v16, v20"); e("v_add_f32 v18, v18, v21")
    e("v_cvt_pk_bf16_f32 v8, v16, v18")
    e("v_lshlrev_b32 v10, 16, v8"); e("v_and_b32 v11, 0xffff0000, v8")
    e(f"s_mov_b32 s{S_T0}, {L2E:#x}")
    for r in (10, 11):
        e(f"v_mul_f32 v12, s{S_T0}, v{r}")
        e(f"v_exp_f32 v12, -v12"); g.nop(1)
        e(f"v_add_f32 v12, 1.0, v12")
        e(f"v_rcp_f32 v12, v12"); g.nop(1)
        e(f"v_mul_f32 v{r}, v{r}, v12")
    e("v_cvt_pk_bf16_f32 v8, v10, v11")
    e(f"v_lshlrev_b32 v{H_G}, 16, v8"); e(f"v_and_b32 v{H_G+1}, 0xffff0000, v8")
    g.lab("L_hb2")
    e(f"s_sub_u32 s{S_T0}, s{S_WAVE}, 4")
    e(f"s_lshl_b32 s{S_T1}, s{S_T0}, 9")
    e("v_lshlrev_b32 v232, 2, v0"); e(f"v_add_u32 v232, s{S_T1}, v232")
    e(f"v_add_u32 v233, {2*RING}, v232")
    e(f"s_lshl_b32 s{S_T1}, s{S_T0}, 3"); e(f"s_add_u32 s{S_T1}, s{S_T1}, {L_ML}")
    e(f"v_mov_b32 v234, s{S_T1}")
    e("v_lshrrev_b32 v231, 4, v0"); e("v_lshlrev_b32 v231, 8, v231")
    e("v_and_b32 v235, 15, v0"); e("v_lshl_add_u32 v235, v235, 3, v231")
    e("v_lshrrev_b32 v231, 1, v0"); e("v_and_b32 v231, 7, v231"); e("v_lshlrev_b32 v231, 8, v231")
    e("v_and_b32 v228, 1, v0"); e("v_lshl_add_u32 v231, v228, 3, v231"); e("v_add_u32 v231, 128, v231")
    e(f"s_lshl_b32 s67, s{S_PAIR}, 4"); e(f"s_add_u32 s67, s67, s{S_SPLIT}")
    e(f"s_lshl_b32 s67, s67, 2"); e(f"s_add_u32 s67, s67, s{S_T0}")
    e(f"s_lshl_b32 s67, s67, 11"); e(f"s_add_u32 s67, s67, {WS_P}")
    e(f"s_add_u32 s68, s67, {2 << 20}")
    e("v_lshrrev_b32 v236, 4, v0"); e("v_lshlrev_b32 v236, 4, v236"); e(f"v_add_u32 v236, {L_OB}, v236")
    e("v_lshlrev_b32 v237, 3, v0")
    e(f"s_and_b32 s{S_T2}, s{S_SPLIT}, 3")
    e(f"s_lshl_b32 s69, s{S_HKV}, 2"); e(f"s_add_u32 s69, s69, s{S_T2}")
    e(f"s_lshl_b32 s{S_T2}, s{S_B}, 5"); e(f"s_add_u32 s69, s69, s{S_T2}")
    e(f"s_lshl_b32 s69, s69, 12")
    e(f"s_lshr_b32 s{S_T2}, s{S_SPLIT}, 2"); e(f"s_lshl_b32 s{S_T2}, s{S_T2}, 10"); e(f"s_add_u32 s69, s69, s{S_T2}")
    e(f"s_lshl_b32 s{S_T2}, s{S_T0}, 8"); e(f"s_add_u32 s69, s69, s{S_T2}")
    e(f"s_add_u32 s69, s69, {WS_S}")
    e("v_lshrrev_b32 v2, 5, v0"); e("v_bfe_u32 v3, v0, 3, 2"); e("v_and_b32 v4, 7, v0")
    e("v_lshlrev_b32 v238, 17, v2"); e("v_lshl_add_u32 v238, v3, 15, v238"); e("v_lshl_add_u32 v238, v4, 4, v238")
    e(f"s_lshl_b32 s{S_T0}, s2, 7"); e(f"v_add_u32 v238, s{S_T0}, v238")
    e("v_lshlrev_b32 v239, 10, v2"); e("v_lshl_add_u32 v239, v4, 2, v239"); e(f"s_lshl_b32 s{S_T1}, s2, 5"); e(f"v_add_u32 v239, s{S_T1}, v239")
    e(f"v_mov_b32 v41, s{S_TAG}"); e(f"v_mov_b32 v43, s{S_TAG}"); e(f"v_mov_b32 v45, s{S_TAG}"); e(f"v_mov_b32 v47, s{S_TAG}")
    e(f"s_mov_b32 s{S_C0}, {L2E:#x}")
    if o.get("pretouch"):
        fl = "" if o["pretouch"] == 1 else " sc1"
        e(f"buffer_load_dword v227, v235, s[{SRD_WS}:{SRD_WS+3}], s67 offen{fl}")
        e(f"buffer_load_dword v227, v235, s[{SRD_WS}:{SRD_WS+3}], s67 offen offset:1152{fl}")
        e(f"buffer_load_dword v227, v237, s[{SRD_WS}:{SRD_WS+3}], s69 offen{fl}")
    if o.get("tailpf", True):
        e(f"s_getpc_b64 s[{S_T2}:{S_T2+1}]")
        g.lab("L_pc2")
        e(f"s_add_u32 s{S_T2}, s{S_T2}, L_tail-L_pc2"); e(f"s_addc_u32 s{S_T2+1}, s{S_T2+1}, 0")
        e("v_lshlrev_b32 v229, 7, v0")
        e(f"v_min_u32 v229, L_code_end-L_tail-4, v229")
    stamp(g, 3, ST)

    g.lab("L_tail")
    if DS:
        LX = g.new("ds")
        e(f"s_cmp_lg_u32 s{S_WAVE}, 0"); e(f"s_cbranch_scc1 {LX}")
        dstamp(g, 2, True)
        e("v_mov_b32 v236, 12"); e("v_mov_b32 v237, s88")
        e("s_mov_b64 exec, 1")
        e(f"global_atomic_umax v236, v237, s[{S_DBG}:{S_DBG+1}]")
        e("s_mov_b64 exec, -1")
        e("s_not_b32 s90, s90")
        e("v_mov_b32 v236, 0"); e("v_mov_b32 v237, s90")
        e("s_mov_b64 exec, 1")
        e(f"global_atomic_umax v236, v237, s[{S_DBG}:{S_DBG+1}]")
        e("s_mov_b64 exec, -1")
        g.lab(LX)
    e("s_barrier")
    stamp(g, 4, STT)
    e(f"s_cmp_lt_u32 s{S_WAVE}, 4"); e("s_cbranch_scc1 L_t2")
    e("ds_read_b32 v8, v232"); e("ds_read_b32 v9, v232 offset:256")
    e("ds_read_b32 v10, v232 offset:32768"); e("ds_read_b32 v11, v232 offset:33024")
    e("ds_read_b32 v12, v233"); e("ds_read_b32 v13, v233 offset:256")
    e("ds_read_b32 v14, v233 offset:32768"); e("ds_read_b32 v15, v233 offset:33024")
    for w in range(4):
        e(f"ds_read_b64 {vr(16+2*w,2)}, v234 offset:{w*32}")
    if o.get("tailpf", True):
        LP = g.new("tpf")
        e(f"s_cmp_lg_u32 s{S_WAVE}, 7"); e(f"s_cbranch_scc1 {LP}")
        e("s_mov_b64 exec, 0xffffffff")
        e(f"global_load_dword v230, v229, s[{S_T2}:{S_T2+1}]")
        e("s_mov_b64 exec, -1")
        g.lab(LP)
    e("v_cmp_eq_u32 vcc, 1, v228")
    e("s_waitcnt lgkmcnt(0)")
    e("v_max3_f32 v44, v16, v18, v20"); e("v_max_f32 v44, v44, v22")
    for w in range(4):
        e(f"v_sub_f32 v{16+2*w}, v{16+2*w}, v44")
    for w in range(4):
        e(f"v_mul_f32 v{16+2*w}, s{S_C0}, v{16+2*w}")
    for w in range(4):
        e(f"v_exp_f32 v{16+2*w}, v{16+2*w}")
    g.nop(1)
    e("v_mul_f32 v40, v8, v16"); e("v_mul_f32 v42, v9, v16"); e("v_mul_f32 v46, v17, v16")
    for w in range(1, 4):
        e(f"v_fmac_f32 v40, v{8+2*w}, v{16+2*w}"); e(f"v_fmac_f32 v42, v{9+2*w}, v{16+2*w}"); e(f"v_fmac_f32 v46, v{17+2*w}, v{16+2*w}")
    dests = ["s67", "s68"] if o.get("copies", 2) == 2 else ["s67"]
    e("v_cndmask_b32 v44, v44, v46, vcc")
    for d in dests:
        pub2(g, 40, 235, d)
        pub2(g, 42, 235, d, 1024)
    e("s_mov_b64 exec, 0xffff")
    for d in dests:
        pub2(g, 44, 231, d)
    e("s_mov_b64 exec, -1")
    if o.get("diagH") == 1:
        stamp(g, 1, True)
        e("s_waitcnt vmcnt(0)")
        stamp(g, 2, True)
    g.lab("L_t2")
    stamp(g, 5, STT)
    e(f"s_and_b32 s{S_T0}, s{S_SPLIT}, 3")
    e("v_lshrrev_b32 v2, 2, v0"); e("v_and_b32 v3, 3, v0")
    e("v_lshlrev_b32 v5, 13, v2")
    e("v_lshl_add_u32 v4, v3, 5, v5")
    e("v_add_u32 v5, 128, v5")
    e(f"s_lshl_b32 s{S_T1}, s{S_PAIR}, 17")
    e(f"s_lshl_b32 s{S_T2}, s{S_T0}, 11"); e(f"s_add_u32 s{S_T1}, s{S_T1}, s{S_T2}")
    e(f"s_lshl_b32 s{S_T2}, s{S_WAVE}, 8"); e(f"s_add_u32 s{S_T1}, s{S_T1}, s{S_T2}")
    e(f"s_add_u32 s{S_T1}, s{S_T1}, {WS_P}")
    if o.get("copies", 2) == 2:
        e(f"s_lshr_b32 s{S_T2}, s{S_SPLIT}, 2"); e(f"s_and_b32 s{S_T2}, s{S_T2}, 1"); e(f"s_lshl_b32 s{S_T2}, s{S_T2}, 21")
        e(f"s_add_u32 s{S_T1}, s{S_T1}, s{S_T2}")
    e(f"s_mov_b32 s{S_T2}, s{S_T1}")
    if o.get("poll2", True):
        def pl(base):
            e(f"buffer_load_dwordx4 {vr(base,4)}, v4, s[{SRD_WS}:{SRD_WS+3}], s{S_T1} offen sc1")
            e(f"buffer_load_dwordx4 {vr(base+4,4)}, v4, s[{SRD_WS}:{SRD_WS+3}], s{S_T1} offen offset:16 sc1")
            e(f"buffer_load_dwordx4 {vr(base+8,4)}, v5, s[{SRD_WS}:{SRD_WS+3}], s{S_T2} offen sc1")
        def pok(base):
            for i in range(6):
                e(f"v_mov_b32 v{8+2*i}, v{base+2*i}")
        poll2(g, "p", pl, 3, lambda base: [base+1+2*i for i in range(6)], pok, 48, 60, 24, stagger=o.get("stagger", 10))
    else:
        def pl():
            e(f"buffer_load_dwordx4 v[8:11], v4, s[{SRD_WS}:{SRD_WS+3}], s{S_T1} offen sc1")
            e(f"buffer_load_dwordx4 v[12:15], v4, s[{SRD_WS}:{SRD_WS+3}], s{S_T1} offen offset:16 sc1")
            e(f"buffer_load_dwordx4 v[16:19], v5, s[{SRD_WS}:{SRD_WS+3}], s{S_T2} offen sc1")
        poll(g, "p", pl, [9, 11, 13, 15, 17, 19], 24, sleep=o.get("psleep", 1))
    stamp(g, 6, STT)
    e("v_mov_b32 v20, v16")
    row_ror_reduce(g, [20], "v_max_f32", [4, 8])
    rows_reduce(g, 20, 21, "v_max_f32")
    e(f"s_mov_b32 s{S_C0}, {L2E:#x}")
    e("v_sub_f32 v16, v16, v20"); e(f"v_mul_f32 v16, s{S_C0}, v16"); e("v_exp_f32 v16, v16"); g.nop(1)
    e("v_mul_f32 v18, v18, v16")
    e("v_mul_f32 v8, v8, v16"); e("v_mul_f32 v10, v10, v16"); e("v_mul_f32 v12, v12, v16"); e("v_mul_f32 v14, v14, v16")
    row_ror_reduce(g, [8, 10, 12, 14, 18], "v_add_f32", [4, 8])
    rows_reduce_multi(g, [8, 10, 12, 14, 18], [26, 27, 28, 29, 30], "v_add_f32")
    e("v_rcp_f32 v19, v18"); g.nop(1)
    for r in (8, 10, 12, 14):
        e(f"v_mul_f32 v20, v{r}, v19"); e(f"v_fma_f32 v21, -v20, v18, v{r}"); e(f"v_fma_f32 v{r}, v21, v19, v20")
    e("v_cvt_pk_bf16_f32 v22, v8, v10"); e("v_cvt_pk_bf16_f32 v23, v12, v14")
    e(f"s_lshl_b32 s{S_T2}, s{S_WAVE}, 5"); e(f"s_add_u32 s{S_T2}, s{S_T2}, {L_OB}")
    e(f"v_lshlrev_b32 v3, 3, v3"); e(f"v_add_u32 v3, s{S_T2}, v3")
    e("s_mov_b64 exec, 0xf")
    e("ds_write_b64 v3, v[22:23]")
    e("s_mov_b64 exec, -1")
    e("s_waitcnt lgkmcnt(0)")
    e("s_barrier")
    e(f"s_cmp_lt_u32 s{S_WAVE}, 4"); e("s_cbranch_scc1 L_fin")
    for kk in range(4):
        e(f"ds_read_b128 {vr(8+4*kk,4)}, v236 offset:{kk*64}")
    e("v_cmp_gt_u32 vcc, 16, v0")
    e(f"v_mov_b32 v9, s{S_TAG}") if False else None
    e("s_waitcnt lgkmcnt(0)")
    for kk in range(4):
        for ct in range(2):
            c = "0" if kk == 0 else vr(24+4*ct, 4)
            e(f"v_mfma_f32_16x16x32_bf16 {vr(24+4*ct,4)}, {vr(8+4*kk,4)}, {vr(H_WO+4*(kk*2+ct),4)}, {c}")
    g.nop(8)
    e("v_cndmask_b32 v40, v28, v24, vcc")
    e("s_mov_b32 exec_hi, 0")
    pub2(g, 40, 237, "s69")
    e("s_mov_b64 exec, -1")
    if o.get("diagH") == 2:
        stamp(g, 1, True)
        e("s_waitcnt vmcnt(0)")
        stamp(g, 2, True)
    stamp(g, 7, STT)
    e(f"s_cmp_lg_u32 s{S_WAVE}, 7"); e("s_cbranch_scc1 L_fin")
    e("s_cmp_ge_u32 s2, 32"); e("s_cbranch_scc1 L_fin")
    TMPS = 10
    if o.get("poll2", True):
        def sl(base):
            for i in range(8):
                e(f"s_mov_b32 s{S_T1}, {WS_S + i*4096}")
                e(f"buffer_load_dwordx4 {vr(base+4*i,4)}, v238, s[{SRD_WS}:{SRD_WS+3}], s{S_T1} offen sc1")
        def sok(base):
            e(f"v_add_f32 v16, v{base}, v{base+4}"); e(f"v_add_f32 v18, v{base+2}, v{base+6}")
            for i in range(2, 8):
                e(f"v_add_f32 v16, v16, v{base+4*i}"); e(f"v_add_f32 v18, v18, v{base+4*i+2}")
        poll2(g, "s", sl, 8, lambda base: [base+1+2*i for i in range(16)], sok, 64, 96, 8, stagger=o.get("stagger", 10))
        stamp(g, 8, STT)
    else:
        def sl():
            for i in range(8):
                e(f"s_mov_b32 s{S_T1}, {WS_S + i*4096}")
                e(f"buffer_load_dwordx4 {vr(16+4*i,4)}, v238, s[{SRD_WS}:{SRD_WS+3}], s{S_T1} offen sc1")
        poll(g, "s", sl, [16+4*i+1 for i in range(8)] + [16+4*i+3 for i in range(8)], 8)
        stamp(g, 8, STT)
        for i in range(1, 8):
            e(f"v_add_f32 v16, v16, v{16+4*i}"); e(f"v_add_f32 v18, v18, v{18+4*i}")
    g.nop(2)
    e("v_add_f32_dpp v16, v16, v16 row_ror:8 row_mask:0xf bank_mask:0xf")
    e("v_add_f32_dpp v18, v18, v18 row_ror:8 row_mask:0xf bank_mask:0xf")
    e("v_mov_b32 v20, v16"); e("v_mov_b32 v21, v18"); g.nop(2)
    e("v_permlane16_swap_b32 v16, v20"); e("v_permlane16_swap_b32 v18, v21"); g.nop(1)
    e("v_add_f32 v16, v16, v20"); e("v_add_f32 v18, v18, v21")
    e("v_cvt_pk_bf16_f32 v8, v16, v18")
    e("v_lshlrev_b32 v10, 16, v8"); e("v_and_b32 v11, 0xffff0000, v8")
    e(f"v_mul_f32 v10, v10, v{H_G}"); e(f"v_mul_f32 v11, v11, v{H_G+1}")
    e("v_cvt_pk_bf16_f32 v8, v10, v11")
    e("v_lshlrev_b32 v10, 16, v8"); e("v_and_b32 v11, 0xffff0000, v8")
    e(f"v_lshlrev_b32 v12, 16, v{H_G+2}"); e(f"v_and_b32 v13, 0xffff0000, v{H_G+2}")
    e("v_add_f32 v10, v10, v12"); e("v_add_f32 v11, v11, v13")
    e("v_cvt_pk_bf16_f32 v8, v10, v11")
    e("s_mov_b32 exec_lo, 0xff"); e("s_mov_b32 exec_hi, 0xff")
    e(f"buffer_store_dword v8, v239, s[{SRD_OUT}:{SRD_OUT+3}], 0 offen")
    e("s_mov_b64 exec, -1")
    if DS: dstamp(g, 1, True)
    e("s_cmp_lg_u32 s2, 0"); e("s_cbranch_scc1 L_fin")
    e(f"v_mov_b32 v8, s{S_TAG}"); e("v_mov_b32 v1, 0")
    e("s_mov_b64 exec, 1")
    e(f"buffer_store_dword v8, v1, s[{SRD_WS}:{SRD_WS+3}], 0 offen sc1")
    e("s_mov_b64 exec, -1")
    g.lab("L_fin")
    if DS2:
        LX = g.new("ds2"); LY = g.new("ds2y")
        e("s_memrealtime s[84:85]")
        e("s_waitcnt lgkmcnt(0)")
        e("s_mov_b64 exec, 1")
        e(f"s_cmp_eq_u32 s{S_WAVE}, 7"); e(f"s_cbranch_scc1 {LY}")
        e(f"s_cmp_lg_u32 s{S_WAVE}, 0"); e(f"s_cbranch_scc1 {LX}")
        e("s_cmp_ge_u32 s2, 3"); e(f"s_cbranch_scc1 {LX}")
        e("s_mul_i32 s83, s2, 12")
        e("v_mov_b32 v1, s83")
        e("v_mov_b32 v2, s90"); e("v_mov_b32 v3, s86"); e("v_mov_b32 v4, s88")
        e(f"global_store_dwordx3 v1, v[2:4], s[{S_DBG}:{S_DBG+1}]")
        e(f"s_branch {LX}")
        g.lab(LY)
        e("s_cmp_ge_u32 s2, 7"); e(f"s_cbranch_scc1 {LX}")
        e("s_lshl_b32 s83, s2, 2"); e("s_add_u32 s83, s83, 36")
        e("v_mov_b32 v1, s83"); e("v_mov_b32 v2, s84")
        e(f"global_store_dword v1, v2, s[{S_DBG}:{S_DBG+1}]")
        g.lab(LX)
    if ST:
        stamp(g, 9, ST)
        e("s_waitcnt lgkmcnt(0)")
        e(f"s_lshl_b32 s{S_T0}, s2, 3"); e(f"s_add_u32 s{S_T0}, s{S_T0}, s{S_WAVE}"); e(f"s_lshl_b32 s{S_T0}, s{S_T0}, 6")
        e(f"s_add_u32 s{S_T0}, s{S_T0}, {WS_DBG}")
        e("v_mov_b32 v1, 0")
        e("s_mov_b64 exec, 1")
        for i in range(10):
            e(f"v_mov_b32 v2, s{S_ST0+2*i}")
            e(f"buffer_store_dword v2, v1, s[{SRD_WS}:{SRD_WS+3}], s{S_T0} offen offset:{4*i}")
            g.nop(1)
    g.lab("L_end")
    e("s_endpgm")
    g.lab("L_code_end")
    g.L.append('.section .rodata,"a"')
    g.L.append(".p2align 6")
    g.L.append(f".amdhsa_kernel {KN}_kernel")
    for s in ["next_free_vgpr 240", "next_free_sgpr 102", "accum_offset 240", "group_segment_fixed_size 0", "kernarg_size 88",
              "user_sgpr_count 2", "user_sgpr_kernarg_segment_ptr 1", "system_sgpr_workgroup_id_x 1",
              "float_denorm_mode_32 3", "float_denorm_mode_16_64 3"]:
        g.L.append("  .amdhsa_" + s)
    g.L.append(".end_amdhsa_kernel")
    txt = "\n".join(g.L) + "\n"
    lf = o.get("ldflags")
    if lf:
        out = []
        for ln in txt.split("\n"):
            if "buffer_load_dword" in ln and ln.rstrip().endswith(" sc1") and " lds" not in ln:
                ln = ln.rstrip()[:-4] + " " + lf
            out.append(ln)
        txt = "\n".join(out)
    pf = []
    span = 64 << o.get("pfshift", 7)
    for i in range((o.get("pf_kib", 24) * 1024 + span - 1) // span):
        pf.append(f"  v_min_u32 v3, L_code_end-{KN}_kernel-4, v1")
        pf.append(f"  global_load_dword v230, v3, s[{S_T0}:{S_T0+1}]")
        pf.append(f"  v_add_u32 v1, {span}, v1")
    txt = txt.replace("  CODE_PREFETCH_PLACEHOLDER", "\n".join(pf))
    return txt

if __name__ == "__main__":
    import json
    opt = json.loads(sys.argv[2]) if len(sys.argv) > 2 else {}
    open(sys.argv[1], "w").write(gen(opt))
```

```python
import sys
KN = "recurrent_scan__gqa_block_cached__dense_activation_silu__decode"

WS_E   = 0x0
WS_Q   = 0x200000
WS_H   = 0x240000
WS_ML  = 0x28000
WS_F   = 0x30000
WS_S   = 0x80000
WS_P   = 0x400000
WS_CNT = 0x2A0000
WS_DBG = 0x300000
WS_SIZE = 0x800000

RING   = 32768
L_STG  = 0x20000
L_XN4  = 0x24000
L_XN5  = 0x24800
L_Q    = 0x25000
L_H    = 0x25400
L_OB   = 0x25600
L_ML   = 0x25800
L_FLAG = 0x25900
LDS_BYTES = 0x26000

L2E = 0x3fb8aa3b
SCALE = 0x3db504f3
NEG_INF = 0xff800000

DEBUG_TO = True
class G:
    def __init__(self):
        self.L = []
        self.uid = 0
    def e(self, s):
        self.L.append("  " + s)
    def lab(self, s):
        self.L.append(s + ":")
    def new(self, p):
        self.uid += 1
        return f"L_{p}_{self.uid}"
    def nop(self, n):
        while n > 0:
            k = min(n, 16)
            self.e(f"s_nop {k-1}")
            n -= k

def vr(a, n=None):
    return f"v{a}" if n is None else f"v[{a}:{a+n-1}]"
def sr(a, n=None):
    return f"s{a}" if n is None else f"s[{a}:{a+n-1}]"

S_WAVE = 3
S_X, S_K, S_V, S_WQ, S_WO, S_BX, S_W1, S_W2 = 4, 6, 8, 10, 12, 14, 16, 18
S_OUT, S_DBG, S_WS = 20, 22, 24
S_TAG, S_E = 26, 27
SRD_K, SRD_V, SRD_WS, SRD_W, SRD_X, SRD_OUT, SRD_WO = 28, 32, 36, 40, 44, 48, 52
S_PAIR, S_SPLIT, S_B, S_HKV = 56, 57, 58, 59
S_T0, S_T1, S_T2, S_T3, S_T4, S_T5 = 60, 61, 62, 63, 64, 65
S_RETRY = 66
S_OFF = 67
S_RB = 68
S_PB = 69
S_CNT = 70
S_SOFF = 71
S_RS32 = 72
S_EX = 74
S_ST0 = 76
S_C0 = 96
S_C1 = 97
S_ROT = 98
S_NEXT = 99

def build_srd(g, d, ptr, size):
    g.e(f"s_mov_b32 s{d}, s{ptr}")
    g.e(f"s_and_b32 s{d+1}, s{ptr+1}, 0xffff")
    g.e(f"s_mov_b32 s{d+2}, {size:#x}")
    g.e(f"s_mov_b32 s{d+3}, 0x20000")

def rows_reduce(g, v, t, op):
    for sw in ("v_permlane16_swap_b32", "v_permlane32_swap_b32"):
        g.e(f"v_mov_b32 v{t}, v{v}")
        g.nop(2)
        g.e(f"{sw} v{v}, v{t}")
        g.nop(1)
        g.e(f"{op} v{v}, v{v}, v{t}")

def rows_reduce_multi(g, vs, ts, op):
    for sw in ("v_permlane16_swap_b32", "v_permlane32_swap_b32"):
        for v, t in zip(vs, ts):
            g.e(f"v_mov_b32 v{t}, v{v}")
        g.nop(max(0, 3 - len(vs)) if len(vs) < 3 else 0)
        if len(vs) >= 3: pass
        g.nop(1)
        for v, t in zip(vs, ts):
            g.e(f"{sw} v{v}, v{t}")
        g.nop(1)
        for v, t in zip(vs, ts):
            g.e(f"{op} v{v}, v{v}, v{t}")
        g.nop(1)

def row_ror_reduce(g, vs, op, rors):
    for r in rors:
        g.nop(2)
        for v in vs:
            g.e(f"{op}_dpp v{v}, v{v}, v{v} row_ror:{r} row_mask:0xf bank_mask:0xf")
            if len(vs) == 1:
                pass
    g.nop(1)

POLL_IDS = {"q": 0, "h": 1, "f": 2, "p": 3, "s": 4}
def poll(g, name, issue_loads, tag_regs, tmp, dbgword=None, sleep=1):
    L = g.new("poll_" + name); D = g.new("polld_" + name); TO = g.new("pollto_" + name)
    g.e(f"s_mov_b32 s{S_RETRY}, 0x40000")
    g.lab(L)
    issue_loads()
    g.e("s_waitcnt vmcnt(0)")
    g.e(f"v_xor_b32 v{tmp}, s{S_TAG}, v{tag_regs[0]}")
    for t in tag_regs[1:]:
        g.e(f"v_xor_b32 v{tmp+1}, s{S_TAG}, v{t}")
        g.e(f"v_or_b32 v{tmp}, v{tmp}, v{tmp+1}")
    g.e(f"v_cmp_ne_u32 vcc, 0, v{tmp}")
    g.e(f"s_cbranch_vccz {D}")
    g.e("s_mov_b64 exec, vcc")
    g.e(f"s_sub_u32 s{S_RETRY}, s{S_RETRY}, 1")
    g.e(f"s_cbranch_scc1 {TO}")
    g.e(f"s_sleep {sleep}")
    g.e(f"s_branch {L}")
    g.lab(TO)
    if DEBUG_TO:
        g.e(f"v_mov_b32 v{tmp}, {4*POLL_IDS[name]}")
        g.e(f"v_mov_b32 v{tmp+1}, s2")
        g.e(f"v_add_u32 v{tmp+1}, 0x1000, v{tmp+1}")
        g.e(f"global_store_dword v{tmp}, v{tmp+1}, s[{S_DBG}:{S_DBG+1}]")
    g.lab(D)
    g.e("s_mov_b64 exec, -1")

PUB = {"mode": "store"}
def pub2(g, vdata, voff, soff, imm=0):
    off = f" offset:{imm}" if imm else ""
    if PUB["mode"] == "atomic":
        g.e(f"buffer_atomic_swap_x2 v[{vdata}:{vdata+1}], v{voff}, s[{SRD_WS}:{SRD_WS+3}], {soff} offen{off}")
    elif PUB["mode"] == "atomic_sc1":
        g.e(f"buffer_atomic_swap_x2 v[{vdata}:{vdata+1}], v{voff}, s[{SRD_WS}:{SRD_WS+3}], {soff} offen{off} sc1")
    elif PUB["mode"] == "store_sc01":
        g.e(f"buffer_store_dwordx2 v[{vdata}:{vdata+1}], v{voff}, s[{SRD_WS}:{SRD_WS+3}], {soff} offen{off} sc0 sc1")
    else:
        g.e(f"buffer_store_dwordx2 v[{vdata}:{vdata+1}], v{voff}, s[{SRD_WS}:{SRD_WS+3}], {soff} offen{off} sc1")

def poll2(g, name, issue, nloads, tags, on_ok, A, B, tmp, stagger=10):
    L = g.new("p2_" + name); D = g.new("p2d_" + name); TO = g.new("p2to_" + name)
    W = "s[100:101]"
    def check(base):
        tr = tags(base)
        g.e(f"s_mov_b64 exec, {W}")
        g.e(f"v_xor_b32 v{tmp}, s{S_TAG}, v{tr[0]}")
        for t in tr[1:]:
            g.e(f"v_xor_b32 v{tmp+1}, s{S_TAG}, v{t}")
            g.e(f"v_or_b32 v{tmp}, v{tmp}, v{tmp+1}")
        g.e(f"v_cmp_ne_u32 vcc, 0, v{tmp}")
        g.e(f"s_andn2_b64 exec, {W}, vcc")
        SK = g.new("p2s")
        g.e(f"s_cbranch_execz {SK}")
        on_ok(base)
        g.lab(SK)
        g.e(f"s_mov_b64 {W}, vcc")
        g.e(f"s_cbranch_vccz {D}")
        g.e(f"s_mov_b64 exec, {W}")
    g.e(f"s_mov_b32 s{S_RETRY}, 0x40000")
    g.e(f"s_mov_b64 {W}, -1")
    issue(A)
    g.e(f"s_sleep {stagger}")
    g.lab(L)
    issue(B)
    g.e(f"s_waitcnt vmcnt({nloads})")
    check(A)
    issue(A)
    g.e(f"s_waitcnt vmcnt({nloads})")
    check(B)
    g.e(f"s_sub_u32 s{S_RETRY}, s{S_RETRY}, 1")
    g.e(f"s_cbranch_scc0 {L}")
    if DEBUG_TO:
        g.e(f"v_mov_b32 v{tmp}, {4*POLL_IDS[name]}")
        g.e(f"v_mov_b32 v{tmp+1}, s2")
        g.e(f"v_add_u32 v{tmp+1}, 0x1000, v{tmp+1}")
        g.e(f"global_store_dword v{tmp}, v{tmp+1}, s[{S_DBG}:{S_DBG+1}]")
    g.lab(D)
    g.e("s_mov_b64 exec, -1")

def dstamp(g, word, on, tmpv=(236, 237), sp=(92, 93)):
    if not on: return
    g.e(f"s_memrealtime s[{sp[0]}:{sp[1]}]")
    g.e("s_waitcnt lgkmcnt(0)")
    g.e(f"v_mov_b32 v{tmpv[0]}, {4*word}")
    g.e(f"v_mov_b32 v{tmpv[1]}, s{sp[0]}")
    g.e("s_mov_b64 s[94:95], exec")
    g.e("s_mov_b64 exec, 1")
    g.e(f"global_atomic_umax v{tmpv[0]}, v{tmpv[1]}, s[{S_DBG}:{S_DBG+1}]")
    g.e("s_mov_b64 exec, s[94:95]")

def stamp(g, idx, on):
    if on:
        g.e(f"s_memrealtime s[{S_ST0+2*idx}:{S_ST0+2*idx+1}]")

def gen(opt=None):
    o = dict(pattern="grp16", rot=512*1024, xmap=False, stamps=False, ntiles=16, prefetch_code=True, stage=99, b0=True, thr=16, prio=True, dyn=True, sthr=24, wnt=1, ns=10, poll2=False, copies=1, wofl="")
    if opt: o.update(opt)
    DS = False
    DS2 = bool(o.get("dstamps"))
    ST = bool(o["stamps"])
    STT = o["stamps"] is True
    STA = o["stamps"] == "A"
    STP = o["stamps"] == "P"
    STF = o["stamps"] == "F"
    STX = o["stamps"] == "X"
    STL = o["stamps"] == "L"
    PUB["mode"] = o.get("pub", "store")
    g = G(); e = g.e
    g.L.append(f"; @launch grid=(256,1,1) block=(512,1,1) lds={LDS_BYTES}")
    g.L.append('.amdgcn_target "amdgcn-amd-amdhsa--gfx950"')
    g.L.append(".text")
    g.L.append(f".globl {KN}_kernel")
    g.L.append(".p2align 8")
    g.L.append(f".type {KN}_kernel,@function")
    g.lab(f"{KN}_kernel")
    e("s_cmp_ge_u32 s2, 256")
    e("s_cbranch_scc1 L_end")
    stamp(g, 0, ST)
    if DS2: e("s_memrealtime s[90:91]")
    e(f"s_load_dwordx16 s[4:19], s[0:1], 0")
    e(f"s_load_dwordx4 s[20:23], s[0:1], 64")
    e(f"s_load_dwordx2 s[24:25], s[0:1], 80")
    e("v_lshrrev_b32 v1, 6, v0")
    e("v_and_b32 v0, 63, v0")
    e(f"v_readfirstlane_b32 s{S_WAVE}, v1")
    if o["xmap"]:
        e(f"s_and_b32 s{S_T0}, s2, 7"); e(f"s_lshl_b32 s{S_T0}, s{S_T0}, 5"); e(f"s_lshr_b32 s{S_T1}, s2, 3")
        e(f"s_add_u32 s{S_T0}, s{S_T0}, s{S_T1}")
        e(f"s_lshr_b32 s{S_PAIR}, s{S_T0}, 4"); e(f"s_and_b32 s{S_SPLIT}, s{S_T0}, 15")
    else:
        e(f"s_lshr_b32 s{S_PAIR}, s2, 4"); e(f"s_and_b32 s{S_SPLIT}, s2, 15")
    e(f"s_lshr_b32 s{S_B}, s{S_PAIR}, 3"); e(f"s_and_b32 s{S_HKV}, s{S_PAIR}, 7")
    e(f"s_cmp_ge_u32 s{S_WAVE}, 4")
    e("s_cbranch_scc1 L_helper")

    V_KD, V_VD, V_KR, V_VR = 8, 12, 14, 18
    V_Q, V_O = 28, 44
    RK = (76, 140); RV = (108, 172)
    V_S, V_A, V_P = 204, 212, 220
    V_M, V_L, V_AL, V_NM, V_MX, V_T = 224, 225, 226, 227, 228, 229
    e("v_lshrrev_b32 v1, 4, v0")
    e("v_and_b32 v2, 15, v0")
    e("v_lshlrev_b32 v3, 8, v1")
    e("v_xor_b32 v4, v2, v1")
    for n in range(4):
        e(f"v_xor_b32 v5, {4*n}, v4")
        e(f"v_lshl_add_u32 v{V_KD+n}, v5, 4, v3")
    e("v_lshlrev_b32 v4, 1, v1")
    e("v_xor_b32 v4, v2, v4")
    for n in range(2):
        e(f"v_xor_b32 v5, {8*n}, v4")
        e(f"v_lshl_add_u32 v{V_VD+n}, v5, 4, v3")
    e(f"s_lshl_b32 s{S_RB}, s{S_WAVE}, 15")
    e(f"s_lshl_b32 s{S_PB}, s{S_PAIR}, 23")
    if o["pattern"] == "grp16":
        e(f"s_lshl_b32 s{S_OFF}, s{S_SPLIT}, 2"); e(f"s_add_u32 s{S_OFF}, s{S_OFF}, s{S_WAVE}")
        e(f"s_lshl_b32 s{S_OFF}, s{S_OFF}, 13")
        STEP = 16 * 4 * 8192
    else:
        e(f"s_lshl_b32 s{S_OFF}, s{S_SPLIT}, 6"); e(f"s_add_u32 s{S_OFF}, s{S_OFF}, s{S_WAVE}")
        e(f"s_lshl_b32 s{S_OFF}, s{S_OFF}, 13")
        STEP = 4 * 8192
    e(f"s_mul_i32 s{S_ROT}, s{S_PAIR}, {o['rot']}")
    e(f"s_add_u32 s{S_OFF}, s{S_OFF}, s{S_ROT}")
    e("s_waitcnt lgkmcnt(0)")
    stamp(g, 4, STA)
    e(f"s_load_dword s{S_E}, s[{S_WS}:{S_WS+1}], {WS_E}")
    build_srd(g, SRD_K, S_K, 0x8000000)
    build_srd(g, SRD_V, S_V, 0x8000000)

    def tile_addr():
        e(f"s_and_b32 s{S_SOFF}, s{S_OFF}, 0x7fffff")
        e(f"s_add_u32 s{S_SOFF}, s{S_SOFF}, s{S_PB}")
    def issue(which, slot):
        srd = SRD_K if which == 0 else SRD_V
        for half in range(2):
            off = slot * 16384 + which * 8192 + half * 4096
            e(f"s_add_u32 m0, s{S_RB}, {off}")
            if half == 0:
                e(f"s_mov_b32 s{S_T0}, s{S_SOFF}")
            else:
                e(f"s_add_u32 s{S_T0}, s{S_SOFF}, 4096")
            for i in range(4):
                n = half * 4 + i
                vo = (V_KD + (n & 3)) if which == 0 else (V_VD + (n & 1))
                fl = o.get("kfl" if which == 0 else "vfl", " nt")
                e(f"buffer_load_dwordx4 v{vo}, s[{srd}:{srd+3}], s{S_T0} offen offset:{i*1024}{fl} lds")
    THR = o["thr"]
    nissued = 0
    for slot in range(2):
        tile_addr()
        for which in range(2):
            if o["b0"] and nissued == o.get("b0at", 8):
                e("s_barrier")
            if nissued + 8 > THR:
                e(f"s_waitcnt vmcnt({THR - 8})")
                stamp(g, 3 + nissued // 8, STP)
            issue(which, slot)
            nissued += 8
        e(f"s_add_u32 s{S_OFF}, s{S_OFF}, {STEP}")
    stamp(g, 5, STA)
    e("v_and_b32 v1, 15, v0")
    e("v_lshrrev_b32 v2, 4, v0")
    e("v_xor_b32 v3, v2, v1")
    e(f"v_lshlrev_b32 v4, 8, v1")
    e(f"v_add_u32 v4, s{S_RB}, v4")
    for kk in range(4):
        e(f"v_xor_b32 v5, {4*kk}, v3")
        e(f"v_lshl_add_u32 v{V_KR+kk}, v5, 4, v4")
    e("v_lshrrev_b32 v1, 2, v0")
    e("v_and_b32 v2, 7, v1")
    e("v_and_b32 v3, 3, v0")
    e("v_lshlrev_b32 v4, 8, v1")
    e("v_lshl_add_u32 v4, v3, 3, v4")
    e(f"v_add_u32 v4, s{S_RB}, v4")
    e("v_add_u32 v4, 8192, v4")
    for dt in range(8):
        e(f"v_xor_b32 v5, {dt}, v2")
        e(f"v_lshl_add_u32 v{V_VR+dt}, v5, 5, v4")
    for i in range(32):
        e(f"v_mov_b32 v{V_O+i}, 0")
    for i in range(16):
        e(f"v_mov_b32 v{V_Q+i}, 0")
    e(f"v_mov_b32 v{V_M}, {NEG_INF:#x}")
    for r in (236, 237, 238, 239): e(f"v_mov_b32 v{r}, 0")
    e(f"v_mov_b32 v{V_L}, 0")
    build_srd(g, SRD_WS, S_WS, WS_SIZE)
    build_srd(g, SRD_X, S_X, 2048)
    build_srd(g, SRD_WO, S_WO, 0x400000)
    build_srd(g, SRD_OUT, S_OUT, 2048)

    def load(rs, slot, do_issue, wK, wV, thr=None, pst=None):
        e(f"s_waitcnt vmcnt({wK})")
        for T in range(2):
            for kk in range(4):
                if not o.get("noread"): e(f"ds_read_b128 {vr(RK[rs]+16*T+4*kk,4)}, v{V_KR+kk} offset:{slot*16384+T*4096}")
        e("s_waitcnt lgkmcnt(0)")
        if do_issue:
            tile_addr()
            if thr is not None and thr < 32: e(f"s_waitcnt vmcnt({thr-8})")
            if pst is not None: stamp(g, pst, STP)
            issue(0, slot)
        e(f"s_waitcnt vmcnt({wV})")
        for dt in range(8):
            for T in range(2):
                if not o.get("noread"): e(f"ds_read_b64_tr_b16 {vr(RV[rs]+4*dt+2*T,2)}, v{V_VR+dt} offset:{slot*16384+T*4096}")
        e("s_waitcnt lgkmcnt(0)")
        if do_issue:
            if thr is not None and thr < 32: e(f"s_waitcnt vmcnt({thr-8})")
            if pst is not None: stamp(g, pst+1, STP)
            issue(1, slot)
            e(f"s_add_u32 s{S_OFF}, s{S_OFF}, {STEP}")

    def compute(rs):
        if o.get("nocompute"): return
        KF, VF = RK[rs], RV[rs]
        for kk in range(4):
            for T in range(2):
                c = "0" if kk == 0 else vr(V_S+4*T, 4)
                e(f"v_mfma_f32_16x16x32_bf16 {vr(V_S+4*T,4)}, {vr(KF+16*T+4*kk,4)}, {vr(V_Q+4*kk,4)}, {c}")
        g.nop(8)
        t = V_T
        for i in range(4):
            e(f"v_cvt_pk_bf16_f32 v{t+i}, v{V_S+2*i}, v{V_S+2*i+1}")
        for i in range(4):
            e(f"v_lshlrev_b32 v{V_A+2*i}, 16, v{t+i}")
            e(f"v_and_b32 v{V_A+2*i+1}, 0xffff0000, v{t+i}")
        for i in range(8):
            e(f"v_mul_f32 v{V_A+i}, s{S_C1}, v{V_A+i}")
        for i in range(4):
            e(f"v_cvt_pk_bf16_f32 v{t+i}, v{V_A+2*i}, v{V_A+2*i+1}")
        for i in range(4):
            e(f"v_lshlrev_b32 v{V_A+2*i}, 16, v{t+i}")
            e(f"v_and_b32 v{V_A+2*i+1}, 0xffff0000, v{t+i}")
        e(f"v_max3_f32 v{V_MX}, v{V_A}, v{V_A+1}, v{V_A+2}")
        e(f"v_max3_f32 v{V_MX}, v{V_MX}, v{V_A+3}, v{V_A+4}")
        e(f"v_max3_f32 v{V_MX}, v{V_MX}, v{V_A+5}, v{V_A+6}")
        e(f"v_max3_f32 v{V_MX}, v{V_MX}, v{V_A+7}, v{V_M}")
        rows_reduce(g, V_MX, t, "v_max_f32")
        e(f"v_sub_f32 v{V_AL}, v{V_M}, v{V_MX}")
        e(f"v_mul_f32 v{V_AL}, s{S_C0}, v{V_AL}")
        e(f"v_exp_f32 v{V_AL}, v{V_AL}")
        e(f"v_mov_b32 v{V_M}, v{V_MX}")
        e(f"v_mul_f32 v{V_NM}, s{S_C0}, v{V_MX}")
        for i in range(8):
            e(f"v_fma_f32 v{V_A+i}, v{V_A+i}, s{S_C0}, -v{V_NM}")
        for i in range(8):
            e(f"v_exp_f32 v{V_A+i}, v{V_A+i}")
        e(f"v_mul_f32 v{V_L}, v{V_L}, v{V_AL}")
        for i in range(16):
            e(f"v_pk_mul_f32 {vr(V_O+2*i,2)}, {vr(V_O+2*i,2)}, {vr(V_AL,2)} op_sel_hi:[1,0]")
        for i in range(4):
            e(f"v_cvt_pk_bf16_f32 v{V_P+i}, v{V_A+2*i}, v{V_A+2*i+1}")
        e(f"v_add_f32 v{t}, v{V_A}, v{V_A+1}")
        e(f"v_add_f32 v{t+1}, v{V_A+2}, v{V_A+3}")
        e(f"v_add_f32 v{t+2}, v{V_A+4}, v{V_A+5}")
        e(f"v_add_f32 v{t+3}, v{V_A+6}, v{V_A+7}")
        e(f"v_add_f32 v{t}, v{t}, v{t+1}")
        e(f"v_add_f32 v{t+2}, v{t+2}, v{t+3}")
        e(f"v_add_f32 v{t}, v{t}, v{t+2}")
        e(f"v_add_f32 v{V_L}, v{V_L}, v{t}")
        for dt in range(8):
            e(f"v_mfma_f32_16x16x32_bf16 {vr(V_O+4*dt,4)}, {vr(VF+4*dt,4)}, {vr(V_P,4)}, {vr(V_O+4*dt,4)}")

    load(0, 0, True, 24, 24, THR, 7)
    load(1, 1, True, 24, 24, THR, None)
    e("s_waitcnt lgkmcnt(0)")
    e(f"s_mul_i32 s{S_TAG}, s{S_E}, 1664525")
    e(f"s_add_u32 s{S_TAG}, s{S_TAG}, 1013904223")
    stamp(g, 1, ST)
    e("s_barrier")
    if DS2: e("s_memrealtime s[86:87]")
    stamp(g, 2, ST)
    if DS:
        LX = g.new("ds")
        e(f"s_cmp_lg_u32 s{S_WAVE}, 0"); e(f"s_cbranch_scc1 {LX}")
        e("s_memrealtime s[88:89]")
        g.lab(LX)
    e("v_and_b32 v1, 15, v0")
    e("v_lshrrev_b32 v2, 4, v0")
    e("v_lshlrev_b32 v1, 8, v1")
    e("v_lshl_add_u32 v1, v2, 4, v1")
    e(f"v_add_u32 v1, {L_Q}, v1")
    e(f"s_mov_b32 s{S_EX}, 0x000f000f"); e(f"s_mov_b32 s{S_EX+1}, 0x000f000f")
    e(f"s_mov_b64 exec, s[{S_EX}:{S_EX+1}]")
    for kk in range(4):
        e(f"ds_read_b128 {vr(V_Q+4*kk,4)}, v1 offset:{kk*64}")
    e("s_mov_b64 exec, -1")
    e(f"s_mov_b32 s{S_C0}, {L2E:#x}")
    e(f"s_mov_b32 s{S_C1}, {SCALE:#x}")
    e("s_waitcnt lgkmcnt(0)")

    NT = o["ntiles"]
    STHR = o.get("sthr", 32)
    if not o["dyn"]:
        nloop = (NT - 4) // 2
        if STL:
            for it in range(nloop):
                compute(0); load(0, 0, True, 24, 24, STHR)
                compute(1); load(1, 1, True, 24, 24, STHR)
                if it < 5: stamp(g, 4 + it, True)
        else:
            e(f"s_mov_b32 s{S_CNT}, {nloop}")
            g.lab("L_loop")
            compute(0); load(0, 0, True, 24, 24, STHR)
            compute(1); load(1, 1, True, 24, 24, STHR)
            e(f"s_sub_u32 s{S_CNT}, s{S_CNT}, 1")
            e(f"s_cmp_lg_u32 s{S_CNT}, 0")
            e("s_cbranch_scc1 L_loop")
        compute(0); load(0, 0, False, 24, 16)
        compute(1); load(1, 1, False, 8, 0)
        compute(0)
        compute(1)
    else:
        NS = o.get("ns", 5)
        NDUAL = o.get("ndual", 0)
        assert NS >= 5 + 2 * NDUAL
        NSTAT = NS * 64
        V_TK, V_ONE, V_CA = 233, 234, 235
        cap = min(STHR, 24) - 8
        if NDUAL:
            e(f"s_mov_b32 s{S_CNT}, {NDUAL}")
            g.lab("L_dual")
            compute(0); load(0, 0, True, 24, 24, o.get("dthr", 32))
            compute(1); load(1, 1, True, 24, 24, o.get("dthr", 32))
            e(f"s_sub_u32 s{S_CNT}, s{S_CNT}, 1")
            e(f"s_cmp_lg_u32 s{S_CNT}, 0")
            e("s_cbranch_scc1 L_dual")
        e(f"s_sub_u32 s{S_NEXT}, s{S_OFF}, s{S_ROT}")
        e(f"s_lshr_b32 s{S_NEXT}, s{S_NEXT}, 13")
        e(f"s_sub_u32 s{S_NEXT}, s{S_NEXT}, {NSTAT}")
        e(f"s_add_u32 s95, s{S_NEXT}, {NSTAT}")
        e(f"v_mov_b32 v{V_TK}, s{S_NEXT}")
        e(f"v_mov_b32 v{V_ONE}, 1")
        e(f"s_lshl_b32 s{S_T0}, s{S_PAIR}, 8"); e(f"s_add_u32 s{S_T0}, s{S_T0}, {WS_CNT}")
        e(f"v_mov_b32 v{V_CA}, s{S_T0}")
        e(f"s_mov_b32 s{S_CNT}, 0"); e("s_mov_b32 s73, 0")
        def readK(rs, slot):
            if o.get("noread"): return
            for T in range(2):
                for kk in range(4):
                    e(f"ds_read_b128 {vr(RK[rs]+16*T+4*kk,4)}, v{V_KR+kk} offset:{slot*16384+T*4096}")
            e("s_waitcnt lgkmcnt(0)")
        def readV(rs, slot):
            if o.get("noread"): return
            for dt in range(8):
                for T in range(2):
                    e(f"ds_read_b64_tr_b16 {vr(RV[rs]+4*dt+2*T,2)}, v{V_VR+dt} offset:{slot*16384+T*4096}")
            e("s_waitcnt lgkmcnt(0)")
        def dload(sg):
            e("s_waitcnt vmcnt(25)")
            readK(sg, sg)
            e(f"s_waitcnt vmcnt({cap})")
            e(f"v_readfirstlane_b32 s{S_NEXT}, v{V_TK}")
            e(f"s_add_u32 s{S_NEXT}, s{S_NEXT}, {NSTAT}")
            e(f"s_cmp_ge_u32 s{S_NEXT}, 1024")
            e(f"s_cbranch_scc1 L_drain{sg}")
            if NS > 5:
                LA = g.new("tka"); LB = g.new("tkb")
                e(f"s_add_u32 s95, s95, 64")
                e(f"s_cmp_ge_u32 s95, {NSTAT}"); e(f"s_cbranch_scc1 {LA}")
                e(f"s_sub_u32 s{S_T0}, s95, {NSTAT}")
                e(f"v_mov_b32 v{V_TK}, s{S_T0}")
                e(f"s_branch {LB}")
                g.lab(LA)
            e("s_mov_b64 exec, 1")
            e(f"global_atomic_add v{V_TK}, v{V_CA}, v{V_ONE}, s[{S_WS}:{S_WS+1}] sc0")
            e("s_mov_b64 exec, -1")
            if NS > 5: g.lab(LB)
            e(f"s_lshl_b32 s{S_OFF}, s{S_NEXT}, 13")
            e(f"s_add_u32 s{S_OFF}, s{S_OFF}, s{S_ROT}")
            tile_addr(); issue(0, sg)
            e("s_waitcnt vmcnt(26)")
            readV(sg, sg)
            e(f"s_waitcnt vmcnt({cap})")
            issue(1, sg)
            e(f"s_add_u32 s{S_CNT}, s{S_CNT}, 1")
        S_DR, S_E0, S_EM = 73, 92, 94
        S_PREV, S_NP = 92, 93
        NPA = o.get("npa", 0); NPC = o.get("npc", 112)
        def do_atomic():
            e("s_mov_b64 exec, 1")
            e(f"global_atomic_add v{V_TK}, v{V_CA}, v{V_ONE}, s[{S_WS}:{S_WS+1}] sc0")
            e("s_mov_b64 exec, -1")
        def ticket(faillabel, np_check=False):
            e(f"v_readfirstlane_b32 s{S_NEXT}, v{V_TK}")
            e(f"s_add_u32 s{S_NEXT}, s{S_NEXT}, {NSTAT}")
            e(f"s_cmp_ge_u32 s{S_NEXT}, 1024")
            e(f"s_cbranch_scc1 {faillabel}")
            LB = g.new("tkb")
            if np_check and NPA:
                LN = g.new("tkn")
                e(f"s_sub_u32 s{S_T0}, s{S_NEXT}, s{S_PREV}")
                e(f"s_mov_b32 s{S_PREV}, s{S_NEXT}")
                e(f"s_mul_i32 s{S_T0}, s{S_T0}, {NPA}")
                e(f"s_add_u32 s{S_T0}, s{S_T0}, s{S_NEXT}")
                e(f"s_cmp_le_u32 s{S_T0}, {1024 + NPC}"); e(f"s_cbranch_scc1 {LN}")
                e(f"s_mov_b32 s{S_NP}, 1")
                e(f"s_branch {LB}")
                g.lab(LN)
            elif NPA:
                e(f"s_mov_b32 s{S_PREV}, s{S_NEXT}")
            if NS > 5:
                LA = g.new("tka")
                e(f"s_add_u32 s95, s95, 64")
                e(f"s_cmp_ge_u32 s95, {NSTAT}"); e(f"s_cbranch_scc1 {LA}")
                e(f"s_sub_u32 s{S_T0}, s95, {NSTAT}")
                e(f"v_mov_b32 v{V_TK}, s{S_T0}")
                e(f"s_branch {LB}")
                g.lab(LA)
            do_atomic()
            g.lab(LB)
            e(f"s_lshl_b32 s{S_OFF}, s{S_NEXT}, 13")
            e(f"s_add_u32 s{S_OFF}, s{S_OFF}, s{S_ROT}")
            tile_addr()
        def consume(faillabel):
            e(f"v_readfirstlane_b32 s{S_NEXT}, v{V_TK}")
            e(f"s_add_u32 s{S_NEXT}, s{S_NEXT}, {NSTAT}")
            e(f"s_cmp_ge_u32 s{S_NEXT}, 1024")
            e(f"s_cbranch_scc1 {faillabel}")
            e(f"s_lshl_b32 s{S_OFF}, s{S_NEXT}, 13")
            e(f"s_add_u32 s{S_OFF}, s{S_OFF}, s{S_ROT}")
            tile_addr()
        def request():
            LB = g.new("rqb")
            if NS > 5:
                LA = g.new("rqa")
                e(f"s_add_u32 s95, s95, 64")
                e(f"s_cmp_ge_u32 s95, {NSTAT}"); e(f"s_cbranch_scc1 {LA}")
                e(f"s_sub_u32 s{S_T0}, s95, {NSTAT}")
                e(f"v_mov_b32 v{V_TK}, s{S_T0}")
                e(f"s_branch {LB}")
                g.lab(LA)
            do_atomic()
            g.lab(LB)
        if o.get("single", True) and o.get("late", True):
            compute(0)
            stamp(g, 4, STX)
            e("s_waitcnt vmcnt(24)")
            readK(0, 0)
            consume("L_ldone")
            issue(0, 0)
            e("s_waitcnt vmcnt(24)")
            readV(0, 0)
            issue(1, 0)
            stamp(g, 5, STX)
            compute(1)
            stamp(g, 6, STX)
            request()
            e("s_waitcnt vmcnt(24)")
            readK(1, 1)
            e("s_waitcnt vmcnt(16)")
            readV(1, 1)
            stamp(g, 7, STX)
            compute(0)
            compute(1)
            stamp(g, 8, STX)
            g.lab("L_loop")
            e("s_waitcnt vmcnt(8)")
            readK(0, 0)
            e("s_waitcnt vmcnt(0)")
            consume("L_last")
            issue(0, 0)
            readV(0, 0)
            issue(1, 0)
            e(f"s_add_u32 s{S_CNT}, s{S_CNT}, 1")
            if o["stamps"] == "R":
                for idx, c in ((4, 1), (5, 3), (6, 5), (7, 7), (8, 9)):
                    LS = g.new("rs")
                    e(f"s_cmp_lg_u32 s{S_CNT}, {c}"); e(f"s_cbranch_scc1 {LS}")
                    stamp(g, idx, True)
                    g.lab(LS)
            g.lab("L_comp")
            compute(0)
            e(f"s_cmp_eq_u32 s{S_DR}, 1"); e("s_cbranch_scc1 L_ldone")
            request()
            e("s_branch L_loop")
            g.lab("L_last")
            e(f"s_mov_b32 s{S_DR}, 1")
            readV(0, 0)
            e("s_branch L_comp")
        elif o.get("single", True):
            e(f"s_mov_b32 s{S_NP}, 0")
            compute(0)
            e("s_waitcnt vmcnt(24)")
            readK(0, 0)
            ticket("L_ldone")
            issue(0, 0)
            e("s_waitcnt vmcnt(24)")
            readV(0, 0)
            issue(1, 0)
            compute(1)
            e("s_waitcnt vmcnt(24)")
            readK(1, 1)
            e("s_waitcnt vmcnt(16)")
            readV(1, 1)
            compute(0)
            compute(1)
            g.lab("L_loop")
            e("s_waitcnt vmcnt(8)")
            readK(0, 0)
            ticket("L_last", True)
            issue(0, 0)
            e("s_waitcnt vmcnt(8)")
            readV(0, 0)
            issue(1, 0)
            e(f"s_add_u32 s{S_CNT}, s{S_CNT}, 1")
            g.lab("L_comp")
            compute(0)
            e(f"s_cmp_eq_u32 s{S_DR}, 0"); e("s_cbranch_scc1 L_loop")
            e("s_branch L_ldone")
            g.lab("L_last")
            e(f"s_mov_b32 s{S_DR}, 1")
            e("s_waitcnt vmcnt(0)")
            readV(0, 0)
            e("s_branch L_comp")
        else:
            e(f"s_mov_b32 s{S_E0}, 0"); e(f"s_mov_b32 s{S_E0+1}, 0"); e(f"s_mov_b32 s{S_EM}, 0")
            g.lab("L_loop")
            for sg in range(2):
                compute(sg)
                e(f"s_cmp_eq_u32 s{S_E0+sg}, 1"); e(f"s_cbranch_scc1 L_empty{sg}")
                e(f"s_cmp_eq_u32 s{S_DR}, 1"); e(f"s_cbranch_scc1 L_dw{sg}")
                e("s_waitcnt vmcnt(24)")
                readK(sg, sg)
                e(f"s_waitcnt vmcnt({cap})")
                ticket(f"L_noref{sg}")
                issue(0, sg)
                e("s_waitcnt vmcnt(24)")
                readV(sg, sg)
                e(f"s_waitcnt vmcnt({cap})")
                issue(1, sg)
                e(f"s_add_u32 s{S_CNT}, s{S_CNT}, 1")
                e(f"s_branch L_next{sg}")
                g.lab(f"L_dw{sg}")
                e("s_waitcnt vmcnt(0)")
                readK(sg, sg)
                g.lab(f"L_noref{sg}")
                e(f"s_mov_b32 s{S_DR}, 1"); e(f"s_mov_b32 s{S_E0+sg}, 1")
                e("s_waitcnt vmcnt(16)")
                readV(sg, sg)
                e(f"s_branch L_next{sg}")
                g.lab(f"L_empty{sg}")
                e(f"s_add_u32 s{S_EM}, s{S_EM}, 1")
                e(f"s_cmp_eq_u32 s{S_EM}, 2"); e("s_cbranch_scc1 L_ldone")
                g.lab(f"L_next{sg}")
            e("s_branch L_loop")
        g.lab("L_ldone")
        if STL: e(f"s_mov_b32 s{S_ST0+8}, s{S_CNT}")
    stamp(g, 3, ST and not STP)
    if DS2: e("s_memrealtime s[88:89]")
    rows_reduce(g, V_L, V_T, "v_add_f32")
    e("v_and_b32 v1, 15, v0")
    e("v_lshrrev_b32 v2, 4, v0")
    e("v_lshlrev_b32 v3, 9, v1")
    e("v_lshl_add_u32 v3, v2, 4, v3")
    e(f"v_add_u32 v3, s{S_RB}, v3")
    e(f"s_lshl_b32 s{S_T0}, s{S_WAVE}, 5")
    e(f"s_add_u32 s{S_T0}, s{S_T0}, {L_ML}")
    e(f"v_lshlrev_b32 v4, 3, v1")
    e(f"v_add_u32 v4, s{S_T0}, v4")
    g.nop(8)
    e(f"s_mov_b64 exec, s[{S_EX}:{S_EX+1}]")
    for dt in range(8):
        e(f"ds_write_b128 v3, {vr(V_O+4*dt,4)} offset:{dt*64}")
    e(f"ds_write_b64 v4, {vr(V_M,2)}")
    e("s_mov_b64 exec, -1")
    e(f"s_mov_b64 s[{S_T2}:{S_T2+1}], s[{S_X}:{S_X+1}]")
    for r in (228, 229, 231, 232, 233, 234, 235): e(f"v_mov_b32 v{r}, 0")
    e("s_waitcnt lgkmcnt(0)")
    e("s_branch L_tail")

    g.lab("L_helper")
    H_W = 64
    H_F = 128
    H_WO = 192
    H_G = 224
    S_STG = S_T5
    if o.get("skipA"):
        e("s_waitcnt lgkmcnt(0)")
        e(f"s_load_dword s{S_E}, s[{S_WS}:{S_WS+1}], {WS_E}")
        build_srd(g, SRD_WS, S_WS, WS_SIZE); build_srd(g, SRD_X, S_X, 2048); build_srd(g, SRD_WO, S_WO, 0x400000); build_srd(g, SRD_OUT, S_OUT, 2048)
        build_srd(g, SRD_W, S_WQ, 0x400000)
        e("s_waitcnt lgkmcnt(0)")
        e(f"s_mul_i32 s{S_TAG}, s{S_E}, 1664525"); e(f"s_add_u32 s{S_TAG}, s{S_TAG}, 1013904223")
        if o["b0"]: e("s_barrier")
        e("s_barrier")
        e("s_branch L_hb2")
    if o["prio"]:
        e("s_setprio 3")
    e(f"s_sub_u32 s{S_T5}, s{S_WAVE}, 4")
    e(f"s_lshl_b32 s{S_T5}, s{S_T5}, 12")
    e(f"s_add_u32 s{S_T5}, s{S_T5}, {L_STG}")
    e(f"s_cmp_ge_u32 s{S_WAVE}, 6"); e("s_cbranch_scc1 L_w67")
    e(f"s_and_b32 s{S_T2}, s2, 3")
    e(f"s_lshr_b32 s{S_T1}, s2, 2")
    e("v_lshrrev_b32 v2, 3, v0")
    e("v_and_b32 v3, 7, v0")
    e("v_lshlrev_b32 v1, 4, v0")
    e(f"s_cmp_eq_u32 s{S_WAVE}, 5"); e("s_cbranch_scc1 L_w5setup")
    e(f"s_mov_b32 s{S_T0}, 8192")
    e(f"s_mov_b32 s{S_T3}, {L_XN4}")
    e(f"s_mov_b32 s{S_C0}, {WS_Q}"); e(f"s_mov_b32 s{S_C1}, {4096*8}")
    e("s_waitcnt lgkmcnt(0)")
    build_srd(g, SRD_W, S_WQ, 0x400000)
    if o["dyn"]:
        e(f"s_and_b32 s{S_T4}, s2, 30"); e(f"s_cmp_lg_u32 s{S_T4}, 0"); e("s_cbranch_scc1 L_slice")
        e(f"s_and_b32 s{S_T4}, s2, 1"); e(f"s_lshl_b32 s{S_T4}, s{S_T4}, 3")
        e(f"s_lshr_b32 s{S_SOFF}, s2, 5"); e(f"s_add_u32 s{S_T4}, s{S_T4}, s{S_SOFF}")
        e(f"s_lshl_b32 s{S_T4}, s{S_T4}, 8"); e(f"s_add_u32 s{S_T4}, s{S_T4}, {WS_CNT}")
        e(f"v_mov_b32 v4, s{S_T4}"); e("v_mov_b32 v5, 0")
        e("s_mov_b64 exec, 1")
        e(f"global_store_dword v4, v5, s[{S_WS}:{S_WS+1}] sc1")
        e("s_mov_b64 exec, -1")
    e("s_branch L_slice")
    g.lab("L_w5setup")
    e(f"s_mov_b32 s{S_T0}, 3584")
    e(f"s_mov_b32 s{S_T3}, {L_XN5}")
    e(f"s_mov_b32 s{S_C0}, {WS_H}"); e(f"s_mov_b32 s{S_C1}, {1792*8}")
    e("s_waitcnt lgkmcnt(0)")
    build_srd(g, SRD_W, S_W1, 512*3584)
    e(f"s_cmp_ge_u32 s2, 112"); e("s_cbranch_scc1 L_hb0")
    g.lab("L_slice")
    stamp(g, 4, STA)
    build_srd(g, SRD_X, S_X, 2048)
    e(f"buffer_load_dwordx4 v[8:11], v1, s[{SRD_X}:{SRD_X+3}], 0 offen")
    e(f"buffer_load_dwordx4 v[12:15], v1, s[{SRD_X}:{SRD_X+3}], 0 offen offset:1024")
    e(f"v_mul_lo_u32 v2, v2, s{S_T0}")
    e("v_lshl_add_u32 v2, v3, 4, v2")
    e(f"s_lshl_b32 s{S_SOFF}, s{S_T2}, 7"); e(f"s_mul_i32 s{S_SOFF}, s{S_SOFF}, s{S_T0}")
    e(f"s_lshl_b32 s{S_T4}, s{S_T1}, 7"); e(f"s_add_u32 s{S_SOFF}, s{S_SOFF}, s{S_T4}")
    e(f"s_lshl_b32 s{S_RS32}, s{S_T0}, 3")
    for i in range(16):
        e(f"buffer_load_dwordx4 {vr(H_W+4*i,4)}, v2, s[{SRD_W}:{SRD_W+3}], s{S_SOFF} offen" + (" nt" if o.get("wnt") else ""))
        if i < 15:
            e(f"s_add_u32 s{S_SOFF}, s{S_SOFF}, s{S_RS32}")
    stamp(g, 5, STA)
    if o["b0"]:
        e("s_barrier")
    e(f"s_load_dword s{S_E}, s[{S_WS}:{S_WS+1}], {WS_E}")
    build_srd(g, SRD_WS, S_WS, WS_SIZE)
    build_srd(g, SRD_WO, S_WO, 0x400000)
    build_srd(g, SRD_OUT, S_OUT, 2048)
    e("s_waitcnt vmcnt(16)")
    stamp(g, 6, STA)
    X0, X1 = 16, 24
    for b, (src, dst) in enumerate(((8, X0), (12, X1))):
        for i in range(4):
            e(f"v_lshlrev_b32 v{dst+2*i}, 16, v{src+i}")
            e(f"v_and_b32 v{dst+2*i+1}, 0xffff0000, v{src+i}")
    SU = 32
    for b, dst in enumerate((X0, X1)):
        e(f"v_add_f32 v{SU+b}, v{dst}, v{dst+1}")
        for i in range(2, 8):
            e(f"v_add_f32 v{SU+b}, v{SU+b}, v{dst+i}")
    def wave_sum2(a):
        row_ror_reduce(g, [a, a+1], "v_add_f32", [1, 2, 4, 8])
        rows_reduce_multi(g, [a, a+1], [a+2, a+3], "v_add_f32")
    wave_sum2(SU)
    e(f"s_mov_b32 s{S_T4}, 0x3b000000")
    e(f"v_mul_f32 v{SU}, s{S_T4}, v{SU}")
    e(f"v_mul_f32 v{SU+1}, s{S_T4}, v{SU+1}")
    VA = 36
    for b, dst in enumerate((X0, X1)):
        e(f"v_sub_f32 v40, v{dst}, v{SU+b}")
        e(f"v_mul_f32 v{VA+b}, v40, v40")
        for i in range(1, 8):
            e(f"v_sub_f32 v40, v{dst+i}, v{SU+b}")
            e(f"v_fmac_f32 v{VA+b}, v40, v40")
    wave_sum2(VA)
    e(f"v_mul_f32 v{VA}, s{S_T4}, v{VA}")
    e(f"v_mul_f32 v{VA+1}, s{S_T4}, v{VA+1}")
    e(f"v_cvt_pk_bf16_f32 v40, v{SU}, v{SU+1}")
    e(f"v_cvt_pk_bf16_f32 v41, v{VA}, v{VA+1}")
    e(f"v_lshlrev_b32 v{SU}, 16, v40"); e(f"v_and_b32 v{SU+1}, 0xffff0000, v40")
    e(f"v_lshlrev_b32 v{VA}, 16, v41"); e(f"v_and_b32 v{VA+1}, 0xffff0000, v41")
    e(f"v_add_f32 v{VA}, 0x3727c5ac, v{VA}"); e(f"v_add_f32 v{VA+1}, 0x3727c5ac, v{VA+1}")
    e(f"v_cvt_pk_bf16_f32 v41, v{VA}, v{VA+1}")
    e(f"v_lshlrev_b32 v{VA}, 16, v41"); e(f"v_and_b32 v{VA+1}, 0xffff0000, v41")
    e(f"v_sqrt_f32 v{VA}, v{VA}"); e(f"v_sqrt_f32 v{VA+1}, v{VA+1}")
    g.nop(1)
    e(f"v_cvt_pk_bf16_f32 v41, v{VA}, v{VA+1}")
    e(f"v_lshlrev_b32 v{VA}, 16, v41"); e(f"v_and_b32 v{VA+1}, 0xffff0000, v41")
    e(f"v_rcp_f32 v38, v{VA}"); e(f"v_rcp_f32 v39, v{VA+1}")
    for b, dst in enumerate((X0, X1)):
        for i in range(8):
            e(f"v_sub_f32 v{dst+i}, v{dst+i}, v{SU+b}")
        for i in range(4):
            e(f"v_cvt_pk_bf16_f32 v40, v{dst+2*i}, v{dst+2*i+1}")
            e(f"v_lshlrev_b32 v{dst+2*i}, 16, v40"); e(f"v_and_b32 v{dst+2*i+1}, 0xffff0000, v40")
        for i in range(8):
            e(f"v_mul_f32 v41, v{dst+i}, v{38+b}")
            e(f"v_fma_f32 v42, -v41, v{VA+b}, v{dst+i}")
            e(f"v_fma_f32 v{dst+i}, v42, v{38+b}, v41")
        for i in range(4):
            e(f"v_cvt_pk_bf16_f32 v{44+4*b+i}, v{dst+2*i}, v{dst+2*i+1}")
    e("v_lshlrev_b32 v1, 4, v0")
    e(f"v_add_u32 v1, s{S_T3}, v1")
    e("ds_write_b128 v1, v[44:47]")
    e("ds_write_b128 v1, v[48:51] offset:1024")
    e("v_lshlrev_b32 v1, 4, v0")
    e(f"v_add_u32 v1, s{S_STG}, v1")
    e("v_lshrrev_b32 v2, 4, v0")
    e("v_bfe_u32 v3, v0, 2, 2")
    e("v_lshl_add_u32 v3, v2, 3, v3")
    e("v_and_b32 v4, 3, v0")
    e("v_lshlrev_b32 v5, 7, v3")
    e("v_lshl_add_u32 v5, v4, 3, v5")
    e(f"v_add_u32 v5, s{S_STG}, v5")
    e("v_and_b32 v6, 1, v0")
    e("v_lshlrev_b32 v6, 10, v6")
    e("v_lshl_add_u32 v6, v2, 4, v6")
    e(f"s_lshl_b32 s{S_T4}, s{S_T2}, 8"); e(f"s_add_u32 s{S_T4}, s{S_T4}, s{S_T3}")
    e(f"v_add_u32 v6, s{S_T4}, v6")
    ACC = 48
    stamp(g, 7, STA)
    if STA:
        e("s_waitcnt vmcnt(0)")
        stamp(g, 8, STA)
    for pc in range(4):
        e(f"ds_read_b128 {vr(16+4*pc,4)}, v6 offset:{64*pc}")
    for pc in range(4):
        e(f"s_waitcnt vmcnt({12-4*pc})")
        for i in range(4):
            e(f"ds_write_b128 v1, {vr(H_W+16*pc+4*i,4)} offset:{i*1024}")
        for c in range(4):
            e(f"ds_read_b64_tr_b16 {vr(32+4*c,2)}, v5 offset:{c*32}")
            e(f"ds_read_b64_tr_b16 {vr(32+4*c+2,2)}, v5 offset:{c*32+512}")
        e("s_waitcnt lgkmcnt(0)")
        for c in range(4):
            cc = "0" if pc == 0 else vr(ACC+4*c, 4)
            e(f"v_mfma_f32_16x16x32_bf16 {vr(ACC+4*c,4)}, {vr(16+4*pc,4)}, {vr(32+4*c,4)}, {cc}")
    e(f"s_mul_i32 s{S_TAG}, s{S_E}, 1664525")
    e(f"s_add_u32 s{S_TAG}, s{S_TAG}, 1013904223")
    e(f"s_lshl_b32 s{S_T0}, s{S_T2}, 1"); e(f"s_mul_i32 s{S_T0}, s{S_T0}, s{S_C1}")
    e(f"s_add_u32 s{S_T0}, s{S_T0}, s{S_C0}")
    e(f"s_lshl_b32 s{S_T4}, s{S_T1}, 9"); e(f"s_add_u32 s{S_T0}, s{S_T0}, s{S_T4}")
    e(f"s_add_u32 s{S_T4}, s{S_T0}, s{S_C1}")
    e("v_lshlrev_b32 v1, 3, v0")
    e(f"v_mov_b32 v9, s{S_TAG}"); e(f"v_mov_b32 v11, s{S_TAG}")
    g.nop(4)
    for c in range(4):
        if c < 2:
            e(f"s_mov_b32 exec_lo, {0xffff << (16*c):#x}"); e("s_mov_b32 exec_hi, 0")
        else:
            e("s_mov_b32 exec_lo, 0"); e(f"s_mov_b32 exec_hi, {0xffff << (16*(c-2)):#x}")
        e(f"v_mov_b32 v8, v{ACC+4*c}"); e(f"v_mov_b32 v10, v{ACC+4*c+1}")
    e("s_mov_b64 exec, -1")
    pub2(g, 8, 1, f"s{S_T0}")
    pub2(g, 10, 1, f"s{S_T4}")
    stamp(g, 1, ST)
    e("s_branch L_qg")
    g.lab("L_w67")
    if o["b0"]:
        e("s_barrier")
    e("s_waitcnt lgkmcnt(0)")
    e(f"s_load_dword s{S_E}, s[{S_WS}:{S_WS+1}], {WS_E}")
    build_srd(g, SRD_WS, S_WS, WS_SIZE)
    build_srd(g, SRD_X, S_X, 2048)
    build_srd(g, SRD_WO, S_WO, 0x400000)
    build_srd(g, SRD_OUT, S_OUT, 2048)
    e(f"s_cmp_eq_u32 s{S_WAVE}, 7"); e("s_cbranch_scc1 L_w7")
    e("s_branch L_qg")
    g.lab("L_w6")
    if o.get("prio_after") is not None:
        e(f"s_setprio {o['prio_after']}")
    build_srd(g, SRD_W, S_W2, 1792*1024)
    e(f"s_sub_u32 s{S_T0}, s2, 128")
    e(f"s_cmp_ge_u32 s{S_T0}, 112")
    e("s_cbranch_scc1 L_wo")
    e(f"s_lshr_b32 s{S_T1}, s{S_T0}, 2")
    e(f"s_and_b32 s{S_T2}, s{S_T0}, 3")
    e("v_lshrrev_b32 v2, 3, v0"); e("v_lshlrev_b32 v2, 10, v2")
    e("v_and_b32 v3, 7, v0"); e("v_lshl_add_u32 v2, v3, 4, v2")
    e(f"s_lshl_b32 s{S_SOFF}, s{S_T1}, 16")
    e(f"s_lshl_b32 s{S_T3}, s{S_T2}, 8")
    e(f"s_add_u32 s{S_SOFF}, s{S_SOFF}, s{S_T3}")
    for ks in range(2):
        for ch in range(2):
            for u in range(4):
                idx = (ks * 2 + ch) * 4 + u
                e(f"s_add_u32 s{S_T3}, s{S_SOFF}, {(32*ks+8*u)*1024}")
                e(f"buffer_load_dwordx4 {vr(H_W+4*idx,4)}, v2, s[{SRD_W}:{SRD_W+3}], s{S_T3} offen offset:{ch*128}" + (" nt" if o.get("wnt") else ""))
    stamp(g, 4, STF)
    e("v_lshlrev_b32 v1, 4, v0")
    e(f"v_add_u32 v1, s{S_STG}, v1")
    e("v_lshrrev_b32 v2, 4, v0"); e("v_bfe_u32 v3, v0, 2, 2"); e("v_lshl_add_u32 v3, v2, 3, v3"); e("v_and_b32 v4, 3, v0")
    e("v_lshlrev_b32 v5, 7, v3"); e("v_lshl_add_u32 v5, v4, 3, v5"); e(f"v_add_u32 v5, s{S_STG}, v5")
    e("s_waitcnt vmcnt(0)")
    stamp(g, 5, STF)
    for ks in range(2):
        for ch in range(2):
            pc = ks * 2 + ch
            for u in range(4):
                e(f"ds_write_b128 v1, {vr(H_W+16*pc+4*u,4)} offset:{u*1024}")
            for c in range(4):
                f = H_F + 4 * (ks * 8 + ch * 4 + c)
                e(f"ds_read_b64_tr_b16 {vr(f,2)}, v5 offset:{c*32}")
                e(f"ds_read_b64_tr_b16 {vr(f+2,2)}, v5 offset:{c*32+512}")
            e("s_waitcnt lgkmcnt(0)")
    e("v_lshrrev_b32 v6, 5, v0")
    e(f"v_mul_u32_u24 v6, {1792*8}, v6")
    e("v_and_b32 v7, 31, v0")
    e("v_lshl_add_u32 v6, v7, 4, v6")
    e(f"s_lshl_b32 s{S_T0}, s{S_T1}, 9"); e(f"s_add_u32 s{S_T0}, s{S_T0}, {WS_H}")
    def hl():
        for r4 in range(4):
            e(f"s_add_u32 s{S_T3}, s{S_T0}, {r4*2*1792*8}")
            e(f"buffer_load_dwordx4 {vr(16+4*r4,4)}, v6, s[{SRD_WS}:{SRD_WS+3}], s{S_T3} offen sc1")
    stamp(g, 6, STF)
    poll(g, "h", hl, [17+2*i for i in range(8)], 8, sleep=8)
    stamp(g, 7, STF)
    e("v_add_f32 v16, v16, v20"); e("v_add_f32 v18, v18, v22"); e("v_add_f32 v24, v24, v28"); e("v_add_f32 v26, v26, v30")
    e("v_add_f32 v16, v16, v24"); e("v_add_f32 v18, v18, v26")
    e("v_cvt_pk_bf16_f32 v8, v16, v18")
    e("v_lshlrev_b32 v10, 16, v8"); e("v_and_b32 v11, 0xffff0000, v8")
    e(f"s_mov_b32 s{S_T0}, {L2E:#x}")
    for r in (10, 11):
        e(f"v_mul_f32 v12, s{S_T0}, v{r}")
        e(f"v_exp_f32 v12, -v12"); g.nop(1)
        e(f"v_add_f32 v12, 1.0, v12")
        e(f"v_rcp_f32 v12, v12"); g.nop(1)
        e(f"v_mul_f32 v{r}, v{r}, v12")
    e("v_cvt_pk_bf16_f32 v12, v10, v11")
    e("v_lshlrev_b32 v7, 2, v0")
    e(f"v_add_u32 v7, {L_H}, v7")
    e("ds_write_b32 v7, v12")
    e("v_and_b32 v6, 1, v0"); e("v_lshlrev_b32 v6, 7, v6"); e("v_lshl_add_u32 v6, v2, 4, v6"); e(f"v_add_u32 v6, {L_H}, v6")
    e("ds_read_b128 v[16:19], v6")
    e("ds_read_b128 v[20:23], v6 offset:64")
    e("s_waitcnt lgkmcnt(0)")
    for c in range(8):
        e(f"v_mfma_f32_16x16x32_bf16 {vr(H_W+4*c,4)}, v[16:19], {vr(H_F+4*c,4)}, 0")
    for c in range(8):
        e(f"v_mfma_f32_16x16x32_bf16 {vr(H_W+4*c,4)}, v[20:23], {vr(H_F+32+4*c,4)}, {vr(H_W+4*c,4)}")
    g.nop(10)
    e("v_and_b32 v1, 15, v0"); e("v_lshlrev_b32 v1, 3, v1")
    e(f"s_lshl_b32 s{S_T0}, s{S_T1}, 13")
    e(f"s_lshl_b32 s{S_T3}, s{S_T2}, 10")
    e(f"s_add_u32 s{S_T0}, s{S_T0}, s{S_T3}"); e(f"s_add_u32 s{S_T0}, s{S_T0}, {WS_F}")
    e(f"s_add_u32 s{S_T3}, s{S_T0}, 4096")
    e(f"v_mov_b32 v9, s{S_TAG}"); e(f"v_mov_b32 v11, s{S_TAG}")
    e("s_mov_b64 exec, 0xffff")
    for c in range(8):
        e(f"v_mov_b32 v8, v{H_W+4*c}"); e(f"v_mov_b32 v10, v{H_W+4*c+1}")
        e(f"buffer_store_dwordx2 v[8:9], v1, s[{SRD_WS}:{SRD_WS+3}], s{S_T0} offen offset:{c*128} sc1")
        e(f"buffer_store_dwordx2 v[10:11], v1, s[{SRD_WS}:{SRD_WS+3}], s{S_T3} offen offset:{c*128} sc1")
        g.nop(2)
    e("s_mov_b64 exec, -1")
    stamp(g, 8, STF)
    e("s_branch L_wo")

    g.lab("L_w7")
    if o["prefetch_code"]:
        pfm = o.get("pfmask", 7)
        e(f"s_lshr_b32 s{S_T0}, s2, 3"); e(f"s_and_b32 s{S_T0}, s{S_T0}, {pfm}"); e(f"s_cmp_lg_u32 s{S_T0}, 0"); e("s_cbranch_scc1 L_qg")
        e(f"s_getpc_b64 s[{S_T0}:{S_T0+1}]")
        g.lab("L_pcbase")
        e(f"s_sub_u32 s{S_T0}, s{S_T0}, L_pcbase-{KN}_kernel")
        e(f"s_subb_u32 s{S_T0+1}, s{S_T0+1}, 0")
        e(f"v_lshlrev_b32 v1, {o.get('pfshift', 7)}, v0")
        e("CODE_PREFETCH_PLACEHOLDER")
    e("s_branch L_qg")
    g.lab("L_hb0")
    if o["b0"]:
        e("s_barrier")
    e(f"s_load_dword s{S_E}, s[{S_WS}:{S_WS+1}], {WS_E}")
    build_srd(g, SRD_WS, S_WS, WS_SIZE)
    build_srd(g, SRD_X, S_X, 2048)
    build_srd(g, SRD_WO, S_WO, 0x400000)
    build_srd(g, SRD_OUT, S_OUT, 2048)
    g.lab("L_qg")
    e("s_waitcnt lgkmcnt(0)")
    e(f"s_mul_i32 s{S_TAG}, s{S_E}, 1664525")
    e(f"s_add_u32 s{S_TAG}, s{S_TAG}, 1013904223")
    e(f"s_lshl_b32 s{S_T0}, s{S_B}, 12"); e(f"s_lshl_b32 s{S_T2}, s{S_HKV}, 9")
    e(f"s_add_u32 s{S_T0}, s{S_T0}, s{S_T2}")
    e(f"s_sub_u32 s{S_T2}, s{S_WAVE}, 4"); e(f"s_lshl_b32 s{S_T1}, s{S_T2}, 7")
    e(f"s_add_u32 s{S_T0}, s{S_T0}, s{S_T1}"); e(f"s_lshl_b32 s{S_T0}, s{S_T0}, 3")
    e(f"s_add_u32 s{S_T0}, s{S_T0}, {WS_Q}")
    if o.get("qflag", True):
        LW = g.new("qfw"); LG = g.new("qfg")
        e(f"v_mov_b32 v2, {L_FLAG}")
        e(f"s_cmp_lg_u32 s{S_WAVE}, 4"); e(f"s_cbranch_scc1 {LW}")
        e(f"v_mov_b32 v3, s{S_TAG}")
        e("ds_write_b32 v2, v3")
        e(f"s_branch {LG}")
        g.lab(LW)
        e(f"s_mov_b32 s{S_RETRY}, 0x100000")
        LW2 = g.new("qfw2")
        g.lab(LW2)
        e("ds_read_b32 v3, v2")
        e("s_waitcnt lgkmcnt(0)")
        e(f"v_readfirstlane_b32 s{S_T1}, v3")
        e(f"s_cmp_eq_u32 s{S_T1}, s{S_TAG}"); e(f"s_cbranch_scc1 {LG}")
        e(f"s_sub_u32 s{S_RETRY}, s{S_RETRY}, 1"); e(f"s_cbranch_scc1 {LG}")
        e("s_sleep 2")
        e(f"s_branch {LW2}")
        g.lab(LG)
    e("v_lshlrev_b32 v1, 4, v0")
    def ql():
        for rb in range(4):
            e(f"s_add_u32 s{S_T1}, s{S_T0}, {rb*2*4096*8}")
            e(f"buffer_load_dwordx4 {vr(16+4*rb,4)}, v1, s[{SRD_WS}:{SRD_WS+3}], s{S_T1} offen sc1")
    poll(g, "q", ql, [17+2*i for i in range(8)], 8, sleep=o.get("qsleep", 4))
    e("v_add_f32 v16, v16, v20"); e("v_add_f32 v18, v18, v22"); e("v_add_f32 v24, v24, v28"); e("v_add_f32 v26, v26, v30")
    e("v_add_f32 v16, v16, v24"); e("v_add_f32 v18, v18, v26")
    e("v_cvt_pk_bf16_f32 v12, v16, v18")
    e(f"s_lshl_b32 s{S_T2}, s{S_T2}, 8"); e(f"s_add_u32 s{S_T2}, s{S_T2}, {L_Q}")
    e("v_lshlrev_b32 v1, 2, v0"); e(f"v_add_u32 v1, s{S_T2}, v1")
    e("ds_write_b32 v1, v12")
    e("s_waitcnt lgkmcnt(0)")
    stamp(g, 2, ST)
    e("s_barrier")
    if o.get("skiphelp"):
        e("s_branch L_hb2")
    if not o.get("skipffn2"):
        e(f"s_cmp_eq_u32 s{S_WAVE}, 6"); e("s_cbranch_scc1 L_w6")
    g.lab("L_wo")
    if o.get("prio_after") is not None:
        e(f"s_setprio {o['prio_after']}")
    if o.get("skipwo"): e("s_branch L_wodone")
    e(f"s_and_b32 s{S_T0}, s{S_SPLIT}, 3")
    e(f"s_lshl_b32 s{S_T1}, s{S_HKV}, 2"); e(f"s_add_u32 s{S_T1}, s{S_T1}, s{S_T0}")
    e(f"s_lshl_b32 s{S_SOFF}, s{S_T1}, 17")
    e(f"s_bfe_u32 s{S_T2}, s{S_SPLIT}, 0x10002"); e(f"s_lshl_b32 s{S_T2}, s{S_T2}, 16")
    e(f"s_add_u32 s{S_SOFF}, s{S_SOFF}, s{S_T2}")
    e(f"s_lshr_b32 s{S_T2}, s{S_SPLIT}, 3"); e(f"s_lshl_b32 s{S_T2}, s{S_T2}, 9")
    e(f"s_add_u32 s{S_SOFF}, s{S_SOFF}, s{S_T2}")
    e(f"s_sub_u32 s{S_T2}, s{S_WAVE}, 4"); e(f"s_lshl_b32 s{S_T2}, s{S_T2}, 7")
    e(f"s_add_u32 s{S_SOFF}, s{S_SOFF}, s{S_T2}")
    e("v_lshrrev_b32 v2, 3, v0"); e("v_lshlrev_b32 v2, 10, v2"); e("v_and_b32 v3, 7, v0"); e("v_lshl_add_u32 v2, v3, 4, v2")
    for u in range(8):
        e(f"buffer_load_dwordx4 {vr(H_W+4*u,4)}, v2, s[{SRD_WO}:{SRD_WO+3}], s{S_SOFF} offen" + o.get("wofl", " nt"))
        if u < 7:
            e(f"s_add_u32 s{S_SOFF}, s{S_SOFF}, {8*1024}")
    e("v_lshlrev_b32 v1, 4, v0"); e(f"v_add_u32 v1, s{S_STG}, v1")
    e("v_lshrrev_b32 v2, 4, v0"); e("v_bfe_u32 v3, v0, 2, 2"); e("v_lshl_add_u32 v3, v2, 3, v3"); e("v_and_b32 v4, 3, v0")
    e("v_lshlrev_b32 v5, 7, v3"); e("v_lshl_add_u32 v5, v4, 3, v5"); e(f"v_add_u32 v5, s{S_STG}, v5")
    e("s_waitcnt vmcnt(0)")
    for pc in range(2):
        for u in range(4):
            e(f"ds_write_b128 v1, {vr(H_W+16*pc+4*u,4)} offset:{u*1024}")
        for ct in range(4):
            f = H_WO + 4 * (pc * 4 + ct)
            e(f"ds_read_b64_tr_b16 {vr(f,2)}, v5 offset:{ct*32}")
            e(f"ds_read_b64_tr_b16 {vr(f+2,2)}, v5 offset:{ct*32+512}")
        e("s_waitcnt lgkmcnt(0)")
    g.lab("L_wodone")
    if o.get("skipffn2"): e("s_branch L_hb2")
    e(f"s_cmp_lg_u32 s{S_WAVE}, 7"); e("s_cbranch_scc1 L_hb2")
    e("s_cmp_ge_u32 s2, 64"); e("s_cbranch_scc1 L_hb2")
    for ln in ['s_lshr_b32 s68, s2, 4', 's_lshl_b32 s68, s68, 3', 's_and_b32 s60, s2, 7', 's_add_u32 s68, s68, s60', 's_lshl_b32 s68, s68, 1', 's_bfe_u32 s60, s2, 0x10003', 's_add_u32 s68, s68, s60']: e(ln)
    e("v_lshrrev_b32 v2, 5, v0"); e("v_bfe_u32 v3, v0, 2, 3"); e("v_and_b32 v4, 3, v0")
    e("v_min_u32 v7, 6, v3")
    e(f"v_mul_u32_u24 v5, {4*2*512*8}, v7")
    e("v_lshl_add_u32 v5, v2, 12, v5")
    e("v_lshl_add_u32 v5, v4, 4, v5")
    e(f"s_lshl_b32 s{S_T0}, s68, 6")
    e(f"v_add_u32 v5, s{S_T0}, v5")
    def fl():
        for i in range(4):
            e(f"s_mov_b32 s{S_T1}, {WS_F + i*8192}")
            e(f"buffer_load_dwordx4 {vr(16+4*i,4)}, v5, s[{SRD_WS}:{SRD_WS+3}], s{S_T1} offen sc1")
    e("v_lshlrev_b32 v6, 10, v2"); e("v_lshl_add_u32 v6, v4, 2, v6"); e(f"s_lshl_b32 s{S_T1}, s68, 4"); e(f"v_add_u32 v6, s{S_T1}, v6")
    e(f"buffer_load_dword v{H_G+2}, v6, s[{SRD_X}:{SRD_X+3}], 0 offen")
    poll(g, "f", fl, [17+2*i for i in range(8)], 8, sleep=16)
    e("v_add_f32 v16, v16, v20"); e("v_add_f32 v18, v18, v22"); e("v_add_f32 v24, v24, v28"); e("v_add_f32 v26, v26, v30")
    e("v_add_f32 v16, v16, v24"); e("v_add_f32 v18, v18, v26")
    e("v_cmp_gt_u32 vcc, 7, v3"); g.nop(2)
    e("v_cndmask_b32 v16, 0, v16, vcc"); e("v_cndmask_b32 v18, 0, v18, vcc")
    row_ror_reduce(g, [16, 18], "v_add_f32", [4, 8])
    e("v_mov_b32 v20, v16"); e("v_mov_b32 v21, v18"); g.nop(2)
    e("v_permlane16_swap_b32 v16, v20"); e("v_permlane16_swap_b32 v18, v21"); g.nop(1)
    e("v_add_f32 v16, v16, v20"); e("v_add_f32 v18, v18, v21")
    e("v_cvt_pk_bf16_f32 v8, v16, v18")
    e("v_lshlrev_b32 v10, 16, v8"); e("v_and_b32 v11, 0xffff0000, v8")
    e(f"s_mov_b32 s{S_T0}, {L2E:#x}")
    for r in (10, 11):
        e(f"v_mul_f32 v12, s{S_T0}, v{r}")
        e(f"v_exp_f32 v12, -v12"); g.nop(1)
        e(f"v_add_f32 v12, 1.0, v12")
        e(f"v_rcp_f32 v12, v12"); g.nop(1)
        e(f"v_mul_f32 v{r}, v{r}, v12")
    e("v_cvt_pk_bf16_f32 v8, v10, v11")
    e(f"v_lshlrev_b32 v{H_G}, 16, v8"); e(f"v_and_b32 v{H_G+1}, 0xffff0000, v8")
    g.lab("L_hb2")
    e(f"s_sub_u32 s{S_T0}, s{S_WAVE}, 4")
    e(f"s_lshl_b32 s{S_T1}, s{S_T0}, 9")
    e("v_lshlrev_b32 v232, 2, v0"); e(f"v_add_u32 v232, s{S_T1}, v232")
    e(f"v_add_u32 v233, {2*RING}, v232")
    e(f"s_lshl_b32 s{S_T1}, s{S_T0}, 3"); e(f"s_add_u32 s{S_T1}, s{S_T1}, {L_ML}")
    e(f"v_mov_b32 v234, s{S_T1}")
    e("v_lshlrev_b32 v235, 4, v0")
    e("v_and_b32 v228, 1, v0")
    e(f"s_lshl_b32 s67, s{S_PAIR}, 4"); e(f"s_add_u32 s67, s67, s{S_SPLIT}")
    e(f"s_lshl_b32 s67, s67, 2"); e(f"s_add_u32 s67, s67, s{S_T0}")
    e(f"s_lshl_b32 s67, s67, 11"); e(f"s_add_u32 s67, s67, {WS_P}")
    e("v_lshrrev_b32 v236, 4, v0"); e("v_lshlrev_b32 v236, 4, v236"); e(f"v_add_u32 v236, {L_OB}, v236")
    e("v_lshlrev_b32 v237, 3, v0")
    e(f"s_and_b32 s{S_T2}, s{S_SPLIT}, 3")
    e(f"s_lshl_b32 s69, s{S_HKV}, 2"); e(f"s_add_u32 s69, s69, s{S_T2}")
    e(f"s_lshl_b32 s69, s69, 1"); e(f"s_bfe_u32 s{S_T2}, s{S_SPLIT}, 0x10002"); e(f"s_add_u32 s69, s69, s{S_T2}")
    e(f"s_lshl_b32 s{S_T2}, s{S_B}, 6"); e(f"s_add_u32 s69, s69, s{S_T2}")
    e(f"s_lshl_b32 s69, s69, 12")
    e(f"s_lshr_b32 s{S_T2}, s{S_SPLIT}, 3"); e(f"s_lshl_b32 s{S_T2}, s{S_T2}, 11"); e(f"s_add_u32 s69, s69, s{S_T2}")
    e(f"s_lshl_b32 s{S_T2}, s{S_T0}, 9"); e(f"s_add_u32 s69, s69, s{S_T2}")
    e(f"s_add_u32 s69, s69, {WS_S}")
    for ln in ['s_lshr_b32 s68, s2, 4', 's_lshl_b32 s68, s68, 3', 's_and_b32 s61, s2, 7', 's_add_u32 s68, s68, s61', 's_lshl_b32 s68, s68, 1', 's_bfe_u32 s61, s2, 0x10003', 's_add_u32 s68, s68, s61']: e(ln)
    e("v_lshrrev_b32 v2, 5, v0"); e("v_bfe_u32 v3, v0, 2, 3"); e("v_and_b32 v4, 3, v0")
    e("v_lshlrev_b32 v238, 18, v2"); e("v_lshl_add_u32 v238, v3, 15, v238"); e("v_lshl_add_u32 v238, v4, 4, v238")
    e(f"s_lshl_b32 s{S_T0}, s68, 6"); e(f"v_add_u32 v238, s{S_T0}, v238")
    e("v_lshlrev_b32 v239, 10, v2"); e("v_lshl_add_u32 v239, v4, 2, v239"); e(f"s_lshl_b32 s{S_T1}, s68, 4"); e(f"v_add_u32 v239, s{S_T1}, v239")
    e("s_mov_b32 s70, 0xffff0000"); e("s_mov_b32 s71, 0")
    e("s_mov_b32 s72, 0"); e("s_mov_b32 s73, 0x0000ffff")
    e("s_mov_b32 s74, 0"); e("s_mov_b32 s75, 0xffff0000")
    e(f"v_mov_b32 v41, s{S_TAG}"); e(f"v_mov_b32 v43, s{S_TAG}"); e(f"v_mov_b32 v45, s{S_TAG}"); e(f"v_mov_b32 v47, s{S_TAG}")
    e(f"s_mov_b32 s{S_C0}, {L2E:#x}")
    if o.get("pretouch"):
        fl = "" if o["pretouch"] == 1 else " sc1"
        e(f"buffer_load_dword v227, v235, s[{SRD_WS}:{SRD_WS+3}], s67 offen{fl}")
        e(f"buffer_load_dword v227, v235, s[{SRD_WS}:{SRD_WS+3}], s67 offen offset:1152{fl}")
        e(f"buffer_load_dword v227, v237, s[{SRD_WS}:{SRD_WS+3}], s69 offen{fl}")
    if o.get("tailpf", True):
        e(f"s_getpc_b64 s[{S_T2}:{S_T2+1}]")
        g.lab("L_pc2")
        e(f"s_add_u32 s{S_T2}, s{S_T2}, L_tail-L_pc2"); e(f"s_addc_u32 s{S_T2+1}, s{S_T2+1}, 0")
        e("v_lshlrev_b32 v229, 7, v0")
        e(f"v_min_u32 v229, L_code_end-L_tail-4, v229")
    stamp(g, 3, ST)

    g.lab("L_tail")
    if DS:
        LX = g.new("ds")
        e(f"s_cmp_lg_u32 s{S_WAVE}, 0"); e(f"s_cbranch_scc1 {LX}")
        dstamp(g, 2, True)
        e("v_mov_b32 v236, 12"); e("v_mov_b32 v237, s88")
        e("s_mov_b64 exec, 1")
        e(f"global_atomic_umax v236, v237, s[{S_DBG}:{S_DBG+1}]")
        e("s_mov_b64 exec, -1")
        e("s_not_b32 s90, s90")
        e("v_mov_b32 v236, 0"); e("v_mov_b32 v237, s90")
        e("s_mov_b64 exec, 1")
        e(f"global_atomic_umax v236, v237, s[{S_DBG}:{S_DBG+1}]")
        e("s_mov_b64 exec, -1")
        g.lab(LX)
    e("s_barrier")
    stamp(g, 4, STT)
    e(f"s_cmp_lt_u32 s{S_WAVE}, 4"); e("s_cbranch_scc1 L_t2")
    e("ds_read_b32 v8, v232"); e("ds_read_b32 v9, v232 offset:256")
    e("ds_read_b32 v10, v232 offset:32768"); e("ds_read_b32 v11, v232 offset:33024")
    e("ds_read_b32 v12, v233"); e("ds_read_b32 v13, v233 offset:256")
    e("ds_read_b32 v14, v233 offset:32768"); e("ds_read_b32 v15, v233 offset:33024")
    for w in range(4):
        e(f"ds_read_b64 {vr(16+2*w,2)}, v234 offset:{w*32}")
    if o.get("tailpf", True):
        LP = g.new("tpf")
        e(f"s_cmp_lg_u32 s{S_WAVE}, 7"); e(f"s_cbranch_scc1 {LP}")
        e("s_mov_b32 exec_hi, 0")
        e(f"global_load_dword v230, v229, s[{S_T2}:{S_T2+1}]")
        e("s_mov_b64 exec, -1")
        g.lab(LP)
    e("v_cmp_eq_u32 vcc, 1, v228")
    e("s_waitcnt lgkmcnt(0)")
    e("v_max3_f32 v24, v16, v18, v20"); e("v_max_f32 v24, v24, v22")
    for w in range(4):
        e(f"v_sub_f32 v{16+2*w}, v{16+2*w}, v24")
    for w in range(4):
        e(f"v_mul_f32 v{16+2*w}, s{S_C0}, v{16+2*w}")
    for w in range(4):
        e(f"v_exp_f32 v{16+2*w}, v{16+2*w}")
    g.nop(1)
    e("v_mul_f32 v40, v8, v16"); e("v_mul_f32 v44, v9, v16"); e("v_mul_f32 v46, v17, v16")
    for w in range(1, 4):
        e(f"v_fmac_f32 v40, v{8+2*w}, v{16+2*w}"); e(f"v_fmac_f32 v44, v{9+2*w}, v{16+2*w}"); e(f"v_fmac_f32 v46, v{17+2*w}, v{16+2*w}")
    e("v_cndmask_b32 v42, v24, v46, vcc")
    e("v_mov_b32 v46, v42")
    e(f"buffer_store_dwordx4 v[40:43], v235, s[{SRD_WS}:{SRD_WS+3}], s67 offen sc1")
    e(f"buffer_store_dwordx4 v[44:47], v235, s[{SRD_WS}:{SRD_WS+3}], s67 offen offset:1024 sc1")
    if o.get("diagH") == 1:
        stamp(g, 1, True)
        e("s_waitcnt vmcnt(0)")
        stamp(g, 2, True)
    g.lab("L_t2")
    stamp(g, 5, STT)
    e(f"s_and_b32 s{S_T0}, s{S_SPLIT}, 3")
    e("v_lshrrev_b32 v2, 2, v0"); e("v_and_b32 v3, 3, v0")
    e("v_lshlrev_b32 v5, 13, v2")
    e("v_lshl_add_u32 v4, v3, 5, v5")
    e(f"s_lshl_b32 s{S_T1}, s{S_PAIR}, 17")
    e(f"s_lshl_b32 s{S_T2}, s{S_T0}, 11"); e(f"s_add_u32 s{S_T1}, s{S_T1}, s{S_T2}")
    e(f"s_bfe_u32 s{S_T2}, s{S_SPLIT}, 0x10002"); e(f"s_lshl_b32 s{S_T2}, s{S_T2}, 10"); e(f"s_add_u32 s{S_T1}, s{S_T1}, s{S_T2}")
    e(f"s_lshl_b32 s{S_T2}, s{S_WAVE}, 7"); e(f"s_add_u32 s{S_T1}, s{S_T1}, s{S_T2}")
    e(f"s_add_u32 s{S_T1}, s{S_T1}, {WS_P}")
    def pl():
        e(f"buffer_load_dwordx4 v[8:11], v4, s[{SRD_WS}:{SRD_WS+3}], s{S_T1} offen sc1")
        e(f"buffer_load_dwordx4 v[12:15], v4, s[{SRD_WS}:{SRD_WS+3}], s{S_T1} offen offset:16 sc1")
    poll(g, "p", pl, [9, 11, 13, 15], 24, sleep=o.get("psleep", 1))
    e("v_mov_b32 v16, v10"); e("v_mov_b32 v18, v14"); e("v_mov_b32 v10, v12")
    stamp(g, 6, STT)
    e("v_mov_b32 v20, v16")
    row_ror_reduce(g, [20], "v_max_f32", [4, 8])
    rows_reduce(g, 20, 21, "v_max_f32")
    e(f"s_mov_b32 s{S_C0}, {L2E:#x}")
    e("v_sub_f32 v16, v16, v20"); e(f"v_mul_f32 v16, s{S_C0}, v16"); e("v_exp_f32 v16, v16"); g.nop(1)
    e("v_mul_f32 v18, v18, v16")
    e("v_mul_f32 v8, v8, v16"); e("v_mul_f32 v10, v10, v16")
    row_ror_reduce(g, [8, 10, 18], "v_add_f32", [4, 8])
    rows_reduce_multi(g, [8, 10, 18], [26, 27, 28], "v_add_f32")
    e("v_rcp_f32 v19, v18"); g.nop(1)
    for r in (8, 10):
        e(f"v_mul_f32 v20, v{r}, v19"); e(f"v_fma_f32 v21, -v20, v18, v{r}"); e(f"v_fma_f32 v{r}, v21, v19, v20")
    e("v_cvt_pk_bf16_f32 v22, v8, v10")
    e(f"s_lshl_b32 s{S_T2}, s{S_WAVE}, 4"); e(f"s_add_u32 s{S_T2}, s{S_T2}, {L_OB}")
    e(f"v_lshlrev_b32 v3, 2, v3"); e(f"v_add_u32 v3, s{S_T2}, v3")
    e("s_mov_b64 exec, 0xf")
    e("ds_write_b32 v3, v22")
    e("s_mov_b64 exec, -1")
    e("s_waitcnt lgkmcnt(0)")
    e("s_barrier")
    e(f"s_cmp_lt_u32 s{S_WAVE}, 4"); e("s_cbranch_scc1 L_fin")
    for ks in range(2):
        e(f"ds_read_b128 {vr(8+4*ks,4)}, v236 offset:{ks*64}")
    e("s_waitcnt lgkmcnt(0)")
    for ks in range(2):
        for ct in range(4):
            c = "0" if ks == 0 else vr(16+4*ct, 4)
            e(f"v_mfma_f32_16x16x32_bf16 {vr(16+4*ct,4)}, {vr(8+4*ks,4)}, {vr(H_WO+4*(ks*4+ct),4)}, {c}")
    g.nop(6)
    e("v_cndmask_b32 v40, v16, v20, s[70:71]")
    e("v_cndmask_b32 v40, v40, v24, s[72:73]")
    g.nop(1)
    e("v_cndmask_b32 v40, v40, v28, s[74:75]")
    pub2(g, 40, 237, "s69")
    if o.get("diagH") == 2:
        stamp(g, 1, True)
        e("s_waitcnt vmcnt(0)")
        stamp(g, 2, True)
    stamp(g, 7, STT)
    e(f"s_cmp_lg_u32 s{S_WAVE}, 7"); e("s_cbranch_scc1 L_fin")
    e("s_cmp_ge_u32 s2, 64"); e("s_cbranch_scc1 L_fin")
    def sl():
        for i in range(8):
            e(f"s_mov_b32 s{S_T1}, {WS_S + i*4096}")
            e(f"buffer_load_dwordx4 {vr(64+4*i,4)}, v238, s[{SRD_WS}:{SRD_WS+3}], s{S_T1} offen sc1")
    poll(g, "s", sl, [64+2*i+1 for i in range(16)], 8)
    stamp(g, 8, STT)
    for i in range(4):
        e(f"v_add_f32 v{64+4*i}, v{64+4*i}, v{80+4*i}"); e(f"v_add_f32 v{66+4*i}, v{66+4*i}, v{82+4*i}")
    e("v_add_f32 v64, v64, v72"); e("v_add_f32 v66, v66, v74"); e("v_add_f32 v68, v68, v76"); e("v_add_f32 v70, v70, v78")
    e("v_add_f32 v16, v64, v68"); e("v_add_f32 v18, v66, v70")
    row_ror_reduce(g, [16, 18], "v_add_f32", [4, 8])
    e("v_mov_b32 v20, v16"); e("v_mov_b32 v21, v18"); g.nop(2)
    e("v_permlane16_swap_b32 v16, v20"); e("v_permlane16_swap_b32 v18, v21"); g.nop(1)
    e("v_add_f32 v16, v16, v20"); e("v_add_f32 v18, v18, v21")
    e("v_cvt_pk_bf16_f32 v8, v16, v18")
    e("v_lshlrev_b32 v10, 16, v8"); e("v_and_b32 v11, 0xffff0000, v8")
    e(f"v_mul_f32 v10, v10, v{H_G}"); e(f"v_mul_f32 v11, v11, v{H_G+1}")
    e("v_cvt_pk_bf16_f32 v8, v10, v11")
    e("v_lshlrev_b32 v10, 16, v8"); e("v_and_b32 v11, 0xffff0000, v8")
    e(f"v_lshlrev_b32 v12, 16, v{H_G+2}"); e(f"v_and_b32 v13, 0xffff0000, v{H_G+2}")
    e("v_add_f32 v10, v10, v12"); e("v_add_f32 v11, v11, v13")
    e("v_cvt_pk_bf16_f32 v8, v10, v11")
    e("s_mov_b32 exec_lo, 0xf"); e("s_mov_b32 exec_hi, 0xf")
    e(f"buffer_store_dword v8, v239, s[{SRD_OUT}:{SRD_OUT+3}], 0 offen")
    e("s_mov_b64 exec, -1")
    if DS: dstamp(g, 1, True)
    e("s_cmp_lg_u32 s2, 0"); e("s_cbranch_scc1 L_fin")
    e(f"v_mov_b32 v8, s{S_TAG}"); e("v_mov_b32 v1, 0")
    e("s_mov_b64 exec, 1")
    e(f"buffer_store_dword v8, v1, s[{SRD_WS}:{SRD_WS+3}], 0 offen sc1")
    e("s_mov_b64 exec, -1")
    g.lab("L_fin")
    if DS2:
        LX = g.new("ds2"); LY = g.new("ds2y")
        e("s_memrealtime s[84:85]")
        e("s_waitcnt lgkmcnt(0)")
        e("s_mov_b64 exec, 1")
        e(f"s_cmp_eq_u32 s{S_WAVE}, 7"); e(f"s_cbranch_scc1 {LY}")
        e(f"s_cmp_lg_u32 s{S_WAVE}, 0"); e(f"s_cbranch_scc1 {LX}")
        e("s_cmp_ge_u32 s2, 3"); e(f"s_cbranch_scc1 {LX}")
        e("s_mul_i32 s83, s2, 12")
        e("v_mov_b32 v1, s83")
        e("v_mov_b32 v2, s90"); e("v_mov_b32 v3, s86"); e("v_mov_b32 v4, s88")
        e(f"global_store_dwordx3 v1, v[2:4], s[{S_DBG}:{S_DBG+1}]")
        e(f"s_branch {LX}")
        g.lab(LY)
        e("s_cmp_ge_u32 s2, 7"); e(f"s_cbranch_scc1 {LX}")
        e("s_lshl_b32 s83, s2, 2"); e("s_add_u32 s83, s83, 36")
        e("v_mov_b32 v1, s83"); e("v_mov_b32 v2, s84")
        e(f"global_store_dword v1, v2, s[{S_DBG}:{S_DBG+1}]")
        g.lab(LX)
    if ST:
        stamp(g, 9, ST)
        e("s_waitcnt lgkmcnt(0)")
        e(f"s_lshl_b32 s{S_T0}, s2, 3"); e(f"s_add_u32 s{S_T0}, s{S_T0}, s{S_WAVE}"); e(f"s_lshl_b32 s{S_T0}, s{S_T0}, 6")
        e(f"s_add_u32 s{S_T0}, s{S_T0}, {WS_DBG}")
        e("v_mov_b32 v1, 0")
        e("s_mov_b64 exec, 1")
        for i in range(10):
            e(f"v_mov_b32 v2, s{S_ST0+2*i}")
            e(f"buffer_store_dword v2, v1, s[{SRD_WS}:{SRD_WS+3}], s{S_T0} offen offset:{4*i}")
            g.nop(1)
    g.lab("L_end")
    e("s_endpgm")
    g.lab("L_code_end")
    g.L.append('.section .rodata,"a"')
    g.L.append(".p2align 6")
    g.L.append(f".amdhsa_kernel {KN}_kernel")
    for s in ["next_free_vgpr 240", "next_free_sgpr 102", "accum_offset 240", "group_segment_fixed_size 0", "kernarg_size 88",
              "user_sgpr_count 2", "user_sgpr_kernarg_segment_ptr 1", "system_sgpr_workgroup_id_x 1",
              "float_denorm_mode_32 3", "float_denorm_mode_16_64 3"]:
        g.L.append("  .amdhsa_" + s)
    g.L.append(".end_amdhsa_kernel")
    txt = "\n".join(g.L) + "\n"
    lf = o.get("ldflags")
    if lf:
        out = []
        for ln in txt.split("\n"):
            if "buffer_load_dword" in ln and ln.rstrip().endswith(" sc1") and " lds" not in ln:
                ln = ln.rstrip()[:-4] + " " + lf
            out.append(ln)
        txt = "\n".join(out)
    pf = []
    span = 64 << o.get("pfshift", 7)
    for i in range((o.get("pf_kib", 24) * 1024 + span - 1) // span):
        pf.append(f"  v_min_u32 v3, L_code_end-{KN}_kernel-4, v1")
        pf.append(f"  global_load_dword v230, v3, s[{S_T0}:{S_T0+1}]")
        pf.append(f"  v_add_u32 v1, {span}, v1")
    txt = txt.replace("  CODE_PREFETCH_PLACEHOLDER", "\n".join(pf))
    return txt

if __name__ == "__main__":
    import json
    opt = json.loads(sys.argv[2]) if len(sys.argv) > 2 else {}
    open(sys.argv[1], "w").write(gen(opt))
```

```python
import sys
KN = "recurrent_scan__gqa_block_cached__dense_activation_silu__decode"

WS_E   = 0x0
WS_Q   = 0x200000
WS_H   = 0x240000
WS_ML  = 0x28000
WS_F   = 0x30000
WS_S   = 0x80000
WS_P   = 0x400000
WS_CNT = 0x2A0000
WS_DBG = 0x300000
WS_SIZE = 0x800000

RING   = 32768
L_STG  = 0x20000
L_XN4  = 0x24000
L_XN5  = 0x24800
L_Q    = 0x25000
L_H    = 0x25400
L_OB   = 0x25600
L_ML   = 0x25800
L_FLAG = 0x25900
LDS_BYTES = 0x26000

L2E = 0x3fb8aa3b
SCALE = 0x3db504f3
NEG_INF = 0xff800000

DEBUG_TO = True
class G:
    def __init__(self):
        self.L = []
        self.uid = 0
    def e(self, s):
        self.L.append("  " + s)
    def lab(self, s):
        self.L.append(s + ":")
    def new(self, p):
        self.uid += 1
        return f"L_{p}_{self.uid}"
    def nop(self, n):
        while n > 0:
            k = min(n, 16)
            self.e(f"s_nop {k-1}")
            n -= k

def vr(a, n=None):
    return f"v{a}" if n is None else f"v[{a}:{a+n-1}]"
def sr(a, n=None):
    return f"s{a}" if n is None else f"s[{a}:{a+n-1}]"

S_WAVE = 3
S_X, S_K, S_V, S_WQ, S_WO, S_BX, S_W1, S_W2 = 4, 6, 8, 10, 12, 14, 16, 18
S_OUT, S_DBG, S_WS = 20, 22, 24
S_TAG, S_E = 26, 27
SRD_K, SRD_V, SRD_WS, SRD_W, SRD_X, SRD_OUT, SRD_WO = 28, 32, 36, 40, 44, 48, 52
S_PAIR, S_SPLIT, S_B, S_HKV = 56, 57, 58, 59
S_T0, S_T1, S_T2, S_T3, S_T4, S_T5 = 60, 61, 62, 63, 64, 65
S_RETRY = 66
S_OFF = 67
S_RB = 68
S_PB = 69
S_CNT = 70
S_SOFF = 71
S_RS32 = 72
S_EX = 74
S_ST0 = 76
S_C0 = 96
S_C1 = 97
S_ROT = 98
S_NEXT = 99

def build_srd(g, d, ptr, size):
    g.e(f"s_mov_b32 s{d}, s{ptr}")
    g.e(f"s_and_b32 s{d+1}, s{ptr+1}, 0xffff")
    g.e(f"s_mov_b32 s{d+2}, {size:#x}")
    g.e(f"s_mov_b32 s{d+3}, 0x20000")

def rows_reduce(g, v, t, op):
    for sw in ("v_permlane16_swap_b32", "v_permlane32_swap_b32"):
        g.e(f"v_mov_b32 v{t}, v{v}")
        g.nop(2)
        g.e(f"{sw} v{v}, v{t}")
        g.nop(1)
        g.e(f"{op} v{v}, v{v}, v{t}")

def rows_reduce_multi(g, vs, ts, op):
    for sw in ("v_permlane16_swap_b32", "v_permlane32_swap_b32"):
        for v, t in zip(vs, ts):
            g.e(f"v_mov_b32 v{t}, v{v}")
        g.nop(max(0, 3 - len(vs)) if len(vs) < 3 else 0)
        if len(vs) >= 3: pass
        g.nop(1)
        for v, t in zip(vs, ts):
            g.e(f"{sw} v{v}, v{t}")
        g.nop(1)
        for v, t in zip(vs, ts):
            g.e(f"{op} v{v}, v{v}, v{t}")
        g.nop(1)

def row_ror_reduce(g, vs, op, rors):
    for r in rors:
        g.nop(2)
        for v in vs:
            g.e(f"{op}_dpp v{v}, v{v}, v{v} row_ror:{r} row_mask:0xf bank_mask:0xf")
            if len(vs) == 1:
                pass
    g.nop(1)

POLL_IDS = {"q": 0, "h": 1, "f": 2, "p": 3, "s": 4}
def poll(g, name, issue_loads, tag_regs, tmp, dbgword=None, sleep=1):
    L = g.new("poll_" + name); D = g.new("polld_" + name); TO = g.new("pollto_" + name)
    g.e(f"s_mov_b32 s{S_RETRY}, 0x40000")
    g.lab(L)
    issue_loads()
    g.e("s_waitcnt vmcnt(0)")
    g.e(f"v_xor_b32 v{tmp}, s{S_TAG}, v{tag_regs[0]}")
    for t in tag_regs[1:]:
        g.e(f"v_xor_b32 v{tmp+1}, s{S_TAG}, v{t}")
        g.e(f"v_or_b32 v{tmp}, v{tmp}, v{tmp+1}")
    g.e(f"v_cmp_ne_u32 vcc, 0, v{tmp}")
    g.e(f"s_cbranch_vccz {D}")
    g.e("s_mov_b64 exec, vcc")
    g.e(f"s_sub_u32 s{S_RETRY}, s{S_RETRY}, 1")
    g.e(f"s_cbranch_scc1 {TO}")
    g.e(f"s_sleep {sleep}")
    g.e(f"s_branch {L}")
    g.lab(TO)
    if DEBUG_TO:
        g.e(f"v_mov_b32 v{tmp}, {4*POLL_IDS[name]}")
        g.e(f"v_mov_b32 v{tmp+1}, s2")
        g.e(f"v_add_u32 v{tmp+1}, 0x1000, v{tmp+1}")
        g.e(f"global_store_dword v{tmp}, v{tmp+1}, s[{S_DBG}:{S_DBG+1}]")
    g.lab(D)
    g.e("s_mov_b64 exec, -1")

PUB = {"mode": "store"}
def pub2(g, vdata, voff, soff, imm=0):
    off = f" offset:{imm}" if imm else ""
    if PUB["mode"] == "atomic":
        g.e(f"buffer_atomic_swap_x2 v[{vdata}:{vdata+1}], v{voff}, s[{SRD_WS}:{SRD_WS+3}], {soff} offen{off}")
    elif PUB["mode"] == "atomic_sc1":
        g.e(f"buffer_atomic_swap_x2 v[{vdata}:{vdata+1}], v{voff}, s[{SRD_WS}:{SRD_WS+3}], {soff} offen{off} sc1")
    elif PUB["mode"] == "store_sc01":
        g.e(f"buffer_store_dwordx2 v[{vdata}:{vdata+1}], v{voff}, s[{SRD_WS}:{SRD_WS+3}], {soff} offen{off} sc0 sc1")
    else:
        g.e(f"buffer_store_dwordx2 v[{vdata}:{vdata+1}], v{voff}, s[{SRD_WS}:{SRD_WS+3}], {soff} offen{off} sc1")

def poll2(g, name, issue, nloads, tags, on_ok, A, B, tmp, stagger=10):
    L = g.new("p2_" + name); D = g.new("p2d_" + name); TO = g.new("p2to_" + name)
    W = "s[100:101]"
    def check(base):
        tr = tags(base)
        g.e(f"s_mov_b64 exec, {W}")
        g.e(f"v_xor_b32 v{tmp}, s{S_TAG}, v{tr[0]}")
        for t in tr[1:]:
            g.e(f"v_xor_b32 v{tmp+1}, s{S_TAG}, v{t}")
            g.e(f"v_or_b32 v{tmp}, v{tmp}, v{tmp+1}")
        g.e(f"v_cmp_ne_u32 vcc, 0, v{tmp}")
        g.e(f"s_andn2_b64 exec, {W}, vcc")
        SK = g.new("p2s")
        g.e(f"s_cbranch_execz {SK}")
        on_ok(base)
        g.lab(SK)
        g.e(f"s_mov_b64 {W}, vcc")
        g.e(f"s_cbranch_vccz {D}")
        g.e(f"s_mov_b64 exec, {W}")
    g.e(f"s_mov_b32 s{S_RETRY}, 0x40000")
    g.e(f"s_mov_b64 {W}, -1")
    issue(A)
    g.e(f"s_sleep {stagger}")
    g.lab(L)
    issue(B)
    g.e(f"s_waitcnt vmcnt({nloads})")
    check(A)
    issue(A)
    g.e(f"s_waitcnt vmcnt({nloads})")
    check(B)
    g.e(f"s_sub_u32 s{S_RETRY}, s{S_RETRY}, 1")
    g.e(f"s_cbranch_scc0 {L}")
    if DEBUG_TO:
        g.e(f"v_mov_b32 v{tmp}, {4*POLL_IDS[name]}")
        g.e(f"v_mov_b32 v{tmp+1}, s2")
        g.e(f"v_add_u32 v{tmp+1}, 0x1000, v{tmp+1}")
        g.e(f"global_store_dword v{tmp}, v{tmp+1}, s[{S_DBG}:{S_DBG+1}]")
    g.lab(D)
    g.e("s_mov_b64 exec, -1")

def dstamp(g, word, on, tmpv=(236, 237), sp=(92, 93)):
    if not on: return
    g.e(f"s_memrealtime s[{sp[0]}:{sp[1]}]")
    g.e("s_waitcnt lgkmcnt(0)")
    g.e(f"v_mov_b32 v{tmpv[0]}, {4*word}")
    g.e(f"v_mov_b32 v{tmpv[1]}, s{sp[0]}")
    g.e("s_mov_b64 s[94:95], exec")
    g.e("s_mov_b64 exec, 1")
    g.e(f"global_atomic_umax v{tmpv[0]}, v{tmpv[1]}, s[{S_DBG}:{S_DBG+1}]")
    g.e("s_mov_b64 exec, s[94:95]")

def stamp(g, idx, on):
    if on:
        g.e(f"s_memrealtime s[{S_ST0+2*idx}:{S_ST0+2*idx+1}]")

def gen(opt=None):
    o = dict(pattern="grp16", rot=512*1024, xmap=False, stamps=False, ntiles=16, prefetch_code=True, stage=99, b0=True, thr=16, prio=True, dyn=True, sthr=24, wnt=1, ns=10, poll2=False, copies=1, wofl="")
    if opt: o.update(opt)
    DS = False
    DS2 = bool(o.get("dstamps"))
    ST = bool(o["stamps"])
    STT = o["stamps"] is True
    STA = o["stamps"] == "A"
    STP = o["stamps"] == "P"
    STF = o["stamps"] == "F"
    STE = o["stamps"] == "E"
    STX = o["stamps"] == "X"
    STL = o["stamps"] == "L"
    PUB["mode"] = o.get("pub", "store")
    g = G(); e = g.e
    g.L.append(f"; @launch grid=(256,1,1) block=(512,1,1) lds={LDS_BYTES}")
    g.L.append('.amdgcn_target "amdgcn-amd-amdhsa--gfx950"')
    g.L.append(".text")
    g.L.append(f".globl {KN}_kernel")
    g.L.append(".p2align 8")
    g.L.append(f".type {KN}_kernel,@function")
    g.lab(f"{KN}_kernel")
    e("s_cmp_ge_u32 s2, 256")
    e("s_cbranch_scc1 L_end")
    stamp(g, 0, ST)
    if DS2: e("s_memrealtime s[90:91]")
    e(f"s_load_dwordx16 s[4:19], s[0:1], 0")
    e(f"s_load_dwordx4 s[20:23], s[0:1], 64")
    e(f"s_load_dwordx2 s[24:25], s[0:1], 80")
    e("v_lshrrev_b32 v1, 6, v0")
    e("v_and_b32 v0, 63, v0")
    e(f"v_readfirstlane_b32 s{S_WAVE}, v1")
    if o["xmap"]:
        e(f"s_and_b32 s{S_T0}, s2, 7"); e(f"s_lshl_b32 s{S_T0}, s{S_T0}, 5"); e(f"s_lshr_b32 s{S_T1}, s2, 3")
        e(f"s_add_u32 s{S_T0}, s{S_T0}, s{S_T1}")
        e(f"s_lshr_b32 s{S_PAIR}, s{S_T0}, 4"); e(f"s_and_b32 s{S_SPLIT}, s{S_T0}, 15")
    else:
        e(f"s_lshr_b32 s{S_PAIR}, s2, 4"); e(f"s_and_b32 s{S_SPLIT}, s2, 15")
    e(f"s_lshr_b32 s{S_B}, s{S_PAIR}, 3"); e(f"s_and_b32 s{S_HKV}, s{S_PAIR}, 7")
    e(f"s_cmp_ge_u32 s{S_WAVE}, 4")
    e("s_cbranch_scc1 L_helper")

    V_KD, V_VD, V_KR, V_VR = 8, 12, 14, 18
    V_Q, V_O = 28, 44
    RK = (76, 140); RV = (108, 172)
    V_S, V_A, V_P = 204, 212, 220
    V_M, V_L, V_AL, V_NM, V_MX, V_T = 224, 225, 226, 227, 228, 229
    e("v_lshrrev_b32 v1, 4, v0")
    e("v_and_b32 v2, 15, v0")
    e("v_lshlrev_b32 v3, 8, v1")
    e("v_xor_b32 v4, v2, v1")
    for n in range(4):
        e(f"v_xor_b32 v5, {4*n}, v4")
        e(f"v_lshl_add_u32 v{V_KD+n}, v5, 4, v3")
    e("v_lshlrev_b32 v4, 1, v1")
    e("v_xor_b32 v4, v2, v4")
    for n in range(2):
        e(f"v_xor_b32 v5, {8*n}, v4")
        e(f"v_lshl_add_u32 v{V_VD+n}, v5, 4, v3")
    e(f"s_lshl_b32 s{S_RB}, s{S_WAVE}, 15")
    e(f"s_lshl_b32 s{S_PB}, s{S_PAIR}, 23")
    if o["pattern"] == "grp16":
        e(f"s_lshl_b32 s{S_OFF}, s{S_SPLIT}, 2"); e(f"s_add_u32 s{S_OFF}, s{S_OFF}, s{S_WAVE}")
        e(f"s_lshl_b32 s{S_OFF}, s{S_OFF}, 13")
        STEP = 16 * 4 * 8192
    else:
        e(f"s_lshl_b32 s{S_OFF}, s{S_SPLIT}, 6"); e(f"s_add_u32 s{S_OFF}, s{S_OFF}, s{S_WAVE}")
        e(f"s_lshl_b32 s{S_OFF}, s{S_OFF}, 13")
        STEP = 4 * 8192
    e(f"s_mul_i32 s{S_ROT}, s{S_PAIR}, {o['rot']}")
    e(f"s_add_u32 s{S_OFF}, s{S_OFF}, s{S_ROT}")
    e("s_waitcnt lgkmcnt(0)")
    stamp(g, 4, STA)
    e(f"s_load_dword s{S_E}, s[{S_WS}:{S_WS+1}], {WS_E}")
    build_srd(g, SRD_K, S_K, 0x8000000)
    build_srd(g, SRD_V, S_V, 0x8000000)

    def tile_addr():
        e(f"s_and_b32 s{S_SOFF}, s{S_OFF}, 0x7fffff")
        e(f"s_add_u32 s{S_SOFF}, s{S_SOFF}, s{S_PB}")
    def issue(which, slot):
        srd = SRD_K if which == 0 else SRD_V
        for half in range(2):
            off = slot * 16384 + which * 8192 + half * 4096
            e(f"s_add_u32 m0, s{S_RB}, {off}")
            if half == 0:
                e(f"s_mov_b32 s{S_T0}, s{S_SOFF}")
            else:
                e(f"s_add_u32 s{S_T0}, s{S_SOFF}, 4096")
            for i in range(4):
                n = half * 4 + i
                vo = (V_KD + (n & 3)) if which == 0 else (V_VD + (n & 1))
                fl = o.get("kfl" if which == 0 else "vfl", " nt")
                e(f"buffer_load_dwordx4 v{vo}, s[{srd}:{srd+3}], s{S_T0} offen offset:{i*1024}{fl} lds")
    THR = o["thr"]
    nissued = 0
    for slot in range(2):
        tile_addr()
        for which in range(2):
            if o["b0"] and nissued == o.get("b0at", 8):
                e("s_barrier")
            if nissued + 8 > THR:
                e(f"s_waitcnt vmcnt({THR - 8})")
                stamp(g, 3 + nissued // 8, STP)
            issue(which, slot)
            nissued += 8
        e(f"s_add_u32 s{S_OFF}, s{S_OFF}, {STEP}")
    stamp(g, 5, STA)
    e("v_and_b32 v1, 15, v0")
    e("v_lshrrev_b32 v2, 4, v0")
    e("v_xor_b32 v3, v2, v1")
    e(f"v_lshlrev_b32 v4, 8, v1")
    e(f"v_add_u32 v4, s{S_RB}, v4")
    for kk in range(4):
        e(f"v_xor_b32 v5, {4*kk}, v3")
        e(f"v_lshl_add_u32 v{V_KR+kk}, v5, 4, v4")
    e("v_lshrrev_b32 v1, 2, v0")
    e("v_and_b32 v2, 7, v1")
    e("v_and_b32 v3, 3, v0")
    e("v_lshlrev_b32 v4, 8, v1")
    e("v_lshl_add_u32 v4, v3, 3, v4")
    e(f"v_add_u32 v4, s{S_RB}, v4")
    e("v_add_u32 v4, 8192, v4")
    for dt in range(8):
        e(f"v_xor_b32 v5, {dt}, v2")
        e(f"v_lshl_add_u32 v{V_VR+dt}, v5, 5, v4")
    for i in range(32):
        e(f"v_mov_b32 v{V_O+i}, 0")
    for i in range(16):
        e(f"v_mov_b32 v{V_Q+i}, 0")
    e(f"v_mov_b32 v{V_M}, {NEG_INF:#x}")
    for r in (236, 237, 238, 239): e(f"v_mov_b32 v{r}, 0")
    e(f"v_mov_b32 v{V_L}, 0")
    build_srd(g, SRD_WS, S_WS, WS_SIZE)
    build_srd(g, SRD_X, S_X, 2048)
    build_srd(g, SRD_WO, S_WO, 0x400000)
    build_srd(g, SRD_OUT, S_OUT, 2048)

    def load(rs, slot, do_issue, wK, wV, thr=None, pst=None):
        e(f"s_waitcnt vmcnt({wK})")
        for T in range(2):
            for kk in range(4):
                if not o.get("noread"): e(f"ds_read_b128 {vr(RK[rs]+16*T+4*kk,4)}, v{V_KR+kk} offset:{slot*16384+T*4096}")
        e("s_waitcnt lgkmcnt(0)")
        if do_issue:
            tile_addr()
            if thr is not None and thr < 32: e(f"s_waitcnt vmcnt({thr-8})")
            if pst is not None: stamp(g, pst, STP)
            issue(0, slot)
        e(f"s_waitcnt vmcnt({wV})")
        for dt in range(8):
            for T in range(2):
                if not o.get("noread"): e(f"ds_read_b64_tr_b16 {vr(RV[rs]+4*dt+2*T,2)}, v{V_VR+dt} offset:{slot*16384+T*4096}")
        e("s_waitcnt lgkmcnt(0)")
        if do_issue:
            if thr is not None and thr < 32: e(f"s_waitcnt vmcnt({thr-8})")
            if pst is not None: stamp(g, pst+1, STP)
            issue(1, slot)
            e(f"s_add_u32 s{S_OFF}, s{S_OFF}, {STEP}")

    def compute(rs):
        if o.get("nocompute"): return
        KF, VF = RK[rs], RV[rs]
        for kk in range(4):
            for T in range(2):
                c = "0" if kk == 0 else vr(V_S+4*T, 4)
                e(f"v_mfma_f32_16x16x32_bf16 {vr(V_S+4*T,4)}, {vr(KF+16*T+4*kk,4)}, {vr(V_Q+4*kk,4)}, {c}")
        g.nop(8)
        t = V_T
        for i in range(4):
            e(f"v_cvt_pk_bf16_f32 v{t+i}, v{V_S+2*i}, v{V_S+2*i+1}")
        for i in range(4):
            e(f"v_lshlrev_b32 v{V_A+2*i}, 16, v{t+i}")
            e(f"v_and_b32 v{V_A+2*i+1}, 0xffff0000, v{t+i}")
        for i in range(8):
            e(f"v_mul_f32 v{V_A+i}, s{S_C1}, v{V_A+i}")
        for i in range(4):
            e(f"v_cvt_pk_bf16_f32 v{t+i}, v{V_A+2*i}, v{V_A+2*i+1}")
        for i in range(4):
            e(f"v_lshlrev_b32 v{V_A+2*i}, 16, v{t+i}")
            e(f"v_and_b32 v{V_A+2*i+1}, 0xffff0000, v{t+i}")
        e(f"v_max3_f32 v{V_MX}, v{V_A}, v{V_A+1}, v{V_A+2}")
        e(f"v_max3_f32 v{V_MX}, v{V_MX}, v{V_A+3}, v{V_A+4}")
        e(f"v_max3_f32 v{V_MX}, v{V_MX}, v{V_A+5}, v{V_A+6}")
        e(f"v_max3_f32 v{V_MX}, v{V_MX}, v{V_A+7}, v{V_M}")
        rows_reduce(g, V_MX, t, "v_max_f32")
        e(f"v_sub_f32 v{V_AL}, v{V_M}, v{V_MX}")
        e(f"v_mul_f32 v{V_AL}, s{S_C0}, v{V_AL}")
        e(f"v_exp_f32 v{V_AL}, v{V_AL}")
        e(f"v_mov_b32 v{V_M}, v{V_MX}")
        e(f"v_mul_f32 v{V_NM}, s{S_C0}, v{V_MX}")
        for i in range(8):
            e(f"v_fma_f32 v{V_A+i}, v{V_A+i}, s{S_C0}, -v{V_NM}")
        for i in range(8):
            e(f"v_exp_f32 v{V_A+i}, v{V_A+i}")
        e(f"v_mul_f32 v{V_L}, v{V_L}, v{V_AL}")
        for i in range(16):
            e(f"v_pk_mul_f32 {vr(V_O+2*i,2)}, {vr(V_O+2*i,2)}, {vr(V_AL,2)} op_sel_hi:[1,0]")
        for i in range(4):
            e(f"v_cvt_pk_bf16_f32 v{V_P+i}, v{V_A+2*i}, v{V_A+2*i+1}")
        e(f"v_add_f32 v{t}, v{V_A}, v{V_A+1}")
        e(f"v_add_f32 v{t+1}, v{V_A+2}, v{V_A+3}")
        e(f"v_add_f32 v{t+2}, v{V_A+4}, v{V_A+5}")
        e(f"v_add_f32 v{t+3}, v{V_A+6}, v{V_A+7}")
        e(f"v_add_f32 v{t}, v{t}, v{t+1}")
        e(f"v_add_f32 v{t+2}, v{t+2}, v{t+3}")
        e(f"v_add_f32 v{t}, v{t}, v{t+2}")
        e(f"v_add_f32 v{V_L}, v{V_L}, v{t}")
        for dt in range(8):
            e(f"v_mfma_f32_16x16x32_bf16 {vr(V_O+4*dt,4)}, {vr(VF+4*dt,4)}, {vr(V_P,4)}, {vr(V_O+4*dt,4)}")

    load(0, 0, True, 24, 24, THR, 7)
    load(1, 1, True, 24, 24, THR, None)
    e("s_waitcnt lgkmcnt(0)")
    e(f"s_mul_i32 s{S_TAG}, s{S_E}, 1664525")
    e(f"s_add_u32 s{S_TAG}, s{S_TAG}, 1013904223")
    stamp(g, 1, ST)
    e("s_barrier")
    if DS2: e("s_memrealtime s[86:87]")
    stamp(g, 2, ST)
    if DS:
        LX = g.new("ds")
        e(f"s_cmp_lg_u32 s{S_WAVE}, 0"); e(f"s_cbranch_scc1 {LX}")
        e("s_memrealtime s[88:89]")
        g.lab(LX)
    e("v_and_b32 v1, 15, v0")
    e("v_lshrrev_b32 v2, 4, v0")
    e("v_lshlrev_b32 v1, 8, v1")
    e("v_lshl_add_u32 v1, v2, 4, v1")
    e(f"v_add_u32 v1, {L_Q}, v1")
    e(f"s_mov_b32 s{S_EX}, 0x000f000f"); e(f"s_mov_b32 s{S_EX+1}, 0x000f000f")
    e(f"s_mov_b64 exec, s[{S_EX}:{S_EX+1}]")
    for kk in range(4):
        e(f"ds_read_b128 {vr(V_Q+4*kk,4)}, v1 offset:{kk*64}")
    e("s_mov_b64 exec, -1")
    e(f"s_mov_b32 s{S_C0}, {L2E:#x}")
    e(f"s_mov_b32 s{S_C1}, {SCALE:#x}")
    e("s_waitcnt lgkmcnt(0)")

    NT = o["ntiles"]
    STHR = o.get("sthr", 32)
    if not o["dyn"]:
        nloop = (NT - 4) // 2
        if STL:
            for it in range(nloop):
                compute(0); load(0, 0, True, 24, 24, STHR)
                compute(1); load(1, 1, True, 24, 24, STHR)
                if it < 5: stamp(g, 4 + it, True)
        else:
            e(f"s_mov_b32 s{S_CNT}, {nloop}")
            g.lab("L_loop")
            compute(0); load(0, 0, True, 24, 24, STHR)
            compute(1); load(1, 1, True, 24, 24, STHR)
            e(f"s_sub_u32 s{S_CNT}, s{S_CNT}, 1")
            e(f"s_cmp_lg_u32 s{S_CNT}, 0")
            e("s_cbranch_scc1 L_loop")
        compute(0); load(0, 0, False, 24, 16)
        compute(1); load(1, 1, False, 8, 0)
        compute(0)
        compute(1)
    else:
        NS = o.get("ns", 5)
        NDUAL = o.get("ndual", 0)
        assert NS >= 5 + 2 * NDUAL
        NSTAT = NS * 64
        V_TK, V_ONE, V_CA = 233, 234, 235
        cap = min(STHR, 24) - 8
        if NDUAL:
            e(f"s_mov_b32 s{S_CNT}, {NDUAL}")
            g.lab("L_dual")
            compute(0); load(0, 0, True, 24, 24, o.get("dthr", 32))
            compute(1); load(1, 1, True, 24, 24, o.get("dthr", 32))
            e(f"s_sub_u32 s{S_CNT}, s{S_CNT}, 1")
            e(f"s_cmp_lg_u32 s{S_CNT}, 0")
            e("s_cbranch_scc1 L_dual")
        e(f"s_sub_u32 s{S_NEXT}, s{S_OFF}, s{S_ROT}")
        e(f"s_lshr_b32 s{S_NEXT}, s{S_NEXT}, 13")
        e(f"s_sub_u32 s{S_NEXT}, s{S_NEXT}, {NSTAT}")
        e(f"s_add_u32 s95, s{S_NEXT}, {NSTAT}")
        e(f"v_mov_b32 v{V_TK}, s{S_NEXT}")
        e(f"v_mov_b32 v{V_ONE}, 1")
        e(f"s_lshl_b32 s{S_T0}, s{S_PAIR}, 8"); e(f"s_add_u32 s{S_T0}, s{S_T0}, {WS_CNT}")
        e(f"v_mov_b32 v{V_CA}, s{S_T0}")
        e(f"s_mov_b32 s{S_CNT}, 0"); e("s_mov_b32 s73, 0")
        def readK(rs, slot):
            if o.get("noread"): return
            for T in range(2):
                for kk in range(4):
                    e(f"ds_read_b128 {vr(RK[rs]+16*T+4*kk,4)}, v{V_KR+kk} offset:{slot*16384+T*4096}")
            e("s_waitcnt lgkmcnt(0)")
        def readV(rs, slot):
            if o.get("noread"): return
            for dt in range(8):
                for T in range(2):
                    e(f"ds_read_b64_tr_b16 {vr(RV[rs]+4*dt+2*T,2)}, v{V_VR+dt} offset:{slot*16384+T*4096}")
            e("s_waitcnt lgkmcnt(0)")
        def dload(sg):
            e("s_waitcnt vmcnt(25)")
            readK(sg, sg)
            e(f"s_waitcnt vmcnt({cap})")
            e(f"v_readfirstlane_b32 s{S_NEXT}, v{V_TK}")
            e(f"s_add_u32 s{S_NEXT}, s{S_NEXT}, {NSTAT}")
            e(f"s_cmp_ge_u32 s{S_NEXT}, 1024")
            e(f"s_cbranch_scc1 L_drain{sg}")
            if NS > 5:
                LA = g.new("tka"); LB = g.new("tkb")
                e(f"s_add_u32 s95, s95, 64")
                e(f"s_cmp_ge_u32 s95, {NSTAT}"); e(f"s_cbranch_scc1 {LA}")
                e(f"s_sub_u32 s{S_T0}, s95, {NSTAT}")
                e(f"v_mov_b32 v{V_TK}, s{S_T0}")
                e(f"s_branch {LB}")
                g.lab(LA)
            e("s_mov_b64 exec, 1")
            e(f"global_atomic_add v{V_TK}, v{V_CA}, v{V_ONE}, s[{S_WS}:{S_WS+1}] sc0")
            e("s_mov_b64 exec, -1")
            if NS > 5: g.lab(LB)
            e(f"s_lshl_b32 s{S_OFF}, s{S_NEXT}, 13")
            e(f"s_add_u32 s{S_OFF}, s{S_OFF}, s{S_ROT}")
            tile_addr(); issue(0, sg)
            e("s_waitcnt vmcnt(26)")
            readV(sg, sg)
            e(f"s_waitcnt vmcnt({cap})")
            issue(1, sg)
            e(f"s_add_u32 s{S_CNT}, s{S_CNT}, 1")
        S_DR, S_E0, S_EM = 73, 92, 94
        S_PREV, S_NP = 92, 93
        NPA = o.get("npa", 0); NPC = o.get("npc", 112)
        def do_atomic():
            e("s_mov_b64 exec, 1")
            e(f"global_atomic_add v{V_TK}, v{V_CA}, v{V_ONE}, s[{S_WS}:{S_WS+1}] sc0")
            e("s_mov_b64 exec, -1")
        def ticket(faillabel, np_check=False):
            e(f"v_readfirstlane_b32 s{S_NEXT}, v{V_TK}")
            e(f"s_add_u32 s{S_NEXT}, s{S_NEXT}, {NSTAT}")
            e(f"s_cmp_ge_u32 s{S_NEXT}, 1024")
            e(f"s_cbranch_scc1 {faillabel}")
            LB = g.new("tkb")
            if np_check and NPA:
                LN = g.new("tkn")
                e(f"s_sub_u32 s{S_T0}, s{S_NEXT}, s{S_PREV}")
                e(f"s_mov_b32 s{S_PREV}, s{S_NEXT}")
                e(f"s_mul_i32 s{S_T0}, s{S_T0}, {NPA}")
                e(f"s_add_u32 s{S_T0}, s{S_T0}, s{S_NEXT}")
                e(f"s_cmp_le_u32 s{S_T0}, {1024 + NPC}"); e(f"s_cbranch_scc1 {LN}")
                e(f"s_mov_b32 s{S_NP}, 1")
                e(f"s_branch {LB}")
                g.lab(LN)
            elif NPA:
                e(f"s_mov_b32 s{S_PREV}, s{S_NEXT}")
            if NS > 5:
                LA = g.new("tka")
                e(f"s_add_u32 s95, s95, 64")
                e(f"s_cmp_ge_u32 s95, {NSTAT}"); e(f"s_cbranch_scc1 {LA}")
                e(f"s_sub_u32 s{S_T0}, s95, {NSTAT}")
                e(f"v_mov_b32 v{V_TK}, s{S_T0}")
                e(f"s_branch {LB}")
                g.lab(LA)
            do_atomic()
            g.lab(LB)
            e(f"s_lshl_b32 s{S_OFF}, s{S_NEXT}, 13")
            e(f"s_add_u32 s{S_OFF}, s{S_OFF}, s{S_ROT}")
            tile_addr()
        def consume(faillabel):
            e(f"v_readfirstlane_b32 s{S_NEXT}, v{V_TK}")
            e(f"s_add_u32 s{S_NEXT}, s{S_NEXT}, {NSTAT}")
            e(f"s_cmp_ge_u32 s{S_NEXT}, 1024")
            e(f"s_cbranch_scc1 {faillabel}")
            e(f"s_lshl_b32 s{S_OFF}, s{S_NEXT}, 13")
            e(f"s_add_u32 s{S_OFF}, s{S_OFF}, s{S_ROT}")
            tile_addr()
        def request():
            LB = g.new("rqb")
            if NS > 5:
                LA = g.new("rqa")
                e(f"s_add_u32 s95, s95, 64")
                e(f"s_cmp_ge_u32 s95, {NSTAT}"); e(f"s_cbranch_scc1 {LA}")
                e(f"s_sub_u32 s{S_T0}, s95, {NSTAT}")
                e(f"v_mov_b32 v{V_TK}, s{S_T0}")
                e(f"s_branch {LB}")
                g.lab(LA)
            do_atomic()
            g.lab(LB)
        if o.get("np2"):
            S_MODE = 93
            compute(0)
            e("s_waitcnt vmcnt(24)")
            readK(0, 0)
            consume("L_ldone")
            issue(0, 0)
            e("s_waitcnt vmcnt(24)")
            readV(0, 0)
            issue(1, 0)
            e("s_add_u32 s95, s95, 64")
            compute(1)
            e("s_waitcnt vmcnt(24)")
            readK(1, 1)
            e("s_waitcnt vmcnt(16)")
            readV(1, 1)
            compute(0)
            compute(1)
            g.lab("L_loop")
            e("s_waitcnt vmcnt(8)")
            readK(0, 0)
            e(f"s_cmp_ge_u32 s95, {NSTAT}"); e("s_cbranch_scc1 L_dynA")
            e(f"s_lshl_b32 s{S_OFF}, s95, 13"); e(f"s_add_u32 s{S_OFF}, s{S_OFF}, s{S_ROT}")
            e("s_add_u32 s95, s95, 64")
            tile_addr(); issue(0, 0)
            e("s_waitcnt vmcnt(8)")
            readV(0, 0)
            issue(1, 0)
            e(f"s_mov_b32 s{S_MODE}, 0")
            e(f"s_add_u32 s{S_CNT}, s{S_CNT}, 1")
            e("s_branch L_comp")
            g.lab("L_dynA")
            do_atomic()
            e("s_waitcnt vmcnt(1)")
            readV(0, 0)
            e(f"s_mov_b32 s{S_MODE}, 1")
            g.lab("L_comp")
            compute(0)
            e(f"s_cmp_eq_u32 s{S_MODE}, 0"); e("s_cbranch_scc1 L_loop")
            e("s_waitcnt vmcnt(0)")
            consume("L_ldone")
            issue(0, 0); issue(1, 0)
            e(f"s_add_u32 s{S_CNT}, s{S_CNT}, 1")
            e("s_branch L_loop")
        elif o.get("single", True) and o.get("late", True):
            compute(0)
            stamp(g, 4, STX)
            e("s_waitcnt vmcnt(24)")
            readK(0, 0)
            consume("L_ldone")
            issue(0, 0)
            e("s_waitcnt vmcnt(24)")
            readV(0, 0)
            issue(1, 0)
            stamp(g, 5, STX)
            compute(1)
            stamp(g, 6, STX)
            request()
            e("s_waitcnt vmcnt(24)")
            readK(1, 1)
            e("s_waitcnt vmcnt(16)")
            readV(1, 1)
            stamp(g, 7, STX)
            compute(0)
            compute(1)
            stamp(g, 8, STX)
            g.lab("L_loop")
            e("s_waitcnt vmcnt(8)")
            stamp(g, 6, STE)
            readK(0, 0)
            e("s_waitcnt vmcnt(0)")
            stamp(g, 7, STE)
            consume("L_last")
            stamp(g, 4, STE)
            issue(0, 0)
            readV(0, 0)
            issue(1, 0)
            e(f"s_add_u32 s{S_CNT}, s{S_CNT}, 1")
            if o["stamps"] == "R":
                for idx, c in ((4, 1), (5, 3), (6, 5), (7, 7), (8, 9)):
                    LS = g.new("rs")
                    e(f"s_cmp_lg_u32 s{S_CNT}, {c}"); e(f"s_cbranch_scc1 {LS}")
                    stamp(g, idx, True)
                    g.lab(LS)
            g.lab("L_comp")
            compute(0)
            e(f"s_cmp_eq_u32 s{S_DR}, 1"); e("s_cbranch_scc1 L_ldone")
            stamp(g, 5, STE)
            request()
            e("s_branch L_loop")
            g.lab("L_last")
            e(f"s_mov_b32 s{S_DR}, 1")
            readV(0, 0)
            e("s_branch L_comp")
        elif o.get("single", True):
            e(f"s_mov_b32 s{S_NP}, 0")
            compute(0)
            e("s_waitcnt vmcnt(24)")
            readK(0, 0)
            ticket("L_ldone")
            issue(0, 0)
            e("s_waitcnt vmcnt(24)")
            readV(0, 0)
            issue(1, 0)
            compute(1)
            e("s_waitcnt vmcnt(24)")
            readK(1, 1)
            e("s_waitcnt vmcnt(16)")
            readV(1, 1)
            compute(0)
            compute(1)
            g.lab("L_loop")
            e("s_waitcnt vmcnt(8)")
            readK(0, 0)
            ticket("L_last", True)
            issue(0, 0)
            e("s_waitcnt vmcnt(8)")
            readV(0, 0)
            issue(1, 0)
            e(f"s_add_u32 s{S_CNT}, s{S_CNT}, 1")
            g.lab("L_comp")
            compute(0)
            e(f"s_cmp_eq_u32 s{S_DR}, 0"); e("s_cbranch_scc1 L_loop")
            e("s_branch L_ldone")
            g.lab("L_last")
            e(f"s_mov_b32 s{S_DR}, 1")
            e("s_waitcnt vmcnt(0)")
            readV(0, 0)
            e("s_branch L_comp")
        else:
            e(f"s_mov_b32 s{S_E0}, 0"); e(f"s_mov_b32 s{S_E0+1}, 0"); e(f"s_mov_b32 s{S_EM}, 0")
            g.lab("L_loop")
            for sg in range(2):
                compute(sg)
                e(f"s_cmp_eq_u32 s{S_E0+sg}, 1"); e(f"s_cbranch_scc1 L_empty{sg}")
                e(f"s_cmp_eq_u32 s{S_DR}, 1"); e(f"s_cbranch_scc1 L_dw{sg}")
                e("s_waitcnt vmcnt(24)")
                readK(sg, sg)
                e(f"s_waitcnt vmcnt({cap})")
                ticket(f"L_noref{sg}")
                issue(0, sg)
                e("s_waitcnt vmcnt(24)")
                readV(sg, sg)
                e(f"s_waitcnt vmcnt({cap})")
                issue(1, sg)
                e(f"s_add_u32 s{S_CNT}, s{S_CNT}, 1")
                e(f"s_branch L_next{sg}")
                g.lab(f"L_dw{sg}")
                e("s_waitcnt vmcnt(0)")
                readK(sg, sg)
                g.lab(f"L_noref{sg}")
                e(f"s_mov_b32 s{S_DR}, 1"); e(f"s_mov_b32 s{S_E0+sg}, 1")
                e("s_waitcnt vmcnt(16)")
                readV(sg, sg)
                e(f"s_branch L_next{sg}")
                g.lab(f"L_empty{sg}")
                e(f"s_add_u32 s{S_EM}, s{S_EM}, 1")
                e(f"s_cmp_eq_u32 s{S_EM}, 2"); e("s_cbranch_scc1 L_ldone")
                g.lab(f"L_next{sg}")
            e("s_branch L_loop")
        g.lab("L_ldone")
        if STL: e(f"s_mov_b32 s{S_ST0+8}, s{S_CNT}")
    stamp(g, 3, ST and not STP)
    if DS2: e("s_memrealtime s[88:89]")
    rows_reduce(g, V_L, V_T, "v_add_f32")
    e("v_and_b32 v1, 15, v0")
    e("v_lshrrev_b32 v2, 4, v0")
    e("v_lshlrev_b32 v3, 9, v1")
    e("v_lshl_add_u32 v3, v2, 4, v3")
    e(f"v_add_u32 v3, s{S_RB}, v3")
    e(f"s_lshl_b32 s{S_T0}, s{S_WAVE}, 5")
    e(f"s_add_u32 s{S_T0}, s{S_T0}, {L_ML}")
    e(f"v_lshlrev_b32 v4, 3, v1")
    e(f"v_add_u32 v4, s{S_T0}, v4")
    g.nop(8)
    e(f"s_mov_b64 exec, s[{S_EX}:{S_EX+1}]")
    for dt in range(8):
        e(f"ds_write_b128 v3, {vr(V_O+4*dt,4)} offset:{dt*64}")
    e(f"ds_write_b64 v4, {vr(V_M,2)}")
    e("s_mov_b64 exec, -1")
    e(f"s_mov_b64 s[{S_T2}:{S_T2+1}], s[{S_X}:{S_X+1}]")
    for r in (228, 229, 231, 232, 233, 234, 235): e(f"v_mov_b32 v{r}, 0")
    e("s_waitcnt lgkmcnt(0)")
    e("s_branch L_tail")

    g.lab("L_helper")
    H_W = 64
    H_F = 128
    H_WO = 192
    H_G = 224
    S_STG = S_T5
    if o.get("skipA"):
        e("s_waitcnt lgkmcnt(0)")
        e(f"s_load_dword s{S_E}, s[{S_WS}:{S_WS+1}], {WS_E}")
        build_srd(g, SRD_WS, S_WS, WS_SIZE); build_srd(g, SRD_X, S_X, 2048); build_srd(g, SRD_WO, S_WO, 0x400000); build_srd(g, SRD_OUT, S_OUT, 2048)
        build_srd(g, SRD_W, S_WQ, 0x400000)
        e("s_waitcnt lgkmcnt(0)")
        e(f"s_mul_i32 s{S_TAG}, s{S_E}, 1664525"); e(f"s_add_u32 s{S_TAG}, s{S_TAG}, 1013904223")
        if o["b0"]: e("s_barrier")
        e("s_barrier")
        e("s_branch L_hb2")
    if o["prio"]:
        e("s_setprio 3")
    e(f"s_sub_u32 s{S_T5}, s{S_WAVE}, 4")
    e(f"s_lshl_b32 s{S_T5}, s{S_T5}, 12")
    e(f"s_add_u32 s{S_T5}, s{S_T5}, {L_STG}")
    e(f"s_cmp_ge_u32 s{S_WAVE}, 6"); e("s_cbranch_scc1 L_w67")
    e(f"s_and_b32 s{S_T2}, s2, 3")
    e(f"s_lshr_b32 s{S_T1}, s2, 2")
    e("v_lshrrev_b32 v2, 3, v0")
    e("v_and_b32 v3, 7, v0")
    e("v_lshlrev_b32 v1, 4, v0")
    e(f"s_cmp_eq_u32 s{S_WAVE}, 5"); e("s_cbranch_scc1 L_w5setup")
    e(f"s_mov_b32 s{S_T0}, 8192")
    e(f"s_mov_b32 s{S_T3}, {L_XN4}")
    e(f"s_mov_b32 s{S_C0}, {WS_Q}"); e(f"s_mov_b32 s{S_C1}, {4096*8}")
    e("s_waitcnt lgkmcnt(0)")
    build_srd(g, SRD_W, S_WQ, 0x400000)
    if o["dyn"]:
        e(f"s_and_b32 s{S_T4}, s2, 30"); e(f"s_cmp_lg_u32 s{S_T4}, 0"); e("s_cbranch_scc1 L_slice")
        e(f"s_and_b32 s{S_T4}, s2, 1"); e(f"s_lshl_b32 s{S_T4}, s{S_T4}, 3")
        e(f"s_lshr_b32 s{S_SOFF}, s2, 5"); e(f"s_add_u32 s{S_T4}, s{S_T4}, s{S_SOFF}")
        e(f"s_lshl_b32 s{S_T4}, s{S_T4}, 8"); e(f"s_add_u32 s{S_T4}, s{S_T4}, {WS_CNT}")
        e(f"v_mov_b32 v4, s{S_T4}"); e("v_mov_b32 v5, 0")
        e("s_mov_b64 exec, 1")
        e(f"global_store_dword v4, v5, s[{S_WS}:{S_WS+1}] sc1")
        e("s_mov_b64 exec, -1")
    e("s_branch L_slice")
    g.lab("L_w5setup")
    e(f"s_mov_b32 s{S_T0}, 3584")
    e(f"s_mov_b32 s{S_T3}, {L_XN5}")
    e(f"s_mov_b32 s{S_C0}, {WS_H}"); e(f"s_mov_b32 s{S_C1}, {1792*8}")
    e("s_waitcnt lgkmcnt(0)")
    build_srd(g, SRD_W, S_W1, 512*3584)
    e(f"s_cmp_ge_u32 s{S_SPLIT}, 7"); e("s_cbranch_scc1 L_hb0")
    e(f"s_mul_i32 s{S_T1}, s{S_PAIR}, 7"); e(f"s_add_u32 s{S_T1}, s{S_T1}, s{S_SPLIT}")
    e(f"s_and_b32 s{S_T2}, s{S_T1}, 3"); e(f"s_lshr_b32 s{S_T1}, s{S_T1}, 2")
    g.lab("L_slice")
    stamp(g, 4, STA)
    build_srd(g, SRD_X, S_X, 2048)
    e(f"buffer_load_dwordx4 v[8:11], v1, s[{SRD_X}:{SRD_X+3}], 0 offen")
    e(f"buffer_load_dwordx4 v[12:15], v1, s[{SRD_X}:{SRD_X+3}], 0 offen offset:1024")
    e(f"v_mul_lo_u32 v2, v2, s{S_T0}")
    e("v_lshl_add_u32 v2, v3, 4, v2")
    e(f"s_lshl_b32 s{S_SOFF}, s{S_T2}, 7"); e(f"s_mul_i32 s{S_SOFF}, s{S_SOFF}, s{S_T0}")
    e(f"s_lshl_b32 s{S_T4}, s{S_T1}, 7"); e(f"s_add_u32 s{S_SOFF}, s{S_SOFF}, s{S_T4}")
    e(f"s_lshl_b32 s{S_RS32}, s{S_T0}, 3")
    for i in range(16):
        e(f"buffer_load_dwordx4 {vr(H_W+4*i,4)}, v2, s[{SRD_W}:{SRD_W+3}], s{S_SOFF} offen" + (" nt" if o.get("wnt") else ""))
        if i < 15:
            e(f"s_add_u32 s{S_SOFF}, s{S_SOFF}, s{S_RS32}")
    stamp(g, 5, STA)
    if o["b0"]:
        e("s_barrier")
    e(f"s_load_dword s{S_E}, s[{S_WS}:{S_WS+1}], {WS_E}")
    build_srd(g, SRD_WS, S_WS, WS_SIZE)
    build_srd(g, SRD_WO, S_WO, 0x400000)
    build_srd(g, SRD_OUT, S_OUT, 2048)
    e("s_waitcnt vmcnt(16)")
    stamp(g, 6, STA)
    X0, X1 = 16, 24
    for b, (src, dst) in enumerate(((8, X0), (12, X1))):
        for i in range(4):
            e(f"v_lshlrev_b32 v{dst+2*i}, 16, v{src+i}")
            e(f"v_and_b32 v{dst+2*i+1}, 0xffff0000, v{src+i}")
    SU = 32
    for b, dst in enumerate((X0, X1)):
        e(f"v_add_f32 v{SU+b}, v{dst}, v{dst+1}")
        for i in range(2, 8):
            e(f"v_add_f32 v{SU+b}, v{SU+b}, v{dst+i}")
    def wave_sum2(a):
        row_ror_reduce(g, [a, a+1], "v_add_f32", [1, 2, 4, 8])
        rows_reduce_multi(g, [a, a+1], [a+2, a+3], "v_add_f32")
    wave_sum2(SU)
    e(f"s_mov_b32 s{S_T4}, 0x3b000000")
    e(f"v_mul_f32 v{SU}, s{S_T4}, v{SU}")
    e(f"v_mul_f32 v{SU+1}, s{S_T4}, v{SU+1}")
    VA = 36
    for b, dst in enumerate((X0, X1)):
        e(f"v_sub_f32 v40, v{dst}, v{SU+b}")
        e(f"v_mul_f32 v{VA+b}, v40, v40")
        for i in range(1, 8):
            e(f"v_sub_f32 v40, v{dst+i}, v{SU+b}")
            e(f"v_fmac_f32 v{VA+b}, v40, v40")
    wave_sum2(VA)
    e(f"v_mul_f32 v{VA}, s{S_T4}, v{VA}")
    e(f"v_mul_f32 v{VA+1}, s{S_T4}, v{VA+1}")
    e(f"v_cvt_pk_bf16_f32 v40, v{SU}, v{SU+1}")
    e(f"v_cvt_pk_bf16_f32 v41, v{VA}, v{VA+1}")
    e(f"v_lshlrev_b32 v{SU}, 16, v40"); e(f"v_and_b32 v{SU+1}, 0xffff0000, v40")
    e(f"v_lshlrev_b32 v{VA}, 16, v41"); e(f"v_and_b32 v{VA+1}, 0xffff0000, v41")
    e(f"v_add_f32 v{VA}, 0x3727c5ac, v{VA}"); e(f"v_add_f32 v{VA+1}, 0x3727c5ac, v{VA+1}")
    e(f"v_cvt_pk_bf16_f32 v41, v{VA}, v{VA+1}")
    e(f"v_lshlrev_b32 v{VA}, 16, v41"); e(f"v_and_b32 v{VA+1}, 0xffff0000, v41")
    e(f"v_sqrt_f32 v{VA}, v{VA}"); e(f"v_sqrt_f32 v{VA+1}, v{VA+1}")
    g.nop(1)
    e(f"v_cvt_pk_bf16_f32 v41, v{VA}, v{VA+1}")
    e(f"v_lshlrev_b32 v{VA}, 16, v41"); e(f"v_and_b32 v{VA+1}, 0xffff0000, v41")
    e(f"v_rcp_f32 v38, v{VA}"); e(f"v_rcp_f32 v39, v{VA+1}")
    for b, dst in enumerate((X0, X1)):
        for i in range(8):
            e(f"v_sub_f32 v{dst+i}, v{dst+i}, v{SU+b}")
        for i in range(4):
            e(f"v_cvt_pk_bf16_f32 v40, v{dst+2*i}, v{dst+2*i+1}")
            e(f"v_lshlrev_b32 v{dst+2*i}, 16, v40"); e(f"v_and_b32 v{dst+2*i+1}, 0xffff0000, v40")
        for i in range(8):
            e(f"v_mul_f32 v41, v{dst+i}, v{38+b}")
            e(f"v_fma_f32 v42, -v41, v{VA+b}, v{dst+i}")
            e(f"v_fma_f32 v{dst+i}, v42, v{38+b}, v41")
        for i in range(4):
            e(f"v_cvt_pk_bf16_f32 v{44+4*b+i}, v{dst+2*i}, v{dst+2*i+1}")
    e("v_lshlrev_b32 v1, 4, v0")
    e(f"v_add_u32 v1, s{S_T3}, v1")
    e("ds_write_b128 v1, v[44:47]")
    e("ds_write_b128 v1, v[48:51] offset:1024")
    e("v_lshlrev_b32 v1, 4, v0")
    e(f"v_add_u32 v1, s{S_STG}, v1")
    e("v_lshrrev_b32 v2, 4, v0")
    e("v_bfe_u32 v3, v0, 2, 2")
    e("v_lshl_add_u32 v3, v2, 3, v3")
    e("v_and_b32 v4, 3, v0")
    e("v_lshlrev_b32 v5, 7, v3")
    e("v_lshl_add_u32 v5, v4, 3, v5")
    e(f"v_add_u32 v5, s{S_STG}, v5")
    e("v_and_b32 v6, 1, v0")
    e("v_lshlrev_b32 v6, 10, v6")
    e("v_lshl_add_u32 v6, v2, 4, v6")
    e(f"s_lshl_b32 s{S_T4}, s{S_T2}, 8"); e(f"s_add_u32 s{S_T4}, s{S_T4}, s{S_T3}")
    e(f"v_add_u32 v6, s{S_T4}, v6")
    ACC = 48
    stamp(g, 7, STA)
    if STA:
        e("s_waitcnt vmcnt(0)")
        stamp(g, 8, STA)
    for pc in range(4):
        e(f"ds_read_b128 {vr(16+4*pc,4)}, v6 offset:{64*pc}")
    for pc in range(4):
        e(f"s_waitcnt vmcnt({12-4*pc})")
        for i in range(4):
            e(f"ds_write_b128 v1, {vr(H_W+16*pc+4*i,4)} offset:{i*1024}")
        for c in range(4):
            e(f"ds_read_b64_tr_b16 {vr(32+4*c,2)}, v5 offset:{c*32}")
            e(f"ds_read_b64_tr_b16 {vr(32+4*c+2,2)}, v5 offset:{c*32+512}")
        e("s_waitcnt lgkmcnt(0)")
        for c in range(4):
            cc = "0" if pc == 0 else vr(ACC+4*c, 4)
            e(f"v_mfma_f32_16x16x32_bf16 {vr(ACC+4*c,4)}, {vr(16+4*pc,4)}, {vr(32+4*c,4)}, {cc}")
    e(f"s_mul_i32 s{S_TAG}, s{S_E}, 1664525")
    e(f"s_add_u32 s{S_TAG}, s{S_TAG}, 1013904223")
    e(f"s_lshl_b32 s{S_T0}, s{S_T2}, 1"); e(f"s_mul_i32 s{S_T0}, s{S_T0}, s{S_C1}")
    e(f"s_add_u32 s{S_T0}, s{S_T0}, s{S_C0}")
    e(f"s_lshl_b32 s{S_T4}, s{S_T1}, 9"); e(f"s_add_u32 s{S_T0}, s{S_T0}, s{S_T4}")
    e(f"s_add_u32 s{S_T4}, s{S_T0}, s{S_C1}")
    e("v_lshlrev_b32 v1, 3, v0")
    e(f"v_mov_b32 v9, s{S_TAG}"); e(f"v_mov_b32 v11, s{S_TAG}")
    g.nop(4)
    for c in range(4):
        if c < 2:
            e(f"s_mov_b32 exec_lo, {0xffff << (16*c):#x}"); e("s_mov_b32 exec_hi, 0")
        else:
            e("s_mov_b32 exec_lo, 0"); e(f"s_mov_b32 exec_hi, {0xffff << (16*(c-2)):#x}")
        e(f"v_mov_b32 v8, v{ACC+4*c}"); e(f"v_mov_b32 v10, v{ACC+4*c+1}")
    e("s_mov_b64 exec, -1")
    pub2(g, 8, 1, f"s{S_T0}")
    pub2(g, 10, 1, f"s{S_T4}")
    stamp(g, 1, ST)
    e("s_branch L_qg")
    g.lab("L_w67")
    if o["b0"]:
        e("s_barrier")
    e("s_waitcnt lgkmcnt(0)")
    e(f"s_load_dword s{S_E}, s[{S_WS}:{S_WS+1}], {WS_E}")
    build_srd(g, SRD_WS, S_WS, WS_SIZE)
    build_srd(g, SRD_X, S_X, 2048)
    build_srd(g, SRD_WO, S_WO, 0x400000)
    build_srd(g, SRD_OUT, S_OUT, 2048)
    e(f"s_cmp_eq_u32 s{S_WAVE}, 7"); e("s_cbranch_scc1 L_w7")
    e("s_branch L_qg")
    g.lab("L_w6")
    if o.get("prio_after") is not None:
        e(f"s_setprio {o['prio_after']}")
    build_srd(g, SRD_W, S_W2, 1792*1024)
    e(f"s_sub_u32 s{S_T0}, s{S_SPLIT}, 7")
    e(f"s_cmp_ge_u32 s{S_T0}, 7")
    e("s_cbranch_scc1 L_wo")
    e(f"s_mul_i32 s{S_T1}, s{S_PAIR}, 7"); e(f"s_add_u32 s{S_T0}, s{S_T0}, s{S_T1}")
    e(f"s_lshr_b32 s{S_T1}, s{S_T0}, 2")
    e(f"s_and_b32 s{S_T2}, s{S_T0}, 3")
    e("v_lshrrev_b32 v2, 3, v0"); e("v_lshlrev_b32 v2, 10, v2")
    e("v_and_b32 v3, 7, v0"); e("v_lshl_add_u32 v2, v3, 4, v2")
    e(f"s_lshl_b32 s{S_SOFF}, s{S_T1}, 16")
    e(f"s_lshl_b32 s{S_T3}, s{S_T2}, 8")
    e(f"s_add_u32 s{S_SOFF}, s{S_SOFF}, s{S_T3}")
    for ks in range(2):
        for ch in range(2):
            for u in range(4):
                idx = (ks * 2 + ch) * 4 + u
                e(f"s_add_u32 s{S_T3}, s{S_SOFF}, {(32*ks+8*u)*1024}")
                e(f"buffer_load_dwordx4 {vr(H_W+4*idx,4)}, v2, s[{SRD_W}:{SRD_W+3}], s{S_T3} offen offset:{ch*128}" + (" nt" if o.get("wnt") else ""))
    stamp(g, 4, STF)
    e("v_lshlrev_b32 v1, 4, v0")
    e(f"v_add_u32 v1, s{S_STG}, v1")
    e("v_lshrrev_b32 v2, 4, v0"); e("v_bfe_u32 v3, v0, 2, 2"); e("v_lshl_add_u32 v3, v2, 3, v3"); e("v_and_b32 v4, 3, v0")
    e("v_lshlrev_b32 v5, 7, v3"); e("v_lshl_add_u32 v5, v4, 3, v5"); e(f"v_add_u32 v5, s{S_STG}, v5")
    e("s_waitcnt vmcnt(0)")
    stamp(g, 5, STF)
    for ks in range(2):
        for ch in range(2):
            pc = ks * 2 + ch
            for u in range(4):
                e(f"ds_write_b128 v1, {vr(H_W+16*pc+4*u,4)} offset:{u*1024}")
            for c in range(4):
                f = H_F + 4 * (ks * 8 + ch * 4 + c)
                e(f"ds_read_b64_tr_b16 {vr(f,2)}, v5 offset:{c*32}")
                e(f"ds_read_b64_tr_b16 {vr(f+2,2)}, v5 offset:{c*32+512}")
            e("s_waitcnt lgkmcnt(0)")
    e("v_lshrrev_b32 v6, 5, v0")
    e(f"v_mul_u32_u24 v6, {1792*8}, v6")
    e("v_and_b32 v7, 31, v0")
    e("v_lshl_add_u32 v6, v7, 4, v6")
    e(f"s_lshl_b32 s{S_T0}, s{S_T1}, 9"); e(f"s_add_u32 s{S_T0}, s{S_T0}, {WS_H}")
    def hl():
        for r4 in range(4):
            e(f"s_add_u32 s{S_T3}, s{S_T0}, {r4*2*1792*8}")
            e(f"buffer_load_dwordx4 {vr(16+4*r4,4)}, v6, s[{SRD_WS}:{SRD_WS+3}], s{S_T3} offen sc1")
    stamp(g, 6, STF)
    poll(g, "h", hl, [17+2*i for i in range(8)], 8, sleep=8)
    stamp(g, 7, STF)
    e("v_add_f32 v16, v16, v20"); e("v_add_f32 v18, v18, v22"); e("v_add_f32 v24, v24, v28"); e("v_add_f32 v26, v26, v30")
    e("v_add_f32 v16, v16, v24"); e("v_add_f32 v18, v18, v26")
    e("v_cvt_pk_bf16_f32 v8, v16, v18")
    e("v_lshlrev_b32 v10, 16, v8"); e("v_and_b32 v11, 0xffff0000, v8")
    e(f"s_mov_b32 s{S_T0}, {L2E:#x}")
    for r in (10, 11):
        e(f"v_mul_f32 v12, s{S_T0}, v{r}")
        e(f"v_exp_f32 v12, -v12"); g.nop(1)
        e(f"v_add_f32 v12, 1.0, v12")
        e(f"v_rcp_f32 v12, v12"); g.nop(1)
        e(f"v_mul_f32 v{r}, v{r}, v12")
    e("v_cvt_pk_bf16_f32 v12, v10, v11")
    e("v_lshlrev_b32 v7, 2, v0")
    e(f"v_add_u32 v7, {L_H}, v7")
    e("ds_write_b32 v7, v12")
    e("v_and_b32 v6, 1, v0"); e("v_lshlrev_b32 v6, 7, v6"); e("v_lshl_add_u32 v6, v2, 4, v6"); e(f"v_add_u32 v6, {L_H}, v6")
    e("ds_read_b128 v[16:19], v6")
    e("ds_read_b128 v[20:23], v6 offset:64")
    e("s_waitcnt lgkmcnt(0)")
    for c in range(8):
        e(f"v_mfma_f32_16x16x32_bf16 {vr(H_W+4*c,4)}, v[16:19], {vr(H_F+4*c,4)}, 0")
    for c in range(8):
        e(f"v_mfma_f32_16x16x32_bf16 {vr(H_W+4*c,4)}, v[20:23], {vr(H_F+32+4*c,4)}, {vr(H_W+4*c,4)}")
    g.nop(10)
    e("v_and_b32 v1, 15, v0"); e("v_lshlrev_b32 v1, 3, v1")
    e(f"s_lshl_b32 s{S_T0}, s{S_T1}, 13")
    e(f"s_lshl_b32 s{S_T3}, s{S_T2}, 10")
    e(f"s_add_u32 s{S_T0}, s{S_T0}, s{S_T3}"); e(f"s_add_u32 s{S_T0}, s{S_T0}, {WS_F}")
    e(f"s_add_u32 s{S_T3}, s{S_T0}, 4096")
    e(f"v_mov_b32 v9, s{S_TAG}"); e(f"v_mov_b32 v11, s{S_TAG}")
    e("s_mov_b64 exec, 0xffff")
    for c in range(8):
        e(f"v_mov_b32 v8, v{H_W+4*c}"); e(f"v_mov_b32 v10, v{H_W+4*c+1}")
        e(f"buffer_store_dwordx2 v[8:9], v1, s[{SRD_WS}:{SRD_WS+3}], s{S_T0} offen offset:{c*128} sc1")
        e(f"buffer_store_dwordx2 v[10:11], v1, s[{SRD_WS}:{SRD_WS+3}], s{S_T3} offen offset:{c*128} sc1")
        g.nop(2)
    e("s_mov_b64 exec, -1")
    stamp(g, 8, STF)
    e("s_branch L_wo")

    g.lab("L_w7")
    if o.get("tlbwarm"):
        build_srd(g, SRD_K, S_K, 0x8000000)
        build_srd(g, SRD_V, S_V, 0x8000000)
        e(f"s_lshl_b32 s{S_T0}, s{S_PAIR}, 23")
        e(f"v_lshlrev_b32 v1, {o.get('tlbshift', 21)}, v0")
        e(f"s_mov_b32 exec_lo, {(1 << (8 << 20 >> o.get('tlbshift', 21))) - 1:#x}"); e("s_mov_b32 exec_hi, 0")
        e(f"buffer_load_dword v230, v1, s[{SRD_K}:{SRD_K+3}], s{S_T0} offen nt")
        e(f"buffer_load_dword v230, v1, s[{SRD_V}:{SRD_V+3}], s{S_T0} offen nt")
        e("s_mov_b64 exec, -1")
    if o["prefetch_code"]:
        pfm = o.get("pfmask", 7)
        e(f"s_lshr_b32 s{S_T0}, s2, 3"); e(f"s_and_b32 s{S_T0}, s{S_T0}, {pfm}"); e(f"s_cmp_lg_u32 s{S_T0}, 0"); e("s_cbranch_scc1 L_qg")
        e(f"s_getpc_b64 s[{S_T0}:{S_T0+1}]")
        g.lab("L_pcbase")
        e(f"s_sub_u32 s{S_T0}, s{S_T0}, L_pcbase-{KN}_kernel")
        e(f"s_subb_u32 s{S_T0+1}, s{S_T0+1}, 0")
        e(f"v_lshlrev_b32 v1, {o.get('pfshift', 7)}, v0")
        e("CODE_PREFETCH_PLACEHOLDER")
    e("s_branch L_qg")
    g.lab("L_hb0")
    if o["b0"]:
        e("s_barrier")
    e(f"s_load_dword s{S_E}, s[{S_WS}:{S_WS+1}], {WS_E}")
    build_srd(g, SRD_WS, S_WS, WS_SIZE)
    build_srd(g, SRD_X, S_X, 2048)
    build_srd(g, SRD_WO, S_WO, 0x400000)
    build_srd(g, SRD_OUT, S_OUT, 2048)
    g.lab("L_qg")
    e("s_waitcnt lgkmcnt(0)")
    e(f"s_mul_i32 s{S_TAG}, s{S_E}, 1664525")
    e(f"s_add_u32 s{S_TAG}, s{S_TAG}, 1013904223")
    e(f"s_lshl_b32 s{S_T0}, s{S_B}, 12"); e(f"s_lshl_b32 s{S_T2}, s{S_HKV}, 9")
    e(f"s_add_u32 s{S_T0}, s{S_T0}, s{S_T2}")
    e(f"s_sub_u32 s{S_T2}, s{S_WAVE}, 4"); e(f"s_lshl_b32 s{S_T1}, s{S_T2}, 7")
    e(f"s_add_u32 s{S_T0}, s{S_T0}, s{S_T1}"); e(f"s_lshl_b32 s{S_T0}, s{S_T0}, 3")
    e(f"s_add_u32 s{S_T0}, s{S_T0}, {WS_Q}")
    if o.get("qflag", True):
        LW = g.new("qfw"); LG = g.new("qfg")
        e(f"v_mov_b32 v2, {L_FLAG}")
        e(f"s_cmp_lg_u32 s{S_WAVE}, 4"); e(f"s_cbranch_scc1 {LW}")
        e(f"v_mov_b32 v3, s{S_TAG}")
        e("ds_write_b32 v2, v3")
        e(f"s_branch {LG}")
        g.lab(LW)
        e(f"s_mov_b32 s{S_RETRY}, 0x100000")
        LW2 = g.new("qfw2")
        g.lab(LW2)
        e("ds_read_b32 v3, v2")
        e("s_waitcnt lgkmcnt(0)")
        e(f"v_readfirstlane_b32 s{S_T1}, v3")
        e(f"s_cmp_eq_u32 s{S_T1}, s{S_TAG}"); e(f"s_cbranch_scc1 {LG}")
        e(f"s_sub_u32 s{S_RETRY}, s{S_RETRY}, 1"); e(f"s_cbranch_scc1 {LG}")
        e("s_sleep 2")
        e(f"s_branch {LW2}")
        g.lab(LG)
    e("v_lshlrev_b32 v1, 4, v0")
    def ql():
        for rb in range(4):
            e(f"s_add_u32 s{S_T1}, s{S_T0}, {rb*2*4096*8}")
            e(f"buffer_load_dwordx4 {vr(16+4*rb,4)}, v1, s[{SRD_WS}:{SRD_WS+3}], s{S_T1} offen sc1")
    poll(g, "q", ql, [17+2*i for i in range(8)], 8, sleep=o.get("qsleep", 4))
    e("v_add_f32 v16, v16, v20"); e("v_add_f32 v18, v18, v22"); e("v_add_f32 v24, v24, v28"); e("v_add_f32 v26, v26, v30")
    e("v_add_f32 v16, v16, v24"); e("v_add_f32 v18, v18, v26")
    e("v_cvt_pk_bf16_f32 v12, v16, v18")
    e(f"s_lshl_b32 s{S_T2}, s{S_T2}, 8"); e(f"s_add_u32 s{S_T2}, s{S_T2}, {L_Q}")
    e("v_lshlrev_b32 v1, 2, v0"); e(f"v_add_u32 v1, s{S_T2}, v1")
    e("ds_write_b32 v1, v12")
    e("s_waitcnt lgkmcnt(0)")
    stamp(g, 2, ST)
    e("s_barrier")
    if o.get("skiphelp"):
        e("s_branch L_hb2")
    if not o.get("skipffn2"):
        e(f"s_cmp_eq_u32 s{S_WAVE}, 6"); e("s_cbranch_scc1 L_w6")
    g.lab("L_wo")
    if o.get("prio_after") is not None:
        e(f"s_setprio {o['prio_after']}")
    if o.get("skipwo"): e("s_branch L_wodone")
    e(f"s_and_b32 s{S_T0}, s{S_SPLIT}, 3")
    e(f"s_lshl_b32 s{S_T1}, s{S_HKV}, 2"); e(f"s_add_u32 s{S_T1}, s{S_T1}, s{S_T0}")
    e(f"s_lshl_b32 s{S_SOFF}, s{S_T1}, 17")
    e(f"s_bfe_u32 s{S_T2}, s{S_SPLIT}, 0x10002"); e(f"s_lshl_b32 s{S_T2}, s{S_T2}, 16")
    e(f"s_add_u32 s{S_SOFF}, s{S_SOFF}, s{S_T2}")
    e(f"s_lshr_b32 s{S_T2}, s{S_SPLIT}, 3"); e(f"s_lshl_b32 s{S_T2}, s{S_T2}, 9")
    e(f"s_add_u32 s{S_SOFF}, s{S_SOFF}, s{S_T2}")
    e(f"s_sub_u32 s{S_T2}, s{S_WAVE}, 4"); e(f"s_lshl_b32 s{S_T2}, s{S_T2}, 7")
    e(f"s_add_u32 s{S_SOFF}, s{S_SOFF}, s{S_T2}")
    e("v_lshrrev_b32 v2, 3, v0"); e("v_lshlrev_b32 v2, 10, v2"); e("v_and_b32 v3, 7, v0"); e("v_lshl_add_u32 v2, v3, 4, v2")
    for u in range(8):
        e(f"buffer_load_dwordx4 {vr(H_W+4*u,4)}, v2, s[{SRD_WO}:{SRD_WO+3}], s{S_SOFF} offen" + o.get("wofl", " nt"))
        if u < 7:
            e(f"s_add_u32 s{S_SOFF}, s{S_SOFF}, {8*1024}")
    e("v_lshlrev_b32 v1, 4, v0"); e(f"v_add_u32 v1, s{S_STG}, v1")
    e("v_lshrrev_b32 v2, 4, v0"); e("v_bfe_u32 v3, v0, 2, 2"); e("v_lshl_add_u32 v3, v2, 3, v3"); e("v_and_b32 v4, 3, v0")
    e("v_lshlrev_b32 v5, 7, v3"); e("v_lshl_add_u32 v5, v4, 3, v5"); e(f"v_add_u32 v5, s{S_STG}, v5")
    e("s_waitcnt vmcnt(0)")
    for pc in range(2):
        for u in range(4):
            e(f"ds_write_b128 v1, {vr(H_W+16*pc+4*u,4)} offset:{u*1024}")
        for ct in range(4):
            f = H_WO + 4 * (pc * 4 + ct)
            e(f"ds_read_b64_tr_b16 {vr(f,2)}, v5 offset:{ct*32}")
            e(f"ds_read_b64_tr_b16 {vr(f+2,2)}, v5 offset:{ct*32+512}")
        e("s_waitcnt lgkmcnt(0)")
    g.lab("L_wodone")
    if o.get("skipffn2"): e("s_branch L_hb2")
    e(f"s_cmp_lg_u32 s{S_WAVE}, 7"); e("s_cbranch_scc1 L_hb2")
    for ln in ['s_xor_b32 s60, s57, s56', 's_and_b32 s60, s60, 3', 's_cmp_lg_u32 s60, 0', 's_cbranch_scc1 L_hb2']: e(ln)
    for ln in ['s_lshr_b32 s68, s57, 2', 's_and_b32 s60, s68, 1', 's_lshl_b32 s60, s60, 1', 's_lshr_b32 s68, s68, 1', 's_add_u32 s68, s68, s60', 's_lshl_b32 s60, s56, 2', 's_add_u32 s68, s68, s60']: e(ln)
    e("v_lshrrev_b32 v2, 5, v0"); e("v_bfe_u32 v3, v0, 2, 3"); e("v_and_b32 v4, 3, v0")
    e("v_min_u32 v7, 6, v3")
    e(f"v_mul_u32_u24 v5, {4*2*512*8}, v7")
    e("v_lshl_add_u32 v5, v2, 12, v5")
    e("v_lshl_add_u32 v5, v4, 4, v5")
    e(f"s_lshl_b32 s{S_T0}, s68, 6")
    e(f"v_add_u32 v5, s{S_T0}, v5")
    def fl():
        for i in range(4):
            e(f"s_mov_b32 s{S_T1}, {WS_F + i*8192}")
            e(f"buffer_load_dwordx4 {vr(16+4*i,4)}, v5, s[{SRD_WS}:{SRD_WS+3}], s{S_T1} offen sc1")
    e("v_lshlrev_b32 v6, 10, v2"); e("v_lshl_add_u32 v6, v4, 2, v6"); e(f"s_lshl_b32 s{S_T1}, s68, 4"); e(f"v_add_u32 v6, s{S_T1}, v6")
    e(f"buffer_load_dword v{H_G+2}, v6, s[{SRD_X}:{SRD_X+3}], 0 offen")
    poll(g, "f", fl, [17+2*i for i in range(8)], 8, sleep=16)
    e("v_add_f32 v16, v16, v20"); e("v_add_f32 v18, v18, v22"); e("v_add_f32 v24, v24, v28"); e("v_add_f32 v26, v26, v30")
    e("v_add_f32 v16, v16, v24"); e("v_add_f32 v18, v18, v26")
    e("v_cmp_gt_u32 vcc, 7, v3"); g.nop(2)
    e("v_cndmask_b32 v16, 0, v16, vcc"); e("v_cndmask_b32 v18, 0, v18, vcc")
    row_ror_reduce(g, [16, 18], "v_add_f32", [4, 8])
    e("v_mov_b32 v20, v16"); e("v_mov_b32 v21, v18"); g.nop(2)
    e("v_permlane16_swap_b32 v16, v20"); e("v_permlane16_swap_b32 v18, v21"); g.nop(1)
    e("v_add_f32 v16, v16, v20"); e("v_add_f32 v18, v18, v21")
    e("v_cvt_pk_bf16_f32 v8, v16, v18")
    e("v_lshlrev_b32 v10, 16, v8"); e("v_and_b32 v11, 0xffff0000, v8")
    e(f"s_mov_b32 s{S_T0}, {L2E:#x}")
    for r in (10, 11):
        e(f"v_mul_f32 v12, s{S_T0}, v{r}")
        e(f"v_exp_f32 v12, -v12"); g.nop(1)
        e(f"v_add_f32 v12, 1.0, v12")
        e(f"v_rcp_f32 v12, v12"); g.nop(1)
        e(f"v_mul_f32 v{r}, v{r}, v12")
    e("v_cvt_pk_bf16_f32 v8, v10, v11")
    e(f"v_lshlrev_b32 v{H_G}, 16, v8"); e(f"v_and_b32 v{H_G+1}, 0xffff0000, v8")
    g.lab("L_hb2")
    e(f"s_sub_u32 s{S_T0}, s{S_WAVE}, 4")
    e(f"s_lshl_b32 s{S_T1}, s{S_T0}, 9")
    e("v_lshlrev_b32 v232, 2, v0"); e(f"v_add_u32 v232, s{S_T1}, v232")
    e(f"v_add_u32 v233, {2*RING}, v232")
    e(f"s_lshl_b32 s{S_T1}, s{S_T0}, 3"); e(f"s_add_u32 s{S_T1}, s{S_T1}, {L_ML}")
    e(f"v_mov_b32 v234, s{S_T1}")
    e("v_lshlrev_b32 v235, 4, v0")
    e("v_and_b32 v228, 1, v0")
    e(f"s_lshl_b32 s67, s{S_PAIR}, 4"); e(f"s_add_u32 s67, s67, s{S_SPLIT}")
    e(f"s_lshl_b32 s67, s67, 2"); e(f"s_add_u32 s67, s67, s{S_T0}")
    e(f"s_lshl_b32 s67, s67, 11"); e(f"s_add_u32 s67, s67, {WS_P}")
    e("v_lshrrev_b32 v236, 4, v0"); e("v_lshlrev_b32 v236, 4, v236"); e(f"v_add_u32 v236, {L_OB}, v236")
    e("v_lshlrev_b32 v237, 3, v0")
    e(f"s_and_b32 s{S_T2}, s{S_SPLIT}, 3")
    e(f"s_lshl_b32 s69, s{S_HKV}, 2"); e(f"s_add_u32 s69, s69, s{S_T2}")
    e(f"s_lshl_b32 s69, s69, 1"); e(f"s_bfe_u32 s{S_T2}, s{S_SPLIT}, 0x10002"); e(f"s_add_u32 s69, s69, s{S_T2}")
    e(f"s_lshl_b32 s{S_T2}, s{S_B}, 6"); e(f"s_add_u32 s69, s69, s{S_T2}")
    e(f"s_lshl_b32 s69, s69, 12")
    e(f"s_lshr_b32 s{S_T2}, s{S_SPLIT}, 3"); e(f"s_lshl_b32 s{S_T2}, s{S_T2}, 11"); e(f"s_add_u32 s69, s69, s{S_T2}")
    e(f"s_lshl_b32 s{S_T2}, s{S_T0}, 9"); e(f"s_add_u32 s69, s69, s{S_T2}")
    e(f"s_add_u32 s69, s69, {WS_S}")
    for ln in ['s_lshr_b32 s68, s57, 2', 's_and_b32 s61, s68, 1', 's_lshl_b32 s61, s61, 1', 's_lshr_b32 s68, s68, 1', 's_add_u32 s68, s68, s61', 's_lshl_b32 s61, s56, 2', 's_add_u32 s68, s68, s61']: e(ln)
    e("v_lshrrev_b32 v2, 5, v0"); e("v_bfe_u32 v3, v0, 2, 3"); e("v_and_b32 v4, 3, v0")
    e("v_lshlrev_b32 v238, 18, v2"); e("v_lshl_add_u32 v238, v3, 15, v238"); e("v_lshl_add_u32 v238, v4, 4, v238")
    e(f"s_lshl_b32 s{S_T0}, s68, 6"); e(f"v_add_u32 v238, s{S_T0}, v238")
    e("v_lshlrev_b32 v239, 10, v2"); e("v_lshl_add_u32 v239, v4, 2, v239"); e(f"s_lshl_b32 s{S_T1}, s68, 4"); e(f"v_add_u32 v239, s{S_T1}, v239")
    e("s_mov_b32 s70, 0xffff0000"); e("s_mov_b32 s71, 0")
    e("s_mov_b32 s72, 0"); e("s_mov_b32 s73, 0x0000ffff")
    e("s_mov_b32 s74, 0"); e("s_mov_b32 s75, 0xffff0000")
    e(f"v_mov_b32 v41, s{S_TAG}"); e(f"v_mov_b32 v43, s{S_TAG}"); e(f"v_mov_b32 v45, s{S_TAG}"); e(f"v_mov_b32 v47, s{S_TAG}")
    e(f"s_mov_b32 s{S_C0}, {L2E:#x}")
    if o.get("pretouch"):
        fl = "" if o["pretouch"] == 1 else " sc1"
        e(f"buffer_load_dword v227, v235, s[{SRD_WS}:{SRD_WS+3}], s67 offen{fl}")
        e(f"buffer_load_dword v227, v235, s[{SRD_WS}:{SRD_WS+3}], s67 offen offset:1152{fl}")
        e(f"buffer_load_dword v227, v237, s[{SRD_WS}:{SRD_WS+3}], s69 offen{fl}")
    if o.get("tailpf", True):
        e(f"s_getpc_b64 s[{S_T2}:{S_T2+1}]")
        g.lab("L_pc2")
        e(f"s_add_u32 s{S_T2}, s{S_T2}, L_tail-L_pc2"); e(f"s_addc_u32 s{S_T2+1}, s{S_T2+1}, 0")
        e("v_lshlrev_b32 v229, 7, v0")
        e(f"v_min_u32 v229, L_code_end-L_tail-4, v229")
    stamp(g, 3, ST)

    g.lab("L_tail")
    if DS:
        LX = g.new("ds")
        e(f"s_cmp_lg_u32 s{S_WAVE}, 0"); e(f"s_cbranch_scc1 {LX}")
        dstamp(g, 2, True)
        e("v_mov_b32 v236, 12"); e("v_mov_b32 v237, s88")
        e("s_mov_b64 exec, 1")
        e(f"global_atomic_umax v236, v237, s[{S_DBG}:{S_DBG+1}]")
        e("s_mov_b64 exec, -1")
        e("s_not_b32 s90, s90")
        e("v_mov_b32 v236, 0"); e("v_mov_b32 v237, s90")
        e("s_mov_b64 exec, 1")
        e(f"global_atomic_umax v236, v237, s[{S_DBG}:{S_DBG+1}]")
        e("s_mov_b64 exec, -1")
        g.lab(LX)
    e("s_barrier")
    stamp(g, 4, STT)
    e(f"s_cmp_lt_u32 s{S_WAVE}, 4"); e("s_cbranch_scc1 L_t2")
    e("ds_read_b32 v8, v232"); e("ds_read_b32 v9, v232 offset:256")
    e("ds_read_b32 v10, v232 offset:32768"); e("ds_read_b32 v11, v232 offset:33024")
    e("ds_read_b32 v12, v233"); e("ds_read_b32 v13, v233 offset:256")
    e("ds_read_b32 v14, v233 offset:32768"); e("ds_read_b32 v15, v233 offset:33024")
    for w in range(4):
        e(f"ds_read_b64 {vr(16+2*w,2)}, v234 offset:{w*32}")
    if o.get("tailpf", True):
        LP = g.new("tpf")
        e(f"s_cmp_lg_u32 s{S_WAVE}, 7"); e(f"s_cbranch_scc1 {LP}")
        e("s_mov_b32 exec_hi, 0")
        e(f"global_load_dword v230, v229, s[{S_T2}:{S_T2+1}]")
        e("s_mov_b64 exec, -1")
        g.lab(LP)
    e("v_cmp_eq_u32 vcc, 1, v228")
    e("s_waitcnt lgkmcnt(0)")
    e("v_max3_f32 v24, v16, v18, v20"); e("v_max_f32 v24, v24, v22")
    for w in range(4):
        e(f"v_sub_f32 v{16+2*w}, v{16+2*w}, v24")
    for w in range(4):
        e(f"v_mul_f32 v{16+2*w}, s{S_C0}, v{16+2*w}")
    for w in range(4):
        e(f"v_exp_f32 v{16+2*w}, v{16+2*w}")
    g.nop(1)
    e("v_mul_f32 v40, v8, v16"); e("v_mul_f32 v44, v9, v16"); e("v_mul_f32 v46, v17, v16")
    for w in range(1, 4):
        e(f"v_fmac_f32 v40, v{8+2*w}, v{16+2*w}"); e(f"v_fmac_f32 v44, v{9+2*w}, v{16+2*w}"); e(f"v_fmac_f32 v46, v{17+2*w}, v{16+2*w}")
    e("v_cndmask_b32 v42, v24, v46, vcc")
    e("v_mov_b32 v46, v42")
    e(f"buffer_store_dwordx4 v[40:43], v235, s[{SRD_WS}:{SRD_WS+3}], s67 offen sc1")
    e(f"buffer_store_dwordx4 v[44:47], v235, s[{SRD_WS}:{SRD_WS+3}], s67 offen offset:1024 sc1")
    if o.get("diagH") == 1:
        stamp(g, 1, True)
        e("s_waitcnt vmcnt(0)")
        stamp(g, 2, True)
    g.lab("L_t2")
    stamp(g, 5, STT)
    e(f"s_and_b32 s{S_T0}, s{S_SPLIT}, 3")
    e("v_lshrrev_b32 v2, 2, v0"); e("v_and_b32 v3, 3, v0")
    e("v_lshlrev_b32 v5, 13, v2")
    e("v_lshl_add_u32 v4, v3, 5, v5")
    e(f"s_lshl_b32 s{S_T1}, s{S_PAIR}, 17")
    e(f"s_lshl_b32 s{S_T2}, s{S_T0}, 11"); e(f"s_add_u32 s{S_T1}, s{S_T1}, s{S_T2}")
    e(f"s_bfe_u32 s{S_T2}, s{S_SPLIT}, 0x10002"); e(f"s_lshl_b32 s{S_T2}, s{S_T2}, 10"); e(f"s_add_u32 s{S_T1}, s{S_T1}, s{S_T2}")
    e(f"s_lshl_b32 s{S_T2}, s{S_WAVE}, 7"); e(f"s_add_u32 s{S_T1}, s{S_T1}, s{S_T2}")
    e(f"s_add_u32 s{S_T1}, s{S_T1}, {WS_P}")
    def pl():
        e(f"buffer_load_dwordx4 v[8:11], v4, s[{SRD_WS}:{SRD_WS+3}], s{S_T1} offen sc1")
        e(f"buffer_load_dwordx4 v[12:15], v4, s[{SRD_WS}:{SRD_WS+3}], s{S_T1} offen offset:16 sc1")
    poll(g, "p", pl, [9, 11, 13, 15], 24, sleep=o.get("psleep", 1))
    e("v_mov_b32 v16, v10"); e("v_mov_b32 v18, v14"); e("v_mov_b32 v10, v12")
    stamp(g, 6, STT)
    e("v_mov_b32 v20, v16")
    row_ror_reduce(g, [20], "v_max_f32", [4, 8])
    rows_reduce(g, 20, 21, "v_max_f32")
    e(f"s_mov_b32 s{S_C0}, {L2E:#x}")
    e("v_sub_f32 v16, v16, v20"); e(f"v_mul_f32 v16, s{S_C0}, v16"); e("v_exp_f32 v16, v16"); g.nop(1)
    e("v_mul_f32 v18, v18, v16")
    e("v_mul_f32 v8, v8, v16"); e("v_mul_f32 v10, v10, v16")
    row_ror_reduce(g, [8, 10, 18], "v_add_f32", [4, 8])
    rows_reduce_multi(g, [8, 10, 18], [26, 27, 28], "v_add_f32")
    e("v_rcp_f32 v19, v18"); g.nop(1)
    for r in (8, 10):
        e(f"v_mul_f32 v20, v{r}, v19"); e(f"v_fma_f32 v21, -v20, v18, v{r}"); e(f"v_fma_f32 v{r}, v21, v19, v20")
    e("v_cvt_pk_bf16_f32 v22, v8, v10")
    e(f"s_lshl_b32 s{S_T2}, s{S_WAVE}, 4"); e(f"s_add_u32 s{S_T2}, s{S_T2}, {L_OB}")
    e(f"v_lshlrev_b32 v3, 2, v3"); e(f"v_add_u32 v3, s{S_T2}, v3")
    e("s_mov_b64 exec, 0xf")
    e("ds_write_b32 v3, v22")
    e("s_mov_b64 exec, -1")
    e("s_waitcnt lgkmcnt(0)")
    e("s_barrier")
    e(f"s_cmp_lt_u32 s{S_WAVE}, 4"); e("s_cbranch_scc1 L_fin")
    for ks in range(2):
        e(f"ds_read_b128 {vr(8+4*ks,4)}, v236 offset:{ks*64}")
    e("s_waitcnt lgkmcnt(0)")
    for ks in range(2):
        for ct in range(4):
            c = "0" if ks == 0 else vr(16+4*ct, 4)
            e(f"v_mfma_f32_16x16x32_bf16 {vr(16+4*ct,4)}, {vr(8+4*ks,4)}, {vr(H_WO+4*(ks*4+ct),4)}, {c}")
    g.nop(6)
    e("v_cndmask_b32 v40, v16, v20, s[70:71]")
    e("v_cndmask_b32 v40, v40, v24, s[72:73]")
    g.nop(1)
    e("v_cndmask_b32 v40, v40, v28, s[74:75]")
    pub2(g, 40, 237, "s69")
    if o.get("diagH") == 2:
        stamp(g, 1, True)
        e("s_waitcnt vmcnt(0)")
        stamp(g, 2, True)
    stamp(g, 7, STT)
    e(f"s_cmp_lg_u32 s{S_WAVE}, 7"); e("s_cbranch_scc1 L_fin")
    for ln in ['s_xor_b32 s60, s57, s56', 's_and_b32 s60, s60, 3', 's_cmp_lg_u32 s60, 0', 's_cbranch_scc1 L_fin']: e(ln)
    def sl():
        for i in range(8):
            e(f"s_mov_b32 s{S_T1}, {WS_S + i*4096}")
            e(f"buffer_load_dwordx4 {vr(64+4*i,4)}, v238, s[{SRD_WS}:{SRD_WS+3}], s{S_T1} offen sc1")
    poll(g, "s", sl, [64+2*i+1 for i in range(16)], 8)
    stamp(g, 8, STT)
    for i in range(4):
        e(f"v_add_f32 v{64+4*i}, v{64+4*i}, v{80+4*i}"); e(f"v_add_f32 v{66+4*i}, v{66+4*i}, v{82+4*i}")
    e("v_add_f32 v64, v64, v72"); e("v_add_f32 v66, v66, v74"); e("v_add_f32 v68, v68, v76"); e("v_add_f32 v70, v70, v78")
    e("v_add_f32 v16, v64, v68"); e("v_add_f32 v18, v66, v70")
    row_ror_reduce(g, [16, 18], "v_add_f32", [4, 8])
    e("v_mov_b32 v20, v16"); e("v_mov_b32 v21, v18"); g.nop(2)
    e("v_permlane16_swap_b32 v16, v20"); e("v_permlane16_swap_b32 v18, v21"); g.nop(1)
    e("v_add_f32 v16, v16, v20"); e("v_add_f32 v18, v18, v21")
    e("v_cvt_pk_bf16_f32 v8, v16, v18")
    e("v_lshlrev_b32 v10, 16, v8"); e("v_and_b32 v11, 0xffff0000, v8")
    e(f"v_mul_f32 v10, v10, v{H_G}"); e(f"v_mul_f32 v11, v11, v{H_G+1}")
    e("v_cvt_pk_bf16_f32 v8, v10, v11")
    e("v_lshlrev_b32 v10, 16, v8"); e("v_and_b32 v11, 0xffff0000, v8")
    e(f"v_lshlrev_b32 v12, 16, v{H_G+2}"); e(f"v_and_b32 v13, 0xffff0000, v{H_G+2}")
    e("v_add_f32 v10, v10, v12"); e("v_add_f32 v11, v11, v13")
    e("v_cvt_pk_bf16_f32 v8, v10, v11")
    e("s_mov_b32 exec_lo, 0xf"); e("s_mov_b32 exec_hi, 0xf")
    e(f"buffer_store_dword v8, v239, s[{SRD_OUT}:{SRD_OUT+3}], 0 offen")
    e("s_mov_b64 exec, -1")
    if DS: dstamp(g, 1, True)
    e("s_cmp_lg_u32 s2, 0"); e("s_cbranch_scc1 L_fin")
    e(f"v_mov_b32 v8, s{S_TAG}"); e("v_mov_b32 v1, 0")
    e("s_mov_b64 exec, 1")
    e(f"buffer_store_dword v8, v1, s[{SRD_WS}:{SRD_WS+3}], 0 offen sc1")
    e("s_mov_b64 exec, -1")
    g.lab("L_fin")
    if DS2:
        LX = g.new("ds2"); LY = g.new("ds2y")
        e("s_memrealtime s[84:85]")
        e("s_waitcnt lgkmcnt(0)")
        e("s_mov_b64 exec, 1")
        e(f"s_cmp_eq_u32 s{S_WAVE}, 7"); e(f"s_cbranch_scc1 {LY}")
        e(f"s_cmp_lg_u32 s{S_WAVE}, 0"); e(f"s_cbranch_scc1 {LX}")
        e("s_cmp_ge_u32 s2, 3"); e(f"s_cbranch_scc1 {LX}")
        e("s_mul_i32 s83, s2, 12")
        e("v_mov_b32 v1, s83")
        e("v_mov_b32 v2, s90"); e("v_mov_b32 v3, s86"); e("v_mov_b32 v4, s88")
        e(f"global_store_dwordx3 v1, v[2:4], s[{S_DBG}:{S_DBG+1}]")
        e(f"s_branch {LX}")
        g.lab(LY)
        e("s_cmp_ge_u32 s2, 7"); e(f"s_cbranch_scc1 {LX}")
        e("s_lshl_b32 s83, s2, 2"); e("s_add_u32 s83, s83, 36")
        e("v_mov_b32 v1, s83"); e("v_mov_b32 v2, s84")
        e(f"global_store_dword v1, v2, s[{S_DBG}:{S_DBG+1}]")
        g.lab(LX)
    if ST:
        stamp(g, 9, ST)
        e("s_waitcnt lgkmcnt(0)")
        e(f"s_lshl_b32 s{S_T0}, s2, 3"); e(f"s_add_u32 s{S_T0}, s{S_T0}, s{S_WAVE}"); e(f"s_lshl_b32 s{S_T0}, s{S_T0}, 6")
        e(f"s_add_u32 s{S_T0}, s{S_T0}, {WS_DBG}")
        e("v_mov_b32 v1, 0")
        e("s_mov_b64 exec, 1")
        for i in range(10):
            e(f"v_mov_b32 v2, s{S_ST0+2*i}")
            e(f"buffer_store_dword v2, v1, s[{SRD_WS}:{SRD_WS+3}], s{S_T0} offen offset:{4*i}")
            g.nop(1)
    g.lab("L_end")
    e("s_endpgm")
    g.lab("L_code_end")
    g.L.append('.section .rodata,"a"')
    g.L.append(".p2align 6")
    g.L.append(f".amdhsa_kernel {KN}_kernel")
    for s in ["next_free_vgpr 240", "next_free_sgpr 102", "accum_offset 240", "group_segment_fixed_size 0", "kernarg_size 88",
              "user_sgpr_count 2", "user_sgpr_kernarg_segment_ptr 1", "system_sgpr_workgroup_id_x 1",
              "float_denorm_mode_32 3", "float_denorm_mode_16_64 3"]:
        g.L.append("  .amdhsa_" + s)
    g.L.append(".end_amdhsa_kernel")
    txt = "\n".join(g.L) + "\n"
    lf = o.get("ldflags")
    if lf:
        out = []
        for ln in txt.split("\n"):
            if "buffer_load_dword" in ln and ln.rstrip().endswith(" sc1") and " lds" not in ln:
                ln = ln.rstrip()[:-4] + " " + lf
            out.append(ln)
        txt = "\n".join(out)
    pf = []
    span = 64 << o.get("pfshift", 7)
    for i in range((o.get("pf_kib", 24) * 1024 + span - 1) // span):
        pf.append(f"  v_min_u32 v3, L_code_end-{KN}_kernel-4, v1")
        pf.append(f"  global_load_dword v230, v3, s[{S_T0}:{S_T0+1}]")
        pf.append(f"  v_add_u32 v1, {span}, v1")
    txt = txt.replace("  CODE_PREFETCH_PLACEHOLDER", "\n".join(pf))
    return txt

if __name__ == "__main__":
    import json
    opt = json.loads(sys.argv[2]) if len(sys.argv) > 2 else {}
    open(sys.argv[1], "w").write(gen(opt))
```

```python
import sys
KN = "recurrent_scan__gqa_block_cached__dense_activation_silu__decode"

WS_E   = 0x0
WS_Q   = 0x200000
WS_H   = 0x240000
WS_ML  = 0x28000
WS_F   = 0x30000
WS_S   = 0x80000
WS_P   = 0x400000
WS_CNT = 0x2A0000
WS_DBG = 0x300000
WS_SIZE = 0x800000

RING   = 32768
L_STG  = 0x20000
L_XN4  = 0x24000
L_XN5  = 0x24800
L_Q    = 0x25000
L_H    = 0x25400
L_OB   = 0x25600
L_ML   = 0x25800
L_FLAG = 0x25900
LDS_BYTES = 0x26000

L2E = 0x3fb8aa3b
SCALE = 0x3db504f3
NEG_INF = 0xff800000

DEBUG_TO = True
class G:
    def __init__(self):
        self.L = []
        self.uid = 0
    def e(self, s):
        self.L.append("  " + s)
    def lab(self, s):
        self.L.append(s + ":")
    def new(self, p):
        self.uid += 1
        return f"L_{p}_{self.uid}"
    def nop(self, n):
        while n > 0:
            k = min(n, 16)
            self.e(f"s_nop {k-1}")
            n -= k

def vr(a, n=None):
    return f"v{a}" if n is None else f"v[{a}:{a+n-1}]"
def sr(a, n=None):
    return f"s{a}" if n is None else f"s[{a}:{a+n-1}]"

S_WAVE = 3
S_X, S_K, S_V, S_WQ, S_WO, S_BX, S_W1, S_W2 = 4, 6, 8, 10, 12, 14, 16, 18
S_OUT, S_DBG, S_WS = 20, 22, 24
S_TAG, S_E = 26, 27
SRD_K, SRD_V, SRD_WS, SRD_W, SRD_X, SRD_OUT, SRD_WO = 28, 32, 36, 40, 44, 48, 52
S_PAIR, S_SPLIT, S_B, S_HKV = 56, 57, 58, 59
S_T0, S_T1, S_T2, S_T3, S_T4, S_T5 = 60, 61, 62, 63, 64, 65
S_RETRY = 66
S_OFF = 67
S_RB = 68
S_PB = 69
S_CNT = 70
S_SOFF = 71
S_RS32 = 72
S_EX = 74
S_ST0 = 76
S_C0 = 96
S_C1 = 97
S_ROT = 98
S_NEXT = 99

def build_srd(g, d, ptr, size):
    g.e(f"s_mov_b32 s{d}, s{ptr}")
    g.e(f"s_and_b32 s{d+1}, s{ptr+1}, 0xffff")
    g.e(f"s_mov_b32 s{d+2}, {size:#x}")
    g.e(f"s_mov_b32 s{d+3}, 0x20000")

def rows_reduce(g, v, t, op):
    for sw in ("v_permlane16_swap_b32", "v_permlane32_swap_b32"):
        g.e(f"v_mov_b32 v{t}, v{v}")
        g.nop(2)
        g.e(f"{sw} v{v}, v{t}")
        g.nop(1)
        g.e(f"{op} v{v}, v{v}, v{t}")

def rows_reduce_multi(g, vs, ts, op):
    for sw in ("v_permlane16_swap_b32", "v_permlane32_swap_b32"):
        for v, t in zip(vs, ts):
            g.e(f"v_mov_b32 v{t}, v{v}")
        g.nop(max(0, 3 - len(vs)) if len(vs) < 3 else 0)
        if len(vs) >= 3: pass
        g.nop(1)
        for v, t in zip(vs, ts):
            g.e(f"{sw} v{v}, v{t}")
        g.nop(1)
        for v, t in zip(vs, ts):
            g.e(f"{op} v{v}, v{v}, v{t}")
        g.nop(1)

def row_ror_reduce(g, vs, op, rors):
    for r in rors:
        g.nop(2)
        for v in vs:
            g.e(f"{op}_dpp v{v}, v{v}, v{v} row_ror:{r} row_mask:0xf bank_mask:0xf")
            if len(vs) == 1:
                pass
    g.nop(1)

POLL_IDS = {"q": 0, "h": 1, "f": 2, "p": 3, "s": 4}
def poll(g, name, issue_loads, tag_regs, tmp, dbgword=None, sleep=1):
    L = g.new("poll_" + name); D = g.new("polld_" + name); TO = g.new("pollto_" + name)
    g.e(f"s_mov_b32 s{S_RETRY}, 0x40000")
    g.lab(L)
    issue_loads()
    g.e("s_waitcnt vmcnt(0)")
    g.e(f"v_xor_b32 v{tmp}, s{S_TAG}, v{tag_regs[0]}")
    for t in tag_regs[1:]:
        g.e(f"v_xor_b32 v{tmp+1}, s{S_TAG}, v{t}")
        g.e(f"v_or_b32 v{tmp}, v{tmp}, v{tmp+1}")
    g.e(f"v_cmp_ne_u32 vcc, 0, v{tmp}")
    g.e(f"s_cbranch_vccz {D}")
    g.e("s_mov_b64 exec, vcc")
    g.e(f"s_sub_u32 s{S_RETRY}, s{S_RETRY}, 1")
    g.e(f"s_cbranch_scc1 {TO}")
    g.e(f"s_sleep {sleep}")
    g.e(f"s_branch {L}")
    g.lab(TO)
    if DEBUG_TO:
        g.e(f"v_mov_b32 v{tmp}, {4*POLL_IDS[name]}")
        g.e(f"v_mov_b32 v{tmp+1}, s2")
        g.e(f"v_add_u32 v{tmp+1}, 0x1000, v{tmp+1}")
        g.e(f"global_store_dword v{tmp}, v{tmp+1}, s[{S_DBG}:{S_DBG+1}]")
    g.lab(D)
    g.e("s_mov_b64 exec, -1")

PUB = {"mode": "store"}
def pub2(g, vdata, voff, soff, imm=0):
    off = f" offset:{imm}" if imm else ""
    if PUB["mode"] == "atomic":
        g.e(f"buffer_atomic_swap_x2 v[{vdata}:{vdata+1}], v{voff}, s[{SRD_WS}:{SRD_WS+3}], {soff} offen{off}")
    elif PUB["mode"] == "atomic_sc1":
        g.e(f"buffer_atomic_swap_x2 v[{vdata}:{vdata+1}], v{voff}, s[{SRD_WS}:{SRD_WS+3}], {soff} offen{off} sc1")
    elif PUB["mode"] == "store_sc01":
        g.e(f"buffer_store_dwordx2 v[{vdata}:{vdata+1}], v{voff}, s[{SRD_WS}:{SRD_WS+3}], {soff} offen{off} sc0 sc1")
    else:
        g.e(f"buffer_store_dwordx2 v[{vdata}:{vdata+1}], v{voff}, s[{SRD_WS}:{SRD_WS+3}], {soff} offen{off} sc1")

def poll2(g, name, issue, nloads, tags, on_ok, A, B, tmp, stagger=10):
    L = g.new("p2_" + name); D = g.new("p2d_" + name); TO = g.new("p2to_" + name)
    W = "s[100:101]"
    def check(base):
        tr = tags(base)
        g.e(f"s_mov_b64 exec, {W}")
        g.e(f"v_xor_b32 v{tmp}, s{S_TAG}, v{tr[0]}")
        for t in tr[1:]:
            g.e(f"v_xor_b32 v{tmp+1}, s{S_TAG}, v{t}")
            g.e(f"v_or_b32 v{tmp}, v{tmp}, v{tmp+1}")
        g.e(f"v_cmp_ne_u32 vcc, 0, v{tmp}")
        g.e(f"s_andn2_b64 exec, {W}, vcc")
        SK = g.new("p2s")
        g.e(f"s_cbranch_execz {SK}")
        on_ok(base)
        g.lab(SK)
        g.e(f"s_mov_b64 {W}, vcc")
        g.e(f"s_cbranch_vccz {D}")
        g.e(f"s_mov_b64 exec, {W}")
    g.e(f"s_mov_b32 s{S_RETRY}, 0x40000")
    g.e(f"s_mov_b64 {W}, -1")
    issue(A)
    g.e(f"s_sleep {stagger}")
    g.lab(L)
    issue(B)
    g.e(f"s_waitcnt vmcnt({nloads})")
    check(A)
    issue(A)
    g.e(f"s_waitcnt vmcnt({nloads})")
    check(B)
    g.e(f"s_sub_u32 s{S_RETRY}, s{S_RETRY}, 1")
    g.e(f"s_cbranch_scc0 {L}")
    if DEBUG_TO:
        g.e(f"v_mov_b32 v{tmp}, {4*POLL_IDS[name]}")
        g.e(f"v_mov_b32 v{tmp+1}, s2")
        g.e(f"v_add_u32 v{tmp+1}, 0x1000, v{tmp+1}")
        g.e(f"global_store_dword v{tmp}, v{tmp+1}, s[{S_DBG}:{S_DBG+1}]")
    g.lab(D)
    g.e("s_mov_b64 exec, -1")

def dstamp(g, word, on, tmpv=(236, 237), sp=(92, 93)):
    if not on: return
    g.e(f"s_memrealtime s[{sp[0]}:{sp[1]}]")
    g.e("s_waitcnt lgkmcnt(0)")
    g.e(f"v_mov_b32 v{tmpv[0]}, {4*word}")
    g.e(f"v_mov_b32 v{tmpv[1]}, s{sp[0]}")
    g.e("s_mov_b64 s[94:95], exec")
    g.e("s_mov_b64 exec, 1")
    g.e(f"global_atomic_umax v{tmpv[0]}, v{tmpv[1]}, s[{S_DBG}:{S_DBG+1}]")
    g.e("s_mov_b64 exec, s[94:95]")

def stamp(g, idx, on):
    if on:
        g.e(f"s_memrealtime s[{S_ST0+2*idx}:{S_ST0+2*idx+1}]")

def gen(opt=None):
    o = dict(pattern="grp16", rot=512*1024, xmap=False, stamps=False, ntiles=16, prefetch_code=True, stage=99, b0=True, thr=16, prio=True, dyn=True, sthr=24, wnt=1, ns=10, poll2=False, copies=1, wofl="", gate=1)
    if opt: o.update(opt)
    DS = False
    DS2 = bool(o.get("dstamps"))
    ST = bool(o["stamps"])
    STT = o["stamps"] is True
    STA = o["stamps"] == "A"
    STP = o["stamps"] == "P"
    STF = o["stamps"] == "F"
    STE = o["stamps"] == "E"
    STX = o["stamps"] == "X"
    STL = o["stamps"] == "L"
    PUB["mode"] = o.get("pub", "store")
    g = G(); e = g.e
    g.L.append(f"; @launch grid=(256,1,1) block=(512,1,1) lds={LDS_BYTES}")
    g.L.append('.amdgcn_target "amdgcn-amd-amdhsa--gfx950"')
    g.L.append(".text")
    g.L.append(f".globl {KN}_kernel")
    g.L.append(".p2align 8")
    g.L.append(f".type {KN}_kernel,@function")
    g.lab(f"{KN}_kernel")
    e("s_cmp_ge_u32 s2, 256")
    e("s_cbranch_scc1 L_end")
    stamp(g, 0, ST)
    if DS2: e("s_memrealtime s[90:91]")
    e(f"s_load_dwordx16 s[4:19], s[0:1], 0")
    e(f"s_load_dwordx4 s[20:23], s[0:1], 64")
    e(f"s_load_dwordx2 s[24:25], s[0:1], 80")
    e("v_lshrrev_b32 v1, 6, v0")
    e("v_and_b32 v0, 63, v0")
    e(f"v_readfirstlane_b32 s{S_WAVE}, v1")
    if o["xmap"]:
        e(f"s_and_b32 s{S_T0}, s2, 7"); e(f"s_lshl_b32 s{S_T0}, s{S_T0}, 5"); e(f"s_lshr_b32 s{S_T1}, s2, 3")
        e(f"s_add_u32 s{S_T0}, s{S_T0}, s{S_T1}")
        e(f"s_lshr_b32 s{S_PAIR}, s{S_T0}, 4"); e(f"s_and_b32 s{S_SPLIT}, s{S_T0}, 15")
    else:
        e(f"s_lshr_b32 s{S_PAIR}, s2, 4"); e(f"s_and_b32 s{S_SPLIT}, s2, 15")
    e(f"s_lshr_b32 s{S_B}, s{S_PAIR}, 3"); e(f"s_and_b32 s{S_HKV}, s{S_PAIR}, 7")
    e(f"s_cmp_ge_u32 s{S_WAVE}, 4")
    e("s_cbranch_scc1 L_helper")

    V_KD, V_VD, V_KR, V_VR = 8, 12, 14, 18
    V_Q, V_O = 28, 44
    RK = (76, 140); RV = (108, 172)
    V_S, V_A, V_P = 204, 212, 220
    V_M, V_L, V_AL, V_NM, V_MX, V_T = 224, 225, 226, 227, 228, 229
    e("v_lshrrev_b32 v1, 4, v0")
    e("v_and_b32 v2, 15, v0")
    e("v_lshlrev_b32 v3, 8, v1")
    e("v_xor_b32 v4, v2, v1")
    for n in range(4):
        e(f"v_xor_b32 v5, {4*n}, v4")
        e(f"v_lshl_add_u32 v{V_KD+n}, v5, 4, v3")
    e("v_lshlrev_b32 v4, 1, v1")
    e("v_xor_b32 v4, v2, v4")
    for n in range(2):
        e(f"v_xor_b32 v5, {8*n}, v4")
        e(f"v_lshl_add_u32 v{V_VD+n}, v5, 4, v3")
    e(f"s_lshl_b32 s{S_RB}, s{S_WAVE}, 15")
    e(f"s_lshl_b32 s{S_PB}, s{S_PAIR}, 23")
    if o["pattern"] == "grp16":
        e(f"s_lshl_b32 s{S_OFF}, s{S_SPLIT}, 2"); e(f"s_add_u32 s{S_OFF}, s{S_OFF}, s{S_WAVE}")
        e(f"s_lshl_b32 s{S_OFF}, s{S_OFF}, 13")
        STEP = 16 * 4 * 8192
    else:
        e(f"s_lshl_b32 s{S_OFF}, s{S_SPLIT}, 6"); e(f"s_add_u32 s{S_OFF}, s{S_OFF}, s{S_WAVE}")
        e(f"s_lshl_b32 s{S_OFF}, s{S_OFF}, 13")
        STEP = 4 * 8192
    e(f"s_mul_i32 s{S_ROT}, s{S_PAIR}, {o['rot']}")
    e(f"s_add_u32 s{S_OFF}, s{S_OFF}, s{S_ROT}")
    e("s_waitcnt lgkmcnt(0)")
    stamp(g, 4, STA)
    e(f"s_load_dword s{S_E}, s[{S_WS}:{S_WS+1}], {WS_E}")
    build_srd(g, SRD_K, S_K, 0x8000000)
    build_srd(g, SRD_V, S_V, 0x8000000)

    def tile_addr():
        e(f"s_and_b32 s{S_SOFF}, s{S_OFF}, 0x7fffff")
        e(f"s_add_u32 s{S_SOFF}, s{S_SOFF}, s{S_PB}")
    def issue(which, slot):
        srd = SRD_K if which == 0 else SRD_V
        for half in range(2):
            off = slot * 16384 + which * 8192 + half * 4096
            e(f"s_add_u32 m0, s{S_RB}, {off}")
            if half == 0:
                e(f"s_mov_b32 s{S_T0}, s{S_SOFF}")
            else:
                e(f"s_add_u32 s{S_T0}, s{S_SOFF}, 4096")
            for i in range(4):
                n = half * 4 + i
                vo = (V_KD + (n & 3)) if which == 0 else (V_VD + (n & 1))
                fl = o.get("kfl" if which == 0 else "vfl", " nt")
                e(f"buffer_load_dwordx4 v{vo}, s[{srd}:{srd+3}], s{S_T0} offen offset:{i*1024}{fl} lds")
    THR = o["thr"]
    nissued = 0
    for slot in range(2):
        tile_addr()
        for which in range(2):
            if o["b0"] and nissued == o.get("b0at", 8):
                e("s_barrier")
            if nissued + 8 > THR:
                e(f"s_waitcnt vmcnt({THR - 8})")
                stamp(g, 3 + nissued // 8, STP)
            issue(which, slot)
            nissued += 8
        e(f"s_add_u32 s{S_OFF}, s{S_OFF}, {STEP}")
    stamp(g, 5, STA)
    e("v_and_b32 v1, 15, v0")
    e("v_lshrrev_b32 v2, 4, v0")
    e("v_xor_b32 v3, v2, v1")
    e(f"v_lshlrev_b32 v4, 8, v1")
    e(f"v_add_u32 v4, s{S_RB}, v4")
    for kk in range(4):
        e(f"v_xor_b32 v5, {4*kk}, v3")
        e(f"v_lshl_add_u32 v{V_KR+kk}, v5, 4, v4")
    e("v_lshrrev_b32 v1, 2, v0")
    e("v_and_b32 v2, 7, v1")
    e("v_and_b32 v3, 3, v0")
    e("v_lshlrev_b32 v4, 8, v1")
    e("v_lshl_add_u32 v4, v3, 3, v4")
    e(f"v_add_u32 v4, s{S_RB}, v4")
    e("v_add_u32 v4, 8192, v4")
    for dt in range(8):
        e(f"v_xor_b32 v5, {dt}, v2")
        e(f"v_lshl_add_u32 v{V_VR+dt}, v5, 5, v4")
    for i in range(32):
        e(f"v_mov_b32 v{V_O+i}, 0")
    for i in range(16):
        e(f"v_mov_b32 v{V_Q+i}, 0")
    e(f"v_mov_b32 v{V_M}, {NEG_INF:#x}")
    for r in (236, 237, 238, 239): e(f"v_mov_b32 v{r}, 0")
    e(f"v_mov_b32 v{V_L}, 0")
    build_srd(g, SRD_WS, S_WS, WS_SIZE)
    build_srd(g, SRD_X, S_X, 2048)
    build_srd(g, SRD_WO, S_WO, 0x400000)
    build_srd(g, SRD_OUT, S_OUT, 2048)

    def load(rs, slot, do_issue, wK, wV, thr=None, pst=None):
        e(f"s_waitcnt vmcnt({wK})")
        for T in range(2):
            for kk in range(4):
                if not o.get("noread"): e(f"ds_read_b128 {vr(RK[rs]+16*T+4*kk,4)}, v{V_KR+kk} offset:{slot*16384+T*4096}")
        e("s_waitcnt lgkmcnt(0)")
        if do_issue:
            tile_addr()
            if thr is not None and thr < 32: e(f"s_waitcnt vmcnt({thr-8})")
            if pst is not None: stamp(g, pst, STP)
            issue(0, slot)
        e(f"s_waitcnt vmcnt({wV})")
        for dt in range(8):
            for T in range(2):
                if not o.get("noread"): e(f"ds_read_b64_tr_b16 {vr(RV[rs]+4*dt+2*T,2)}, v{V_VR+dt} offset:{slot*16384+T*4096}")
        e("s_waitcnt lgkmcnt(0)")
        if do_issue:
            if thr is not None and thr < 32: e(f"s_waitcnt vmcnt({thr-8})")
            if pst is not None: stamp(g, pst+1, STP)
            issue(1, slot)
            e(f"s_add_u32 s{S_OFF}, s{S_OFF}, {STEP}")

    def compute(rs):
        if o.get("nocompute"): return
        KF, VF = RK[rs], RV[rs]
        for kk in range(4):
            for T in range(2):
                c = "0" if kk == 0 else vr(V_S+4*T, 4)
                e(f"v_mfma_f32_16x16x32_bf16 {vr(V_S+4*T,4)}, {vr(KF+16*T+4*kk,4)}, {vr(V_Q+4*kk,4)}, {c}")
        g.nop(8)
        t = V_T
        for i in range(4):
            e(f"v_cvt_pk_bf16_f32 v{t+i}, v{V_S+2*i}, v{V_S+2*i+1}")
        for i in range(4):
            e(f"v_lshlrev_b32 v{V_A+2*i}, 16, v{t+i}")
            e(f"v_and_b32 v{V_A+2*i+1}, 0xffff0000, v{t+i}")
        for i in range(8):
            e(f"v_mul_f32 v{V_A+i}, s{S_C1}, v{V_A+i}")
        for i in range(4):
            e(f"v_cvt_pk_bf16_f32 v{t+i}, v{V_A+2*i}, v{V_A+2*i+1}")
        for i in range(4):
            e(f"v_lshlrev_b32 v{V_A+2*i}, 16, v{t+i}")
            e(f"v_and_b32 v{V_A+2*i+1}, 0xffff0000, v{t+i}")
        e(f"v_max3_f32 v{V_MX}, v{V_A}, v{V_A+1}, v{V_A+2}")
        e(f"v_max3_f32 v{V_MX}, v{V_MX}, v{V_A+3}, v{V_A+4}")
        e(f"v_max3_f32 v{V_MX}, v{V_MX}, v{V_A+5}, v{V_A+6}")
        e(f"v_max3_f32 v{V_MX}, v{V_MX}, v{V_A+7}, v{V_M}")
        rows_reduce(g, V_MX, t, "v_max_f32")
        e(f"v_sub_f32 v{V_AL}, v{V_M}, v{V_MX}")
        e(f"v_mul_f32 v{V_AL}, s{S_C0}, v{V_AL}")
        e(f"v_exp_f32 v{V_AL}, v{V_AL}")
        e(f"v_mov_b32 v{V_M}, v{V_MX}")
        e(f"v_mul_f32 v{V_NM}, s{S_C0}, v{V_MX}")
        for i in range(8):
            e(f"v_fma_f32 v{V_A+i}, v{V_A+i}, s{S_C0}, -v{V_NM}")
        for i in range(8):
            e(f"v_exp_f32 v{V_A+i}, v{V_A+i}")
        e(f"v_mul_f32 v{V_L}, v{V_L}, v{V_AL}")
        if o.get("skipresc", False):
            LR = g.new("resc")
            e(f"v_cmp_neq_f32 vcc, 1.0, v{V_AL}")
            e(f"s_cbranch_vccz {LR}")
        for i in range(16):
            e(f"v_pk_mul_f32 {vr(V_O+2*i,2)}, {vr(V_O+2*i,2)}, {vr(V_AL,2)} op_sel_hi:[1,0]")
        if o.get("skipresc", False):
            g.lab(LR)
        for i in range(4):
            e(f"v_cvt_pk_bf16_f32 v{V_P+i}, v{V_A+2*i}, v{V_A+2*i+1}")
        e(f"v_add_f32 v{t}, v{V_A}, v{V_A+1}")
        e(f"v_add_f32 v{t+1}, v{V_A+2}, v{V_A+3}")
        e(f"v_add_f32 v{t+2}, v{V_A+4}, v{V_A+5}")
        e(f"v_add_f32 v{t+3}, v{V_A+6}, v{V_A+7}")
        e(f"v_add_f32 v{t}, v{t}, v{t+1}")
        e(f"v_add_f32 v{t+2}, v{t+2}, v{t+3}")
        e(f"v_add_f32 v{t}, v{t}, v{t+2}")
        e(f"v_add_f32 v{V_L}, v{V_L}, v{t}")
        for dt in range(8):
            e(f"v_mfma_f32_16x16x32_bf16 {vr(V_O+4*dt,4)}, {vr(VF+4*dt,4)}, {vr(V_P,4)}, {vr(V_O+4*dt,4)}")

    load(0, 0, True, 24, 24, THR, 7)
    load(1, 1, True, 24, 24, THR, None)
    e("s_waitcnt lgkmcnt(0)")
    e(f"s_mul_i32 s{S_TAG}, s{S_E}, 1664525")
    e(f"s_add_u32 s{S_TAG}, s{S_TAG}, 1013904223")
    stamp(g, 1, ST)
    e("s_barrier")
    if DS2: e("s_memrealtime s[86:87]")
    stamp(g, 2, ST)
    if DS:
        LX = g.new("ds")
        e(f"s_cmp_lg_u32 s{S_WAVE}, 0"); e(f"s_cbranch_scc1 {LX}")
        e("s_memrealtime s[88:89]")
        g.lab(LX)
    e("v_and_b32 v1, 15, v0")
    e("v_lshrrev_b32 v2, 4, v0")
    e("v_lshlrev_b32 v1, 8, v1")
    e("v_lshl_add_u32 v1, v2, 4, v1")
    e(f"v_add_u32 v1, {L_Q}, v1")
    e(f"s_mov_b32 s{S_EX}, 0x000f000f"); e(f"s_mov_b32 s{S_EX+1}, 0x000f000f")
    e(f"s_mov_b64 exec, s[{S_EX}:{S_EX+1}]")
    for kk in range(4):
        e(f"ds_read_b128 {vr(V_Q+4*kk,4)}, v1 offset:{kk*64}")
    e("s_mov_b64 exec, -1")
    e(f"s_mov_b32 s{S_C0}, {L2E:#x}")
    e(f"s_mov_b32 s{S_C1}, {SCALE:#x}")
    e("s_waitcnt lgkmcnt(0)")

    NT = o["ntiles"]
    STHR = o.get("sthr", 32)
    if not o["dyn"]:
        nloop = (NT - 4) // 2
        if STL:
            for it in range(nloop):
                compute(0); load(0, 0, True, 24, 24, STHR)
                compute(1); load(1, 1, True, 24, 24, STHR)
                if it < 5: stamp(g, 4 + it, True)
        else:
            e(f"s_mov_b32 s{S_CNT}, {nloop}")
            g.lab("L_loop")
            compute(0); load(0, 0, True, 24, 24, STHR)
            compute(1); load(1, 1, True, 24, 24, STHR)
            e(f"s_sub_u32 s{S_CNT}, s{S_CNT}, 1")
            e(f"s_cmp_lg_u32 s{S_CNT}, 0")
            e("s_cbranch_scc1 L_loop")
        compute(0); load(0, 0, False, 24, 16)
        compute(1); load(1, 1, False, 8, 0)
        compute(0)
        compute(1)
    else:
        NS = o.get("ns", 5)
        NDUAL = o.get("ndual", 0)
        assert NS >= 5 + 2 * NDUAL
        NSTAT = NS * 64
        V_TK, V_ONE, V_CA = 233, 234, 235
        cap = min(STHR, 24) - 8
        if NDUAL:
            e(f"s_mov_b32 s{S_CNT}, {NDUAL}")
            g.lab("L_dual")
            compute(0); load(0, 0, True, 24, 24, o.get("dthr", 32))
            compute(1); load(1, 1, True, 24, 24, o.get("dthr", 32))
            e(f"s_sub_u32 s{S_CNT}, s{S_CNT}, 1")
            e(f"s_cmp_lg_u32 s{S_CNT}, 0")
            e("s_cbranch_scc1 L_dual")
        e(f"s_sub_u32 s{S_NEXT}, s{S_OFF}, s{S_ROT}")
        e(f"s_lshr_b32 s{S_NEXT}, s{S_NEXT}, 13")
        e(f"s_sub_u32 s{S_NEXT}, s{S_NEXT}, {NSTAT}")
        e(f"s_add_u32 s95, s{S_NEXT}, {NSTAT}")
        e(f"v_mov_b32 v{V_TK}, s{S_NEXT}")
        e(f"v_mov_b32 v{V_ONE}, 1")
        e(f"s_lshl_b32 s{S_T0}, s{S_PAIR}, 8"); e(f"s_add_u32 s{S_T0}, s{S_T0}, {WS_CNT}")
        e(f"v_mov_b32 v{V_CA}, s{S_T0}")
        e(f"s_mov_b32 s{S_CNT}, 0"); e("s_mov_b32 s73, 0")
        def readK(rs, slot):
            if o.get("noread"): return
            for T in range(2):
                for kk in range(4):
                    e(f"ds_read_b128 {vr(RK[rs]+16*T+4*kk,4)}, v{V_KR+kk} offset:{slot*16384+T*4096}")
            e("s_waitcnt lgkmcnt(0)")
        def readV(rs, slot):
            if o.get("noread"): return
            for dt in range(8):
                for T in range(2):
                    e(f"ds_read_b64_tr_b16 {vr(RV[rs]+4*dt+2*T,2)}, v{V_VR+dt} offset:{slot*16384+T*4096}")
            e("s_waitcnt lgkmcnt(0)")
        def dload(sg):
            e("s_waitcnt vmcnt(25)")
            readK(sg, sg)
            e(f"s_waitcnt vmcnt({cap})")
            e(f"v_readfirstlane_b32 s{S_NEXT}, v{V_TK}")
            e(f"s_add_u32 s{S_NEXT}, s{S_NEXT}, {NSTAT}")
            e(f"s_cmp_ge_u32 s{S_NEXT}, 1024")
            e(f"s_cbranch_scc1 L_drain{sg}")
            if NS > 5:
                LA = g.new("tka"); LB = g.new("tkb")
                e(f"s_add_u32 s95, s95, 64")
                e(f"s_cmp_ge_u32 s95, {NSTAT}"); e(f"s_cbranch_scc1 {LA}")
                e(f"s_sub_u32 s{S_T0}, s95, {NSTAT}")
                e(f"v_mov_b32 v{V_TK}, s{S_T0}")
                e(f"s_branch {LB}")
                g.lab(LA)
            e("s_mov_b64 exec, 1")
            e(f"global_atomic_add v{V_TK}, v{V_CA}, v{V_ONE}, s[{S_WS}:{S_WS+1}] sc0")
            e("s_mov_b64 exec, -1")
            if NS > 5: g.lab(LB)
            e(f"s_lshl_b32 s{S_OFF}, s{S_NEXT}, 13")
            e(f"s_add_u32 s{S_OFF}, s{S_OFF}, s{S_ROT}")
            tile_addr(); issue(0, sg)
            e("s_waitcnt vmcnt(26)")
            readV(sg, sg)
            e(f"s_waitcnt vmcnt({cap})")
            issue(1, sg)
            e(f"s_add_u32 s{S_CNT}, s{S_CNT}, 1")
        S_DR, S_E0, S_EM = 73, 92, 94
        S_PREV, S_NP = 92, 93
        NPA = o.get("npa", 0); NPC = o.get("npc", 112)
        def do_atomic():
            e("s_mov_b64 exec, 1")
            e(f"global_atomic_add v{V_TK}, v{V_CA}, v{V_ONE}, s[{S_WS}:{S_WS+1}] sc0")
            e("s_mov_b64 exec, -1")
        def ticket(faillabel, np_check=False):
            e(f"v_readfirstlane_b32 s{S_NEXT}, v{V_TK}")
            e(f"s_add_u32 s{S_NEXT}, s{S_NEXT}, {NSTAT}")
            e(f"s_cmp_ge_u32 s{S_NEXT}, 1024")
            e(f"s_cbranch_scc1 {faillabel}")
            LB = g.new("tkb")
            if np_check and NPA:
                LN = g.new("tkn")
                e(f"s_sub_u32 s{S_T0}, s{S_NEXT}, s{S_PREV}")
                e(f"s_mov_b32 s{S_PREV}, s{S_NEXT}")
                e(f"s_mul_i32 s{S_T0}, s{S_T0}, {NPA}")
                e(f"s_add_u32 s{S_T0}, s{S_T0}, s{S_NEXT}")
                e(f"s_cmp_le_u32 s{S_T0}, {1024 + NPC}"); e(f"s_cbranch_scc1 {LN}")
                e(f"s_mov_b32 s{S_NP}, 1")
                e(f"s_branch {LB}")
                g.lab(LN)
            elif NPA:
                e(f"s_mov_b32 s{S_PREV}, s{S_NEXT}")
            if NS > 5:
                LA = g.new("tka")
                e(f"s_add_u32 s95, s95, 64")
                e(f"s_cmp_ge_u32 s95, {NSTAT}"); e(f"s_cbranch_scc1 {LA}")
                e(f"s_sub_u32 s{S_T0}, s95, {NSTAT}")
                e(f"v_mov_b32 v{V_TK}, s{S_T0}")
                e(f"s_branch {LB}")
                g.lab(LA)
            do_atomic()
            g.lab(LB)
            e(f"s_lshl_b32 s{S_OFF}, s{S_NEXT}, 13")
            e(f"s_add_u32 s{S_OFF}, s{S_OFF}, s{S_ROT}")
            tile_addr()
        def consume(faillabel):
            e(f"v_readfirstlane_b32 s{S_NEXT}, v{V_TK}")
            e(f"s_add_u32 s{S_NEXT}, s{S_NEXT}, {NSTAT}")
            e(f"s_cmp_ge_u32 s{S_NEXT}, 1024")
            e(f"s_cbranch_scc1 {faillabel}")
            e(f"s_lshl_b32 s{S_OFF}, s{S_NEXT}, 13")
            e(f"s_add_u32 s{S_OFF}, s{S_OFF}, s{S_ROT}")
            tile_addr()
        def request():
            LB = g.new("rqb")
            if NS > 5:
                LA = g.new("rqa")
                e(f"s_add_u32 s95, s95, 64")
                e(f"s_cmp_ge_u32 s95, {NSTAT}"); e(f"s_cbranch_scc1 {LA}")
                e(f"s_sub_u32 s{S_T0}, s95, {NSTAT}")
                e(f"v_mov_b32 v{V_TK}, s{S_T0}")
                e(f"s_branch {LB}")
                g.lab(LA)
            do_atomic()
            g.lab(LB)
        if o.get("np2"):
            S_MODE = 93
            compute(0)
            e("s_waitcnt vmcnt(24)")
            readK(0, 0)
            consume("L_ldone")
            issue(0, 0)
            e("s_waitcnt vmcnt(24)")
            readV(0, 0)
            issue(1, 0)
            e("s_add_u32 s95, s95, 64")
            compute(1)
            e("s_waitcnt vmcnt(24)")
            readK(1, 1)
            e("s_waitcnt vmcnt(16)")
            readV(1, 1)
            compute(0)
            compute(1)
            g.lab("L_loop")
            e("s_waitcnt vmcnt(8)")
            readK(0, 0)
            e(f"s_cmp_ge_u32 s95, {NSTAT}"); e("s_cbranch_scc1 L_dynA")
            e(f"s_lshl_b32 s{S_OFF}, s95, 13"); e(f"s_add_u32 s{S_OFF}, s{S_OFF}, s{S_ROT}")
            e("s_add_u32 s95, s95, 64")
            tile_addr(); issue(0, 0)
            e("s_waitcnt vmcnt(8)")
            readV(0, 0)
            issue(1, 0)
            e(f"s_mov_b32 s{S_MODE}, 0")
            e(f"s_add_u32 s{S_CNT}, s{S_CNT}, 1")
            e("s_branch L_comp")
            g.lab("L_dynA")
            do_atomic()
            e("s_waitcnt vmcnt(1)")
            readV(0, 0)
            e(f"s_mov_b32 s{S_MODE}, 1")
            g.lab("L_comp")
            compute(0)
            e(f"s_cmp_eq_u32 s{S_MODE}, 0"); e("s_cbranch_scc1 L_loop")
            e("s_waitcnt vmcnt(0)")
            consume("L_ldone")
            issue(0, 0); issue(1, 0)
            e(f"s_add_u32 s{S_CNT}, s{S_CNT}, 1")
            e("s_branch L_loop")
        elif o.get("single", True) and o.get("late", True):
            compute(0)
            stamp(g, 4, STX)
            e("s_waitcnt vmcnt(24)")
            readK(0, 0)
            consume("L_ldone")
            issue(0, 0)
            e("s_waitcnt vmcnt(24)")
            readV(0, 0)
            issue(1, 0)
            stamp(g, 5, STX)
            compute(1)
            stamp(g, 6, STX)
            request()
            e("s_waitcnt vmcnt(24)")
            readK(1, 1)
            e("s_waitcnt vmcnt(16)")
            readV(1, 1)
            stamp(g, 7, STX)
            compute(0)
            compute(1)
            stamp(g, 8, STX)
            e("s_mov_b32 s93, 0")
            e(f"s_cmp_ge_u32 s95, {NSTAT}"); e("s_cselect_b32 s93, 1, 0")
            g.lab("L_loop")
            e("s_waitcnt vmcnt(8)")
            stamp(g, 6, STE)
            readK(0, 0)
            if o.get("vfirst", False):
                LW = g.new("wv"); LW2 = g.new("wv2")
                e("s_cmp_eq_u32 s93, 1"); e(f"s_cbranch_scc1 {LW}")
                e("s_waitcnt vmcnt(0)")
                e(f"s_branch {LW2}")
                g.lab(LW)
                e("s_waitcnt vmcnt(1)")
                g.lab(LW2)
                readV(0, 0)
                e("s_waitcnt vmcnt(0)")
                stamp(g, 7, STE)
                consume("L_last")
                stamp(g, 4, STE)
                issue(0, 0)
                issue(1, 0)
            else:
                e("s_waitcnt vmcnt(0)")
                stamp(g, 7, STE)
                consume("L_last")
                stamp(g, 4, STE)
                issue(0, 0)
                readV(0, 0)
                issue(1, 0)
            e(f"s_add_u32 s{S_CNT}, s{S_CNT}, 1")
            if o["stamps"] == "R":
                for idx, c in ((4, 1), (5, 3), (6, 5), (7, 7), (8, 9)):
                    LS = g.new("rs")
                    e(f"s_cmp_lg_u32 s{S_CNT}, {c}"); e(f"s_cbranch_scc1 {LS}")
                    stamp(g, idx, True)
                    g.lab(LS)
            g.lab("L_comp")
            compute(0)
            e(f"s_cmp_eq_u32 s{S_DR}, 1"); e("s_cbranch_scc1 L_ldone")
            stamp(g, 5, STE)
            request()
            e(f"s_cmp_ge_u32 s95, {NSTAT}"); e("s_cselect_b32 s93, 1, 0")
            e("s_branch L_loop")
            g.lab("L_last")
            e(f"s_mov_b32 s{S_DR}, 1")
            if not o.get("vfirst", False):
                readV(0, 0)
            e("s_branch L_comp")
        elif o.get("single", True):
            e(f"s_mov_b32 s{S_NP}, 0")
            compute(0)
            e("s_waitcnt vmcnt(24)")
            readK(0, 0)
            ticket("L_ldone")
            issue(0, 0)
            e("s_waitcnt vmcnt(24)")
            readV(0, 0)
            issue(1, 0)
            compute(1)
            e("s_waitcnt vmcnt(24)")
            readK(1, 1)
            e("s_waitcnt vmcnt(16)")
            readV(1, 1)
            compute(0)
            compute(1)
            g.lab("L_loop")
            e("s_waitcnt vmcnt(8)")
            readK(0, 0)
            ticket("L_last", True)
            issue(0, 0)
            e("s_waitcnt vmcnt(8)")
            readV(0, 0)
            issue(1, 0)
            e(f"s_add_u32 s{S_CNT}, s{S_CNT}, 1")
            g.lab("L_comp")
            compute(0)
            e(f"s_cmp_eq_u32 s{S_DR}, 0"); e("s_cbranch_scc1 L_loop")
            e("s_branch L_ldone")
            g.lab("L_last")
            e(f"s_mov_b32 s{S_DR}, 1")
            e("s_waitcnt vmcnt(0)")
            readV(0, 0)
            e("s_branch L_comp")
        else:
            e(f"s_mov_b32 s{S_E0}, 0"); e(f"s_mov_b32 s{S_E0+1}, 0"); e(f"s_mov_b32 s{S_EM}, 0")
            g.lab("L_loop")
            for sg in range(2):
                compute(sg)
                e(f"s_cmp_eq_u32 s{S_E0+sg}, 1"); e(f"s_cbranch_scc1 L_empty{sg}")
                e(f"s_cmp_eq_u32 s{S_DR}, 1"); e(f"s_cbranch_scc1 L_dw{sg}")
                e("s_waitcnt vmcnt(24)")
                readK(sg, sg)
                e(f"s_waitcnt vmcnt({cap})")
                ticket(f"L_noref{sg}")
                issue(0, sg)
                e("s_waitcnt vmcnt(24)")
                readV(sg, sg)
                e(f"s_waitcnt vmcnt({cap})")
                issue(1, sg)
                e(f"s_add_u32 s{S_CNT}, s{S_CNT}, 1")
                e(f"s_branch L_next{sg}")
                g.lab(f"L_dw{sg}")
                e("s_waitcnt vmcnt(0)")
                readK(sg, sg)
                g.lab(f"L_noref{sg}")
                e(f"s_mov_b32 s{S_DR}, 1"); e(f"s_mov_b32 s{S_E0+sg}, 1")
                e("s_waitcnt vmcnt(16)")
                readV(sg, sg)
                e(f"s_branch L_next{sg}")
                g.lab(f"L_empty{sg}")
                e(f"s_add_u32 s{S_EM}, s{S_EM}, 1")
                e(f"s_cmp_eq_u32 s{S_EM}, 2"); e("s_cbranch_scc1 L_ldone")
                g.lab(f"L_next{sg}")
            e("s_branch L_loop")
        g.lab("L_ldone")
        if STL: e(f"s_mov_b32 s{S_ST0+8}, s{S_CNT}")
    stamp(g, 3, ST and not STP)
    if DS2: e("s_memrealtime s[88:89]")
    rows_reduce(g, V_L, V_T, "v_add_f32")
    e("v_and_b32 v1, 15, v0")
    e("v_lshrrev_b32 v2, 4, v0")
    e("v_lshlrev_b32 v3, 9, v1")
    e("v_lshl_add_u32 v3, v2, 4, v3")
    e(f"v_add_u32 v3, s{S_RB}, v3")
    e(f"s_lshl_b32 s{S_T0}, s{S_WAVE}, 5")
    e(f"s_add_u32 s{S_T0}, s{S_T0}, {L_ML}")
    e(f"v_lshlrev_b32 v4, 3, v1")
    e(f"v_add_u32 v4, s{S_T0}, v4")
    g.nop(8)
    e(f"s_mov_b64 exec, s[{S_EX}:{S_EX+1}]")
    for dt in range(8):
        e(f"ds_write_b128 v3, {vr(V_O+4*dt,4)} offset:{dt*64}")
    e(f"ds_write_b64 v4, {vr(V_M,2)}")
    e("s_mov_b64 exec, -1")
    e(f"s_mov_b64 s[{S_T2}:{S_T2+1}], s[{S_X}:{S_X+1}]")
    for r in (228, 229, 231, 232, 233, 234, 235): e(f"v_mov_b32 v{r}, 0")
    e("s_waitcnt lgkmcnt(0)")
    e("s_branch L_tail")

    g.lab("L_helper")
    H_W = 64
    H_F = 128
    H_WO = 192
    H_G = 224
    S_STG = S_T5
    if o.get("skipA"):
        e("s_waitcnt lgkmcnt(0)")
        e(f"s_load_dword s{S_E}, s[{S_WS}:{S_WS+1}], {WS_E}")
        build_srd(g, SRD_WS, S_WS, WS_SIZE); build_srd(g, SRD_X, S_X, 2048); build_srd(g, SRD_WO, S_WO, 0x400000); build_srd(g, SRD_OUT, S_OUT, 2048)
        build_srd(g, SRD_W, S_WQ, 0x400000)
        e("s_waitcnt lgkmcnt(0)")
        e(f"s_mul_i32 s{S_TAG}, s{S_E}, 1664525"); e(f"s_add_u32 s{S_TAG}, s{S_TAG}, 1013904223")
        if o["b0"]: e("s_barrier")
        e("s_barrier")
        e("s_branch L_hb2")
    if o["prio"]:
        e("s_setprio 3")
    e(f"s_sub_u32 s{S_T5}, s{S_WAVE}, 4")
    e(f"s_lshl_b32 s{S_T5}, s{S_T5}, 12")
    e(f"s_add_u32 s{S_T5}, s{S_T5}, {L_STG}")
    e(f"s_cmp_ge_u32 s{S_WAVE}, 6"); e("s_cbranch_scc1 L_w67")
    e(f"s_and_b32 s{S_T2}, s2, 3")
    e(f"s_lshr_b32 s{S_T1}, s2, 2")
    e("v_lshrrev_b32 v2, 3, v0")
    e("v_and_b32 v3, 7, v0")
    e("v_lshlrev_b32 v1, 4, v0")
    e(f"s_cmp_eq_u32 s{S_WAVE}, 5"); e("s_cbranch_scc1 L_w5setup")
    e(f"s_mov_b32 s{S_T0}, 8192")
    e(f"s_mov_b32 s{S_T3}, {L_XN4}")
    e(f"s_mov_b32 s{S_C0}, {WS_Q}"); e(f"s_mov_b32 s{S_C1}, {4096*8}")
    e("s_waitcnt lgkmcnt(0)")
    build_srd(g, SRD_W, S_WQ, 0x400000)
    if o["dyn"]:
        e(f"s_and_b32 s{S_T4}, s2, 30"); e(f"s_cmp_lg_u32 s{S_T4}, 0"); e("s_cbranch_scc1 L_slice")
        e(f"s_and_b32 s{S_T4}, s2, 1"); e(f"s_lshl_b32 s{S_T4}, s{S_T4}, 3")
        e(f"s_lshr_b32 s{S_SOFF}, s2, 5"); e(f"s_add_u32 s{S_T4}, s{S_T4}, s{S_SOFF}")
        e(f"s_lshl_b32 s{S_T4}, s{S_T4}, 8"); e(f"s_add_u32 s{S_T4}, s{S_T4}, {WS_CNT}")
        e(f"v_mov_b32 v4, s{S_T4}"); e("v_mov_b32 v5, 0")
        e("s_mov_b64 exec, 1")
        e(f"global_store_dword v4, v5, s[{S_WS}:{S_WS+1}] sc1")
        e("s_mov_b64 exec, -1")
    e("s_branch L_slice")
    g.lab("L_w5setup")
    e(f"s_mov_b32 s{S_T0}, 3584")
    e(f"s_mov_b32 s{S_T3}, {L_XN5}")
    e(f"s_mov_b32 s{S_C0}, {WS_H}"); e(f"s_mov_b32 s{S_C1}, {1792*8}")
    e("s_waitcnt lgkmcnt(0)")
    build_srd(g, SRD_W, S_W1, 512*3584)
    e(f"s_cmp_ge_u32 s{S_SPLIT}, 7"); e("s_cbranch_scc1 L_hb0")
    e(f"s_mul_i32 s{S_T1}, s{S_PAIR}, 7"); e(f"s_add_u32 s{S_T1}, s{S_T1}, s{S_SPLIT}")
    e(f"s_and_b32 s{S_T2}, s{S_T1}, 3"); e(f"s_lshr_b32 s{S_T1}, s{S_T1}, 2")
    g.lab("L_slice")
    stamp(g, 4, STA)
    build_srd(g, SRD_X, S_X, 2048)
    e(f"buffer_load_dwordx4 v[8:11], v1, s[{SRD_X}:{SRD_X+3}], 0 offen")
    e(f"buffer_load_dwordx4 v[12:15], v1, s[{SRD_X}:{SRD_X+3}], 0 offen offset:1024")
    e(f"v_mul_lo_u32 v2, v2, s{S_T0}")
    e("v_lshl_add_u32 v2, v3, 4, v2")
    e(f"s_lshl_b32 s{S_SOFF}, s{S_T2}, 7"); e(f"s_mul_i32 s{S_SOFF}, s{S_SOFF}, s{S_T0}")
    e(f"s_lshl_b32 s{S_T4}, s{S_T1}, 7"); e(f"s_add_u32 s{S_SOFF}, s{S_SOFF}, s{S_T4}")
    e(f"s_lshl_b32 s{S_RS32}, s{S_T0}, 3")
    for i in range(16):
        e(f"buffer_load_dwordx4 {vr(H_W+4*i,4)}, v2, s[{SRD_W}:{SRD_W+3}], s{S_SOFF} offen" + (" nt" if o.get("wnt") else ""))
        if i < 15:
            e(f"s_add_u32 s{S_SOFF}, s{S_SOFF}, s{S_RS32}")
    stamp(g, 5, STA)
    if o["b0"]:
        e("s_barrier")
    e(f"s_load_dword s{S_E}, s[{S_WS}:{S_WS+1}], {WS_E}")
    build_srd(g, SRD_WS, S_WS, WS_SIZE)
    build_srd(g, SRD_WO, S_WO, 0x400000)
    build_srd(g, SRD_OUT, S_OUT, 2048)
    e("s_waitcnt vmcnt(16)")
    stamp(g, 6, STA)
    X0, X1 = 16, 24
    for b, (src, dst) in enumerate(((8, X0), (12, X1))):
        for i in range(4):
            e(f"v_lshlrev_b32 v{dst+2*i}, 16, v{src+i}")
            e(f"v_and_b32 v{dst+2*i+1}, 0xffff0000, v{src+i}")
    SU = 32
    for b, dst in enumerate((X0, X1)):
        e(f"v_add_f32 v{SU+b}, v{dst}, v{dst+1}")
        for i in range(2, 8):
            e(f"v_add_f32 v{SU+b}, v{SU+b}, v{dst+i}")
    def wave_sum2(a):
        row_ror_reduce(g, [a, a+1], "v_add_f32", [1, 2, 4, 8])
        rows_reduce_multi(g, [a, a+1], [a+2, a+3], "v_add_f32")
    wave_sum2(SU)
    e(f"s_mov_b32 s{S_T4}, 0x3b000000")
    e(f"v_mul_f32 v{SU}, s{S_T4}, v{SU}")
    e(f"v_mul_f32 v{SU+1}, s{S_T4}, v{SU+1}")
    VA = 36
    for b, dst in enumerate((X0, X1)):
        e(f"v_sub_f32 v40, v{dst}, v{SU+b}")
        e(f"v_mul_f32 v{VA+b}, v40, v40")
        for i in range(1, 8):
            e(f"v_sub_f32 v40, v{dst+i}, v{SU+b}")
            e(f"v_fmac_f32 v{VA+b}, v40, v40")
    wave_sum2(VA)
    e(f"v_mul_f32 v{VA}, s{S_T4}, v{VA}")
    e(f"v_mul_f32 v{VA+1}, s{S_T4}, v{VA+1}")
    e(f"v_cvt_pk_bf16_f32 v40, v{SU}, v{SU+1}")
    e(f"v_cvt_pk_bf16_f32 v41, v{VA}, v{VA+1}")
    e(f"v_lshlrev_b32 v{SU}, 16, v40"); e(f"v_and_b32 v{SU+1}, 0xffff0000, v40")
    e(f"v_lshlrev_b32 v{VA}, 16, v41"); e(f"v_and_b32 v{VA+1}, 0xffff0000, v41")
    e(f"v_add_f32 v{VA}, 0x3727c5ac, v{VA}"); e(f"v_add_f32 v{VA+1}, 0x3727c5ac, v{VA+1}")
    e(f"v_cvt_pk_bf16_f32 v41, v{VA}, v{VA+1}")
    e(f"v_lshlrev_b32 v{VA}, 16, v41"); e(f"v_and_b32 v{VA+1}, 0xffff0000, v41")
    e(f"v_sqrt_f32 v{VA}, v{VA}"); e(f"v_sqrt_f32 v{VA+1}, v{VA+1}")
    g.nop(1)
    e(f"v_cvt_pk_bf16_f32 v41, v{VA}, v{VA+1}")
    e(f"v_lshlrev_b32 v{VA}, 16, v41"); e(f"v_and_b32 v{VA+1}, 0xffff0000, v41")
    e(f"v_rcp_f32 v38, v{VA}"); e(f"v_rcp_f32 v39, v{VA+1}")
    for b, dst in enumerate((X0, X1)):
        for i in range(8):
            e(f"v_sub_f32 v{dst+i}, v{dst+i}, v{SU+b}")
        for i in range(4):
            e(f"v_cvt_pk_bf16_f32 v40, v{dst+2*i}, v{dst+2*i+1}")
            e(f"v_lshlrev_b32 v{dst+2*i}, 16, v40"); e(f"v_and_b32 v{dst+2*i+1}, 0xffff0000, v40")
        for i in range(8):
            e(f"v_mul_f32 v41, v{dst+i}, v{38+b}")
            e(f"v_fma_f32 v42, -v41, v{VA+b}, v{dst+i}")
            e(f"v_fma_f32 v{dst+i}, v42, v{38+b}, v41")
        for i in range(4):
            e(f"v_cvt_pk_bf16_f32 v{44+4*b+i}, v{dst+2*i}, v{dst+2*i+1}")
    e("v_lshlrev_b32 v1, 4, v0")
    e(f"v_add_u32 v1, s{S_T3}, v1")
    e("ds_write_b128 v1, v[44:47]")
    e("ds_write_b128 v1, v[48:51] offset:1024")
    e("v_lshlrev_b32 v1, 4, v0")
    e(f"v_add_u32 v1, s{S_STG}, v1")
    e("v_lshrrev_b32 v2, 4, v0")
    e("v_bfe_u32 v3, v0, 2, 2")
    e("v_lshl_add_u32 v3, v2, 3, v3")
    e("v_and_b32 v4, 3, v0")
    e("v_lshlrev_b32 v5, 7, v3")
    e("v_lshl_add_u32 v5, v4, 3, v5")
    e(f"v_add_u32 v5, s{S_STG}, v5")
    e("v_and_b32 v6, 1, v0")
    e("v_lshlrev_b32 v6, 10, v6")
    e("v_lshl_add_u32 v6, v2, 4, v6")
    e(f"s_lshl_b32 s{S_T4}, s{S_T2}, 8"); e(f"s_add_u32 s{S_T4}, s{S_T4}, s{S_T3}")
    e(f"v_add_u32 v6, s{S_T4}, v6")
    ACC = 48
    stamp(g, 7, STA)
    if STA:
        e("s_waitcnt vmcnt(0)")
        stamp(g, 8, STA)
    for pc in range(4):
        e(f"ds_read_b128 {vr(16+4*pc,4)}, v6 offset:{64*pc}")
    for pc in range(4):
        e(f"s_waitcnt vmcnt({12-4*pc})")
        for i in range(4):
            e(f"ds_write_b128 v1, {vr(H_W+16*pc+4*i,4)} offset:{i*1024}")
        for c in range(4):
            e(f"ds_read_b64_tr_b16 {vr(32+4*c,2)}, v5 offset:{c*32}")
            e(f"ds_read_b64_tr_b16 {vr(32+4*c+2,2)}, v5 offset:{c*32+512}")
        e("s_waitcnt lgkmcnt(0)")
        for c in range(4):
            cc = "0" if pc == 0 else vr(ACC+4*c, 4)
            e(f"v_mfma_f32_16x16x32_bf16 {vr(ACC+4*c,4)}, {vr(16+4*pc,4)}, {vr(32+4*c,4)}, {cc}")
    e(f"s_mul_i32 s{S_TAG}, s{S_E}, 1664525")
    e(f"s_add_u32 s{S_TAG}, s{S_TAG}, 1013904223")
    e(f"s_lshl_b32 s{S_T0}, s{S_T2}, 1"); e(f"s_mul_i32 s{S_T0}, s{S_T0}, s{S_C1}")
    e(f"s_add_u32 s{S_T0}, s{S_T0}, s{S_C0}")
    e(f"s_lshl_b32 s{S_T4}, s{S_T1}, 9"); e(f"s_add_u32 s{S_T0}, s{S_T0}, s{S_T4}")
    e(f"s_add_u32 s{S_T4}, s{S_T0}, s{S_C1}")
    e("v_lshlrev_b32 v1, 3, v0")
    e(f"v_mov_b32 v9, s{S_TAG}"); e(f"v_mov_b32 v11, s{S_TAG}")
    g.nop(4)
    for c in range(4):
        if c < 2:
            e(f"s_mov_b32 exec_lo, {0xffff << (16*c):#x}"); e("s_mov_b32 exec_hi, 0")
        else:
            e("s_mov_b32 exec_lo, 0"); e(f"s_mov_b32 exec_hi, {0xffff << (16*(c-2)):#x}")
        e(f"v_mov_b32 v8, v{ACC+4*c}"); e(f"v_mov_b32 v10, v{ACC+4*c+1}")
    e("s_mov_b64 exec, -1")
    pub2(g, 8, 1, f"s{S_T0}")
    pub2(g, 10, 1, f"s{S_T4}")
    stamp(g, 1, ST)
    e("s_branch L_qg")
    g.lab("L_w67")
    if o["b0"]:
        e("s_barrier")
    e("s_waitcnt lgkmcnt(0)")
    e(f"s_load_dword s{S_E}, s[{S_WS}:{S_WS+1}], {WS_E}")
    build_srd(g, SRD_WS, S_WS, WS_SIZE)
    build_srd(g, SRD_X, S_X, 2048)
    build_srd(g, SRD_WO, S_WO, 0x400000)
    build_srd(g, SRD_OUT, S_OUT, 2048)
    e(f"s_cmp_eq_u32 s{S_WAVE}, 7"); e("s_cbranch_scc1 L_w7")
    e("s_branch L_qg")
    g.lab("L_w6")
    if o.get("prio_after") is not None:
        e(f"s_setprio {o['prio_after']}")
    build_srd(g, SRD_W, S_W2, 1792*1024)
    e(f"s_sub_u32 s{S_T0}, s{S_SPLIT}, 7")
    e(f"s_cmp_ge_u32 s{S_T0}, 7")
    e("s_cbranch_scc1 L_wo")
    e(f"s_mul_i32 s{S_T1}, s{S_PAIR}, 7"); e(f"s_add_u32 s{S_T0}, s{S_T0}, s{S_T1}")
    e(f"s_lshr_b32 s{S_T1}, s{S_T0}, 2")
    e(f"s_and_b32 s{S_T2}, s{S_T0}, 3")
    e("v_lshrrev_b32 v2, 3, v0"); e("v_lshlrev_b32 v2, 10, v2")
    e("v_and_b32 v3, 7, v0"); e("v_lshl_add_u32 v2, v3, 4, v2")
    e(f"s_lshl_b32 s{S_SOFF}, s{S_T1}, 16")
    e(f"s_lshl_b32 s{S_T3}, s{S_T2}, 8")
    e(f"s_add_u32 s{S_SOFF}, s{S_SOFF}, s{S_T3}")
    for ks in range(2):
        for ch in range(2):
            for u in range(4):
                idx = (ks * 2 + ch) * 4 + u
                e(f"s_add_u32 s{S_T3}, s{S_SOFF}, {(32*ks+8*u)*1024}")
                e(f"buffer_load_dwordx4 {vr(H_W+4*idx,4)}, v2, s[{SRD_W}:{SRD_W+3}], s{S_T3} offen offset:{ch*128}" + (" nt" if o.get("wnt") else ""))
    stamp(g, 4, STF)
    e("v_lshlrev_b32 v1, 4, v0")
    e(f"v_add_u32 v1, s{S_STG}, v1")
    e("v_lshrrev_b32 v2, 4, v0"); e("v_bfe_u32 v3, v0, 2, 2"); e("v_lshl_add_u32 v3, v2, 3, v3"); e("v_and_b32 v4, 3, v0")
    e("v_lshlrev_b32 v5, 7, v3"); e("v_lshl_add_u32 v5, v4, 3, v5"); e(f"v_add_u32 v5, s{S_STG}, v5")
    e("s_waitcnt vmcnt(0)")
    stamp(g, 5, STF)
    for ks in range(2):
        for ch in range(2):
            pc = ks * 2 + ch
            for u in range(4):
                e(f"ds_write_b128 v1, {vr(H_W+16*pc+4*u,4)} offset:{u*1024}")
            for c in range(4):
                f = H_F + 4 * (ks * 8 + ch * 4 + c)
                e(f"ds_read_b64_tr_b16 {vr(f,2)}, v5 offset:{c*32}")
                e(f"ds_read_b64_tr_b16 {vr(f+2,2)}, v5 offset:{c*32+512}")
            e("s_waitcnt lgkmcnt(0)")
    e("v_lshrrev_b32 v6, 5, v0")
    e(f"v_mul_u32_u24 v6, {1792*8}, v6")
    e("v_and_b32 v7, 31, v0")
    e("v_lshl_add_u32 v6, v7, 4, v6")
    e(f"s_lshl_b32 s{S_T0}, s{S_T1}, 9"); e(f"s_add_u32 s{S_T0}, s{S_T0}, {WS_H}")
    def hl():
        for r4 in range(4):
            e(f"s_add_u32 s{S_T3}, s{S_T0}, {r4*2*1792*8}")
            e(f"buffer_load_dwordx4 {vr(16+4*r4,4)}, v6, s[{SRD_WS}:{SRD_WS+3}], s{S_T3} offen sc1")
    stamp(g, 6, STF)
    poll(g, "h", hl, [17+2*i for i in range(8)], 8, sleep=8)
    stamp(g, 7, STF)
    e("v_add_f32 v16, v16, v20"); e("v_add_f32 v18, v18, v22"); e("v_add_f32 v24, v24, v28"); e("v_add_f32 v26, v26, v30")
    e("v_add_f32 v16, v16, v24"); e("v_add_f32 v18, v18, v26")
    e("v_cvt_pk_bf16_f32 v8, v16, v18")
    e("v_lshlrev_b32 v10, 16, v8"); e("v_and_b32 v11, 0xffff0000, v8")
    e(f"s_mov_b32 s{S_T0}, {L2E:#x}")
    for r in (10, 11):
        e(f"v_mul_f32 v12, s{S_T0}, v{r}")
        e(f"v_exp_f32 v12, -v12"); g.nop(1)
        e(f"v_add_f32 v12, 1.0, v12")
        e(f"v_rcp_f32 v12, v12"); g.nop(1)
        e(f"v_mul_f32 v{r}, v{r}, v12")
    e("v_cvt_pk_bf16_f32 v12, v10, v11")
    e("v_lshlrev_b32 v7, 2, v0")
    e(f"v_add_u32 v7, {L_H}, v7")
    e("ds_write_b32 v7, v12")
    e("v_and_b32 v6, 1, v0"); e("v_lshlrev_b32 v6, 7, v6"); e("v_lshl_add_u32 v6, v2, 4, v6"); e(f"v_add_u32 v6, {L_H}, v6")
    e("ds_read_b128 v[16:19], v6")
    e("ds_read_b128 v[20:23], v6 offset:64")
    e("s_waitcnt lgkmcnt(0)")
    for c in range(8):
        e(f"v_mfma_f32_16x16x32_bf16 {vr(H_W+4*c,4)}, v[16:19], {vr(H_F+4*c,4)}, 0")
    for c in range(8):
        e(f"v_mfma_f32_16x16x32_bf16 {vr(H_W+4*c,4)}, v[20:23], {vr(H_F+32+4*c,4)}, {vr(H_W+4*c,4)}")
    g.nop(10)
    e("v_and_b32 v1, 15, v0"); e("v_lshlrev_b32 v1, 3, v1")
    e(f"s_lshl_b32 s{S_T0}, s{S_T1}, 13")
    e(f"s_lshl_b32 s{S_T3}, s{S_T2}, 10")
    e(f"s_add_u32 s{S_T0}, s{S_T0}, s{S_T3}"); e(f"s_add_u32 s{S_T0}, s{S_T0}, {WS_F}")
    e(f"s_add_u32 s{S_T3}, s{S_T0}, 4096")
    e(f"v_mov_b32 v9, s{S_TAG}"); e(f"v_mov_b32 v11, s{S_TAG}")
    e("s_mov_b64 exec, 0xffff")
    for c in range(8):
        e(f"v_mov_b32 v8, v{H_W+4*c}"); e(f"v_mov_b32 v10, v{H_W+4*c+1}")
        e(f"buffer_store_dwordx2 v[8:9], v1, s[{SRD_WS}:{SRD_WS+3}], s{S_T0} offen offset:{c*128} sc1")
        e(f"buffer_store_dwordx2 v[10:11], v1, s[{SRD_WS}:{SRD_WS+3}], s{S_T3} offen offset:{c*128} sc1")
        g.nop(2)
    e("s_mov_b64 exec, -1")
    stamp(g, 8, STF)
    e("s_branch L_wo")

    g.lab("L_w7")
    if o.get("tlbwarm"):
        build_srd(g, SRD_K, S_K, 0x8000000)
        build_srd(g, SRD_V, S_V, 0x8000000)
        e(f"s_lshl_b32 s{S_T0}, s{S_PAIR}, 23")
        e(f"v_lshlrev_b32 v1, {o.get('tlbshift', 21)}, v0")
        e(f"s_mov_b32 exec_lo, {(1 << (8 << 20 >> o.get('tlbshift', 21))) - 1:#x}"); e("s_mov_b32 exec_hi, 0")
        e(f"buffer_load_dword v230, v1, s[{SRD_K}:{SRD_K+3}], s{S_T0} offen nt")
        e(f"buffer_load_dword v230, v1, s[{SRD_V}:{SRD_V+3}], s{S_T0} offen nt")
        e("s_mov_b64 exec, -1")
    if o["prefetch_code"]:
        pfm = o.get("pfmask", 7)
        e(f"s_lshr_b32 s{S_T0}, s2, 3"); e(f"s_and_b32 s{S_T0}, s{S_T0}, {pfm}"); e(f"s_cmp_lg_u32 s{S_T0}, 0"); e("s_cbranch_scc1 L_qg")
        e(f"s_getpc_b64 s[{S_T0}:{S_T0+1}]")
        g.lab("L_pcbase")
        e(f"s_sub_u32 s{S_T0}, s{S_T0}, L_pcbase-{KN}_kernel")
        e(f"s_subb_u32 s{S_T0+1}, s{S_T0+1}, 0")
        e(f"v_lshlrev_b32 v1, {o.get('pfshift', 7)}, v0")
        e("CODE_PREFETCH_PLACEHOLDER")
    e("s_branch L_qg")
    g.lab("L_hb0")
    if o["b0"]:
        e("s_barrier")
    e(f"s_load_dword s{S_E}, s[{S_WS}:{S_WS+1}], {WS_E}")
    build_srd(g, SRD_WS, S_WS, WS_SIZE)
    build_srd(g, SRD_X, S_X, 2048)
    build_srd(g, SRD_WO, S_WO, 0x400000)
    build_srd(g, SRD_OUT, S_OUT, 2048)
    g.lab("L_qg")
    e("s_waitcnt lgkmcnt(0)")
    e(f"s_mul_i32 s{S_TAG}, s{S_E}, 1664525")
    e(f"s_add_u32 s{S_TAG}, s{S_TAG}, 1013904223")
    e(f"s_lshl_b32 s{S_T0}, s{S_B}, 12"); e(f"s_lshl_b32 s{S_T2}, s{S_HKV}, 9")
    e(f"s_add_u32 s{S_T0}, s{S_T0}, s{S_T2}")
    e(f"s_sub_u32 s{S_T2}, s{S_WAVE}, 4"); e(f"s_lshl_b32 s{S_T1}, s{S_T2}, 7")
    e(f"s_add_u32 s{S_T0}, s{S_T0}, s{S_T1}"); e(f"s_lshl_b32 s{S_T0}, s{S_T0}, 3")
    e(f"s_add_u32 s{S_T0}, s{S_T0}, {WS_Q}")
    if o.get("qflag", True):
        LW = g.new("qfw"); LG = g.new("qfg")
        e(f"v_mov_b32 v2, {L_FLAG}")
        e(f"s_cmp_lg_u32 s{S_WAVE}, 4"); e(f"s_cbranch_scc1 {LW}")
        e(f"v_mov_b32 v3, s{S_TAG}")
        e("ds_write_b32 v2, v3")
        e(f"s_branch {LG}")
        g.lab(LW)
        e(f"s_mov_b32 s{S_RETRY}, 0x100000")
        LW2 = g.new("qfw2")
        g.lab(LW2)
        e("ds_read_b32 v3, v2")
        e("s_waitcnt lgkmcnt(0)")
        e(f"v_readfirstlane_b32 s{S_T1}, v3")
        e(f"s_cmp_eq_u32 s{S_T1}, s{S_TAG}"); e(f"s_cbranch_scc1 {LG}")
        e(f"s_sub_u32 s{S_RETRY}, s{S_RETRY}, 1"); e(f"s_cbranch_scc1 {LG}")
        e("s_sleep 2")
        e(f"s_branch {LW2}")
        g.lab(LG)
    e("v_lshlrev_b32 v1, 4, v0")
    def ql():
        for rb in range(4):
            e(f"s_add_u32 s{S_T1}, s{S_T0}, {rb*2*4096*8}")
            e(f"buffer_load_dwordx4 {vr(16+4*rb,4)}, v1, s[{SRD_WS}:{SRD_WS+3}], s{S_T1} offen sc1")
    poll(g, "q", ql, [17+2*i for i in range(8)], 8, sleep=o.get("qsleep", 4))
    e("v_add_f32 v16, v16, v20"); e("v_add_f32 v18, v18, v22"); e("v_add_f32 v24, v24, v28"); e("v_add_f32 v26, v26, v30")
    e("v_add_f32 v16, v16, v24"); e("v_add_f32 v18, v18, v26")
    e("v_cvt_pk_bf16_f32 v12, v16, v18")
    e(f"s_lshl_b32 s{S_T2}, s{S_T2}, 8"); e(f"s_add_u32 s{S_T2}, s{S_T2}, {L_Q}")
    e("v_lshlrev_b32 v1, 2, v0"); e(f"v_add_u32 v1, s{S_T2}, v1")
    e("ds_write_b32 v1, v12")
    e("s_waitcnt lgkmcnt(0)")
    stamp(g, 2, ST)
    e("s_barrier")
    if o.get("skiphelp"):
        e("s_branch L_hb2")
    if not o.get("skipffn2"):
        e(f"s_cmp_eq_u32 s{S_WAVE}, 6"); e("s_cbranch_scc1 L_w6")
    g.lab("L_wo")
    if o.get("prio_after") is not None:
        e(f"s_setprio {o['prio_after']}")
    if o.get("skipwo"): e("s_branch L_wodone")
    e(f"s_and_b32 s{S_T0}, s{S_SPLIT}, 3")
    e(f"s_lshl_b32 s{S_T1}, s{S_HKV}, 2"); e(f"s_add_u32 s{S_T1}, s{S_T1}, s{S_T0}")
    e(f"s_lshl_b32 s{S_SOFF}, s{S_T1}, 17")
    e(f"s_bfe_u32 s{S_T2}, s{S_SPLIT}, 0x10002"); e(f"s_lshl_b32 s{S_T2}, s{S_T2}, 16")
    e(f"s_add_u32 s{S_SOFF}, s{S_SOFF}, s{S_T2}")
    e(f"s_lshr_b32 s{S_T2}, s{S_SPLIT}, 3"); e(f"s_lshl_b32 s{S_T2}, s{S_T2}, 9")
    e(f"s_add_u32 s{S_SOFF}, s{S_SOFF}, s{S_T2}")
    e(f"s_sub_u32 s{S_T2}, s{S_WAVE}, 4"); e(f"s_lshl_b32 s{S_T2}, s{S_T2}, 7")
    e(f"s_add_u32 s{S_SOFF}, s{S_SOFF}, s{S_T2}")
    e("v_lshrrev_b32 v2, 3, v0"); e("v_lshlrev_b32 v2, 10, v2"); e("v_and_b32 v3, 7, v0"); e("v_lshl_add_u32 v2, v3, 4, v2")
    for u in range(8):
        e(f"buffer_load_dwordx4 {vr(H_W+4*u,4)}, v2, s[{SRD_WO}:{SRD_WO+3}], s{S_SOFF} offen" + o.get("wofl", " nt"))
        if u < 7:
            e(f"s_add_u32 s{S_SOFF}, s{S_SOFF}, {8*1024}")
    e("v_lshlrev_b32 v1, 4, v0"); e(f"v_add_u32 v1, s{S_STG}, v1")
    e("v_lshrrev_b32 v2, 4, v0"); e("v_bfe_u32 v3, v0, 2, 2"); e("v_lshl_add_u32 v3, v2, 3, v3"); e("v_and_b32 v4, 3, v0")
    e("v_lshlrev_b32 v5, 7, v3"); e("v_lshl_add_u32 v5, v4, 3, v5"); e(f"v_add_u32 v5, s{S_STG}, v5")
    e("s_waitcnt vmcnt(0)")
    for pc in range(2):
        for u in range(4):
            e(f"ds_write_b128 v1, {vr(H_W+16*pc+4*u,4)} offset:{u*1024}")
        for ct in range(4):
            f = H_WO + 4 * (pc * 4 + ct)
            e(f"ds_read_b64_tr_b16 {vr(f,2)}, v5 offset:{ct*32}")
            e(f"ds_read_b64_tr_b16 {vr(f+2,2)}, v5 offset:{ct*32+512}")
        e("s_waitcnt lgkmcnt(0)")
    g.lab("L_wodone")
    if o.get("skipffn2"): e("s_branch L_hb2")
    e(f"s_cmp_lg_u32 s{S_WAVE}, 7"); e("s_cbranch_scc1 L_hb2")
    for ln in ['s_xor_b32 s60, s57, s56', 's_and_b32 s60, s60, 3', 's_cmp_lg_u32 s60, 0', 's_cbranch_scc1 L_hb2']: e(ln)
    for ln in ['s_lshr_b32 s68, s57, 2', 's_and_b32 s60, s68, 1', 's_lshl_b32 s60, s60, 1', 's_lshr_b32 s68, s68, 1', 's_add_u32 s68, s68, s60', 's_lshl_b32 s60, s56, 2', 's_add_u32 s68, s68, s60']: e(ln)
    e("v_lshrrev_b32 v2, 5, v0"); e("v_bfe_u32 v3, v0, 2, 3"); e("v_and_b32 v4, 3, v0")
    e("v_min_u32 v7, 6, v3")
    e(f"v_mul_u32_u24 v5, {4*2*512*8}, v7")
    e("v_lshl_add_u32 v5, v2, 12, v5")
    e("v_lshl_add_u32 v5, v4, 4, v5")
    e(f"s_lshl_b32 s{S_T0}, s68, 6")
    e(f"v_add_u32 v5, s{S_T0}, v5")
    def fl():
        for i in range(4):
            e(f"s_mov_b32 s{S_T1}, {WS_F + i*8192}")
            e(f"buffer_load_dwordx4 {vr(16+4*i,4)}, v5, s[{SRD_WS}:{SRD_WS+3}], s{S_T1} offen sc1")
    e("v_lshlrev_b32 v6, 10, v2"); e("v_lshl_add_u32 v6, v4, 2, v6"); e(f"s_lshl_b32 s{S_T1}, s68, 4"); e(f"v_add_u32 v6, s{S_T1}, v6")
    e(f"buffer_load_dword v{H_G+2}, v6, s[{SRD_X}:{SRD_X+3}], 0 offen")
    poll(g, "f", fl, [17+2*i for i in range(8)], 8, sleep=16)
    e("v_add_f32 v16, v16, v20"); e("v_add_f32 v18, v18, v22"); e("v_add_f32 v24, v24, v28"); e("v_add_f32 v26, v26, v30")
    e("v_add_f32 v16, v16, v24"); e("v_add_f32 v18, v18, v26")
    e("v_cmp_gt_u32 vcc, 7, v3"); g.nop(2)
    e("v_cndmask_b32 v16, 0, v16, vcc"); e("v_cndmask_b32 v18, 0, v18, vcc")
    row_ror_reduce(g, [16, 18], "v_add_f32", [4, 8])
    e("v_mov_b32 v20, v16"); e("v_mov_b32 v21, v18"); g.nop(2)
    e("v_permlane16_swap_b32 v16, v20"); e("v_permlane16_swap_b32 v18, v21"); g.nop(1)
    e("v_add_f32 v16, v16, v20"); e("v_add_f32 v18, v18, v21")
    e("v_cvt_pk_bf16_f32 v8, v16, v18")
    e("v_lshlrev_b32 v10, 16, v8"); e("v_and_b32 v11, 0xffff0000, v8")
    e(f"s_mov_b32 s{S_T0}, {L2E:#x}")
    for r in (10, 11):
        e(f"v_mul_f32 v12, s{S_T0}, v{r}")
        e(f"v_exp_f32 v12, -v12"); g.nop(1)
        e(f"v_add_f32 v12, 1.0, v12")
        e(f"v_rcp_f32 v12, v12"); g.nop(1)
        e(f"v_mul_f32 v{r}, v{r}, v12")
    e("v_cvt_pk_bf16_f32 v8, v10, v11")
    e(f"v_lshlrev_b32 v{H_G}, 16, v8"); e(f"v_and_b32 v{H_G+1}, 0xffff0000, v8")
    g.lab("L_hb2")
    e(f"s_sub_u32 s{S_T0}, s{S_WAVE}, 4")
    e(f"s_lshl_b32 s{S_T1}, s{S_T0}, 9")
    e("v_lshlrev_b32 v232, 2, v0"); e(f"v_add_u32 v232, s{S_T1}, v232")
    e(f"v_add_u32 v233, {2*RING}, v232")
    e(f"s_lshl_b32 s{S_T1}, s{S_T0}, 3"); e(f"s_add_u32 s{S_T1}, s{S_T1}, {L_ML}")
    e(f"v_mov_b32 v234, s{S_T1}")
    e("v_lshlrev_b32 v235, 4, v0")
    e("v_and_b32 v228, 1, v0")
    e(f"s_lshl_b32 s67, s{S_PAIR}, 4"); e(f"s_add_u32 s67, s67, s{S_SPLIT}")
    e(f"s_lshl_b32 s67, s67, 2"); e(f"s_add_u32 s67, s67, s{S_T0}")
    e(f"s_lshl_b32 s67, s67, 11"); e(f"s_add_u32 s67, s67, {WS_P}")
    e("v_lshrrev_b32 v236, 4, v0"); e("v_lshlrev_b32 v236, 4, v236"); e(f"v_add_u32 v236, {L_OB}, v236")
    e("v_lshlrev_b32 v237, 3, v0")
    e(f"s_and_b32 s{S_T2}, s{S_SPLIT}, 3")
    e(f"s_lshl_b32 s69, s{S_HKV}, 2"); e(f"s_add_u32 s69, s69, s{S_T2}")
    e(f"s_lshl_b32 s69, s69, 1"); e(f"s_bfe_u32 s{S_T2}, s{S_SPLIT}, 0x10002"); e(f"s_add_u32 s69, s69, s{S_T2}")
    e(f"s_lshl_b32 s{S_T2}, s{S_B}, 6"); e(f"s_add_u32 s69, s69, s{S_T2}")
    e(f"s_lshl_b32 s69, s69, 12")
    e(f"s_lshr_b32 s{S_T2}, s{S_SPLIT}, 3"); e(f"s_lshl_b32 s{S_T2}, s{S_T2}, 11"); e(f"s_add_u32 s69, s69, s{S_T2}")
    e(f"s_lshl_b32 s{S_T2}, s{S_T0}, 9"); e(f"s_add_u32 s69, s69, s{S_T2}")
    e(f"s_add_u32 s69, s69, {WS_S}")
    for ln in ['s_lshr_b32 s68, s57, 2', 's_and_b32 s61, s68, 1', 's_lshl_b32 s61, s61, 1', 's_lshr_b32 s68, s68, 1', 's_add_u32 s68, s68, s61', 's_lshl_b32 s61, s56, 2', 's_add_u32 s68, s68, s61']: e(ln)
    e("v_lshrrev_b32 v2, 5, v0"); e("v_bfe_u32 v3, v0, 2, 3"); e("v_and_b32 v4, 3, v0")
    e("v_lshlrev_b32 v238, 18, v2"); e("v_lshl_add_u32 v238, v3, 15, v238"); e("v_lshl_add_u32 v238, v4, 4, v238")
    e(f"s_lshl_b32 s{S_T0}, s68, 6"); e(f"v_add_u32 v238, s{S_T0}, v238")
    e("v_lshlrev_b32 v239, 10, v2"); e("v_lshl_add_u32 v239, v4, 2, v239"); e(f"s_lshl_b32 s{S_T1}, s68, 4"); e(f"v_add_u32 v239, s{S_T1}, v239")
    e("s_mov_b32 s70, 0xffff0000"); e("s_mov_b32 s71, 0")
    e("s_mov_b32 s72, 0"); e("s_mov_b32 s73, 0x0000ffff")
    e("s_mov_b32 s74, 0"); e("s_mov_b32 s75, 0xffff0000")
    e(f"v_mov_b32 v41, s{S_TAG}"); e(f"v_mov_b32 v43, s{S_TAG}"); e(f"v_mov_b32 v45, s{S_TAG}"); e(f"v_mov_b32 v47, s{S_TAG}")
    e(f"s_mov_b32 s{S_C0}, {L2E:#x}")
    if o.get("pretouch"):
        fl = "" if o["pretouch"] == 1 else " sc1"
        e(f"buffer_load_dword v227, v235, s[{SRD_WS}:{SRD_WS+3}], s67 offen{fl}")
        e(f"buffer_load_dword v227, v235, s[{SRD_WS}:{SRD_WS+3}], s67 offen offset:1152{fl}")
        e(f"buffer_load_dword v227, v237, s[{SRD_WS}:{SRD_WS+3}], s69 offen{fl}")
    if o.get("tailpf", True):
        e(f"s_getpc_b64 s[{S_T2}:{S_T2+1}]")
        g.lab("L_pc2")
        e(f"s_add_u32 s{S_T2}, s{S_T2}, L_tail-L_pc2"); e(f"s_addc_u32 s{S_T2+1}, s{S_T2+1}, 0")
        e("v_lshlrev_b32 v229, 7, v0")
        e(f"v_min_u32 v229, L_code_end-L_tail-4, v229")
    stamp(g, 3, ST)

    g.lab("L_tail")
    if DS:
        LX = g.new("ds")
        e(f"s_cmp_lg_u32 s{S_WAVE}, 0"); e(f"s_cbranch_scc1 {LX}")
        dstamp(g, 2, True)
        e("v_mov_b32 v236, 12"); e("v_mov_b32 v237, s88")
        e("s_mov_b64 exec, 1")
        e(f"global_atomic_umax v236, v237, s[{S_DBG}:{S_DBG+1}]")
        e("s_mov_b64 exec, -1")
        e("s_not_b32 s90, s90")
        e("v_mov_b32 v236, 0"); e("v_mov_b32 v237, s90")
        e("s_mov_b64 exec, 1")
        e(f"global_atomic_umax v236, v237, s[{S_DBG}:{S_DBG+1}]")
        e("s_mov_b64 exec, -1")
        g.lab(LX)
    e("s_barrier")
    stamp(g, 4, STT)
    e(f"s_cmp_lt_u32 s{S_WAVE}, 4"); e("s_cbranch_scc1 L_t2")
    e("ds_read_b32 v8, v232"); e("ds_read_b32 v9, v232 offset:256")
    e("ds_read_b32 v10, v232 offset:32768"); e("ds_read_b32 v11, v232 offset:33024")
    e("ds_read_b32 v12, v233"); e("ds_read_b32 v13, v233 offset:256")
    e("ds_read_b32 v14, v233 offset:32768"); e("ds_read_b32 v15, v233 offset:33024")
    for w in range(4):
        e(f"ds_read_b64 {vr(16+2*w,2)}, v234 offset:{w*32}")
    if o.get("tailpf", True):
        LP = g.new("tpf")
        e(f"s_cmp_lg_u32 s{S_WAVE}, 7"); e(f"s_cbranch_scc1 {LP}")
        e("s_mov_b32 exec_hi, 0")
        e(f"global_load_dword v230, v229, s[{S_T2}:{S_T2+1}]")
        e("s_mov_b64 exec, -1")
        g.lab(LP)
    e("v_cmp_eq_u32 vcc, 1, v228")
    e("s_waitcnt lgkmcnt(0)")
    e("v_max3_f32 v24, v16, v18, v20"); e("v_max_f32 v24, v24, v22")
    for w in range(4):
        e(f"v_sub_f32 v{16+2*w}, v{16+2*w}, v24")
    for w in range(4):
        e(f"v_mul_f32 v{16+2*w}, s{S_C0}, v{16+2*w}")
    for w in range(4):
        e(f"v_exp_f32 v{16+2*w}, v{16+2*w}")
    g.nop(1)
    e("v_mul_f32 v40, v8, v16"); e("v_mul_f32 v44, v9, v16"); e("v_mul_f32 v46, v17, v16")
    for w in range(1, 4):
        e(f"v_fmac_f32 v40, v{8+2*w}, v{16+2*w}"); e(f"v_fmac_f32 v44, v{9+2*w}, v{16+2*w}"); e(f"v_fmac_f32 v46, v{17+2*w}, v{16+2*w}")
    e("v_cndmask_b32 v42, v24, v46, vcc")
    e("v_mov_b32 v46, v42")
    e(f"buffer_store_dwordx4 v[40:43], v235, s[{SRD_WS}:{SRD_WS+3}], s67 offen sc1")
    e(f"buffer_store_dwordx4 v[44:47], v235, s[{SRD_WS}:{SRD_WS+3}], s67 offen offset:1024 sc1")
    if o.get("diagH") == 1:
        stamp(g, 1, True)
        e("s_waitcnt vmcnt(0)")
        stamp(g, 2, True)
    g.lab("L_t2")
    stamp(g, 5, STT)
    e(f"s_and_b32 s{S_T0}, s{S_SPLIT}, 3")
    e("v_lshrrev_b32 v2, 2, v0"); e("v_and_b32 v3, 3, v0")
    e("v_lshlrev_b32 v5, 13, v2")
    e("v_lshl_add_u32 v4, v3, 5, v5")
    e(f"s_lshl_b32 s{S_T1}, s{S_PAIR}, 17")
    e(f"s_lshl_b32 s{S_T2}, s{S_T0}, 11"); e(f"s_add_u32 s{S_T1}, s{S_T1}, s{S_T2}")
    e(f"s_bfe_u32 s{S_T2}, s{S_SPLIT}, 0x10002"); e(f"s_lshl_b32 s{S_T2}, s{S_T2}, 10"); e(f"s_add_u32 s{S_T1}, s{S_T1}, s{S_T2}")
    e(f"s_lshl_b32 s{S_T2}, s{S_WAVE}, 7"); e(f"s_add_u32 s{S_T1}, s{S_T1}, s{S_T2}")
    e(f"s_add_u32 s{S_T1}, s{S_T1}, {WS_P}")
    def pl():
        e(f"buffer_load_dwordx4 v[8:11], v4, s[{SRD_WS}:{SRD_WS+3}], s{S_T1} offen sc1")
        e(f"buffer_load_dwordx4 v[12:15], v4, s[{SRD_WS}:{SRD_WS+3}], s{S_T1} offen offset:16 sc1")
    if o.get("gate"):
        LG = g.new("gate")
        e(f"s_cmp_eq_u32 s{S_WAVE}, {o['gate'] - 1}"); e(f"s_cbranch_scc1 {LG}")
        e("s_barrier")
        g.lab(LG)
    poll(g, "p", pl, [9, 11, 13, 15], 24, sleep=o.get("psleep", 1))
    if o.get("gate"):
        LG2 = g.new("gate2")
        e(f"s_cmp_lg_u32 s{S_WAVE}, {o['gate'] - 1}"); e(f"s_cbranch_scc1 {LG2}")
        e("s_barrier")
        g.lab(LG2)
    e("v_mov_b32 v16, v10"); e("v_mov_b32 v18, v14"); e("v_mov_b32 v10, v12")
    stamp(g, 6, STT)
    e("v_mov_b32 v20, v16")
    row_ror_reduce(g, [20], "v_max_f32", [4, 8])
    rows_reduce(g, 20, 21, "v_max_f32")
    e(f"s_mov_b32 s{S_C0}, {L2E:#x}")
    e("v_sub_f32 v16, v16, v20"); e(f"v_mul_f32 v16, s{S_C0}, v16"); e("v_exp_f32 v16, v16"); g.nop(1)
    e("v_mul_f32 v18, v18, v16")
    e("v_mul_f32 v8, v8, v16"); e("v_mul_f32 v10, v10, v16")
    row_ror_reduce(g, [8, 10, 18], "v_add_f32", [4, 8])
    rows_reduce_multi(g, [8, 10, 18], [26, 27, 28], "v_add_f32")
    e("v_rcp_f32 v19, v18"); g.nop(1)
    for r in (8, 10):
        e(f"v_mul_f32 v20, v{r}, v19"); e(f"v_fma_f32 v21, -v20, v18, v{r}"); e(f"v_fma_f32 v{r}, v21, v19, v20")
    e("v_cvt_pk_bf16_f32 v22, v8, v10")
    e(f"s_lshl_b32 s{S_T2}, s{S_WAVE}, 4"); e(f"s_add_u32 s{S_T2}, s{S_T2}, {L_OB}")
    e(f"v_lshlrev_b32 v3, 2, v3"); e(f"v_add_u32 v3, s{S_T2}, v3")
    e("s_mov_b64 exec, 0xf")
    e("ds_write_b32 v3, v22")
    e("s_mov_b64 exec, -1")
    e("s_waitcnt lgkmcnt(0)")
    e("s_barrier")
    e(f"s_cmp_lt_u32 s{S_WAVE}, 4"); e("s_cbranch_scc1 L_fin")
    for ks in range(2):
        e(f"ds_read_b128 {vr(8+4*ks,4)}, v236 offset:{ks*64}")
    e("s_waitcnt lgkmcnt(0)")
    for ks in range(2):
        for ct in range(4):
            c = "0" if ks == 0 else vr(16+4*ct, 4)
            e(f"v_mfma_f32_16x16x32_bf16 {vr(16+4*ct,4)}, {vr(8+4*ks,4)}, {vr(H_WO+4*(ks*4+ct),4)}, {c}")
    g.nop(6)
    e("v_cndmask_b32 v40, v16, v20, s[70:71]")
    e("v_cndmask_b32 v40, v40, v24, s[72:73]")
    g.nop(1)
    e("v_cndmask_b32 v40, v40, v28, s[74:75]")
    pub2(g, 40, 237, "s69")
    if o.get("diagH") == 2:
        stamp(g, 1, True)
        e("s_waitcnt vmcnt(0)")
        stamp(g, 2, True)
    stamp(g, 7, STT)
    e(f"s_cmp_lg_u32 s{S_WAVE}, 7"); e("s_cbranch_scc1 L_fin")
    for ln in ['s_xor_b32 s60, s57, s56', 's_and_b32 s60, s60, 3', 's_cmp_lg_u32 s60, 0', 's_cbranch_scc1 L_fin']: e(ln)
    def sl():
        for i in range(8):
            e(f"s_mov_b32 s{S_T1}, {WS_S + i*4096}")
            e(f"buffer_load_dwordx4 {vr(64+4*i,4)}, v238, s[{SRD_WS}:{SRD_WS+3}], s{S_T1} offen sc1")
    poll(g, "s", sl, [64+2*i+1 for i in range(16)], 8)
    stamp(g, 8, STT)
    for i in range(4):
        e(f"v_add_f32 v{64+4*i}, v{64+4*i}, v{80+4*i}"); e(f"v_add_f32 v{66+4*i}, v{66+4*i}, v{82+4*i}")
    e("v_add_f32 v64, v64, v72"); e("v_add_f32 v66, v66, v74"); e("v_add_f32 v68, v68, v76"); e("v_add_f32 v70, v70, v78")
    e("v_add_f32 v16, v64, v68"); e("v_add_f32 v18, v66, v70")
    row_ror_reduce(g, [16, 18], "v_add_f32", [4, 8])
    e("v_mov_b32 v20, v16"); e("v_mov_b32 v21, v18"); g.nop(2)
    e("v_permlane16_swap_b32 v16, v20"); e("v_permlane16_swap_b32 v18, v21"); g.nop(1)
    e("v_add_f32 v16, v16, v20"); e("v_add_f32 v18, v18, v21")
    e("v_cvt_pk_bf16_f32 v8, v16, v18")
    e("v_lshlrev_b32 v10, 16, v8"); e("v_and_b32 v11, 0xffff0000, v8")
    e(f"v_mul_f32 v10, v10, v{H_G}"); e(f"v_mul_f32 v11, v11, v{H_G+1}")
    e("v_cvt_pk_bf16_f32 v8, v10, v11")
    e("v_lshlrev_b32 v10, 16, v8"); e("v_and_b32 v11, 0xffff0000, v8")
    e(f"v_lshlrev_b32 v12, 16, v{H_G+2}"); e(f"v_and_b32 v13, 0xffff0000, v{H_G+2}")
    e("v_add_f32 v10, v10, v12"); e("v_add_f32 v11, v11, v13")
    e("v_cvt_pk_bf16_f32 v8, v10, v11")
    e("s_mov_b32 exec_lo, 0xf"); e("s_mov_b32 exec_hi, 0xf")
    e(f"buffer_store_dword v8, v239, s[{SRD_OUT}:{SRD_OUT+3}], 0 offen")
    e("s_mov_b64 exec, -1")
    if DS: dstamp(g, 1, True)
    e("s_cmp_lg_u32 s2, 0"); e("s_cbranch_scc1 L_fin")
    e(f"v_mov_b32 v8, s{S_TAG}"); e("v_mov_b32 v1, 0")
    e("s_mov_b64 exec, 1")
    e(f"buffer_store_dword v8, v1, s[{SRD_WS}:{SRD_WS+3}], 0 offen sc1")
    e("s_mov_b64 exec, -1")
    g.lab("L_fin")
    if DS2:
        LX = g.new("ds2"); LY = g.new("ds2y")
        e("s_memrealtime s[84:85]")
        e("s_waitcnt lgkmcnt(0)")
        e("s_mov_b64 exec, 1")
        e(f"s_cmp_eq_u32 s{S_WAVE}, 7"); e(f"s_cbranch_scc1 {LY}")
        e(f"s_cmp_lg_u32 s{S_WAVE}, 0"); e(f"s_cbranch_scc1 {LX}")
        e("s_cmp_ge_u32 s2, 3"); e(f"s_cbranch_scc1 {LX}")
        e("s_mul_i32 s83, s2, 12")
        e("v_mov_b32 v1, s83")
        e("v_mov_b32 v2, s90"); e("v_mov_b32 v3, s86"); e("v_mov_b32 v4, s88")
        e(f"global_store_dwordx3 v1, v[2:4], s[{S_DBG}:{S_DBG+1}]")
        e(f"s_branch {LX}")
        g.lab(LY)
        e("s_cmp_ge_u32 s2, 7"); e(f"s_cbranch_scc1 {LX}")
        e("s_lshl_b32 s83, s2, 2"); e("s_add_u32 s83, s83, 36")
        e("v_mov_b32 v1, s83"); e("v_mov_b32 v2, s84")
        e(f"global_store_dword v1, v2, s[{S_DBG}:{S_DBG+1}]")
        g.lab(LX)
    if ST:
        stamp(g, 9, ST)
        e("s_waitcnt lgkmcnt(0)")
        e(f"s_lshl_b32 s{S_T0}, s2, 3"); e(f"s_add_u32 s{S_T0}, s{S_T0}, s{S_WAVE}"); e(f"s_lshl_b32 s{S_T0}, s{S_T0}, 6")
        e(f"s_add_u32 s{S_T0}, s{S_T0}, {WS_DBG}")
        e("v_mov_b32 v1, 0")
        e("s_mov_b64 exec, 1")
        for i in range(10):
            e(f"v_mov_b32 v2, s{S_ST0+2*i}")
            e(f"buffer_store_dword v2, v1, s[{SRD_WS}:{SRD_WS+3}], s{S_T0} offen offset:{4*i}")
            g.nop(1)
    g.lab("L_end")
    e("s_endpgm")
    g.lab("L_code_end")
    g.L.append('.section .rodata,"a"')
    g.L.append(".p2align 6")
    g.L.append(f".amdhsa_kernel {KN}_kernel")
    for s in ["next_free_vgpr 240", "next_free_sgpr 102", "accum_offset 240", "group_segment_fixed_size 0", "kernarg_size 88",
              "user_sgpr_count 2", "user_sgpr_kernarg_segment_ptr 1", "system_sgpr_workgroup_id_x 1",
              "float_denorm_mode_32 3", "float_denorm_mode_16_64 3"]:
        g.L.append("  .amdhsa_" + s)
    g.L.append(".end_amdhsa_kernel")
    txt = "\n".join(g.L) + "\n"
    lf = o.get("ldflags")
    if lf:
        out = []
        for ln in txt.split("\n"):
            if "buffer_load_dword" in ln and ln.rstrip().endswith(" sc1") and " lds" not in ln:
                ln = ln.rstrip()[:-4] + " " + lf
            out.append(ln)
        txt = "\n".join(out)
    pf = []
    span = 64 << o.get("pfshift", 7)
    for i in range((o.get("pf_kib", 24) * 1024 + span - 1) // span):
        pf.append(f"  v_min_u32 v3, L_code_end-{KN}_kernel-4, v1")
        pf.append(f"  global_load_dword v230, v3, s[{S_T0}:{S_T0+1}]")
        pf.append(f"  v_add_u32 v1, {span}, v1")
    txt = txt.replace("  CODE_PREFETCH_PLACEHOLDER", "\n".join(pf))
    return txt

if __name__ == "__main__":
    import json
    opt = json.loads(sys.argv[2]) if len(sys.argv) > 2 else {}
    open(sys.argv[1], "w").write(gen(opt))
```

```python
import sys
KN = "recurrent_scan__gqa_block_cached__dense_activation_silu__decode"

WS_E   = 0x0
WS_Q   = 0x200000
WS_H   = 0x240000
WS_ML  = 0x28000
WS_F   = 0x30000
WS_S   = 0x80000
WS_P   = 0x400000
WS_CNT = 0x2A0000
WS_DBG = 0x300000
WS_SIZE = 0x800000

RING   = 32768
L_STG  = 0x20000
L_XN4  = 0x24000
L_XN5  = 0x24800
L_Q    = 0x25000
L_H    = 0x25400
L_OB   = 0x25600
L_ML   = 0x25800
L_FLAG = 0x25900
LDS_BYTES = 0x26000

L2E = 0x3fb8aa3b
SCALE = 0x3db504f3
NEG_INF = 0xff800000

DEBUG_TO = True
class G:
    def __init__(self):
        self.L = []
        self.uid = 0
    def e(self, s):
        self.L.append("  " + s)
    def lab(self, s):
        self.L.append(s + ":")
    def new(self, p):
        self.uid += 1
        return f"L_{p}_{self.uid}"
    def nop(self, n):
        while n > 0:
            k = min(n, 16)
            self.e(f"s_nop {k-1}")
            n -= k

def vr(a, n=None):
    return f"v{a}" if n is None else f"v[{a}:{a+n-1}]"
def sr(a, n=None):
    return f"s{a}" if n is None else f"s[{a}:{a+n-1}]"

S_WAVE = 3
S_X, S_K, S_V, S_WQ, S_WO, S_BX, S_W1, S_W2 = 4, 6, 8, 10, 12, 14, 16, 18
S_OUT, S_DBG, S_WS = 20, 22, 24
S_TAG, S_E = 26, 27
SRD_K, SRD_V, SRD_WS, SRD_W, SRD_X, SRD_OUT, SRD_WO = 28, 32, 36, 40, 44, 48, 52
S_PAIR, S_SPLIT, S_B, S_HKV = 56, 57, 58, 59
S_T0, S_T1, S_T2, S_T3, S_T4, S_T5 = 60, 61, 62, 63, 64, 65
S_RETRY = 66
S_OFF = 67
S_RB = 68
S_PB = 69
S_CNT = 70
S_SOFF = 71
S_RS32 = 72
S_EX = 74
S_ST0 = 76
S_C0 = 96
S_C1 = 97
S_ROT = 98
S_NEXT = 99

def build_srd(g, d, ptr, size):
    g.e(f"s_mov_b32 s{d}, s{ptr}")
    g.e(f"s_and_b32 s{d+1}, s{ptr+1}, 0xffff")
    g.e(f"s_mov_b32 s{d+2}, {size:#x}")
    g.e(f"s_mov_b32 s{d+3}, 0x20000")

def rows_reduce(g, v, t, op):
    for sw in ("v_permlane16_swap_b32", "v_permlane32_swap_b32"):
        g.e(f"v_mov_b32 v{t}, v{v}")
        g.nop(2)
        g.e(f"{sw} v{v}, v{t}")
        g.nop(1)
        g.e(f"{op} v{v}, v{v}, v{t}")

def rows_reduce_multi(g, vs, ts, op):
    for sw in ("v_permlane16_swap_b32", "v_permlane32_swap_b32"):
        for v, t in zip(vs, ts):
            g.e(f"v_mov_b32 v{t}, v{v}")
        g.nop(max(0, 3 - len(vs)) if len(vs) < 3 else 0)
        if len(vs) >= 3: pass
        g.nop(1)
        for v, t in zip(vs, ts):
            g.e(f"{sw} v{v}, v{t}")
        g.nop(1)
        for v, t in zip(vs, ts):
            g.e(f"{op} v{v}, v{v}, v{t}")
        g.nop(1)

def row_ror_reduce(g, vs, op, rors):
    for r in rors:
        g.nop(2)
        for v in vs:
            g.e(f"{op}_dpp v{v}, v{v}, v{v} row_ror:{r} row_mask:0xf bank_mask:0xf")
            if len(vs) == 1:
                pass
    g.nop(1)

POLL_IDS = {"q": 0, "h": 1, "f": 2, "p": 3, "s": 4}
def poll(g, name, issue_loads, tag_regs, tmp, dbgword=None, sleep=1):
    L = g.new("poll_" + name); D = g.new("polld_" + name); TO = g.new("pollto_" + name)
    g.e(f"s_mov_b32 s{S_RETRY}, 0x40000")
    g.lab(L)
    issue_loads()
    g.e("s_waitcnt vmcnt(0)")
    g.e(f"v_xor_b32 v{tmp}, s{S_TAG}, v{tag_regs[0]}")
    for t in tag_regs[1:]:
        g.e(f"v_xor_b32 v{tmp+1}, s{S_TAG}, v{t}")
        g.e(f"v_or_b32 v{tmp}, v{tmp}, v{tmp+1}")
    g.e(f"v_cmp_ne_u32 vcc, 0, v{tmp}")
    g.e(f"s_cbranch_vccz {D}")
    g.e("s_mov_b64 exec, vcc")
    g.e(f"s_sub_u32 s{S_RETRY}, s{S_RETRY}, 1")
    g.e(f"s_cbranch_scc1 {TO}")
    g.e(f"s_sleep {sleep}")
    g.e(f"s_branch {L}")
    g.lab(TO)
    if DEBUG_TO:
        g.e(f"v_mov_b32 v{tmp}, {4*POLL_IDS[name]}")
        g.e(f"v_mov_b32 v{tmp+1}, s2")
        g.e(f"v_add_u32 v{tmp+1}, 0x1000, v{tmp+1}")
        g.e(f"global_store_dword v{tmp}, v{tmp+1}, s[{S_DBG}:{S_DBG+1}]")
    g.lab(D)
    g.e("s_mov_b64 exec, -1")

PUB = {"mode": "store"}
def pub2(g, vdata, voff, soff, imm=0):
    off = f" offset:{imm}" if imm else ""
    if PUB["mode"] == "atomic":
        g.e(f"buffer_atomic_swap_x2 v[{vdata}:{vdata+1}], v{voff}, s[{SRD_WS}:{SRD_WS+3}], {soff} offen{off}")
    elif PUB["mode"] == "atomic_sc1":
        g.e(f"buffer_atomic_swap_x2 v[{vdata}:{vdata+1}], v{voff}, s[{SRD_WS}:{SRD_WS+3}], {soff} offen{off} sc1")
    elif PUB["mode"] == "store_sc01":
        g.e(f"buffer_store_dwordx2 v[{vdata}:{vdata+1}], v{voff}, s[{SRD_WS}:{SRD_WS+3}], {soff} offen{off} sc0 sc1")
    else:
        g.e(f"buffer_store_dwordx2 v[{vdata}:{vdata+1}], v{voff}, s[{SRD_WS}:{SRD_WS+3}], {soff} offen{off} sc1")

def poll2(g, name, issue, nloads, tags, on_ok, A, B, tmp, stagger=10):
    L = g.new("p2_" + name); D = g.new("p2d_" + name); TO = g.new("p2to_" + name)
    W = "s[100:101]"
    def check(base):
        tr = tags(base)
        g.e(f"s_mov_b64 exec, {W}")
        g.e(f"v_xor_b32 v{tmp}, s{S_TAG}, v{tr[0]}")
        for t in tr[1:]:
            g.e(f"v_xor_b32 v{tmp+1}, s{S_TAG}, v{t}")
            g.e(f"v_or_b32 v{tmp}, v{tmp}, v{tmp+1}")
        g.e(f"v_cmp_ne_u32 vcc, 0, v{tmp}")
        g.e(f"s_andn2_b64 exec, {W}, vcc")
        SK = g.new("p2s")
        g.e(f"s_cbranch_execz {SK}")
        on_ok(base)
        g.lab(SK)
        g.e(f"s_mov_b64 {W}, vcc")
        g.e(f"s_cbranch_vccz {D}")
        g.e(f"s_mov_b64 exec, {W}")
    g.e(f"s_mov_b32 s{S_RETRY}, 0x40000")
    g.e(f"s_mov_b64 {W}, -1")
    issue(A)
    g.e(f"s_sleep {stagger}")
    g.lab(L)
    issue(B)
    g.e(f"s_waitcnt vmcnt({nloads})")
    check(A)
    issue(A)
    g.e(f"s_waitcnt vmcnt({nloads})")
    check(B)
    g.e(f"s_sub_u32 s{S_RETRY}, s{S_RETRY}, 1")
    g.e(f"s_cbranch_scc0 {L}")
    if DEBUG_TO:
        g.e(f"v_mov_b32 v{tmp}, {4*POLL_IDS[name]}")
        g.e(f"v_mov_b32 v{tmp+1}, s2")
        g.e(f"v_add_u32 v{tmp+1}, 0x1000, v{tmp+1}")
        g.e(f"global_store_dword v{tmp}, v{tmp+1}, s[{S_DBG}:{S_DBG+1}]")
    g.lab(D)
    g.e("s_mov_b64 exec, -1")

def dstamp(g, word, on, tmpv=(236, 237), sp=(92, 93)):
    if not on: return
    g.e(f"s_memrealtime s[{sp[0]}:{sp[1]}]")
    g.e("s_waitcnt lgkmcnt(0)")
    g.e(f"v_mov_b32 v{tmpv[0]}, {4*word}")
    g.e(f"v_mov_b32 v{tmpv[1]}, s{sp[0]}")
    g.e("s_mov_b64 s[94:95], exec")
    g.e("s_mov_b64 exec, 1")
    g.e(f"global_atomic_umax v{tmpv[0]}, v{tmpv[1]}, s[{S_DBG}:{S_DBG+1}]")
    g.e("s_mov_b64 exec, s[94:95]")

def stamp(g, idx, on):
    if on:
        g.e(f"s_memrealtime s[{S_ST0+2*idx}:{S_ST0+2*idx+1}]")

def gen(opt=None):
    o = dict(pattern="grp16", rot=512*1024, xmap=False, stamps=False, ntiles=16, prefetch_code=True, stage=99, b0=True, thr=16, prio=True, dyn=True, sthr=24, wnt=1, ns=10, poll2=False, copies=1, wofl="", gate=1)
    if opt: o.update(opt)
    DS = False
    DS2 = bool(o.get("dstamps"))
    ST = bool(o["stamps"])
    STT = o["stamps"] is True
    STA = o["stamps"] == "A"
    STP = o["stamps"] == "P"
    STF = o["stamps"] == "F"
    STE = o["stamps"] == "E"
    STX = o["stamps"] == "X"
    STL = o["stamps"] == "L"
    PUB["mode"] = o.get("pub", "store")
    g = G(); e = g.e
    g.L.append(f"; @launch grid=(256,1,1) block=(512,1,1) lds={LDS_BYTES}")
    g.L.append('.amdgcn_target "amdgcn-amd-amdhsa--gfx950"')
    g.L.append(".text")
    g.L.append(f".globl {KN}_kernel")
    g.L.append(".p2align 8")
    g.L.append(f".type {KN}_kernel,@function")
    g.lab(f"{KN}_kernel")
    e("s_cmp_ge_u32 s2, 256")
    e("s_cbranch_scc1 L_end")
    stamp(g, 0, ST)
    if DS2: e("s_memrealtime s[90:91]")
    e(f"s_load_dwordx16 s[4:19], s[0:1], 0")
    e(f"s_load_dwordx4 s[20:23], s[0:1], 64")
    e(f"s_load_dwordx2 s[24:25], s[0:1], 80")
    e("v_lshrrev_b32 v1, 6, v0")
    e("v_and_b32 v0, 63, v0")
    e(f"v_readfirstlane_b32 s{S_WAVE}, v1")
    if o["xmap"]:
        e(f"s_and_b32 s{S_T0}, s2, 7"); e(f"s_lshl_b32 s{S_T0}, s{S_T0}, 5"); e(f"s_lshr_b32 s{S_T1}, s2, 3")
        e(f"s_add_u32 s{S_T0}, s{S_T0}, s{S_T1}")
        e(f"s_lshr_b32 s{S_PAIR}, s{S_T0}, 4"); e(f"s_and_b32 s{S_SPLIT}, s{S_T0}, 15")
    else:
        e(f"s_lshr_b32 s{S_PAIR}, s2, 4"); e(f"s_and_b32 s{S_SPLIT}, s2, 15")
    e(f"s_lshr_b32 s{S_B}, s{S_PAIR}, 3"); e(f"s_and_b32 s{S_HKV}, s{S_PAIR}, 7")
    e(f"s_cmp_ge_u32 s{S_WAVE}, 4")
    e("s_cbranch_scc1 L_helper")

    V_KD, V_VD, V_KR, V_VR = 8, 12, 14, 18
    V_Q, V_O = 28, 44
    RK = (76, 140); RV = (108, 172)
    V_S, V_A, V_P = 204, 212, 220
    V_M, V_L, V_AL, V_NM, V_MX, V_T = 224, 225, 226, 227, 228, 229
    e("v_lshrrev_b32 v1, 4, v0")
    e("v_and_b32 v2, 15, v0")
    e("v_lshlrev_b32 v3, 8, v1")
    e("v_xor_b32 v4, v2, v1")
    for n in range(4):
        e(f"v_xor_b32 v5, {4*n}, v4")
        e(f"v_lshl_add_u32 v{V_KD+n}, v5, 4, v3")
    e("v_lshlrev_b32 v4, 1, v1")
    e("v_xor_b32 v4, v2, v4")
    for n in range(2):
        e(f"v_xor_b32 v5, {8*n}, v4")
        e(f"v_lshl_add_u32 v{V_VD+n}, v5, 4, v3")
    e(f"s_lshl_b32 s{S_RB}, s{S_WAVE}, 15")
    e(f"s_lshl_b32 s{S_PB}, s{S_PAIR}, 23")
    if o["pattern"] == "grp16":
        e(f"s_lshl_b32 s{S_OFF}, s{S_SPLIT}, 2"); e(f"s_add_u32 s{S_OFF}, s{S_OFF}, s{S_WAVE}")
        e(f"s_lshl_b32 s{S_OFF}, s{S_OFF}, 13")
        STEP = 16 * 4 * 8192
    else:
        e(f"s_lshl_b32 s{S_OFF}, s{S_SPLIT}, 6"); e(f"s_add_u32 s{S_OFF}, s{S_OFF}, s{S_WAVE}")
        e(f"s_lshl_b32 s{S_OFF}, s{S_OFF}, 13")
        STEP = 4 * 8192
    e(f"s_mul_i32 s{S_ROT}, s{S_PAIR}, {o['rot']}")
    e(f"s_add_u32 s{S_OFF}, s{S_OFF}, s{S_ROT}")
    e("s_waitcnt lgkmcnt(0)")
    stamp(g, 4, STA)
    e(f"s_load_dword s{S_E}, s[{S_WS}:{S_WS+1}], {WS_E}")
    build_srd(g, SRD_K, S_K, 0x8000000)
    build_srd(g, SRD_V, S_V, 0x8000000)

    def tile_addr():
        e(f"s_and_b32 s{S_SOFF}, s{S_OFF}, 0x7fffff")
        e(f"s_add_u32 s{S_SOFF}, s{S_SOFF}, s{S_PB}")
    def issue(which, slot):
        srd = SRD_K if which == 0 else SRD_V
        for half in range(2):
            off = slot * 16384 + which * 8192 + half * 4096
            e(f"s_add_u32 m0, s{S_RB}, {off}")
            if half == 0:
                e(f"s_mov_b32 s{S_T0}, s{S_SOFF}")
            else:
                e(f"s_add_u32 s{S_T0}, s{S_SOFF}, 4096")
            for i in range(4):
                n = half * 4 + i
                vo = (V_KD + (n & 3)) if which == 0 else (V_VD + (n & 1))
                fl = o.get("kfl" if which == 0 else "vfl", " nt")
                e(f"buffer_load_dwordx4 v{vo}, s[{srd}:{srd+3}], s{S_T0} offen offset:{i*1024}{fl} lds")
    THR = o["thr"]
    nissued = 0
    for slot in range(2):
        tile_addr()
        for which in range(2):
            if o["b0"] and nissued == o.get("b0at", 8):
                e("s_barrier")
            if nissued + 8 > THR:
                e(f"s_waitcnt vmcnt({THR - 8})")
                stamp(g, 3 + nissued // 8, STP)
            issue(which, slot)
            nissued += 8
        e(f"s_add_u32 s{S_OFF}, s{S_OFF}, {STEP}")
    stamp(g, 5, STA)
    e("v_and_b32 v1, 15, v0")
    e("v_lshrrev_b32 v2, 4, v0")
    e("v_xor_b32 v3, v2, v1")
    e(f"v_lshlrev_b32 v4, 8, v1")
    e(f"v_add_u32 v4, s{S_RB}, v4")
    for kk in range(4):
        e(f"v_xor_b32 v5, {4*kk}, v3")
        e(f"v_lshl_add_u32 v{V_KR+kk}, v5, 4, v4")
    e("v_lshrrev_b32 v1, 2, v0")
    e("v_and_b32 v2, 7, v1")
    e("v_and_b32 v3, 3, v0")
    e("v_lshlrev_b32 v4, 8, v1")
    e("v_lshl_add_u32 v4, v3, 3, v4")
    e(f"v_add_u32 v4, s{S_RB}, v4")
    e("v_add_u32 v4, 8192, v4")
    for dt in range(8):
        e(f"v_xor_b32 v5, {dt}, v2")
        e(f"v_lshl_add_u32 v{V_VR+dt}, v5, 5, v4")
    for i in range(32):
        e(f"v_mov_b32 v{V_O+i}, 0")
    for i in range(16):
        e(f"v_mov_b32 v{V_Q+i}, 0")
    e(f"v_mov_b32 v{V_M}, {NEG_INF:#x}")
    for r in (236, 237, 238, 239): e(f"v_mov_b32 v{r}, 0")
    e(f"v_mov_b32 v{V_L}, 0")
    build_srd(g, SRD_WS, S_WS, WS_SIZE)
    build_srd(g, SRD_X, S_X, 2048)
    build_srd(g, SRD_WO, S_WO, 0x400000)
    build_srd(g, SRD_OUT, S_OUT, 2048)

    def load(rs, slot, do_issue, wK, wV, thr=None, pst=None):
        e(f"s_waitcnt vmcnt({wK})")
        for T in range(2):
            for kk in range(4):
                if not o.get("noread"): e(f"ds_read_b128 {vr(RK[rs]+16*T+4*kk,4)}, v{V_KR+kk} offset:{slot*16384+T*4096}")
        e("s_waitcnt lgkmcnt(0)")
        if do_issue:
            tile_addr()
            if thr is not None and thr < 32: e(f"s_waitcnt vmcnt({thr-8})")
            if pst is not None: stamp(g, pst, STP)
            issue(0, slot)
        e(f"s_waitcnt vmcnt({wV})")
        for dt in range(8):
            for T in range(2):
                if not o.get("noread"): e(f"ds_read_b64_tr_b16 {vr(RV[rs]+4*dt+2*T,2)}, v{V_VR+dt} offset:{slot*16384+T*4096}")
        e("s_waitcnt lgkmcnt(0)")
        if do_issue:
            if thr is not None and thr < 32: e(f"s_waitcnt vmcnt({thr-8})")
            if pst is not None: stamp(g, pst+1, STP)
            issue(1, slot)
            e(f"s_add_u32 s{S_OFF}, s{S_OFF}, {STEP}")

    def compute(rs):
        if o.get("nocompute"): return
        KF, VF = RK[rs], RV[rs]
        for kk in range(4):
            for T in range(2):
                c = "0" if kk == 0 else vr(V_S+4*T, 4)
                e(f"v_mfma_f32_16x16x32_bf16 {vr(V_S+4*T,4)}, {vr(KF+16*T+4*kk,4)}, {vr(V_Q+4*kk,4)}, {c}")
        g.nop(8)
        t = V_T
        for i in range(4):
            e(f"v_cvt_pk_bf16_f32 v{t+i}, v{V_S+2*i}, v{V_S+2*i+1}")
        for i in range(4):
            e(f"v_lshlrev_b32 v{V_A+2*i}, 16, v{t+i}")
            e(f"v_and_b32 v{V_A+2*i+1}, 0xffff0000, v{t+i}")
        for i in range(8):
            e(f"v_mul_f32 v{V_A+i}, s{S_C1}, v{V_A+i}")
        for i in range(4):
            e(f"v_cvt_pk_bf16_f32 v{t+i}, v{V_A+2*i}, v{V_A+2*i+1}")
        for i in range(4):
            e(f"v_lshlrev_b32 v{V_A+2*i}, 16, v{t+i}")
            e(f"v_and_b32 v{V_A+2*i+1}, 0xffff0000, v{t+i}")
        e(f"v_max3_f32 v{V_MX}, v{V_A}, v{V_A+1}, v{V_A+2}")
        e(f"v_max3_f32 v{V_MX}, v{V_MX}, v{V_A+3}, v{V_A+4}")
        e(f"v_max3_f32 v{V_MX}, v{V_MX}, v{V_A+5}, v{V_A+6}")
        e(f"v_max3_f32 v{V_MX}, v{V_MX}, v{V_A+7}, v{V_M}")
        rows_reduce(g, V_MX, t, "v_max_f32")
        e(f"v_sub_f32 v{V_AL}, v{V_M}, v{V_MX}")
        e(f"v_mul_f32 v{V_AL}, s{S_C0}, v{V_AL}")
        e(f"v_exp_f32 v{V_AL}, v{V_AL}")
        e(f"v_mov_b32 v{V_M}, v{V_MX}")
        e(f"v_mul_f32 v{V_NM}, s{S_C0}, v{V_MX}")
        for i in range(8):
            e(f"v_fma_f32 v{V_A+i}, v{V_A+i}, s{S_C0}, -v{V_NM}")
        for i in range(8):
            e(f"v_exp_f32 v{V_A+i}, v{V_A+i}")
        e(f"v_mul_f32 v{V_L}, v{V_L}, v{V_AL}")
        if o.get("skipresc", False):
            LR = g.new("resc")
            e(f"v_cmp_neq_f32 vcc, 1.0, v{V_AL}")
            e(f"s_cbranch_vccz {LR}")
        for i in range(16):
            e(f"v_pk_mul_f32 {vr(V_O+2*i,2)}, {vr(V_O+2*i,2)}, {vr(V_AL,2)} op_sel_hi:[1,0]")
        if o.get("skipresc", False):
            g.lab(LR)
        for i in range(4):
            e(f"v_cvt_pk_bf16_f32 v{V_P+i}, v{V_A+2*i}, v{V_A+2*i+1}")
        e(f"v_add_f32 v{t}, v{V_A}, v{V_A+1}")
        e(f"v_add_f32 v{t+1}, v{V_A+2}, v{V_A+3}")
        e(f"v_add_f32 v{t+2}, v{V_A+4}, v{V_A+5}")
        e(f"v_add_f32 v{t+3}, v{V_A+6}, v{V_A+7}")
        e(f"v_add_f32 v{t}, v{t}, v{t+1}")
        e(f"v_add_f32 v{t+2}, v{t+2}, v{t+3}")
        e(f"v_add_f32 v{t}, v{t}, v{t+2}")
        e(f"v_add_f32 v{V_L}, v{V_L}, v{t}")
        for dt in range(8):
            e(f"v_mfma_f32_16x16x32_bf16 {vr(V_O+4*dt,4)}, {vr(VF+4*dt,4)}, {vr(V_P,4)}, {vr(V_O+4*dt,4)}")

    load(0, 0, True, 24, 24, THR, 7)
    load(1, 1, True, 24, 24, THR, None)
    e("s_waitcnt lgkmcnt(0)")
    e(f"s_mul_i32 s{S_TAG}, s{S_E}, 1664525")
    e(f"s_add_u32 s{S_TAG}, s{S_TAG}, 1013904223")
    stamp(g, 1, ST)
    e("s_barrier")
    if DS2: e("s_memrealtime s[86:87]")
    stamp(g, 2, ST)
    if DS:
        LX = g.new("ds")
        e(f"s_cmp_lg_u32 s{S_WAVE}, 0"); e(f"s_cbranch_scc1 {LX}")
        e("s_memrealtime s[88:89]")
        g.lab(LX)
    e("v_and_b32 v1, 15, v0")
    e("v_lshrrev_b32 v2, 4, v0")
    e("v_lshlrev_b32 v1, 8, v1")
    e("v_lshl_add_u32 v1, v2, 4, v1")
    e(f"v_add_u32 v1, {L_Q}, v1")
    e(f"s_mov_b32 s{S_EX}, 0x000f000f"); e(f"s_mov_b32 s{S_EX+1}, 0x000f000f")
    e(f"s_mov_b64 exec, s[{S_EX}:{S_EX+1}]")
    for kk in range(4):
        e(f"ds_read_b128 {vr(V_Q+4*kk,4)}, v1 offset:{kk*64}")
    e("s_mov_b64 exec, -1")
    e(f"s_mov_b32 s{S_C0}, {L2E:#x}")
    e(f"s_mov_b32 s{S_C1}, {SCALE:#x}")
    e("s_waitcnt lgkmcnt(0)")

    NT = o["ntiles"]
    STHR = o.get("sthr", 32)
    if not o["dyn"]:
        nloop = (NT - 4) // 2
        if STL:
            for it in range(nloop):
                compute(0); load(0, 0, True, 24, 24, STHR)
                compute(1); load(1, 1, True, 24, 24, STHR)
                if it < 5: stamp(g, 4 + it, True)
        else:
            e(f"s_mov_b32 s{S_CNT}, {nloop}")
            g.lab("L_loop")
            compute(0); load(0, 0, True, 24, 24, STHR)
            compute(1); load(1, 1, True, 24, 24, STHR)
            e(f"s_sub_u32 s{S_CNT}, s{S_CNT}, 1")
            e(f"s_cmp_lg_u32 s{S_CNT}, 0")
            e("s_cbranch_scc1 L_loop")
        compute(0); load(0, 0, False, 24, 16)
        compute(1); load(1, 1, False, 8, 0)
        compute(0)
        compute(1)
    else:
        NS = o.get("ns", 5)
        NDUAL = o.get("ndual", 0)
        assert NS >= 5 + 2 * NDUAL
        NSTAT = NS * 64
        V_TK, V_ONE, V_CA = 233, 234, 235
        cap = min(STHR, 24) - 8
        if NDUAL:
            e(f"s_mov_b32 s{S_CNT}, {NDUAL}")
            g.lab("L_dual")
            compute(0); load(0, 0, True, 24, 24, o.get("dthr", 32))
            compute(1); load(1, 1, True, 24, 24, o.get("dthr", 32))
            e(f"s_sub_u32 s{S_CNT}, s{S_CNT}, 1")
            e(f"s_cmp_lg_u32 s{S_CNT}, 0")
            e("s_cbranch_scc1 L_dual")
        e(f"s_sub_u32 s{S_NEXT}, s{S_OFF}, s{S_ROT}")
        e(f"s_lshr_b32 s{S_NEXT}, s{S_NEXT}, 13")
        e(f"s_sub_u32 s{S_NEXT}, s{S_NEXT}, {NSTAT}")
        e(f"s_add_u32 s95, s{S_NEXT}, {NSTAT}")
        e(f"v_mov_b32 v{V_TK}, s{S_NEXT}")
        e(f"v_mov_b32 v{V_ONE}, 1")
        e(f"s_lshl_b32 s{S_T0}, s{S_PAIR}, 8"); e(f"s_add_u32 s{S_T0}, s{S_T0}, {WS_CNT}")
        e(f"v_mov_b32 v{V_CA}, s{S_T0}")
        e(f"s_mov_b32 s{S_CNT}, 0"); e("s_mov_b32 s73, 0")
        def readK(rs, slot):
            if o.get("noread"): return
            for T in range(2):
                for kk in range(4):
                    e(f"ds_read_b128 {vr(RK[rs]+16*T+4*kk,4)}, v{V_KR+kk} offset:{slot*16384+T*4096}")
            e("s_waitcnt lgkmcnt(0)")
        def readV(rs, slot):
            if o.get("noread"): return
            for dt in range(8):
                for T in range(2):
                    e(f"ds_read_b64_tr_b16 {vr(RV[rs]+4*dt+2*T,2)}, v{V_VR+dt} offset:{slot*16384+T*4096}")
            e("s_waitcnt lgkmcnt(0)")
        def dload(sg):
            e("s_waitcnt vmcnt(25)")
            readK(sg, sg)
            e(f"s_waitcnt vmcnt({cap})")
            e(f"v_readfirstlane_b32 s{S_NEXT}, v{V_TK}")
            e(f"s_add_u32 s{S_NEXT}, s{S_NEXT}, {NSTAT}")
            e(f"s_cmp_ge_u32 s{S_NEXT}, 1024")
            e(f"s_cbranch_scc1 L_drain{sg}")
            if NS > 5:
                LA = g.new("tka"); LB = g.new("tkb")
                e(f"s_add_u32 s95, s95, 64")
                e(f"s_cmp_ge_u32 s95, {NSTAT}"); e(f"s_cbranch_scc1 {LA}")
                e(f"s_sub_u32 s{S_T0}, s95, {NSTAT}")
                e(f"v_mov_b32 v{V_TK}, s{S_T0}")
                e(f"s_branch {LB}")
                g.lab(LA)
            e("s_mov_b64 exec, 1")
            e(f"global_atomic_add v{V_TK}, v{V_CA}, v{V_ONE}, s[{S_WS}:{S_WS+1}] sc0")
            e("s_mov_b64 exec, -1")
            if NS > 5: g.lab(LB)
            e(f"s_lshl_b32 s{S_OFF}, s{S_NEXT}, 13")
            e(f"s_add_u32 s{S_OFF}, s{S_OFF}, s{S_ROT}")
            tile_addr(); issue(0, sg)
            e("s_waitcnt vmcnt(26)")
            readV(sg, sg)
            e(f"s_waitcnt vmcnt({cap})")
            issue(1, sg)
            e(f"s_add_u32 s{S_CNT}, s{S_CNT}, 1")
        S_DR, S_E0, S_EM = 73, 92, 94
        S_PREV, S_NP = 92, 93
        NPA = o.get("npa", 0); NPC = o.get("npc", 112)
        def do_atomic():
            e("s_mov_b64 exec, 1")
            e(f"global_atomic_add v{V_TK}, v{V_CA}, v{V_ONE}, s[{S_WS}:{S_WS+1}] sc0")
            e("s_mov_b64 exec, -1")
        def ticket(faillabel, np_check=False):
            e(f"v_readfirstlane_b32 s{S_NEXT}, v{V_TK}")
            e(f"s_add_u32 s{S_NEXT}, s{S_NEXT}, {NSTAT}")
            e(f"s_cmp_ge_u32 s{S_NEXT}, 1024")
            e(f"s_cbranch_scc1 {faillabel}")
            LB = g.new("tkb")
            if np_check and NPA:
                LN = g.new("tkn")
                e(f"s_sub_u32 s{S_T0}, s{S_NEXT}, s{S_PREV}")
                e(f"s_mov_b32 s{S_PREV}, s{S_NEXT}")
                e(f"s_mul_i32 s{S_T0}, s{S_T0}, {NPA}")
                e(f"s_add_u32 s{S_T0}, s{S_T0}, s{S_NEXT}")
                e(f"s_cmp_le_u32 s{S_T0}, {1024 + NPC}"); e(f"s_cbranch_scc1 {LN}")
                e(f"s_mov_b32 s{S_NP}, 1")
                e(f"s_branch {LB}")
                g.lab(LN)
            elif NPA:
                e(f"s_mov_b32 s{S_PREV}, s{S_NEXT}")
            if NS > 5:
                LA = g.new("tka")
                e(f"s_add_u32 s95, s95, 64")
                e(f"s_cmp_ge_u32 s95, {NSTAT}"); e(f"s_cbranch_scc1 {LA}")
                e(f"s_sub_u32 s{S_T0}, s95, {NSTAT}")
                e(f"v_mov_b32 v{V_TK}, s{S_T0}")
                e(f"s_branch {LB}")
                g.lab(LA)
            do_atomic()
            g.lab(LB)
            e(f"s_lshl_b32 s{S_OFF}, s{S_NEXT}, 13")
            e(f"s_add_u32 s{S_OFF}, s{S_OFF}, s{S_ROT}")
            tile_addr()
        def consume(faillabel):
            e(f"v_readfirstlane_b32 s{S_NEXT}, v{V_TK}")
            e(f"s_add_u32 s{S_NEXT}, s{S_NEXT}, {NSTAT}")
            e(f"s_cmp_ge_u32 s{S_NEXT}, 1024")
            e(f"s_cbranch_scc1 {faillabel}")
            e(f"s_lshl_b32 s{S_OFF}, s{S_NEXT}, 13")
            e(f"s_add_u32 s{S_OFF}, s{S_OFF}, s{S_ROT}")
            tile_addr()
        def request():
            LB = g.new("rqb")
            if NS > 5:
                LA = g.new("rqa")
                e(f"s_add_u32 s95, s95, 64")
                e(f"s_cmp_ge_u32 s95, {NSTAT}"); e(f"s_cbranch_scc1 {LA}")
                e(f"s_sub_u32 s{S_T0}, s95, {NSTAT}")
                e(f"v_mov_b32 v{V_TK}, s{S_T0}")
                e(f"s_branch {LB}")
                g.lab(LA)
            do_atomic()
            g.lab(LB)
        if o.get("np2"):
            S_MODE = 93
            compute(0)
            e("s_waitcnt vmcnt(24)")
            readK(0, 0)
            consume("L_ldone")
            issue(0, 0)
            e("s_waitcnt vmcnt(24)")
            readV(0, 0)
            issue(1, 0)
            e("s_add_u32 s95, s95, 64")
            compute(1)
            e("s_waitcnt vmcnt(24)")
            readK(1, 1)
            e("s_waitcnt vmcnt(16)")
            readV(1, 1)
            compute(0)
            compute(1)
            g.lab("L_loop")
            e("s_waitcnt vmcnt(8)")
            readK(0, 0)
            e(f"s_cmp_ge_u32 s95, {NSTAT}"); e("s_cbranch_scc1 L_dynA")
            e(f"s_lshl_b32 s{S_OFF}, s95, 13"); e(f"s_add_u32 s{S_OFF}, s{S_OFF}, s{S_ROT}")
            e("s_add_u32 s95, s95, 64")
            tile_addr(); issue(0, 0)
            e("s_waitcnt vmcnt(8)")
            readV(0, 0)
            issue(1, 0)
            e(f"s_mov_b32 s{S_MODE}, 0")
            e(f"s_add_u32 s{S_CNT}, s{S_CNT}, 1")
            e("s_branch L_comp")
            g.lab("L_dynA")
            do_atomic()
            e("s_waitcnt vmcnt(1)")
            readV(0, 0)
            e(f"s_mov_b32 s{S_MODE}, 1")
            g.lab("L_comp")
            compute(0)
            e(f"s_cmp_eq_u32 s{S_MODE}, 0"); e("s_cbranch_scc1 L_loop")
            e("s_waitcnt vmcnt(0)")
            consume("L_ldone")
            issue(0, 0); issue(1, 0)
            e(f"s_add_u32 s{S_CNT}, s{S_CNT}, 1")
            e("s_branch L_loop")
        elif o.get("single", True) and o.get("late", True):
            compute(0)
            stamp(g, 4, STX)
            e("s_waitcnt vmcnt(24)")
            readK(0, 0)
            consume("L_ldone")
            issue(0, 0)
            e("s_waitcnt vmcnt(24)")
            readV(0, 0)
            issue(1, 0)
            stamp(g, 5, STX)
            compute(1)
            stamp(g, 6, STX)
            request()
            e("s_waitcnt vmcnt(24)")
            readK(1, 1)
            e("s_waitcnt vmcnt(16)")
            readV(1, 1)
            stamp(g, 7, STX)
            compute(0)
            compute(1)
            stamp(g, 8, STX)
            e("s_mov_b32 s93, 0")
            e(f"s_cmp_ge_u32 s95, {NSTAT}"); e("s_cselect_b32 s93, 1, 0")
            g.lab("L_loop")
            e("s_waitcnt vmcnt(8)")
            stamp(g, 6, STE)
            readK(0, 0)
            if o.get("vfirst", False):
                LW = g.new("wv"); LW2 = g.new("wv2")
                e("s_cmp_eq_u32 s93, 1"); e(f"s_cbranch_scc1 {LW}")
                e("s_waitcnt vmcnt(0)")
                e(f"s_branch {LW2}")
                g.lab(LW)
                e("s_waitcnt vmcnt(1)")
                g.lab(LW2)
                readV(0, 0)
                e("s_waitcnt vmcnt(0)")
                stamp(g, 7, STE)
                consume("L_last")
                stamp(g, 4, STE)
                issue(0, 0)
                issue(1, 0)
            else:
                e("s_waitcnt vmcnt(0)")
                stamp(g, 7, STE)
                consume("L_last")
                stamp(g, 4, STE)
                issue(0, 0)
                readV(0, 0)
                issue(1, 0)
            e(f"s_add_u32 s{S_CNT}, s{S_CNT}, 1")
            if o["stamps"] == "R":
                for idx, c in ((4, 1), (5, 3), (6, 5), (7, 7), (8, 9)):
                    LS = g.new("rs")
                    e(f"s_cmp_lg_u32 s{S_CNT}, {c}"); e(f"s_cbranch_scc1 {LS}")
                    stamp(g, idx, True)
                    g.lab(LS)
            g.lab("L_comp")
            compute(0)
            e(f"s_cmp_eq_u32 s{S_DR}, 1"); e("s_cbranch_scc1 L_ldone")
            stamp(g, 5, STE)
            request()
            e(f"s_cmp_ge_u32 s95, {NSTAT}"); e("s_cselect_b32 s93, 1, 0")
            e("s_branch L_loop")
            g.lab("L_last")
            e(f"s_mov_b32 s{S_DR}, 1")
            if not o.get("vfirst", False):
                readV(0, 0)
            e("s_branch L_comp")
        elif o.get("single", True):
            e(f"s_mov_b32 s{S_NP}, 0")
            compute(0)
            e("s_waitcnt vmcnt(24)")
            readK(0, 0)
            ticket("L_ldone")
            issue(0, 0)
            e("s_waitcnt vmcnt(24)")
            readV(0, 0)
            issue(1, 0)
            compute(1)
            e("s_waitcnt vmcnt(24)")
            readK(1, 1)
            e("s_waitcnt vmcnt(16)")
            readV(1, 1)
            compute(0)
            compute(1)
            g.lab("L_loop")
            e("s_waitcnt vmcnt(8)")
            readK(0, 0)
            ticket("L_last", True)
            issue(0, 0)
            e("s_waitcnt vmcnt(8)")
            readV(0, 0)
            issue(1, 0)
            e(f"s_add_u32 s{S_CNT}, s{S_CNT}, 1")
            g.lab("L_comp")
            compute(0)
            e(f"s_cmp_eq_u32 s{S_DR}, 0"); e("s_cbranch_scc1 L_loop")
            e("s_branch L_ldone")
            g.lab("L_last")
            e(f"s_mov_b32 s{S_DR}, 1")
            e("s_waitcnt vmcnt(0)")
            readV(0, 0)
            e("s_branch L_comp")
        else:
            e(f"s_mov_b32 s{S_E0}, 0"); e(f"s_mov_b32 s{S_E0+1}, 0"); e(f"s_mov_b32 s{S_EM}, 0")
            g.lab("L_loop")
            for sg in range(2):
                compute(sg)
                e(f"s_cmp_eq_u32 s{S_E0+sg}, 1"); e(f"s_cbranch_scc1 L_empty{sg}")
                e(f"s_cmp_eq_u32 s{S_DR}, 1"); e(f"s_cbranch_scc1 L_dw{sg}")
                e("s_waitcnt vmcnt(24)")
                readK(sg, sg)
                e(f"s_waitcnt vmcnt({cap})")
                ticket(f"L_noref{sg}")
                issue(0, sg)
                e("s_waitcnt vmcnt(24)")
                readV(sg, sg)
                e(f"s_waitcnt vmcnt({cap})")
                issue(1, sg)
                e(f"s_add_u32 s{S_CNT}, s{S_CNT}, 1")
                e(f"s_branch L_next{sg}")
                g.lab(f"L_dw{sg}")
                e("s_waitcnt vmcnt(0)")
                readK(sg, sg)
                g.lab(f"L_noref{sg}")
                e(f"s_mov_b32 s{S_DR}, 1"); e(f"s_mov_b32 s{S_E0+sg}, 1")
                e("s_waitcnt vmcnt(16)")
                readV(sg, sg)
                e(f"s_branch L_next{sg}")
                g.lab(f"L_empty{sg}")
                e(f"s_add_u32 s{S_EM}, s{S_EM}, 1")
                e(f"s_cmp_eq_u32 s{S_EM}, 2"); e("s_cbranch_scc1 L_ldone")
                g.lab(f"L_next{sg}")
            e("s_branch L_loop")
        g.lab("L_ldone")
        if STL: e(f"s_mov_b32 s{S_ST0+8}, s{S_CNT}")
    stamp(g, 3, ST and not STP)
    if DS2: e("s_memrealtime s[88:89]")
    rows_reduce(g, V_L, V_T, "v_add_f32")
    e("v_and_b32 v1, 15, v0")
    e("v_lshrrev_b32 v2, 4, v0")
    e("v_lshlrev_b32 v3, 9, v1")
    e("v_lshl_add_u32 v3, v2, 4, v3")
    e(f"v_add_u32 v3, s{S_RB}, v3")
    e(f"s_lshl_b32 s{S_T0}, s{S_WAVE}, 5")
    e(f"s_add_u32 s{S_T0}, s{S_T0}, {L_ML}")
    e(f"v_lshlrev_b32 v4, 3, v1")
    e(f"v_add_u32 v4, s{S_T0}, v4")
    g.nop(8)
    e(f"s_mov_b64 exec, s[{S_EX}:{S_EX+1}]")
    for dt in range(8):
        e(f"ds_write_b128 v3, {vr(V_O+4*dt,4)} offset:{dt*64}")
    e(f"ds_write_b64 v4, {vr(V_M,2)}")
    e("s_mov_b64 exec, -1")
    e(f"s_mov_b64 s[{S_T2}:{S_T2+1}], s[{S_X}:{S_X+1}]")
    for r in (228, 229, 231, 232, 233, 234, 235): e(f"v_mov_b32 v{r}, 0")
    e("s_waitcnt lgkmcnt(0)")
    e("s_branch L_tail")

    g.lab("L_helper")
    H_W = 64
    H_F = 128
    H_WO = 192
    H_G = 224
    S_STG = S_T5
    if o.get("skipA"):
        e("s_waitcnt lgkmcnt(0)")
        e(f"s_load_dword s{S_E}, s[{S_WS}:{S_WS+1}], {WS_E}")
        build_srd(g, SRD_WS, S_WS, WS_SIZE); build_srd(g, SRD_X, S_X, 2048); build_srd(g, SRD_WO, S_WO, 0x400000); build_srd(g, SRD_OUT, S_OUT, 2048)
        build_srd(g, SRD_W, S_WQ, 0x400000)
        e("s_waitcnt lgkmcnt(0)")
        e(f"s_mul_i32 s{S_TAG}, s{S_E}, 1664525"); e(f"s_add_u32 s{S_TAG}, s{S_TAG}, 1013904223")
        if o["b0"]: e("s_barrier")
        e("s_barrier")
        e("s_branch L_hb2")
    if o["prio"]:
        e("s_setprio 3")
    e(f"s_sub_u32 s{S_T5}, s{S_WAVE}, 4")
    e(f"s_lshl_b32 s{S_T5}, s{S_T5}, 12")
    e(f"s_add_u32 s{S_T5}, s{S_T5}, {L_STG}")
    e(f"s_cmp_ge_u32 s{S_WAVE}, 6"); e("s_cbranch_scc1 L_w67")
    e(f"s_and_b32 s{S_T2}, s2, 3")
    e(f"s_lshr_b32 s{S_T1}, s2, 2")
    e("v_lshrrev_b32 v2, 3, v0")
    e("v_and_b32 v3, 7, v0")
    e("v_lshlrev_b32 v1, 4, v0")
    e(f"s_cmp_eq_u32 s{S_WAVE}, 5"); e("s_cbranch_scc1 L_w5setup")
    e(f"s_mov_b32 s{S_T0}, 8192")
    e(f"s_mov_b32 s{S_T3}, {L_XN4}")
    e(f"s_mov_b32 s{S_C0}, {WS_Q}"); e(f"s_mov_b32 s{S_C1}, {4096*8}")
    e("s_waitcnt lgkmcnt(0)")
    build_srd(g, SRD_W, S_WQ, 0x400000)
    if o["dyn"]:
        e(f"s_and_b32 s{S_T4}, s2, 30"); e(f"s_cmp_lg_u32 s{S_T4}, 0"); e("s_cbranch_scc1 L_slice")
        e(f"s_and_b32 s{S_T4}, s2, 1"); e(f"s_lshl_b32 s{S_T4}, s{S_T4}, 3")
        e(f"s_lshr_b32 s{S_SOFF}, s2, 5"); e(f"s_add_u32 s{S_T4}, s{S_T4}, s{S_SOFF}")
        e(f"s_lshl_b32 s{S_T4}, s{S_T4}, 8"); e(f"s_add_u32 s{S_T4}, s{S_T4}, {WS_CNT}")
        e(f"v_mov_b32 v4, s{S_T4}"); e("v_mov_b32 v5, 0")
        e("s_mov_b64 exec, 1")
        e(f"global_store_dword v4, v5, s[{S_WS}:{S_WS+1}] sc1")
        e("s_mov_b64 exec, -1")
    e("s_branch L_slice")
    g.lab("L_w5setup")
    e(f"s_mov_b32 s{S_T0}, 3584")
    e(f"s_mov_b32 s{S_T3}, {L_XN5}")
    e(f"s_mov_b32 s{S_C0}, {WS_H}"); e(f"s_mov_b32 s{S_C1}, {1792*8}")
    e("s_waitcnt lgkmcnt(0)")
    build_srd(g, SRD_W, S_W1, 512*3584)
    e(f"s_cmp_ge_u32 s{S_SPLIT}, 7"); e("s_cbranch_scc1 L_hb0")
    e(f"s_mul_i32 s{S_T1}, s{S_PAIR}, 7"); e(f"s_add_u32 s{S_T1}, s{S_T1}, s{S_SPLIT}")
    e(f"s_and_b32 s{S_T2}, s{S_T1}, 3"); e(f"s_lshr_b32 s{S_T1}, s{S_T1}, 2")
    g.lab("L_slice")
    stamp(g, 4, STA)
    build_srd(g, SRD_X, S_X, 2048)
    e(f"buffer_load_dwordx4 v[8:11], v1, s[{SRD_X}:{SRD_X+3}], 0 offen")
    e(f"buffer_load_dwordx4 v[12:15], v1, s[{SRD_X}:{SRD_X+3}], 0 offen offset:1024")
    e(f"v_mul_lo_u32 v2, v2, s{S_T0}")
    e("v_lshl_add_u32 v2, v3, 4, v2")
    e(f"s_lshl_b32 s{S_SOFF}, s{S_T2}, 7"); e(f"s_mul_i32 s{S_SOFF}, s{S_SOFF}, s{S_T0}")
    e(f"s_lshl_b32 s{S_T4}, s{S_T1}, 7"); e(f"s_add_u32 s{S_SOFF}, s{S_SOFF}, s{S_T4}")
    e(f"s_lshl_b32 s{S_RS32}, s{S_T0}, 3")
    for i in range(16):
        e(f"buffer_load_dwordx4 {vr(H_W+4*i,4)}, v2, s[{SRD_W}:{SRD_W+3}], s{S_SOFF} offen" + (" nt" if o.get("wnt") else ""))
        if i < 15:
            e(f"s_add_u32 s{S_SOFF}, s{S_SOFF}, s{S_RS32}")
    stamp(g, 5, STA)
    if o["b0"]:
        e("s_barrier")
    e(f"s_load_dword s{S_E}, s[{S_WS}:{S_WS+1}], {WS_E}")
    build_srd(g, SRD_WS, S_WS, WS_SIZE)
    build_srd(g, SRD_WO, S_WO, 0x400000)
    build_srd(g, SRD_OUT, S_OUT, 2048)
    e("s_waitcnt vmcnt(16)")
    stamp(g, 6, STA)
    X0, X1 = 16, 24
    for b, (src, dst) in enumerate(((8, X0), (12, X1))):
        for i in range(4):
            e(f"v_lshlrev_b32 v{dst+2*i}, 16, v{src+i}")
            e(f"v_and_b32 v{dst+2*i+1}, 0xffff0000, v{src+i}")
    SU = 32
    for b, dst in enumerate((X0, X1)):
        e(f"v_add_f32 v{SU+b}, v{dst}, v{dst+1}")
        for i in range(2, 8):
            e(f"v_add_f32 v{SU+b}, v{SU+b}, v{dst+i}")
    def wave_sum2(a):
        row_ror_reduce(g, [a, a+1], "v_add_f32", [1, 2, 4, 8])
        rows_reduce_multi(g, [a, a+1], [a+2, a+3], "v_add_f32")
    wave_sum2(SU)
    e(f"s_mov_b32 s{S_T4}, 0x3b000000")
    e(f"v_mul_f32 v{SU}, s{S_T4}, v{SU}")
    e(f"v_mul_f32 v{SU+1}, s{S_T4}, v{SU+1}")
    VA = 36
    for b, dst in enumerate((X0, X1)):
        e(f"v_sub_f32 v40, v{dst}, v{SU+b}")
        e(f"v_mul_f32 v{VA+b}, v40, v40")
        for i in range(1, 8):
            e(f"v_sub_f32 v40, v{dst+i}, v{SU+b}")
            e(f"v_fmac_f32 v{VA+b}, v40, v40")
    wave_sum2(VA)
    e(f"v_mul_f32 v{VA}, s{S_T4}, v{VA}")
    e(f"v_mul_f32 v{VA+1}, s{S_T4}, v{VA+1}")
    e(f"v_cvt_pk_bf16_f32 v40, v{SU}, v{SU+1}")
    e(f"v_cvt_pk_bf16_f32 v41, v{VA}, v{VA+1}")
    e(f"v_lshlrev_b32 v{SU}, 16, v40"); e(f"v_and_b32 v{SU+1}, 0xffff0000, v40")
    e(f"v_lshlrev_b32 v{VA}, 16, v41"); e(f"v_and_b32 v{VA+1}, 0xffff0000, v41")
    e(f"v_add_f32 v{VA}, 0x3727c5ac, v{VA}"); e(f"v_add_f32 v{VA+1}, 0x3727c5ac, v{VA+1}")
    e(f"v_cvt_pk_bf16_f32 v41, v{VA}, v{VA+1}")
    e(f"v_lshlrev_b32 v{VA}, 16, v41"); e(f"v_and_b32 v{VA+1}, 0xffff0000, v41")
    e(f"v_sqrt_f32 v{VA}, v{VA}"); e(f"v_sqrt_f32 v{VA+1}, v{VA+1}")
    g.nop(1)
    e(f"v_cvt_pk_bf16_f32 v41, v{VA}, v{VA+1}")
    e(f"v_lshlrev_b32 v{VA}, 16, v41"); e(f"v_and_b32 v{VA+1}, 0xffff0000, v41")
    e(f"v_rcp_f32 v38, v{VA}"); e(f"v_rcp_f32 v39, v{VA+1}")
    for b, dst in enumerate((X0, X1)):
        for i in range(8):
            e(f"v_sub_f32 v{dst+i}, v{dst+i}, v{SU+b}")
        for i in range(4):
            e(f"v_cvt_pk_bf16_f32 v40, v{dst+2*i}, v{dst+2*i+1}")
            e(f"v_lshlrev_b32 v{dst+2*i}, 16, v40"); e(f"v_and_b32 v{dst+2*i+1}, 0xffff0000, v40")
        for i in range(8):
            e(f"v_mul_f32 v41, v{dst+i}, v{38+b}")
            e(f"v_fma_f32 v42, -v41, v{VA+b}, v{dst+i}")
            e(f"v_fma_f32 v{dst+i}, v42, v{38+b}, v41")
        for i in range(4):
            e(f"v_cvt_pk_bf16_f32 v{44+4*b+i}, v{dst+2*i}, v{dst+2*i+1}")
    e("v_lshlrev_b32 v1, 4, v0")
    e(f"v_add_u32 v1, s{S_T3}, v1")
    e("ds_write_b128 v1, v[44:47]")
    e("ds_write_b128 v1, v[48:51] offset:1024")
    e("v_lshlrev_b32 v1, 4, v0")
    e(f"v_add_u32 v1, s{S_STG}, v1")
    e("v_lshrrev_b32 v2, 4, v0")
    e("v_bfe_u32 v3, v0, 2, 2")
    e("v_lshl_add_u32 v3, v2, 3, v3")
    e("v_and_b32 v4, 3, v0")
    e("v_lshlrev_b32 v5, 7, v3")
    e("v_lshl_add_u32 v5, v4, 3, v5")
    e(f"v_add_u32 v5, s{S_STG}, v5")
    e("v_and_b32 v6, 1, v0")
    e("v_lshlrev_b32 v6, 10, v6")
    e("v_lshl_add_u32 v6, v2, 4, v6")
    e(f"s_lshl_b32 s{S_T4}, s{S_T2}, 8"); e(f"s_add_u32 s{S_T4}, s{S_T4}, s{S_T3}")
    e(f"v_add_u32 v6, s{S_T4}, v6")
    ACC = 48
    stamp(g, 7, STA)
    if STA:
        e("s_waitcnt vmcnt(0)")
        stamp(g, 8, STA)
    for pc in range(4):
        e(f"ds_read_b128 {vr(16+4*pc,4)}, v6 offset:{64*pc}")
    for pc in range(4):
        e(f"s_waitcnt vmcnt({12-4*pc})")
        for i in range(4):
            e(f"ds_write_b128 v1, {vr(H_W+16*pc+4*i,4)} offset:{i*1024}")
        for c in range(4):
            e(f"ds_read_b64_tr_b16 {vr(32+4*c,2)}, v5 offset:{c*32}")
            e(f"ds_read_b64_tr_b16 {vr(32+4*c+2,2)}, v5 offset:{c*32+512}")
        e("s_waitcnt lgkmcnt(0)")
        for c in range(4):
            cc = "0" if pc == 0 else vr(ACC+4*c, 4)
            e(f"v_mfma_f32_16x16x32_bf16 {vr(ACC+4*c,4)}, {vr(16+4*pc,4)}, {vr(32+4*c,4)}, {cc}")
    e(f"s_mul_i32 s{S_TAG}, s{S_E}, 1664525")
    e(f"s_add_u32 s{S_TAG}, s{S_TAG}, 1013904223")
    e(f"s_lshl_b32 s{S_T0}, s{S_T2}, 1"); e(f"s_mul_i32 s{S_T0}, s{S_T0}, s{S_C1}")
    e(f"s_add_u32 s{S_T0}, s{S_T0}, s{S_C0}")
    e(f"s_lshl_b32 s{S_T4}, s{S_T1}, 9"); e(f"s_add_u32 s{S_T0}, s{S_T0}, s{S_T4}")
    e(f"s_add_u32 s{S_T4}, s{S_T0}, s{S_C1}")
    e("v_lshlrev_b32 v1, 3, v0")
    e(f"v_mov_b32 v9, s{S_TAG}"); e(f"v_mov_b32 v11, s{S_TAG}")
    g.nop(4)
    for c in range(4):
        if c < 2:
            e(f"s_mov_b32 exec_lo, {0xffff << (16*c):#x}"); e("s_mov_b32 exec_hi, 0")
        else:
            e("s_mov_b32 exec_lo, 0"); e(f"s_mov_b32 exec_hi, {0xffff << (16*(c-2)):#x}")
        e(f"v_mov_b32 v8, v{ACC+4*c}"); e(f"v_mov_b32 v10, v{ACC+4*c+1}")
    e("s_mov_b64 exec, -1")
    pub2(g, 8, 1, f"s{S_T0}")
    pub2(g, 10, 1, f"s{S_T4}")
    stamp(g, 1, ST)
    e("s_branch L_qg")
    g.lab("L_w67")
    if o["b0"]:
        e("s_barrier")
    e("s_waitcnt lgkmcnt(0)")
    e(f"s_load_dword s{S_E}, s[{S_WS}:{S_WS+1}], {WS_E}")
    build_srd(g, SRD_WS, S_WS, WS_SIZE)
    build_srd(g, SRD_X, S_X, 2048)
    build_srd(g, SRD_WO, S_WO, 0x400000)
    build_srd(g, SRD_OUT, S_OUT, 2048)
    e(f"s_cmp_eq_u32 s{S_WAVE}, 7"); e("s_cbranch_scc1 L_w7")
    e("s_branch L_qg")
    g.lab("L_w6")
    if o.get("prio_after") is not None:
        e(f"s_setprio {o['prio_after']}")
    build_srd(g, SRD_W, S_W2, 1792*1024)
    e(f"s_sub_u32 s{S_T0}, s{S_SPLIT}, 7")
    e(f"s_cmp_ge_u32 s{S_T0}, 7")
    e("s_cbranch_scc1 L_wo")
    e(f"s_mul_i32 s{S_T1}, s{S_PAIR}, 7"); e(f"s_add_u32 s{S_T0}, s{S_T0}, s{S_T1}")
    e(f"s_lshr_b32 s{S_T1}, s{S_T0}, 2")
    e(f"s_and_b32 s{S_T2}, s{S_T0}, 3")
    e("v_lshrrev_b32 v2, 3, v0"); e("v_lshlrev_b32 v2, 10, v2")
    e("v_and_b32 v3, 7, v0"); e("v_lshl_add_u32 v2, v3, 4, v2")
    e(f"s_lshl_b32 s{S_SOFF}, s{S_T1}, 16")
    e(f"s_lshl_b32 s{S_T3}, s{S_T2}, 8")
    e(f"s_add_u32 s{S_SOFF}, s{S_SOFF}, s{S_T3}")
    for ks in range(2):
        for ch in range(2):
            for u in range(4):
                idx = (ks * 2 + ch) * 4 + u
                e(f"s_add_u32 s{S_T3}, s{S_SOFF}, {(32*ks+8*u)*1024}")
                e(f"buffer_load_dwordx4 {vr(H_W+4*idx,4)}, v2, s[{SRD_W}:{SRD_W+3}], s{S_T3} offen offset:{ch*128}" + (" nt" if o.get("wnt") else ""))
    stamp(g, 4, STF)
    e("v_lshlrev_b32 v1, 4, v0")
    e(f"v_add_u32 v1, s{S_STG}, v1")
    e("v_lshrrev_b32 v2, 4, v0"); e("v_bfe_u32 v3, v0, 2, 2"); e("v_lshl_add_u32 v3, v2, 3, v3"); e("v_and_b32 v4, 3, v0")
    e("v_lshlrev_b32 v5, 7, v3"); e("v_lshl_add_u32 v5, v4, 3, v5"); e(f"v_add_u32 v5, s{S_STG}, v5")
    e("s_waitcnt vmcnt(0)")
    stamp(g, 5, STF)
    for ks in range(2):
        for ch in range(2):
            pc = ks * 2 + ch
            for u in range(4):
                e(f"ds_write_b128 v1, {vr(H_W+16*pc+4*u,4)} offset:{u*1024}")
            for c in range(4):
                f = H_F + 4 * (ks * 8 + ch * 4 + c)
                e(f"ds_read_b64_tr_b16 {vr(f,2)}, v5 offset:{c*32}")
                e(f"ds_read_b64_tr_b16 {vr(f+2,2)}, v5 offset:{c*32+512}")
            e("s_waitcnt lgkmcnt(0)")
    e("v_lshrrev_b32 v6, 5, v0")
    e(f"v_mul_u32_u24 v6, {1792*8}, v6")
    e("v_and_b32 v7, 31, v0")
    e("v_lshl_add_u32 v6, v7, 4, v6")
    e(f"s_lshl_b32 s{S_T0}, s{S_T1}, 9"); e(f"s_add_u32 s{S_T0}, s{S_T0}, {WS_H}")
    def hl():
        for r4 in range(4):
            e(f"s_add_u32 s{S_T3}, s{S_T0}, {r4*2*1792*8}")
            e(f"buffer_load_dwordx4 {vr(16+4*r4,4)}, v6, s[{SRD_WS}:{SRD_WS+3}], s{S_T3} offen sc1")
    stamp(g, 6, STF)
    poll(g, "h", hl, [17+2*i for i in range(8)], 8, sleep=8)
    stamp(g, 7, STF)
    e("v_add_f32 v16, v16, v20"); e("v_add_f32 v18, v18, v22"); e("v_add_f32 v24, v24, v28"); e("v_add_f32 v26, v26, v30")
    e("v_add_f32 v16, v16, v24"); e("v_add_f32 v18, v18, v26")
    e("v_cvt_pk_bf16_f32 v8, v16, v18")
    e("v_lshlrev_b32 v10, 16, v8"); e("v_and_b32 v11, 0xffff0000, v8")
    e(f"s_mov_b32 s{S_T0}, {L2E:#x}")
    for r in (10, 11):
        e(f"v_mul_f32 v12, s{S_T0}, v{r}")
        e(f"v_exp_f32 v12, -v12"); g.nop(1)
        e(f"v_add_f32 v12, 1.0, v12")
        e(f"v_rcp_f32 v12, v12"); g.nop(1)
        e(f"v_mul_f32 v{r}, v{r}, v12")
    e("v_cvt_pk_bf16_f32 v12, v10, v11")
    e("v_lshlrev_b32 v7, 2, v0")
    e(f"v_add_u32 v7, {L_H}, v7")
    e("ds_write_b32 v7, v12")
    e("v_and_b32 v6, 1, v0"); e("v_lshlrev_b32 v6, 7, v6"); e("v_lshl_add_u32 v6, v2, 4, v6"); e(f"v_add_u32 v6, {L_H}, v6")
    e("ds_read_b128 v[16:19], v6")
    e("ds_read_b128 v[20:23], v6 offset:64")
    e("s_waitcnt lgkmcnt(0)")
    for c in range(8):
        e(f"v_mfma_f32_16x16x32_bf16 {vr(H_W+4*c,4)}, v[16:19], {vr(H_F+4*c,4)}, 0")
    for c in range(8):
        e(f"v_mfma_f32_16x16x32_bf16 {vr(H_W+4*c,4)}, v[20:23], {vr(H_F+32+4*c,4)}, {vr(H_W+4*c,4)}")
    g.nop(10)
    e("v_and_b32 v1, 15, v0"); e("v_lshlrev_b32 v1, 3, v1")
    e(f"s_lshl_b32 s{S_T0}, s{S_T1}, 13")
    e(f"s_lshl_b32 s{S_T3}, s{S_T2}, 10")
    e(f"s_add_u32 s{S_T0}, s{S_T0}, s{S_T3}"); e(f"s_add_u32 s{S_T0}, s{S_T0}, {WS_F}")
    e(f"s_add_u32 s{S_T3}, s{S_T0}, 4096")
    e(f"v_mov_b32 v9, s{S_TAG}"); e(f"v_mov_b32 v11, s{S_TAG}")
    e("s_mov_b64 exec, 0xffff")
    for c in range(8):
        e(f"v_mov_b32 v8, v{H_W+4*c}"); e(f"v_mov_b32 v10, v{H_W+4*c+1}")
        e(f"buffer_store_dwordx2 v[8:9], v1, s[{SRD_WS}:{SRD_WS+3}], s{S_T0} offen offset:{c*128} sc1")
        e(f"buffer_store_dwordx2 v[10:11], v1, s[{SRD_WS}:{SRD_WS+3}], s{S_T3} offen offset:{c*128} sc1")
        g.nop(2)
    e("s_mov_b64 exec, -1")
    stamp(g, 8, STF)
    e("s_branch L_wo")

    g.lab("L_w7")
    if o.get("tlbwarm"):
        build_srd(g, SRD_K, S_K, 0x8000000)
        build_srd(g, SRD_V, S_V, 0x8000000)
        e(f"s_lshl_b32 s{S_T0}, s{S_PAIR}, 23")
        e(f"v_lshlrev_b32 v1, {o.get('tlbshift', 21)}, v0")
        e(f"s_mov_b32 exec_lo, {(1 << (8 << 20 >> o.get('tlbshift', 21))) - 1:#x}"); e("s_mov_b32 exec_hi, 0")
        e(f"buffer_load_dword v230, v1, s[{SRD_K}:{SRD_K+3}], s{S_T0} offen nt")
        e(f"buffer_load_dword v230, v1, s[{SRD_V}:{SRD_V+3}], s{S_T0} offen nt")
        e("s_mov_b64 exec, -1")
    if o["prefetch_code"]:
        pfm = o.get("pfmask", 7)
        e(f"s_lshr_b32 s{S_T0}, s2, 3"); e(f"s_and_b32 s{S_T0}, s{S_T0}, {pfm}"); e(f"s_cmp_lg_u32 s{S_T0}, 0"); e("s_cbranch_scc1 L_qg")
        e(f"s_getpc_b64 s[{S_T0}:{S_T0+1}]")
        g.lab("L_pcbase")
        e(f"s_sub_u32 s{S_T0}, s{S_T0}, L_pcbase-{KN}_kernel")
        e(f"s_subb_u32 s{S_T0+1}, s{S_T0+1}, 0")
        e(f"v_lshlrev_b32 v1, {o.get('pfshift', 7)}, v0")
        e("CODE_PREFETCH_PLACEHOLDER")
    e("s_branch L_qg")
    g.lab("L_hb0")
    if o["b0"]:
        e("s_barrier")
    e(f"s_load_dword s{S_E}, s[{S_WS}:{S_WS+1}], {WS_E}")
    build_srd(g, SRD_WS, S_WS, WS_SIZE)
    build_srd(g, SRD_X, S_X, 2048)
    build_srd(g, SRD_WO, S_WO, 0x400000)
    build_srd(g, SRD_OUT, S_OUT, 2048)
    g.lab("L_qg")
    e("s_waitcnt lgkmcnt(0)")
    e(f"s_mul_i32 s{S_TAG}, s{S_E}, 1664525")
    e(f"s_add_u32 s{S_TAG}, s{S_TAG}, 1013904223")
    e(f"s_lshl_b32 s{S_T0}, s{S_B}, 12"); e(f"s_lshl_b32 s{S_T2}, s{S_HKV}, 9")
    e(f"s_add_u32 s{S_T0}, s{S_T0}, s{S_T2}")
    e(f"s_sub_u32 s{S_T2}, s{S_WAVE}, 4"); e(f"s_lshl_b32 s{S_T1}, s{S_T2}, 7")
    e(f"s_add_u32 s{S_T0}, s{S_T0}, s{S_T1}"); e(f"s_lshl_b32 s{S_T0}, s{S_T0}, 3")
    e(f"s_add_u32 s{S_T0}, s{S_T0}, {WS_Q}")
    if o.get("qflag", True):
        LW = g.new("qfw"); LG = g.new("qfg")
        e(f"v_mov_b32 v2, {L_FLAG}")
        e(f"s_cmp_lg_u32 s{S_WAVE}, 4"); e(f"s_cbranch_scc1 {LW}")
        e(f"v_mov_b32 v3, s{S_TAG}")
        e("ds_write_b32 v2, v3")
        e(f"s_branch {LG}")
        g.lab(LW)
        e(f"s_mov_b32 s{S_RETRY}, 0x100000")
        LW2 = g.new("qfw2")
        g.lab(LW2)
        e("ds_read_b32 v3, v2")
        e("s_waitcnt lgkmcnt(0)")
        e(f"v_readfirstlane_b32 s{S_T1}, v3")
        e(f"s_cmp_eq_u32 s{S_T1}, s{S_TAG}"); e(f"s_cbranch_scc1 {LG}")
        e(f"s_sub_u32 s{S_RETRY}, s{S_RETRY}, 1"); e(f"s_cbranch_scc1 {LG}")
        e("s_sleep 2")
        e(f"s_branch {LW2}")
        g.lab(LG)
    e("v_lshlrev_b32 v1, 4, v0")
    def ql():
        for rb in range(4):
            e(f"s_add_u32 s{S_T1}, s{S_T0}, {rb*2*4096*8}")
            e(f"buffer_load_dwordx4 {vr(16+4*rb,4)}, v1, s[{SRD_WS}:{SRD_WS+3}], s{S_T1} offen sc1")
    poll(g, "q", ql, [17+2*i for i in range(8)], 8, sleep=o.get("qsleep", 4))
    e("v_add_f32 v16, v16, v20"); e("v_add_f32 v18, v18, v22"); e("v_add_f32 v24, v24, v28"); e("v_add_f32 v26, v26, v30")
    e("v_add_f32 v16, v16, v24"); e("v_add_f32 v18, v18, v26")
    e("v_cvt_pk_bf16_f32 v12, v16, v18")
    e(f"s_lshl_b32 s{S_T2}, s{S_T2}, 8"); e(f"s_add_u32 s{S_T2}, s{S_T2}, {L_Q}")
    e("v_lshlrev_b32 v1, 2, v0"); e(f"v_add_u32 v1, s{S_T2}, v1")
    e("ds_write_b32 v1, v12")
    e("s_waitcnt lgkmcnt(0)")
    stamp(g, 2, ST)
    e("s_barrier")
    if o.get("earlyE", True):
        LA = g.new("arr")
        e(f"s_cmp_lg_u32 s{S_WAVE}, 5"); e(f"s_cbranch_scc1 {LA}")
        e("v_mov_b32 v2, 32"); e("v_mov_b32 v3, 1")
        e("s_mov_b64 exec, 1")
        e(f"global_atomic_add v2, v3, s[{S_DBG}:{S_DBG+1}]")
        e("s_mov_b64 exec, -1")
        g.lab(LA)
    if o.get("skiphelp"):
        e("s_branch L_hb2")
    if not o.get("skipffn2"):
        e(f"s_cmp_eq_u32 s{S_WAVE}, 6"); e("s_cbranch_scc1 L_w6")
    g.lab("L_wo")
    if o.get("prio_after") is not None:
        e(f"s_setprio {o['prio_after']}")
    if o.get("skipwo"): e("s_branch L_wodone")
    e(f"s_and_b32 s{S_T0}, s{S_SPLIT}, 3")
    e(f"s_lshl_b32 s{S_T1}, s{S_HKV}, 2"); e(f"s_add_u32 s{S_T1}, s{S_T1}, s{S_T0}")
    e(f"s_lshl_b32 s{S_SOFF}, s{S_T1}, 17")
    e(f"s_bfe_u32 s{S_T2}, s{S_SPLIT}, 0x10002"); e(f"s_lshl_b32 s{S_T2}, s{S_T2}, 16")
    e(f"s_add_u32 s{S_SOFF}, s{S_SOFF}, s{S_T2}")
    e(f"s_lshr_b32 s{S_T2}, s{S_SPLIT}, 3"); e(f"s_lshl_b32 s{S_T2}, s{S_T2}, 9")
    e(f"s_add_u32 s{S_SOFF}, s{S_SOFF}, s{S_T2}")
    e(f"s_sub_u32 s{S_T2}, s{S_WAVE}, 4"); e(f"s_lshl_b32 s{S_T2}, s{S_T2}, 7")
    e(f"s_add_u32 s{S_SOFF}, s{S_SOFF}, s{S_T2}")
    e("v_lshrrev_b32 v2, 3, v0"); e("v_lshlrev_b32 v2, 10, v2"); e("v_and_b32 v3, 7, v0"); e("v_lshl_add_u32 v2, v3, 4, v2")
    for u in range(8):
        e(f"buffer_load_dwordx4 {vr(H_W+4*u,4)}, v2, s[{SRD_WO}:{SRD_WO+3}], s{S_SOFF} offen" + o.get("wofl", " nt"))
        if u < 7:
            e(f"s_add_u32 s{S_SOFF}, s{S_SOFF}, {8*1024}")
    e("v_lshlrev_b32 v1, 4, v0"); e(f"v_add_u32 v1, s{S_STG}, v1")
    e("v_lshrrev_b32 v2, 4, v0"); e("v_bfe_u32 v3, v0, 2, 2"); e("v_lshl_add_u32 v3, v2, 3, v3"); e("v_and_b32 v4, 3, v0")
    e("v_lshlrev_b32 v5, 7, v3"); e("v_lshl_add_u32 v5, v4, 3, v5"); e(f"v_add_u32 v5, s{S_STG}, v5")
    e("s_waitcnt vmcnt(0)")
    for pc in range(2):
        for u in range(4):
            e(f"ds_write_b128 v1, {vr(H_W+16*pc+4*u,4)} offset:{u*1024}")
        for ct in range(4):
            f = H_WO + 4 * (pc * 4 + ct)
            e(f"ds_read_b64_tr_b16 {vr(f,2)}, v5 offset:{ct*32}")
            e(f"ds_read_b64_tr_b16 {vr(f+2,2)}, v5 offset:{ct*32+512}")
        e("s_waitcnt lgkmcnt(0)")
    g.lab("L_wodone")
    if o.get("earlyE", True):
        LE = g.new("eup"); LP = g.new("eupp"); LD = g.new("eupd")
        e(f"s_cmp_lg_u32 s{S_WAVE}, 5"); e(f"s_cbranch_scc1 {LE}")
        e("s_cmp_lg_u32 s2, 0"); e(f"s_cbranch_scc1 {LE}")
        e(f"s_mov_b32 s{S_RETRY}, 0x40000")
        e("v_mov_b32 v2, 32")
        g.lab(LP)
        e(f"global_load_dword v3, v2, s[{S_DBG}:{S_DBG+1}] sc1")
        e("s_waitcnt vmcnt(0)")
        e(f"v_readfirstlane_b32 s{S_T0}, v3")
        e(f"s_cmp_ge_u32 s{S_T0}, 256"); e(f"s_cbranch_scc1 {LD}")
        e(f"s_sub_u32 s{S_RETRY}, s{S_RETRY}, 1"); e(f"s_cbranch_scc1 {LD}")
        e("s_sleep 16")
        e(f"s_branch {LP}")
        g.lab(LD)
        e(f"v_mov_b32 v8, s{S_TAG}"); e("v_mov_b32 v1, 0")
        e("s_mov_b64 exec, 1")
        e(f"buffer_store_dword v8, v1, s[{SRD_WS}:{SRD_WS+3}], 0 offen sc1")
        e("s_mov_b64 exec, -1")
        g.lab(LE)
    if o.get("skipffn2"): e("s_branch L_hb2")
    e(f"s_cmp_lg_u32 s{S_WAVE}, 7"); e("s_cbranch_scc1 L_hb2")
    for ln in ['s_xor_b32 s60, s57, s56', 's_and_b32 s60, s60, 3', 's_cmp_lg_u32 s60, 0', 's_cbranch_scc1 L_hb2']: e(ln)
    for ln in ['s_lshr_b32 s68, s57, 2', 's_and_b32 s60, s68, 1', 's_lshl_b32 s60, s60, 1', 's_lshr_b32 s68, s68, 1', 's_add_u32 s68, s68, s60', 's_lshl_b32 s60, s56, 2', 's_add_u32 s68, s68, s60']: e(ln)
    e("v_lshrrev_b32 v2, 5, v0"); e("v_bfe_u32 v3, v0, 2, 3"); e("v_and_b32 v4, 3, v0")
    e("v_min_u32 v7, 6, v3")
    e(f"v_mul_u32_u24 v5, {4*2*512*8}, v7")
    e("v_lshl_add_u32 v5, v2, 12, v5")
    e("v_lshl_add_u32 v5, v4, 4, v5")
    e(f"s_lshl_b32 s{S_T0}, s68, 6")
    e(f"v_add_u32 v5, s{S_T0}, v5")
    def fl():
        for i in range(4):
            e(f"s_mov_b32 s{S_T1}, {WS_F + i*8192}")
            e(f"buffer_load_dwordx4 {vr(16+4*i,4)}, v5, s[{SRD_WS}:{SRD_WS+3}], s{S_T1} offen sc1")
    e("v_lshlrev_b32 v6, 10, v2"); e("v_lshl_add_u32 v6, v4, 2, v6"); e(f"s_lshl_b32 s{S_T1}, s68, 4"); e(f"v_add_u32 v6, s{S_T1}, v6")
    e(f"buffer_load_dword v{H_G+2}, v6, s[{SRD_X}:{SRD_X+3}], 0 offen")
    poll(g, "f", fl, [17+2*i for i in range(8)], 8, sleep=16)
    e("v_add_f32 v16, v16, v20"); e("v_add_f32 v18, v18, v22"); e("v_add_f32 v24, v24, v28"); e("v_add_f32 v26, v26, v30")
    e("v_add_f32 v16, v16, v24"); e("v_add_f32 v18, v18, v26")
    e("v_cmp_gt_u32 vcc, 7, v3"); g.nop(2)
    e("v_cndmask_b32 v16, 0, v16, vcc"); e("v_cndmask_b32 v18, 0, v18, vcc")
    row_ror_reduce(g, [16, 18], "v_add_f32", [4, 8])
    e("v_mov_b32 v20, v16"); e("v_mov_b32 v21, v18"); g.nop(2)
    e("v_permlane16_swap_b32 v16, v20"); e("v_permlane16_swap_b32 v18, v21"); g.nop(1)
    e("v_add_f32 v16, v16, v20"); e("v_add_f32 v18, v18, v21")
    e("v_cvt_pk_bf16_f32 v8, v16, v18")
    e("v_lshlrev_b32 v10, 16, v8"); e("v_and_b32 v11, 0xffff0000, v8")
    e(f"s_mov_b32 s{S_T0}, {L2E:#x}")
    for r in (10, 11):
        e(f"v_mul_f32 v12, s{S_T0}, v{r}")
        e(f"v_exp_f32 v12, -v12"); g.nop(1)
        e(f"v_add_f32 v12, 1.0, v12")
        e(f"v_rcp_f32 v12, v12"); g.nop(1)
        e(f"v_mul_f32 v{r}, v{r}, v12")
    e("v_cvt_pk_bf16_f32 v8, v10, v11")
    e(f"v_lshlrev_b32 v{H_G}, 16, v8"); e(f"v_and_b32 v{H_G+1}, 0xffff0000, v8")
    g.lab("L_hb2")
    e(f"s_sub_u32 s{S_T0}, s{S_WAVE}, 4")
    e(f"s_lshl_b32 s{S_T1}, s{S_T0}, 9")
    e("v_lshlrev_b32 v232, 2, v0"); e(f"v_add_u32 v232, s{S_T1}, v232")
    e(f"v_add_u32 v233, {2*RING}, v232")
    e(f"s_lshl_b32 s{S_T1}, s{S_T0}, 3"); e(f"s_add_u32 s{S_T1}, s{S_T1}, {L_ML}")
    e(f"v_mov_b32 v234, s{S_T1}")
    e("v_lshlrev_b32 v235, 4, v0")
    e("v_and_b32 v228, 1, v0")
    e(f"s_lshl_b32 s67, s{S_PAIR}, 4"); e(f"s_add_u32 s67, s67, s{S_SPLIT}")
    e(f"s_lshl_b32 s67, s67, 2"); e(f"s_add_u32 s67, s67, s{S_T0}")
    e(f"s_lshl_b32 s67, s67, 11"); e(f"s_add_u32 s67, s67, {WS_P}")
    e("v_lshrrev_b32 v236, 4, v0"); e("v_lshlrev_b32 v236, 4, v236"); e(f"v_add_u32 v236, {L_OB}, v236")
    e("v_lshlrev_b32 v237, 3, v0")
    e(f"s_and_b32 s{S_T2}, s{S_SPLIT}, 3")
    e(f"s_lshl_b32 s69, s{S_HKV}, 2"); e(f"s_add_u32 s69, s69, s{S_T2}")
    e(f"s_lshl_b32 s69, s69, 1"); e(f"s_bfe_u32 s{S_T2}, s{S_SPLIT}, 0x10002"); e(f"s_add_u32 s69, s69, s{S_T2}")
    e(f"s_lshl_b32 s{S_T2}, s{S_B}, 6"); e(f"s_add_u32 s69, s69, s{S_T2}")
    e(f"s_lshl_b32 s69, s69, 12")
    e(f"s_lshr_b32 s{S_T2}, s{S_SPLIT}, 3"); e(f"s_lshl_b32 s{S_T2}, s{S_T2}, 11"); e(f"s_add_u32 s69, s69, s{S_T2}")
    e(f"s_lshl_b32 s{S_T2}, s{S_T0}, 9"); e(f"s_add_u32 s69, s69, s{S_T2}")
    e(f"s_add_u32 s69, s69, {WS_S}")
    for ln in ['s_lshr_b32 s68, s57, 2', 's_and_b32 s61, s68, 1', 's_lshl_b32 s61, s61, 1', 's_lshr_b32 s68, s68, 1', 's_add_u32 s68, s68, s61', 's_lshl_b32 s61, s56, 2', 's_add_u32 s68, s68, s61']: e(ln)
    e("v_lshrrev_b32 v2, 5, v0"); e("v_bfe_u32 v3, v0, 2, 3"); e("v_and_b32 v4, 3, v0")
    e("v_lshlrev_b32 v238, 18, v2"); e("v_lshl_add_u32 v238, v3, 15, v238"); e("v_lshl_add_u32 v238, v4, 4, v238")
    e(f"s_lshl_b32 s{S_T0}, s68, 6"); e(f"v_add_u32 v238, s{S_T0}, v238")
    e("v_lshlrev_b32 v239, 10, v2"); e("v_lshl_add_u32 v239, v4, 2, v239"); e(f"s_lshl_b32 s{S_T1}, s68, 4"); e(f"v_add_u32 v239, s{S_T1}, v239")
    e("s_mov_b32 s70, 0xffff0000"); e("s_mov_b32 s71, 0")
    e("s_mov_b32 s72, 0"); e("s_mov_b32 s73, 0x0000ffff")
    e("s_mov_b32 s74, 0"); e("s_mov_b32 s75, 0xffff0000")
    e(f"v_mov_b32 v41, s{S_TAG}"); e(f"v_mov_b32 v43, s{S_TAG}"); e(f"v_mov_b32 v45, s{S_TAG}"); e(f"v_mov_b32 v47, s{S_TAG}")
    e(f"s_mov_b32 s{S_C0}, {L2E:#x}")
    if o.get("pretouch"):
        fl = "" if o["pretouch"] == 1 else " sc1"
        e(f"buffer_load_dword v227, v235, s[{SRD_WS}:{SRD_WS+3}], s67 offen{fl}")
        e(f"buffer_load_dword v227, v235, s[{SRD_WS}:{SRD_WS+3}], s67 offen offset:1152{fl}")
        e(f"buffer_load_dword v227, v237, s[{SRD_WS}:{SRD_WS+3}], s69 offen{fl}")
    if o.get("tailpf", True):
        e(f"s_getpc_b64 s[{S_T2}:{S_T2+1}]")
        g.lab("L_pc2")
        e(f"s_add_u32 s{S_T2}, s{S_T2}, L_tail-L_pc2"); e(f"s_addc_u32 s{S_T2+1}, s{S_T2+1}, 0")
        e("v_lshlrev_b32 v229, 7, v0")
        e(f"v_min_u32 v229, L_code_end-L_tail-4, v229")
    stamp(g, 3, ST)

    g.lab("L_tail")
    if DS:
        LX = g.new("ds")
        e(f"s_cmp_lg_u32 s{S_WAVE}, 0"); e(f"s_cbranch_scc1 {LX}")
        dstamp(g, 2, True)
        e("v_mov_b32 v236, 12"); e("v_mov_b32 v237, s88")
        e("s_mov_b64 exec, 1")
        e(f"global_atomic_umax v236, v237, s[{S_DBG}:{S_DBG+1}]")
        e("s_mov_b64 exec, -1")
        e("s_not_b32 s90, s90")
        e("v_mov_b32 v236, 0"); e("v_mov_b32 v237, s90")
        e("s_mov_b64 exec, 1")
        e(f"global_atomic_umax v236, v237, s[{S_DBG}:{S_DBG+1}]")
        e("s_mov_b64 exec, -1")
        g.lab(LX)
    e("s_barrier")
    stamp(g, 4, STT)
    e(f"s_cmp_lt_u32 s{S_WAVE}, 4"); e("s_cbranch_scc1 L_t2")
    e("ds_read_b32 v8, v232"); e("ds_read_b32 v9, v232 offset:256")
    e("ds_read_b32 v10, v232 offset:32768"); e("ds_read_b32 v11, v232 offset:33024")
    e("ds_read_b32 v12, v233"); e("ds_read_b32 v13, v233 offset:256")
    e("ds_read_b32 v14, v233 offset:32768"); e("ds_read_b32 v15, v233 offset:33024")
    for w in range(4):
        e(f"ds_read_b64 {vr(16+2*w,2)}, v234 offset:{w*32}")
    if o.get("tailpf", True):
        LP = g.new("tpf")
        e(f"s_cmp_lg_u32 s{S_WAVE}, 7"); e(f"s_cbranch_scc1 {LP}")
        e("s_mov_b32 exec_hi, 0")
        e(f"global_load_dword v230, v229, s[{S_T2}:{S_T2+1}]")
        e("s_mov_b64 exec, -1")
        g.lab(LP)
    e("v_cmp_eq_u32 vcc, 1, v228")
    e("s_waitcnt lgkmcnt(0)")
    e("v_max3_f32 v24, v16, v18, v20"); e("v_max_f32 v24, v24, v22")
    for w in range(4):
        e(f"v_sub_f32 v{16+2*w}, v{16+2*w}, v24")
    for w in range(4):
        e(f"v_mul_f32 v{16+2*w}, s{S_C0}, v{16+2*w}")
    for w in range(4):
        e(f"v_exp_f32 v{16+2*w}, v{16+2*w}")
    g.nop(1)
    e("v_mul_f32 v40, v8, v16"); e("v_mul_f32 v44, v9, v16"); e("v_mul_f32 v46, v17, v16")
    for w in range(1, 4):
        e(f"v_fmac_f32 v40, v{8+2*w}, v{16+2*w}"); e(f"v_fmac_f32 v44, v{9+2*w}, v{16+2*w}"); e(f"v_fmac_f32 v46, v{17+2*w}, v{16+2*w}")
    e("v_cndmask_b32 v42, v24, v46, vcc")
    e("v_mov_b32 v46, v42")
    e(f"buffer_store_dwordx4 v[40:43], v235, s[{SRD_WS}:{SRD_WS+3}], s67 offen sc1")
    e(f"buffer_store_dwordx4 v[44:47], v235, s[{SRD_WS}:{SRD_WS+3}], s67 offen offset:1024 sc1")
    if o.get("diagH") == 1:
        stamp(g, 1, True)
        e("s_waitcnt vmcnt(0)")
        stamp(g, 2, True)
    g.lab("L_t2")
    stamp(g, 5, STT)
    e(f"s_and_b32 s{S_T0}, s{S_SPLIT}, 3")
    e("v_lshrrev_b32 v2, 2, v0"); e("v_and_b32 v3, 3, v0")
    e("v_lshlrev_b32 v5, 13, v2")
    e("v_lshl_add_u32 v4, v3, 5, v5")
    e(f"s_lshl_b32 s{S_T1}, s{S_PAIR}, 17")
    e(f"s_lshl_b32 s{S_T2}, s{S_T0}, 11"); e(f"s_add_u32 s{S_T1}, s{S_T1}, s{S_T2}")
    e(f"s_bfe_u32 s{S_T2}, s{S_SPLIT}, 0x10002"); e(f"s_lshl_b32 s{S_T2}, s{S_T2}, 10"); e(f"s_add_u32 s{S_T1}, s{S_T1}, s{S_T2}")
    e(f"s_lshl_b32 s{S_T2}, s{S_WAVE}, 7"); e(f"s_add_u32 s{S_T1}, s{S_T1}, s{S_T2}")
    e(f"s_add_u32 s{S_T1}, s{S_T1}, {WS_P}")
    def pl():
        e(f"buffer_load_dwordx4 v[8:11], v4, s[{SRD_WS}:{SRD_WS+3}], s{S_T1} offen sc1")
        e(f"buffer_load_dwordx4 v[12:15], v4, s[{SRD_WS}:{SRD_WS+3}], s{S_T1} offen offset:16 sc1")
    if o.get("gate"):
        LG = g.new("gate")
        e(f"s_cmp_eq_u32 s{S_WAVE}, {o['gate'] - 1}"); e(f"s_cbranch_scc1 {LG}")
        e("s_barrier")
        g.lab(LG)
    poll(g, "p", pl, [9, 11, 13, 15], 24, sleep=o.get("psleep", 1))
    if o.get("gate"):
        LG2 = g.new("gate2")
        e(f"s_cmp_lg_u32 s{S_WAVE}, {o['gate'] - 1}"); e(f"s_cbranch_scc1 {LG2}")
        e("s_barrier")
        g.lab(LG2)
    e("v_mov_b32 v16, v10"); e("v_mov_b32 v18, v14"); e("v_mov_b32 v10, v12")
    stamp(g, 6, STT)
    e("v_mov_b32 v20, v16")
    row_ror_reduce(g, [20], "v_max_f32", [4, 8])
    rows_reduce(g, 20, 21, "v_max_f32")
    e(f"s_mov_b32 s{S_C0}, {L2E:#x}")
    e("v_sub_f32 v16, v16, v20"); e(f"v_mul_f32 v16, s{S_C0}, v16"); e("v_exp_f32 v16, v16"); g.nop(1)
    e("v_mul_f32 v18, v18, v16")
    e("v_mul_f32 v8, v8, v16"); e("v_mul_f32 v10, v10, v16")
    row_ror_reduce(g, [8, 10, 18], "v_add_f32", [4, 8])
    rows_reduce_multi(g, [8, 10, 18], [26, 27, 28], "v_add_f32")
    e("v_rcp_f32 v19, v18"); g.nop(1)
    for r in (8, 10):
        e(f"v_mul_f32 v20, v{r}, v19"); e(f"v_fma_f32 v21, -v20, v18, v{r}"); e(f"v_fma_f32 v{r}, v21, v19, v20")
    e("v_cvt_pk_bf16_f32 v22, v8, v10")
    e(f"s_lshl_b32 s{S_T2}, s{S_WAVE}, 4"); e(f"s_add_u32 s{S_T2}, s{S_T2}, {L_OB}")
    e(f"v_lshlrev_b32 v3, 2, v3"); e(f"v_add_u32 v3, s{S_T2}, v3")
    e("s_mov_b64 exec, 0xf")
    e("ds_write_b32 v3, v22")
    e("s_mov_b64 exec, -1")
    e("s_waitcnt lgkmcnt(0)")
    e("s_barrier")
    e(f"s_cmp_lt_u32 s{S_WAVE}, 4"); e("s_cbranch_scc1 L_fin")
    for ks in range(2):
        e(f"ds_read_b128 {vr(8+4*ks,4)}, v236 offset:{ks*64}")
    e("s_waitcnt lgkmcnt(0)")
    for ks in range(2):
        for ct in range(4):
            c = "0" if ks == 0 else vr(16+4*ct, 4)
            e(f"v_mfma_f32_16x16x32_bf16 {vr(16+4*ct,4)}, {vr(8+4*ks,4)}, {vr(H_WO+4*(ks*4+ct),4)}, {c}")
    g.nop(6)
    e("v_cndmask_b32 v40, v16, v20, s[70:71]")
    e("v_cndmask_b32 v40, v40, v24, s[72:73]")
    g.nop(1)
    e("v_cndmask_b32 v40, v40, v28, s[74:75]")
    pub2(g, 40, 237, "s69")
    if o.get("diagH") == 2:
        stamp(g, 1, True)
        e("s_waitcnt vmcnt(0)")
        stamp(g, 2, True)
    stamp(g, 7, STT)
    e(f"s_cmp_lg_u32 s{S_WAVE}, 7"); e("s_cbranch_scc1 L_fin")
    for ln in ['s_xor_b32 s60, s57, s56', 's_and_b32 s60, s60, 3', 's_cmp_lg_u32 s60, 0', 's_cbranch_scc1 L_fin']: e(ln)
    def sl():
        for i in range(8):
            e(f"s_mov_b32 s{S_T1}, {WS_S + i*4096}")
            e(f"buffer_load_dwordx4 {vr(64+4*i,4)}, v238, s[{SRD_WS}:{SRD_WS+3}], s{S_T1} offen sc1")
    poll(g, "s", sl, [64+2*i+1 for i in range(16)], 8)
    stamp(g, 8, STT)
    for i in range(4):
        e(f"v_add_f32 v{64+4*i}, v{64+4*i}, v{80+4*i}"); e(f"v_add_f32 v{66+4*i}, v{66+4*i}, v{82+4*i}")
    e("v_add_f32 v64, v64, v72"); e("v_add_f32 v66, v66, v74"); e("v_add_f32 v68, v68, v76"); e("v_add_f32 v70, v70, v78")
    e("v_add_f32 v16, v64, v68"); e("v_add_f32 v18, v66, v70")
    row_ror_reduce(g, [16, 18], "v_add_f32", [4, 8])
    e("v_mov_b32 v20, v16"); e("v_mov_b32 v21, v18"); g.nop(2)
    e("v_permlane16_swap_b32 v16, v20"); e("v_permlane16_swap_b32 v18, v21"); g.nop(1)
    e("v_add_f32 v16, v16, v20"); e("v_add_f32 v18, v18, v21")
    e("v_cvt_pk_bf16_f32 v8, v16, v18")
    e("v_lshlrev_b32 v10, 16, v8"); e("v_and_b32 v11, 0xffff0000, v8")
    e(f"v_mul_f32 v10, v10, v{H_G}"); e(f"v_mul_f32 v11, v11, v{H_G+1}")
    e("v_cvt_pk_bf16_f32 v8, v10, v11")
    e("v_lshlrev_b32 v10, 16, v8"); e("v_and_b32 v11, 0xffff0000, v8")
    e(f"v_lshlrev_b32 v12, 16, v{H_G+2}"); e(f"v_and_b32 v13, 0xffff0000, v{H_G+2}")
    e("v_add_f32 v10, v10, v12"); e("v_add_f32 v11, v11, v13")
    e("v_cvt_pk_bf16_f32 v8, v10, v11")
    e("s_mov_b32 exec_lo, 0xf"); e("s_mov_b32 exec_hi, 0xf")
    e(f"buffer_store_dword v8, v239, s[{SRD_OUT}:{SRD_OUT+3}], 0 offen" + o.get("outfl", ""))
    e("s_mov_b64 exec, -1")
    if DS: dstamp(g, 1, True)
    if not o.get("earlyE", True):
        e("s_cmp_lg_u32 s2, 0"); e("s_cbranch_scc1 L_fin")
        e(f"v_mov_b32 v8, s{S_TAG}"); e("v_mov_b32 v1, 0")
        e("s_mov_b64 exec, 1")
        e(f"buffer_store_dword v8, v1, s[{SRD_WS}:{SRD_WS+3}], 0 offen sc1")
        e("s_mov_b64 exec, -1")
    g.lab("L_fin")
    if DS2:
        LX = g.new("ds2"); LY = g.new("ds2y")
        e("s_memrealtime s[84:85]")
        e("s_waitcnt lgkmcnt(0)")
        e("s_mov_b64 exec, 1")
        e(f"s_cmp_eq_u32 s{S_WAVE}, 7"); e(f"s_cbranch_scc1 {LY}")
        e(f"s_cmp_lg_u32 s{S_WAVE}, 0"); e(f"s_cbranch_scc1 {LX}")
        e("s_cmp_ge_u32 s2, 3"); e(f"s_cbranch_scc1 {LX}")
        e("s_mul_i32 s83, s2, 12")
        e("v_mov_b32 v1, s83")
        e("v_mov_b32 v2, s90"); e("v_mov_b32 v3, s86"); e("v_mov_b32 v4, s88")
        e(f"global_store_dwordx3 v1, v[2:4], s[{S_DBG}:{S_DBG+1}]")
        e(f"s_branch {LX}")
        g.lab(LY)
        e("s_cmp_ge_u32 s2, 7"); e(f"s_cbranch_scc1 {LX}")
        e("s_lshl_b32 s83, s2, 2"); e("s_add_u32 s83, s83, 36")
        e("v_mov_b32 v1, s83"); e("v_mov_b32 v2, s84")
        e(f"global_store_dword v1, v2, s[{S_DBG}:{S_DBG+1}]")
        g.lab(LX)
    if ST:
        stamp(g, 9, ST)
        e("s_waitcnt lgkmcnt(0)")
        e(f"s_lshl_b32 s{S_T0}, s2, 3"); e(f"s_add_u32 s{S_T0}, s{S_T0}, s{S_WAVE}"); e(f"s_lshl_b32 s{S_T0}, s{S_T0}, 6")
        e(f"s_add_u32 s{S_T0}, s{S_T0}, {WS_DBG}")
        e("v_mov_b32 v1, 0")
        e("s_mov_b64 exec, 1")
        for i in range(10):
            e(f"v_mov_b32 v2, s{S_ST0+2*i}")
            e(f"buffer_store_dword v2, v1, s[{SRD_WS}:{SRD_WS+3}], s{S_T0} offen offset:{4*i}")
            g.nop(1)
    g.lab("L_end")
    e("s_endpgm")
    g.lab("L_code_end")
    g.L.append('.section .rodata,"a"')
    g.L.append(".p2align 6")
    g.L.append(f".amdhsa_kernel {KN}_kernel")
    for s in ["next_free_vgpr 240", "next_free_sgpr 102", "accum_offset 240", "group_segment_fixed_size 0", "kernarg_size 88",
              "user_sgpr_count 2", "user_sgpr_kernarg_segment_ptr 1", "system_sgpr_workgroup_id_x 1",
              "float_denorm_mode_32 3", "float_denorm_mode_16_64 3"]:
        g.L.append("  .amdhsa_" + s)
    g.L.append(".end_amdhsa_kernel")
    txt = "\n".join(g.L) + "\n"
    lf = o.get("ldflags")
    if lf:
        out = []
        for ln in txt.split("\n"):
            if "buffer_load_dword" in ln and ln.rstrip().endswith(" sc1") and " lds" not in ln:
                ln = ln.rstrip()[:-4] + " " + lf
            out.append(ln)
        txt = "\n".join(out)
    pf = []
    span = 64 << o.get("pfshift", 7)
    for i in range((o.get("pf_kib", 24) * 1024 + span - 1) // span):
        pf.append(f"  v_min_u32 v3, L_code_end-{KN}_kernel-4, v1")
        pf.append(f"  global_load_dword v230, v3, s[{S_T0}:{S_T0+1}]")
        pf.append(f"  v_add_u32 v1, {span}, v1")
    txt = txt.replace("  CODE_PREFETCH_PLACEHOLDER", "\n".join(pf))
    return txt

if __name__ == "__main__":
    import json
    opt = json.loads(sys.argv[2]) if len(sys.argv) > 2 else {}
    open(sys.argv[1], "w").write(gen(opt))
```

```python
import sys
KN = "recurrent_scan__gqa_block_cached__dense_activation_silu__decode"

WS_E   = 0x0
WS_Q   = 0x200000
WS_H   = 0x240000
WS_ML  = 0x28000
WS_F   = 0x30000
WS_S   = 0x80000
WS_P   = 0x400000
WS_CNT = 0x2A0000
WS_DBG = 0x300000
WS_SIZE = 0x800000

RING   = 32768
L_STG  = 0x20000
L_XN4  = 0x24000
L_XN5  = 0x24800
L_Q    = 0x25000
L_H    = 0x25400
L_OB   = 0x25600
L_ML   = 0x25800
L_FLAG = 0x25900
LDS_BYTES = 0x26000

L2E = 0x3fb8aa3b
SCALE = 0x3db504f3
NEG_INF = 0xff800000

DEBUG_TO = True
class G:
    def __init__(self):
        self.L = []
        self.uid = 0
    def e(self, s):
        self.L.append("  " + s)
    def lab(self, s):
        self.L.append(s + ":")
    def new(self, p):
        self.uid += 1
        return f"L_{p}_{self.uid}"
    def nop(self, n):
        while n > 0:
            k = min(n, 16)
            self.e(f"s_nop {k-1}")
            n -= k

def vr(a, n=None):
    return f"v{a}" if n is None else f"v[{a}:{a+n-1}]"
def sr(a, n=None):
    return f"s{a}" if n is None else f"s[{a}:{a+n-1}]"

S_WAVE = 3
S_X, S_K, S_V, S_WQ, S_WO, S_BX, S_W1, S_W2 = 4, 6, 8, 10, 12, 14, 16, 18
S_OUT, S_DBG, S_WS = 20, 22, 24
S_TAG, S_E = 26, 27
SRD_K, SRD_V, SRD_WS, SRD_W, SRD_X, SRD_OUT, SRD_WO = 28, 32, 36, 40, 44, 48, 52
S_PAIR, S_SPLIT, S_B, S_HKV = 56, 57, 58, 59
S_T0, S_T1, S_T2, S_T3, S_T4, S_T5 = 60, 61, 62, 63, 64, 65
S_RETRY = 66
S_OFF = 67
S_RB = 68
S_PB = 69
S_CNT = 70
S_SOFF = 71
S_RS32 = 72
S_EX = 74
S_ST0 = 76
S_C0 = 96
S_C1 = 97
S_ROT = 98
S_NEXT = 99

def build_srd(g, d, ptr, size):
    g.e(f"s_mov_b32 s{d}, s{ptr}")
    g.e(f"s_and_b32 s{d+1}, s{ptr+1}, 0xffff")
    g.e(f"s_mov_b32 s{d+2}, {size:#x}")
    g.e(f"s_mov_b32 s{d+3}, 0x20000")

def rows_reduce(g, v, t, op):
    for sw in ("v_permlane16_swap_b32", "v_permlane32_swap_b32"):
        g.e(f"v_mov_b32 v{t}, v{v}")
        g.nop(2)
        g.e(f"{sw} v{v}, v{t}")
        g.nop(1)
        g.e(f"{op} v{v}, v{v}, v{t}")

def rows_reduce_multi(g, vs, ts, op):
    for sw in ("v_permlane16_swap_b32", "v_permlane32_swap_b32"):
        for v, t in zip(vs, ts):
            g.e(f"v_mov_b32 v{t}, v{v}")
        g.nop(max(0, 3 - len(vs)) if len(vs) < 3 else 0)
        if len(vs) >= 3: pass
        g.nop(1)
        for v, t in zip(vs, ts):
            g.e(f"{sw} v{v}, v{t}")
        g.nop(1)
        for v, t in zip(vs, ts):
            g.e(f"{op} v{v}, v{v}, v{t}")
        g.nop(1)

def row_ror_reduce(g, vs, op, rors):
    for r in rors:
        g.nop(2)
        for v in vs:
            g.e(f"{op}_dpp v{v}, v{v}, v{v} row_ror:{r} row_mask:0xf bank_mask:0xf")
            if len(vs) == 1:
                pass
    g.nop(1)

POLL_IDS = {"q": 0, "h": 1, "f": 2, "p": 3, "s": 4}
def poll(g, name, issue_loads, tag_regs, tmp, dbgword=None, sleep=1, mask=None):
    L = g.new("poll_" + name); D = g.new("polld_" + name); TO = g.new("pollto_" + name)
    g.e(f"s_mov_b32 s{S_RETRY}, 0x40000")
    if mask is not None:
        g.e(f"s_mov_b32 exec_lo, {mask & 0xffffffff:#x}"); g.e(f"s_mov_b32 exec_hi, {mask >> 32:#x}")
    g.lab(L)
    issue_loads()
    g.e("s_waitcnt vmcnt(0)")
    g.e(f"v_xor_b32 v{tmp}, s{S_TAG}, v{tag_regs[0]}")
    for t in tag_regs[1:]:
        g.e(f"v_xor_b32 v{tmp+1}, s{S_TAG}, v{t}")
        g.e(f"v_or_b32 v{tmp}, v{tmp}, v{tmp+1}")
    g.e(f"v_cmp_ne_u32 vcc, 0, v{tmp}")
    g.e(f"s_cbranch_vccz {D}")
    g.e("s_mov_b64 exec, vcc")
    g.e(f"s_sub_u32 s{S_RETRY}, s{S_RETRY}, 1")
    g.e(f"s_cbranch_scc1 {TO}")
    g.e(f"s_sleep {sleep}")
    g.e(f"s_branch {L}")
    g.lab(TO)
    if DEBUG_TO:
        g.e(f"v_mov_b32 v{tmp}, {4*POLL_IDS[name]}")
        g.e(f"v_mov_b32 v{tmp+1}, s2")
        g.e(f"v_add_u32 v{tmp+1}, 0x1000, v{tmp+1}")
        g.e(f"global_store_dword v{tmp}, v{tmp+1}, s[{S_DBG}:{S_DBG+1}]")
    g.lab(D)
    g.e("s_mov_b64 exec, -1")

PUB = {"mode": "store"}
def pub2(g, vdata, voff, soff, imm=0):
    off = f" offset:{imm}" if imm else ""
    if PUB["mode"] == "atomic":
        g.e(f"buffer_atomic_swap_x2 v[{vdata}:{vdata+1}], v{voff}, s[{SRD_WS}:{SRD_WS+3}], {soff} offen{off}")
    elif PUB["mode"] == "atomic_sc1":
        g.e(f"buffer_atomic_swap_x2 v[{vdata}:{vdata+1}], v{voff}, s[{SRD_WS}:{SRD_WS+3}], {soff} offen{off} sc1")
    elif PUB["mode"] == "store_sc01":
        g.e(f"buffer_store_dwordx2 v[{vdata}:{vdata+1}], v{voff}, s[{SRD_WS}:{SRD_WS+3}], {soff} offen{off} sc0 sc1")
    else:
        g.e(f"buffer_store_dwordx2 v[{vdata}:{vdata+1}], v{voff}, s[{SRD_WS}:{SRD_WS+3}], {soff} offen{off} sc1")

def poll2(g, name, issue, nloads, tags, on_ok, A, B, tmp, stagger=10):
    L = g.new("p2_" + name); D = g.new("p2d_" + name); TO = g.new("p2to_" + name)
    W = "s[100:101]"
    def check(base):
        tr = tags(base)
        g.e(f"s_mov_b64 exec, {W}")
        g.e(f"v_xor_b32 v{tmp}, s{S_TAG}, v{tr[0]}")
        for t in tr[1:]:
            g.e(f"v_xor_b32 v{tmp+1}, s{S_TAG}, v{t}")
            g.e(f"v_or_b32 v{tmp}, v{tmp}, v{tmp+1}")
        g.e(f"v_cmp_ne_u32 vcc, 0, v{tmp}")
        g.e(f"s_andn2_b64 exec, {W}, vcc")
        SK = g.new("p2s")
        g.e(f"s_cbranch_execz {SK}")
        on_ok(base)
        g.lab(SK)
        g.e(f"s_mov_b64 {W}, vcc")
        g.e(f"s_cbranch_vccz {D}")
        g.e(f"s_mov_b64 exec, {W}")
    g.e(f"s_mov_b32 s{S_RETRY}, 0x40000")
    g.e(f"s_mov_b64 {W}, -1")
    issue(A)
    g.e(f"s_sleep {stagger}")
    g.lab(L)
    issue(B)
    g.e(f"s_waitcnt vmcnt({nloads})")
    check(A)
    issue(A)
    g.e(f"s_waitcnt vmcnt({nloads})")
    check(B)
    g.e(f"s_sub_u32 s{S_RETRY}, s{S_RETRY}, 1")
    g.e(f"s_cbranch_scc0 {L}")
    if DEBUG_TO:
        g.e(f"v_mov_b32 v{tmp}, {4*POLL_IDS[name]}")
        g.e(f"v_mov_b32 v{tmp+1}, s2")
        g.e(f"v_add_u32 v{tmp+1}, 0x1000, v{tmp+1}")
        g.e(f"global_store_dword v{tmp}, v{tmp+1}, s[{S_DBG}:{S_DBG+1}]")
    g.lab(D)
    g.e("s_mov_b64 exec, -1")

def dstamp(g, word, on, tmpv=(236, 237), sp=(92, 93)):
    if not on: return
    g.e(f"s_memrealtime s[{sp[0]}:{sp[1]}]")
    g.e("s_waitcnt lgkmcnt(0)")
    g.e(f"v_mov_b32 v{tmpv[0]}, {4*word}")
    g.e(f"v_mov_b32 v{tmpv[1]}, s{sp[0]}")
    g.e("s_mov_b64 s[94:95], exec")
    g.e("s_mov_b64 exec, 1")
    g.e(f"global_atomic_umax v{tmpv[0]}, v{tmpv[1]}, s[{S_DBG}:{S_DBG+1}]")
    g.e("s_mov_b64 exec, s[94:95]")

def stamp(g, idx, on):
    if on:
        g.e(f"s_memrealtime s[{S_ST0+2*idx}:{S_ST0+2*idx+1}]")

def gen(opt=None):
    o = dict(pattern="grp16", rot=512*1024, xmap=False, stamps=False, ntiles=16, prefetch_code=True, stage=99, b0=True, thr=16, prio=True, dyn=True, sthr=24, wnt=1, ns=10, poll2=False, copies=1, wofl="", gate=1)
    if opt: o.update(opt)
    DS = False
    DS2 = bool(o.get("dstamps"))
    ST = bool(o["stamps"])
    STT = o["stamps"] is True
    STA = o["stamps"] == "A"
    STP = o["stamps"] == "P"
    STF = o["stamps"] == "F"
    STE = o["stamps"] == "E"
    STX = o["stamps"] == "X"
    STL = o["stamps"] == "L"
    PUB["mode"] = o.get("pub", "store")
    g = G(); e = g.e
    g.L.append(f"; @launch grid=(256,1,1) block=(512,1,1) lds={LDS_BYTES}")
    g.L.append('.amdgcn_target "amdgcn-amd-amdhsa--gfx950"')
    g.L.append(".text")
    g.L.append(f".globl {KN}_kernel")
    g.L.append(".p2align 8")
    g.L.append(f".type {KN}_kernel,@function")
    g.lab(f"{KN}_kernel")
    e("s_cmp_ge_u32 s2, 256")
    e("s_cbranch_scc1 L_end")
    stamp(g, 0, ST)
    if DS2: e("s_memrealtime s[90:91]")
    e(f"s_load_dwordx16 s[4:19], s[0:1], 0")
    e(f"s_load_dwordx4 s[20:23], s[0:1], 64")
    e(f"s_load_dwordx2 s[24:25], s[0:1], 80")
    e("v_lshrrev_b32 v1, 6, v0")
    e("v_and_b32 v0, 63, v0")
    e(f"v_readfirstlane_b32 s{S_WAVE}, v1")
    if o["xmap"]:
        e(f"s_and_b32 s{S_T0}, s2, 7"); e(f"s_lshl_b32 s{S_T0}, s{S_T0}, 5"); e(f"s_lshr_b32 s{S_T1}, s2, 3")
        e(f"s_add_u32 s{S_T0}, s{S_T0}, s{S_T1}")
        e(f"s_lshr_b32 s{S_PAIR}, s{S_T0}, 4"); e(f"s_and_b32 s{S_SPLIT}, s{S_T0}, 15")
    else:
        e(f"s_lshr_b32 s{S_PAIR}, s2, 4"); e(f"s_and_b32 s{S_SPLIT}, s2, 15")
    e(f"s_lshr_b32 s{S_B}, s{S_PAIR}, 3"); e(f"s_and_b32 s{S_HKV}, s{S_PAIR}, 7")
    e(f"s_cmp_ge_u32 s{S_WAVE}, 4")
    e("s_cbranch_scc1 L_helper")

    V_KD, V_VD, V_KR, V_VR = 8, 12, 14, 18
    V_Q, V_O = 28, 44
    RK = (76, 140); RV = (108, 172)
    V_S, V_A, V_P = 204, 212, 220
    V_M, V_L, V_AL, V_NM, V_MX, V_T = 224, 225, 226, 227, 228, 229
    e("v_lshrrev_b32 v1, 4, v0")
    e("v_and_b32 v2, 15, v0")
    e("v_lshlrev_b32 v3, 8, v1")
    e("v_xor_b32 v4, v2, v1")
    for n in range(4):
        e(f"v_xor_b32 v5, {4*n}, v4")
        e(f"v_lshl_add_u32 v{V_KD+n}, v5, 4, v3")
    e("v_lshlrev_b32 v4, 1, v1")
    e("v_xor_b32 v4, v2, v4")
    for n in range(2):
        e(f"v_xor_b32 v5, {8*n}, v4")
        e(f"v_lshl_add_u32 v{V_VD+n}, v5, 4, v3")
    e(f"s_lshl_b32 s{S_RB}, s{S_WAVE}, 15")
    e(f"s_lshl_b32 s{S_PB}, s{S_PAIR}, 23")
    if o["pattern"] == "grp16":
        e(f"s_lshl_b32 s{S_OFF}, s{S_SPLIT}, 2"); e(f"s_add_u32 s{S_OFF}, s{S_OFF}, s{S_WAVE}")
        e(f"s_lshl_b32 s{S_OFF}, s{S_OFF}, 13")
        STEP = 16 * 4 * 8192
    else:
        e(f"s_lshl_b32 s{S_OFF}, s{S_SPLIT}, 6"); e(f"s_add_u32 s{S_OFF}, s{S_OFF}, s{S_WAVE}")
        e(f"s_lshl_b32 s{S_OFF}, s{S_OFF}, 13")
        STEP = 4 * 8192
    e(f"s_mul_i32 s{S_ROT}, s{S_PAIR}, {o['rot']}")
    e(f"s_add_u32 s{S_OFF}, s{S_OFF}, s{S_ROT}")
    e("s_waitcnt lgkmcnt(0)")
    stamp(g, 4, STA)
    e(f"s_load_dword s{S_E}, s[{S_WS}:{S_WS+1}], {WS_E}")
    build_srd(g, SRD_K, S_K, 0x8000000)
    build_srd(g, SRD_V, S_V, 0x8000000)

    def tile_addr():
        e(f"s_and_b32 s{S_SOFF}, s{S_OFF}, 0x7fffff")
        e(f"s_add_u32 s{S_SOFF}, s{S_SOFF}, s{S_PB}")
    def issue(which, slot):
        srd = SRD_K if which == 0 else SRD_V
        for half in range(2):
            off = slot * 16384 + which * 8192 + half * 4096
            e(f"s_add_u32 m0, s{S_RB}, {off}")
            if half == 0:
                e(f"s_mov_b32 s{S_T0}, s{S_SOFF}")
            else:
                e(f"s_add_u32 s{S_T0}, s{S_SOFF}, 4096")
            for i in range(4):
                n = half * 4 + i
                vo = (V_KD + (n & 3)) if which == 0 else (V_VD + (n & 1))
                fl = o.get("kfl" if which == 0 else "vfl", " nt")
                e(f"buffer_load_dwordx4 v{vo}, s[{srd}:{srd+3}], s{S_T0} offen offset:{i*1024}{fl} lds")
    THR = o["thr"]
    nissued = 0
    for slot in range(2):
        tile_addr()
        for which in range(2):
            if o["b0"] and nissued == o.get("b0at", 8):
                e("s_barrier")
            if nissued + 8 > THR:
                e(f"s_waitcnt vmcnt({THR - 8})")
                stamp(g, 3 + nissued // 8, STP)
            issue(which, slot)
            nissued += 8
        e(f"s_add_u32 s{S_OFF}, s{S_OFF}, {STEP}")
    stamp(g, 5, STA)
    e("v_and_b32 v1, 15, v0")
    e("v_lshrrev_b32 v2, 4, v0")
    e("v_xor_b32 v3, v2, v1")
    e(f"v_lshlrev_b32 v4, 8, v1")
    e(f"v_add_u32 v4, s{S_RB}, v4")
    for kk in range(4):
        e(f"v_xor_b32 v5, {4*kk}, v3")
        e(f"v_lshl_add_u32 v{V_KR+kk}, v5, 4, v4")
    e("v_lshrrev_b32 v1, 2, v0")
    e("v_and_b32 v2, 7, v1")
    e("v_and_b32 v3, 3, v0")
    e("v_lshlrev_b32 v4, 8, v1")
    e("v_lshl_add_u32 v4, v3, 3, v4")
    e(f"v_add_u32 v4, s{S_RB}, v4")
    e("v_add_u32 v4, 8192, v4")
    for dt in range(8):
        e(f"v_xor_b32 v5, {dt}, v2")
        e(f"v_lshl_add_u32 v{V_VR+dt}, v5, 5, v4")
    for i in range(32):
        e(f"v_mov_b32 v{V_O+i}, 0")
    for i in range(16):
        e(f"v_mov_b32 v{V_Q+i}, 0")
    e(f"v_mov_b32 v{V_M}, {NEG_INF:#x}")
    for r in (236, 237, 238, 239): e(f"v_mov_b32 v{r}, 0")
    e(f"v_mov_b32 v{V_L}, 0")
    build_srd(g, SRD_WS, S_WS, WS_SIZE)
    build_srd(g, SRD_X, S_X, 2048)
    build_srd(g, SRD_WO, S_WO, 0x400000)
    build_srd(g, SRD_OUT, S_OUT, 2048)

    def load(rs, slot, do_issue, wK, wV, thr=None, pst=None):
        e(f"s_waitcnt vmcnt({wK})")
        for T in range(2):
            for kk in range(4):
                if not o.get("noread"): e(f"ds_read_b128 {vr(RK[rs]+16*T+4*kk,4)}, v{V_KR+kk} offset:{slot*16384+T*4096}")
        e("s_waitcnt lgkmcnt(0)")
        if do_issue:
            tile_addr()
            if thr is not None and thr < 32: e(f"s_waitcnt vmcnt({thr-8})")
            if pst is not None: stamp(g, pst, STP)
            issue(0, slot)
        e(f"s_waitcnt vmcnt({wV})")
        for dt in range(8):
            for T in range(2):
                if not o.get("noread"): e(f"ds_read_b64_tr_b16 {vr(RV[rs]+4*dt+2*T,2)}, v{V_VR+dt} offset:{slot*16384+T*4096}")
        e("s_waitcnt lgkmcnt(0)")
        if do_issue:
            if thr is not None and thr < 32: e(f"s_waitcnt vmcnt({thr-8})")
            if pst is not None: stamp(g, pst+1, STP)
            issue(1, slot)
            e(f"s_add_u32 s{S_OFF}, s{S_OFF}, {STEP}")

    def compute(rs):
        if o.get("nocompute"): return
        KF, VF = RK[rs], RV[rs]
        for kk in range(4):
            for T in range(2):
                c = "0" if kk == 0 else vr(V_S+4*T, 4)
                e(f"v_mfma_f32_16x16x32_bf16 {vr(V_S+4*T,4)}, {vr(KF+16*T+4*kk,4)}, {vr(V_Q+4*kk,4)}, {c}")
        g.nop(8)
        t = V_T
        for i in range(4):
            e(f"v_cvt_pk_bf16_f32 v{t+i}, v{V_S+2*i}, v{V_S+2*i+1}")
        for i in range(4):
            e(f"v_lshlrev_b32 v{V_A+2*i}, 16, v{t+i}")
            e(f"v_and_b32 v{V_A+2*i+1}, 0xffff0000, v{t+i}")
        for i in range(8):
            e(f"v_mul_f32 v{V_A+i}, s{S_C1}, v{V_A+i}")
        for i in range(4):
            e(f"v_cvt_pk_bf16_f32 v{t+i}, v{V_A+2*i}, v{V_A+2*i+1}")
        for i in range(4):
            e(f"v_lshlrev_b32 v{V_A+2*i}, 16, v{t+i}")
            e(f"v_and_b32 v{V_A+2*i+1}, 0xffff0000, v{t+i}")
        e(f"v_max3_f32 v{V_MX}, v{V_A}, v{V_A+1}, v{V_A+2}")
        e(f"v_max3_f32 v{V_MX}, v{V_MX}, v{V_A+3}, v{V_A+4}")
        e(f"v_max3_f32 v{V_MX}, v{V_MX}, v{V_A+5}, v{V_A+6}")
        e(f"v_max3_f32 v{V_MX}, v{V_MX}, v{V_A+7}, v{V_M}")
        rows_reduce(g, V_MX, t, "v_max_f32")
        e(f"v_sub_f32 v{V_AL}, v{V_M}, v{V_MX}")
        e(f"v_mul_f32 v{V_AL}, s{S_C0}, v{V_AL}")
        e(f"v_exp_f32 v{V_AL}, v{V_AL}")
        e(f"v_mov_b32 v{V_M}, v{V_MX}")
        e(f"v_mul_f32 v{V_NM}, s{S_C0}, v{V_MX}")
        for i in range(8):
            e(f"v_fma_f32 v{V_A+i}, v{V_A+i}, s{S_C0}, -v{V_NM}")
        for i in range(8):
            e(f"v_exp_f32 v{V_A+i}, v{V_A+i}")
        e(f"v_mul_f32 v{V_L}, v{V_L}, v{V_AL}")
        if o.get("skipresc", False):
            LR = g.new("resc")
            e(f"v_cmp_neq_f32 vcc, 1.0, v{V_AL}")
            e(f"s_cbranch_vccz {LR}")
        for i in range(16):
            e(f"v_pk_mul_f32 {vr(V_O+2*i,2)}, {vr(V_O+2*i,2)}, {vr(V_AL,2)} op_sel_hi:[1,0]")
        if o.get("skipresc", False):
            g.lab(LR)
        for i in range(4):
            e(f"v_cvt_pk_bf16_f32 v{V_P+i}, v{V_A+2*i}, v{V_A+2*i+1}")
        e(f"v_add_f32 v{t}, v{V_A}, v{V_A+1}")
        e(f"v_add_f32 v{t+1}, v{V_A+2}, v{V_A+3}")
        e(f"v_add_f32 v{t+2}, v{V_A+4}, v{V_A+5}")
        e(f"v_add_f32 v{t+3}, v{V_A+6}, v{V_A+7}")
        e(f"v_add_f32 v{t}, v{t}, v{t+1}")
        e(f"v_add_f32 v{t+2}, v{t+2}, v{t+3}")
        e(f"v_add_f32 v{t}, v{t}, v{t+2}")
        e(f"v_add_f32 v{V_L}, v{V_L}, v{t}")
        for dt in range(8):
            e(f"v_mfma_f32_16x16x32_bf16 {vr(V_O+4*dt,4)}, {vr(VF+4*dt,4)}, {vr(V_P,4)}, {vr(V_O+4*dt,4)}")

    load(0, 0, True, 24, 24, THR, 7)
    load(1, 1, True, 24, 24, THR, None)
    e("s_waitcnt lgkmcnt(0)")
    e(f"s_mul_i32 s{S_TAG}, s{S_E}, 1664525")
    e(f"s_add_u32 s{S_TAG}, s{S_TAG}, 1013904223")
    stamp(g, 1, ST)
    e("s_barrier")
    if DS2: e("s_memrealtime s[86:87]")
    stamp(g, 2, ST)
    if DS:
        LX = g.new("ds")
        e(f"s_cmp_lg_u32 s{S_WAVE}, 0"); e(f"s_cbranch_scc1 {LX}")
        e("s_memrealtime s[88:89]")
        g.lab(LX)
    e("v_and_b32 v1, 15, v0")
    e("v_lshrrev_b32 v2, 4, v0")
    e("v_lshlrev_b32 v1, 8, v1")
    e("v_lshl_add_u32 v1, v2, 4, v1")
    e(f"v_add_u32 v1, {L_Q}, v1")
    e(f"s_mov_b32 s{S_EX}, 0x000f000f"); e(f"s_mov_b32 s{S_EX+1}, 0x000f000f")
    e(f"s_mov_b64 exec, s[{S_EX}:{S_EX+1}]")
    for kk in range(4):
        e(f"ds_read_b128 {vr(V_Q+4*kk,4)}, v1 offset:{kk*64}")
    e("s_mov_b64 exec, -1")
    e(f"s_mov_b32 s{S_C0}, {L2E:#x}")
    e(f"s_mov_b32 s{S_C1}, {SCALE:#x}")
    e("s_waitcnt lgkmcnt(0)")

    NT = o["ntiles"]
    STHR = o.get("sthr", 32)
    if not o["dyn"]:
        nloop = (NT - 4) // 2
        if STL:
            for it in range(nloop):
                compute(0); load(0, 0, True, 24, 24, STHR)
                compute(1); load(1, 1, True, 24, 24, STHR)
                if it < 5: stamp(g, 4 + it, True)
        else:
            e(f"s_mov_b32 s{S_CNT}, {nloop}")
            g.lab("L_loop")
            compute(0); load(0, 0, True, 24, 24, STHR)
            compute(1); load(1, 1, True, 24, 24, STHR)
            e(f"s_sub_u32 s{S_CNT}, s{S_CNT}, 1")
            e(f"s_cmp_lg_u32 s{S_CNT}, 0")
            e("s_cbranch_scc1 L_loop")
        compute(0); load(0, 0, False, 24, 16)
        compute(1); load(1, 1, False, 8, 0)
        compute(0)
        compute(1)
    else:
        NS = o.get("ns", 5)
        NDUAL = o.get("ndual", 0)
        assert NS >= 5 + 2 * NDUAL
        NSTAT = NS * 64
        V_TK, V_ONE, V_CA = 233, 234, 235
        cap = min(STHR, 24) - 8
        if NDUAL:
            e(f"s_mov_b32 s{S_CNT}, {NDUAL}")
            g.lab("L_dual")
            compute(0); load(0, 0, True, 24, 24, o.get("dthr", 32))
            compute(1); load(1, 1, True, 24, 24, o.get("dthr", 32))
            e(f"s_sub_u32 s{S_CNT}, s{S_CNT}, 1")
            e(f"s_cmp_lg_u32 s{S_CNT}, 0")
            e("s_cbranch_scc1 L_dual")
        e(f"s_sub_u32 s{S_NEXT}, s{S_OFF}, s{S_ROT}")
        e(f"s_lshr_b32 s{S_NEXT}, s{S_NEXT}, 13")
        e(f"s_sub_u32 s{S_NEXT}, s{S_NEXT}, {NSTAT}")
        e(f"s_add_u32 s95, s{S_NEXT}, {NSTAT}")
        e(f"v_mov_b32 v{V_TK}, s{S_NEXT}")
        e(f"v_mov_b32 v{V_ONE}, 1")
        e(f"s_lshl_b32 s{S_T0}, s{S_PAIR}, 8"); e(f"s_add_u32 s{S_T0}, s{S_T0}, {WS_CNT}")
        e(f"v_mov_b32 v{V_CA}, s{S_T0}")
        e(f"s_mov_b32 s{S_CNT}, 0"); e("s_mov_b32 s73, 0")
        def readK(rs, slot):
            if o.get("noread"): return
            for T in range(2):
                for kk in range(4):
                    e(f"ds_read_b128 {vr(RK[rs]+16*T+4*kk,4)}, v{V_KR+kk} offset:{slot*16384+T*4096}")
            e("s_waitcnt lgkmcnt(0)")
        def readV(rs, slot):
            if o.get("noread"): return
            for dt in range(8):
                for T in range(2):
                    e(f"ds_read_b64_tr_b16 {vr(RV[rs]+4*dt+2*T,2)}, v{V_VR+dt} offset:{slot*16384+T*4096}")
            e("s_waitcnt lgkmcnt(0)")
        def dload(sg):
            e("s_waitcnt vmcnt(25)")
            readK(sg, sg)
            e(f"s_waitcnt vmcnt({cap})")
            e(f"v_readfirstlane_b32 s{S_NEXT}, v{V_TK}")
            e(f"s_add_u32 s{S_NEXT}, s{S_NEXT}, {NSTAT}")
            e(f"s_cmp_ge_u32 s{S_NEXT}, 1024")
            e(f"s_cbranch_scc1 L_drain{sg}")
            if NS > 5:
                LA = g.new("tka"); LB = g.new("tkb")
                e(f"s_add_u32 s95, s95, 64")
                e(f"s_cmp_ge_u32 s95, {NSTAT}"); e(f"s_cbranch_scc1 {LA}")
                e(f"s_sub_u32 s{S_T0}, s95, {NSTAT}")
                e(f"v_mov_b32 v{V_TK}, s{S_T0}")
                e(f"s_branch {LB}")
                g.lab(LA)
            e("s_mov_b64 exec, 1")
            e(f"global_atomic_add v{V_TK}, v{V_CA}, v{V_ONE}, s[{S_WS}:{S_WS+1}] sc0")
            e("s_mov_b64 exec, -1")
            if NS > 5: g.lab(LB)
            e(f"s_lshl_b32 s{S_OFF}, s{S_NEXT}, 13")
            e(f"s_add_u32 s{S_OFF}, s{S_OFF}, s{S_ROT}")
            tile_addr(); issue(0, sg)
            e("s_waitcnt vmcnt(26)")
            readV(sg, sg)
            e(f"s_waitcnt vmcnt({cap})")
            issue(1, sg)
            e(f"s_add_u32 s{S_CNT}, s{S_CNT}, 1")
        S_DR, S_E0, S_EM = 73, 92, 94
        S_PREV, S_NP = 92, 93
        NPA = o.get("npa", 0); NPC = o.get("npc", 112)
        def do_atomic():
            e("s_mov_b64 exec, 1")
            e(f"global_atomic_add v{V_TK}, v{V_CA}, v{V_ONE}, s[{S_WS}:{S_WS+1}] sc0")
            e("s_mov_b64 exec, -1")
        def ticket(faillabel, np_check=False):
            e(f"v_readfirstlane_b32 s{S_NEXT}, v{V_TK}")
            e(f"s_add_u32 s{S_NEXT}, s{S_NEXT}, {NSTAT}")
            e(f"s_cmp_ge_u32 s{S_NEXT}, 1024")
            e(f"s_cbranch_scc1 {faillabel}")
            LB = g.new("tkb")
            if np_check and NPA:
                LN = g.new("tkn")
                e(f"s_sub_u32 s{S_T0}, s{S_NEXT}, s{S_PREV}")
                e(f"s_mov_b32 s{S_PREV}, s{S_NEXT}")
                e(f"s_mul_i32 s{S_T0}, s{S_T0}, {NPA}")
                e(f"s_add_u32 s{S_T0}, s{S_T0}, s{S_NEXT}")
                e(f"s_cmp_le_u32 s{S_T0}, {1024 + NPC}"); e(f"s_cbranch_scc1 {LN}")
                e(f"s_mov_b32 s{S_NP}, 1")
                e(f"s_branch {LB}")
                g.lab(LN)
            elif NPA:
                e(f"s_mov_b32 s{S_PREV}, s{S_NEXT}")
            if NS > 5:
                LA = g.new("tka")
                e(f"s_add_u32 s95, s95, 64")
                e(f"s_cmp_ge_u32 s95, {NSTAT}"); e(f"s_cbranch_scc1 {LA}")
                e(f"s_sub_u32 s{S_T0}, s95, {NSTAT}")
                e(f"v_mov_b32 v{V_TK}, s{S_T0}")
                e(f"s_branch {LB}")
                g.lab(LA)
            do_atomic()
            g.lab(LB)
            e(f"s_lshl_b32 s{S_OFF}, s{S_NEXT}, 13")
            e(f"s_add_u32 s{S_OFF}, s{S_OFF}, s{S_ROT}")
            tile_addr()
        def consume(faillabel):
            e(f"v_readfirstlane_b32 s{S_NEXT}, v{V_TK}")
            e(f"s_add_u32 s{S_NEXT}, s{S_NEXT}, {NSTAT}")
            e(f"s_cmp_ge_u32 s{S_NEXT}, 1024")
            e(f"s_cbranch_scc1 {faillabel}")
            e(f"s_lshl_b32 s{S_OFF}, s{S_NEXT}, 13")
            e(f"s_add_u32 s{S_OFF}, s{S_OFF}, s{S_ROT}")
            tile_addr()
        def request():
            LB = g.new("rqb")
            if NS > 5:
                LA = g.new("rqa")
                e(f"s_add_u32 s95, s95, 64")
                e(f"s_cmp_ge_u32 s95, {NSTAT}"); e(f"s_cbranch_scc1 {LA}")
                e(f"s_sub_u32 s{S_T0}, s95, {NSTAT}")
                e(f"v_mov_b32 v{V_TK}, s{S_T0}")
                e(f"s_branch {LB}")
                g.lab(LA)
            do_atomic()
            g.lab(LB)
        if o.get("np2"):
            S_MODE = 93
            compute(0)
            e("s_waitcnt vmcnt(24)")
            readK(0, 0)
            consume("L_ldone")
            issue(0, 0)
            e("s_waitcnt vmcnt(24)")
            readV(0, 0)
            issue(1, 0)
            e("s_add_u32 s95, s95, 64")
            compute(1)
            e("s_waitcnt vmcnt(24)")
            readK(1, 1)
            e("s_waitcnt vmcnt(16)")
            readV(1, 1)
            compute(0)
            compute(1)
            g.lab("L_loop")
            e("s_waitcnt vmcnt(8)")
            readK(0, 0)
            e(f"s_cmp_ge_u32 s95, {NSTAT}"); e("s_cbranch_scc1 L_dynA")
            e(f"s_lshl_b32 s{S_OFF}, s95, 13"); e(f"s_add_u32 s{S_OFF}, s{S_OFF}, s{S_ROT}")
            e("s_add_u32 s95, s95, 64")
            tile_addr(); issue(0, 0)
            e("s_waitcnt vmcnt(8)")
            readV(0, 0)
            issue(1, 0)
            e(f"s_mov_b32 s{S_MODE}, 0")
            e(f"s_add_u32 s{S_CNT}, s{S_CNT}, 1")
            e("s_branch L_comp")
            g.lab("L_dynA")
            do_atomic()
            e("s_waitcnt vmcnt(1)")
            readV(0, 0)
            e(f"s_mov_b32 s{S_MODE}, 1")
            g.lab("L_comp")
            compute(0)
            e(f"s_cmp_eq_u32 s{S_MODE}, 0"); e("s_cbranch_scc1 L_loop")
            e("s_waitcnt vmcnt(0)")
            consume("L_ldone")
            issue(0, 0); issue(1, 0)
            e(f"s_add_u32 s{S_CNT}, s{S_CNT}, 1")
            e("s_branch L_loop")
        elif o.get("single", True) and o.get("late", True):
            compute(0)
            stamp(g, 4, STX)
            e("s_waitcnt vmcnt(24)")
            readK(0, 0)
            consume("L_ldone")
            issue(0, 0)
            e("s_waitcnt vmcnt(24)")
            readV(0, 0)
            issue(1, 0)
            stamp(g, 5, STX)
            compute(1)
            stamp(g, 6, STX)
            request()
            e("s_waitcnt vmcnt(24)")
            readK(1, 1)
            e("s_waitcnt vmcnt(16)")
            readV(1, 1)
            stamp(g, 7, STX)
            compute(0)
            compute(1)
            stamp(g, 8, STX)
            e("s_mov_b32 s93, 0")
            e(f"s_cmp_ge_u32 s95, {NSTAT}"); e("s_cselect_b32 s93, 1, 0")
            g.lab("L_loop")
            e("s_waitcnt vmcnt(8)")
            stamp(g, 6, STE)
            readK(0, 0)
            if o.get("vfirst", False):
                LW = g.new("wv"); LW2 = g.new("wv2")
                e("s_cmp_eq_u32 s93, 1"); e(f"s_cbranch_scc1 {LW}")
                e("s_waitcnt vmcnt(0)")
                e(f"s_branch {LW2}")
                g.lab(LW)
                e("s_waitcnt vmcnt(1)")
                g.lab(LW2)
                readV(0, 0)
                e("s_waitcnt vmcnt(0)")
                stamp(g, 7, STE)
                consume("L_last")
                stamp(g, 4, STE)
                issue(0, 0)
                issue(1, 0)
            else:
                e("s_waitcnt vmcnt(0)")
                stamp(g, 7, STE)
                consume("L_last")
                stamp(g, 4, STE)
                issue(0, 0)
                readV(0, 0)
                issue(1, 0)
            e(f"s_add_u32 s{S_CNT}, s{S_CNT}, 1")
            if o["stamps"] == "R":
                for idx, c in ((4, 1), (5, 3), (6, 5), (7, 7), (8, 9)):
                    LS = g.new("rs")
                    e(f"s_cmp_lg_u32 s{S_CNT}, {c}"); e(f"s_cbranch_scc1 {LS}")
                    stamp(g, idx, True)
                    g.lab(LS)
            g.lab("L_comp")
            compute(0)
            e(f"s_cmp_eq_u32 s{S_DR}, 1"); e("s_cbranch_scc1 L_ldone")
            stamp(g, 5, STE)
            request()
            e(f"s_cmp_ge_u32 s95, {NSTAT}"); e("s_cselect_b32 s93, 1, 0")
            e("s_branch L_loop")
            g.lab("L_last")
            e(f"s_mov_b32 s{S_DR}, 1")
            if not o.get("vfirst", False):
                readV(0, 0)
            e("s_branch L_comp")
        elif o.get("single", True):
            e(f"s_mov_b32 s{S_NP}, 0")
            compute(0)
            e("s_waitcnt vmcnt(24)")
            readK(0, 0)
            ticket("L_ldone")
            issue(0, 0)
            e("s_waitcnt vmcnt(24)")
            readV(0, 0)
            issue(1, 0)
            compute(1)
            e("s_waitcnt vmcnt(24)")
            readK(1, 1)
            e("s_waitcnt vmcnt(16)")
            readV(1, 1)
            compute(0)
            compute(1)
            g.lab("L_loop")
            e("s_waitcnt vmcnt(8)")
            readK(0, 0)
            ticket("L_last", True)
            issue(0, 0)
            e("s_waitcnt vmcnt(8)")
            readV(0, 0)
            issue(1, 0)
            e(f"s_add_u32 s{S_CNT}, s{S_CNT}, 1")
            g.lab("L_comp")
            compute(0)
            e(f"s_cmp_eq_u32 s{S_DR}, 0"); e("s_cbranch_scc1 L_loop")
            e("s_branch L_ldone")
            g.lab("L_last")
            e(f"s_mov_b32 s{S_DR}, 1")
            e("s_waitcnt vmcnt(0)")
            readV(0, 0)
            e("s_branch L_comp")
        else:
            e(f"s_mov_b32 s{S_E0}, 0"); e(f"s_mov_b32 s{S_E0+1}, 0"); e(f"s_mov_b32 s{S_EM}, 0")
            g.lab("L_loop")
            for sg in range(2):
                compute(sg)
                e(f"s_cmp_eq_u32 s{S_E0+sg}, 1"); e(f"s_cbranch_scc1 L_empty{sg}")
                e(f"s_cmp_eq_u32 s{S_DR}, 1"); e(f"s_cbranch_scc1 L_dw{sg}")
                e("s_waitcnt vmcnt(24)")
                readK(sg, sg)
                e(f"s_waitcnt vmcnt({cap})")
                ticket(f"L_noref{sg}")
                issue(0, sg)
                e("s_waitcnt vmcnt(24)")
                readV(sg, sg)
                e(f"s_waitcnt vmcnt({cap})")
                issue(1, sg)
                e(f"s_add_u32 s{S_CNT}, s{S_CNT}, 1")
                e(f"s_branch L_next{sg}")
                g.lab(f"L_dw{sg}")
                e("s_waitcnt vmcnt(0)")
                readK(sg, sg)
                g.lab(f"L_noref{sg}")
                e(f"s_mov_b32 s{S_DR}, 1"); e(f"s_mov_b32 s{S_E0+sg}, 1")
                e("s_waitcnt vmcnt(16)")
                readV(sg, sg)
                e(f"s_branch L_next{sg}")
                g.lab(f"L_empty{sg}")
                e(f"s_add_u32 s{S_EM}, s{S_EM}, 1")
                e(f"s_cmp_eq_u32 s{S_EM}, 2"); e("s_cbranch_scc1 L_ldone")
                g.lab(f"L_next{sg}")
            e("s_branch L_loop")
        g.lab("L_ldone")
        if STL: e(f"s_mov_b32 s{S_ST0+8}, s{S_CNT}")
    stamp(g, 3, ST and not STP)
    if DS2: e("s_memrealtime s[88:89]")
    rows_reduce(g, V_L, V_T, "v_add_f32")
    e("v_and_b32 v1, 15, v0")
    e("v_lshrrev_b32 v2, 4, v0")
    e("v_lshlrev_b32 v3, 9, v1")
    e("v_lshl_add_u32 v3, v2, 4, v3")
    e(f"v_add_u32 v3, s{S_RB}, v3")
    e(f"s_lshl_b32 s{S_T0}, s{S_WAVE}, 5")
    e(f"s_add_u32 s{S_T0}, s{S_T0}, {L_ML}")
    e(f"v_lshlrev_b32 v4, 3, v1")
    e(f"v_add_u32 v4, s{S_T0}, v4")
    g.nop(8)
    e(f"s_mov_b64 exec, s[{S_EX}:{S_EX+1}]")
    for dt in range(8):
        e(f"ds_write_b128 v3, {vr(V_O+4*dt,4)} offset:{dt*64}")
    e(f"ds_write_b64 v4, {vr(V_M,2)}")
    e("s_mov_b64 exec, -1")
    e(f"s_mov_b64 s[{S_T2}:{S_T2+1}], s[{S_X}:{S_X+1}]")
    for r in (228, 229, 231, 232, 233, 234, 235): e(f"v_mov_b32 v{r}, 0")
    e("s_waitcnt lgkmcnt(0)")
    e("s_branch L_tail")

    g.lab("L_helper")
    H_W = 64
    H_F = 128
    H_WO = 192
    H_G = 224
    S_STG = S_T5
    if o.get("skipA"):
        e("s_waitcnt lgkmcnt(0)")
        e(f"s_load_dword s{S_E}, s[{S_WS}:{S_WS+1}], {WS_E}")
        build_srd(g, SRD_WS, S_WS, WS_SIZE); build_srd(g, SRD_X, S_X, 2048); build_srd(g, SRD_WO, S_WO, 0x400000); build_srd(g, SRD_OUT, S_OUT, 2048)
        build_srd(g, SRD_W, S_WQ, 0x400000)
        e("s_waitcnt lgkmcnt(0)")
        e(f"s_mul_i32 s{S_TAG}, s{S_E}, 1664525"); e(f"s_add_u32 s{S_TAG}, s{S_TAG}, 1013904223")
        if o["b0"]: e("s_barrier")
        e("s_barrier")
        e("s_branch L_hb2")
    if o["prio"]:
        e("s_setprio 3")
    e(f"s_sub_u32 s{S_T5}, s{S_WAVE}, 4")
    e(f"s_lshl_b32 s{S_T5}, s{S_T5}, 12")
    e(f"s_add_u32 s{S_T5}, s{S_T5}, {L_STG}")
    e(f"s_cmp_ge_u32 s{S_WAVE}, 6"); e("s_cbranch_scc1 L_w67")
    e(f"s_and_b32 s{S_T2}, s2, 3")
    e(f"s_lshr_b32 s{S_T1}, s2, 2")
    e("v_lshrrev_b32 v2, 3, v0")
    e("v_and_b32 v3, 7, v0")
    e("v_lshlrev_b32 v1, 4, v0")
    e(f"s_cmp_eq_u32 s{S_WAVE}, 5"); e("s_cbranch_scc1 L_w5setup")
    e(f"s_mov_b32 s{S_T0}, 8192")
    e(f"s_mov_b32 s{S_T3}, {L_XN4}")
    e(f"s_mov_b32 s{S_C0}, {WS_Q}"); e(f"s_mov_b32 s{S_C1}, {4096*8}")
    e("s_waitcnt lgkmcnt(0)")
    build_srd(g, SRD_W, S_WQ, 0x400000)
    if o["dyn"]:
        e(f"s_and_b32 s{S_T4}, s2, 30"); e(f"s_cmp_lg_u32 s{S_T4}, 0"); e("s_cbranch_scc1 L_slice")
        e(f"s_and_b32 s{S_T4}, s2, 1"); e(f"s_lshl_b32 s{S_T4}, s{S_T4}, 3")
        e(f"s_lshr_b32 s{S_SOFF}, s2, 5"); e(f"s_add_u32 s{S_T4}, s{S_T4}, s{S_SOFF}")
        e(f"s_lshl_b32 s{S_T4}, s{S_T4}, 8"); e(f"s_add_u32 s{S_T4}, s{S_T4}, {WS_CNT}")
        e(f"v_mov_b32 v4, s{S_T4}"); e("v_mov_b32 v5, 0")
        e("s_mov_b64 exec, 1")
        e(f"global_store_dword v4, v5, s[{S_WS}:{S_WS+1}] sc1")
        e("s_mov_b64 exec, -1")
    e("s_branch L_slice")
    g.lab("L_w5setup")
    e(f"s_mov_b32 s{S_T0}, 3584")
    e(f"s_mov_b32 s{S_T3}, {L_XN5}")
    e(f"s_mov_b32 s{S_C0}, {WS_H}"); e(f"s_mov_b32 s{S_C1}, {1792*8}")
    e("s_waitcnt lgkmcnt(0)")
    build_srd(g, SRD_W, S_W1, 512*3584)
    e(f"s_cmp_ge_u32 s{S_SPLIT}, 7"); e("s_cbranch_scc1 L_hb0")
    e(f"s_mul_i32 s{S_T1}, s{S_PAIR}, 7"); e(f"s_add_u32 s{S_T1}, s{S_T1}, s{S_SPLIT}")
    e(f"s_and_b32 s{S_T2}, s{S_T1}, 3"); e(f"s_lshr_b32 s{S_T1}, s{S_T1}, 2")
    g.lab("L_slice")
    stamp(g, 4, STA)
    build_srd(g, SRD_X, S_X, 2048)
    e(f"buffer_load_dwordx4 v[8:11], v1, s[{SRD_X}:{SRD_X+3}], 0 offen")
    e(f"buffer_load_dwordx4 v[12:15], v1, s[{SRD_X}:{SRD_X+3}], 0 offen offset:1024")
    e(f"v_mul_lo_u32 v2, v2, s{S_T0}")
    e("v_lshl_add_u32 v2, v3, 4, v2")
    e(f"s_lshl_b32 s{S_SOFF}, s{S_T2}, 7"); e(f"s_mul_i32 s{S_SOFF}, s{S_SOFF}, s{S_T0}")
    e(f"s_lshl_b32 s{S_T4}, s{S_T1}, 7"); e(f"s_add_u32 s{S_SOFF}, s{S_SOFF}, s{S_T4}")
    e(f"s_lshl_b32 s{S_RS32}, s{S_T0}, 3")
    for i in range(16):
        e(f"buffer_load_dwordx4 {vr(H_W+4*i,4)}, v2, s[{SRD_W}:{SRD_W+3}], s{S_SOFF} offen" + (" nt" if o.get("wnt") else ""))
        if i < 15:
            e(f"s_add_u32 s{S_SOFF}, s{S_SOFF}, s{S_RS32}")
    stamp(g, 5, STA)
    if o["b0"]:
        e("s_barrier")
    e(f"s_load_dword s{S_E}, s[{S_WS}:{S_WS+1}], {WS_E}")
    build_srd(g, SRD_WS, S_WS, WS_SIZE)
    build_srd(g, SRD_WO, S_WO, 0x400000)
    build_srd(g, SRD_OUT, S_OUT, 2048)
    e("s_waitcnt vmcnt(16)")
    stamp(g, 6, STA)
    X0, X1 = 16, 24
    for b, (src, dst) in enumerate(((8, X0), (12, X1))):
        for i in range(4):
            e(f"v_lshlrev_b32 v{dst+2*i}, 16, v{src+i}")
            e(f"v_and_b32 v{dst+2*i+1}, 0xffff0000, v{src+i}")
    SU = 32
    for b, dst in enumerate((X0, X1)):
        e(f"v_add_f32 v{SU+b}, v{dst}, v{dst+1}")
        for i in range(2, 8):
            e(f"v_add_f32 v{SU+b}, v{SU+b}, v{dst+i}")
    def wave_sum2(a):
        row_ror_reduce(g, [a, a+1], "v_add_f32", [1, 2, 4, 8])
        rows_reduce_multi(g, [a, a+1], [a+2, a+3], "v_add_f32")
    wave_sum2(SU)
    e(f"s_mov_b32 s{S_T4}, 0x3b000000")
    e(f"v_mul_f32 v{SU}, s{S_T4}, v{SU}")
    e(f"v_mul_f32 v{SU+1}, s{S_T4}, v{SU+1}")
    VA = 36
    for b, dst in enumerate((X0, X1)):
        e(f"v_sub_f32 v40, v{dst}, v{SU+b}")
        e(f"v_mul_f32 v{VA+b}, v40, v40")
        for i in range(1, 8):
            e(f"v_sub_f32 v40, v{dst+i}, v{SU+b}")
            e(f"v_fmac_f32 v{VA+b}, v40, v40")
    wave_sum2(VA)
    e(f"v_mul_f32 v{VA}, s{S_T4}, v{VA}")
    e(f"v_mul_f32 v{VA+1}, s{S_T4}, v{VA+1}")
    e(f"v_cvt_pk_bf16_f32 v40, v{SU}, v{SU+1}")
    e(f"v_cvt_pk_bf16_f32 v41, v{VA}, v{VA+1}")
    e(f"v_lshlrev_b32 v{SU}, 16, v40"); e(f"v_and_b32 v{SU+1}, 0xffff0000, v40")
    e(f"v_lshlrev_b32 v{VA}, 16, v41"); e(f"v_and_b32 v{VA+1}, 0xffff0000, v41")
    e(f"v_add_f32 v{VA}, 0x3727c5ac, v{VA}"); e(f"v_add_f32 v{VA+1}, 0x3727c5ac, v{VA+1}")
    e(f"v_cvt_pk_bf16_f32 v41, v{VA}, v{VA+1}")
    e(f"v_lshlrev_b32 v{VA}, 16, v41"); e(f"v_and_b32 v{VA+1}, 0xffff0000, v41")
    e(f"v_sqrt_f32 v{VA}, v{VA}"); e(f"v_sqrt_f32 v{VA+1}, v{VA+1}")
    g.nop(1)
    e(f"v_cvt_pk_bf16_f32 v41, v{VA}, v{VA+1}")
    e(f"v_lshlrev_b32 v{VA}, 16, v41"); e(f"v_and_b32 v{VA+1}, 0xffff0000, v41")
    e(f"v_rcp_f32 v38, v{VA}"); e(f"v_rcp_f32 v39, v{VA+1}")
    for b, dst in enumerate((X0, X1)):
        for i in range(8):
            e(f"v_sub_f32 v{dst+i}, v{dst+i}, v{SU+b}")
        for i in range(4):
            e(f"v_cvt_pk_bf16_f32 v40, v{dst+2*i}, v{dst+2*i+1}")
            e(f"v_lshlrev_b32 v{dst+2*i}, 16, v40"); e(f"v_and_b32 v{dst+2*i+1}, 0xffff0000, v40")
        for i in range(8):
            e(f"v_mul_f32 v41, v{dst+i}, v{38+b}")
            e(f"v_fma_f32 v42, -v41, v{VA+b}, v{dst+i}")
            e(f"v_fma_f32 v{dst+i}, v42, v{38+b}, v41")
        for i in range(4):
            e(f"v_cvt_pk_bf16_f32 v{44+4*b+i}, v{dst+2*i}, v{dst+2*i+1}")
    e("v_lshlrev_b32 v1, 4, v0")
    e(f"v_add_u32 v1, s{S_T3}, v1")
    e("ds_write_b128 v1, v[44:47]")
    e("ds_write_b128 v1, v[48:51] offset:1024")
    e("v_lshlrev_b32 v1, 4, v0")
    e(f"v_add_u32 v1, s{S_STG}, v1")
    e("v_lshrrev_b32 v2, 4, v0")
    e("v_bfe_u32 v3, v0, 2, 2")
    e("v_lshl_add_u32 v3, v2, 3, v3")
    e("v_and_b32 v4, 3, v0")
    e("v_lshlrev_b32 v5, 7, v3")
    e("v_lshl_add_u32 v5, v4, 3, v5")
    e(f"v_add_u32 v5, s{S_STG}, v5")
    e("v_and_b32 v6, 1, v0")
    e("v_lshlrev_b32 v6, 10, v6")
    e("v_lshl_add_u32 v6, v2, 4, v6")
    e(f"s_lshl_b32 s{S_T4}, s{S_T2}, 8"); e(f"s_add_u32 s{S_T4}, s{S_T4}, s{S_T3}")
    e(f"v_add_u32 v6, s{S_T4}, v6")
    ACC = 48
    stamp(g, 7, STA)
    if STA:
        e("s_waitcnt vmcnt(0)")
        stamp(g, 8, STA)
    for pc in range(4):
        e(f"ds_read_b128 {vr(16+4*pc,4)}, v6 offset:{64*pc}")
    for pc in range(4):
        e(f"s_waitcnt vmcnt({12-4*pc})")
        for i in range(4):
            e(f"ds_write_b128 v1, {vr(H_W+16*pc+4*i,4)} offset:{i*1024}")
        for c in range(4):
            e(f"ds_read_b64_tr_b16 {vr(32+4*c,2)}, v5 offset:{c*32}")
            e(f"ds_read_b64_tr_b16 {vr(32+4*c+2,2)}, v5 offset:{c*32+512}")
        e("s_waitcnt lgkmcnt(0)")
        for c in range(4):
            cc = "0" if pc == 0 else vr(ACC+4*c, 4)
            e(f"v_mfma_f32_16x16x32_bf16 {vr(ACC+4*c,4)}, {vr(16+4*pc,4)}, {vr(32+4*c,4)}, {cc}")
    e(f"s_mul_i32 s{S_TAG}, s{S_E}, 1664525")
    e(f"s_add_u32 s{S_TAG}, s{S_TAG}, 1013904223")
    e(f"s_lshl_b32 s{S_T0}, s{S_T2}, 1"); e(f"s_mul_i32 s{S_T0}, s{S_T0}, s{S_C1}")
    e(f"s_add_u32 s{S_T0}, s{S_T0}, s{S_C0}")
    e(f"s_lshl_b32 s{S_T4}, s{S_T1}, 9"); e(f"s_add_u32 s{S_T0}, s{S_T0}, s{S_T4}")
    e(f"s_add_u32 s{S_T4}, s{S_T0}, s{S_C1}")
    e("v_lshlrev_b32 v1, 3, v0")
    e(f"v_mov_b32 v9, s{S_TAG}"); e(f"v_mov_b32 v11, s{S_TAG}")
    g.nop(4)
    for c in range(4):
        if c < 2:
            e(f"s_mov_b32 exec_lo, {0xffff << (16*c):#x}"); e("s_mov_b32 exec_hi, 0")
        else:
            e("s_mov_b32 exec_lo, 0"); e(f"s_mov_b32 exec_hi, {0xffff << (16*(c-2)):#x}")
        e(f"v_mov_b32 v8, v{ACC+4*c}"); e(f"v_mov_b32 v10, v{ACC+4*c+1}")
    e("s_mov_b64 exec, -1")
    pub2(g, 8, 1, f"s{S_T0}")
    pub2(g, 10, 1, f"s{S_T4}")
    stamp(g, 1, ST)
    e("s_branch L_qg")
    g.lab("L_w67")
    if o["b0"]:
        e("s_barrier")
    e("s_waitcnt lgkmcnt(0)")
    e(f"s_load_dword s{S_E}, s[{S_WS}:{S_WS+1}], {WS_E}")
    build_srd(g, SRD_WS, S_WS, WS_SIZE)
    build_srd(g, SRD_X, S_X, 2048)
    build_srd(g, SRD_WO, S_WO, 0x400000)
    build_srd(g, SRD_OUT, S_OUT, 2048)
    e(f"s_cmp_eq_u32 s{S_WAVE}, 7"); e("s_cbranch_scc1 L_w7")
    e("s_branch L_qg")
    g.lab("L_w6")
    if o.get("prio_after") is not None:
        e(f"s_setprio {o['prio_after']}")
    build_srd(g, SRD_W, S_W2, 1792*1024)
    e(f"s_sub_u32 s{S_T0}, s{S_SPLIT}, 7")
    e(f"s_cmp_ge_u32 s{S_T0}, 7")
    e("s_cbranch_scc1 L_wo")
    e(f"s_mul_i32 s{S_T1}, s{S_PAIR}, 7"); e(f"s_add_u32 s{S_T0}, s{S_T0}, s{S_T1}")
    e(f"s_lshr_b32 s{S_T1}, s{S_T0}, 2")
    e(f"s_and_b32 s{S_T2}, s{S_T0}, 3")
    e("v_lshrrev_b32 v2, 3, v0"); e("v_lshlrev_b32 v2, 10, v2")
    e("v_and_b32 v3, 7, v0"); e("v_lshl_add_u32 v2, v3, 4, v2")
    e(f"s_lshl_b32 s{S_SOFF}, s{S_T1}, 16")
    e(f"s_lshl_b32 s{S_T3}, s{S_T2}, 8")
    e(f"s_add_u32 s{S_SOFF}, s{S_SOFF}, s{S_T3}")
    for ks in range(2):
        for ch in range(2):
            for u in range(4):
                idx = (ks * 2 + ch) * 4 + u
                e(f"s_add_u32 s{S_T3}, s{S_SOFF}, {(32*ks+8*u)*1024}")
                e(f"buffer_load_dwordx4 {vr(H_W+4*idx,4)}, v2, s[{SRD_W}:{SRD_W+3}], s{S_T3} offen offset:{ch*128}" + (" nt" if o.get("wnt") else ""))
    stamp(g, 4, STF)
    e("v_lshlrev_b32 v1, 4, v0")
    e(f"v_add_u32 v1, s{S_STG}, v1")
    e("v_lshrrev_b32 v2, 4, v0"); e("v_bfe_u32 v3, v0, 2, 2"); e("v_lshl_add_u32 v3, v2, 3, v3"); e("v_and_b32 v4, 3, v0")
    e("v_lshlrev_b32 v5, 7, v3"); e("v_lshl_add_u32 v5, v4, 3, v5"); e(f"v_add_u32 v5, s{S_STG}, v5")
    e("s_waitcnt vmcnt(0)")
    stamp(g, 5, STF)
    for ks in range(2):
        for ch in range(2):
            pc = ks * 2 + ch
            for u in range(4):
                e(f"ds_write_b128 v1, {vr(H_W+16*pc+4*u,4)} offset:{u*1024}")
            for c in range(4):
                f = H_F + 4 * (ks * 8 + ch * 4 + c)
                e(f"ds_read_b64_tr_b16 {vr(f,2)}, v5 offset:{c*32}")
                e(f"ds_read_b64_tr_b16 {vr(f+2,2)}, v5 offset:{c*32+512}")
            e("s_waitcnt lgkmcnt(0)")
    e("v_lshrrev_b32 v6, 5, v0")
    e(f"v_mul_u32_u24 v6, {1792*8}, v6")
    e("v_and_b32 v7, 31, v0")
    e("v_lshl_add_u32 v6, v7, 4, v6")
    e(f"s_lshl_b32 s{S_T0}, s{S_T1}, 9"); e(f"s_add_u32 s{S_T0}, s{S_T0}, {WS_H}")
    def hl():
        for r4 in range(4):
            e(f"s_add_u32 s{S_T3}, s{S_T0}, {r4*2*1792*8}")
            e(f"buffer_load_dwordx4 {vr(16+4*r4,4)}, v6, s[{SRD_WS}:{SRD_WS+3}], s{S_T3} offen sc1")
    stamp(g, 6, STF)
    poll(g, "h", hl, [17+2*i for i in range(8)], 8, sleep=8)
    stamp(g, 7, STF)
    e("v_add_f32 v16, v16, v20"); e("v_add_f32 v18, v18, v22"); e("v_add_f32 v24, v24, v28"); e("v_add_f32 v26, v26, v30")
    e("v_add_f32 v16, v16, v24"); e("v_add_f32 v18, v18, v26")
    e("v_cvt_pk_bf16_f32 v8, v16, v18")
    e("v_lshlrev_b32 v10, 16, v8"); e("v_and_b32 v11, 0xffff0000, v8")
    e(f"s_mov_b32 s{S_T0}, {L2E:#x}")
    for r in (10, 11):
        e(f"v_mul_f32 v12, s{S_T0}, v{r}")
        e(f"v_exp_f32 v12, -v12"); g.nop(1)
        e(f"v_add_f32 v12, 1.0, v12")
        e(f"v_rcp_f32 v12, v12"); g.nop(1)
        e(f"v_mul_f32 v{r}, v{r}, v12")
    e("v_cvt_pk_bf16_f32 v12, v10, v11")
    e("v_lshlrev_b32 v7, 2, v0")
    e(f"v_add_u32 v7, {L_H}, v7")
    e("ds_write_b32 v7, v12")
    e("v_and_b32 v6, 1, v0"); e("v_lshlrev_b32 v6, 7, v6"); e("v_lshl_add_u32 v6, v2, 4, v6"); e(f"v_add_u32 v6, {L_H}, v6")
    e("ds_read_b128 v[16:19], v6")
    e("ds_read_b128 v[20:23], v6 offset:64")
    e("s_waitcnt lgkmcnt(0)")
    for c in range(8):
        e(f"v_mfma_f32_16x16x32_bf16 {vr(H_W+4*c,4)}, v[16:19], {vr(H_F+4*c,4)}, 0")
    for c in range(8):
        e(f"v_mfma_f32_16x16x32_bf16 {vr(H_W+4*c,4)}, v[20:23], {vr(H_F+32+4*c,4)}, {vr(H_W+4*c,4)}")
    g.nop(10)
    e("v_and_b32 v1, 15, v0"); e("v_lshlrev_b32 v1, 3, v1")
    e(f"s_lshl_b32 s{S_T0}, s{S_T1}, 13")
    e(f"s_lshl_b32 s{S_T3}, s{S_T2}, 10")
    e(f"s_add_u32 s{S_T0}, s{S_T0}, s{S_T3}"); e(f"s_add_u32 s{S_T0}, s{S_T0}, {WS_F}")
    e(f"s_add_u32 s{S_T3}, s{S_T0}, 4096")
    e(f"v_mov_b32 v9, s{S_TAG}"); e(f"v_mov_b32 v11, s{S_TAG}")
    e("s_mov_b64 exec, 0xffff")
    for c in range(8):
        e(f"v_mov_b32 v8, v{H_W+4*c}"); e(f"v_mov_b32 v10, v{H_W+4*c+1}")
        e(f"buffer_store_dwordx2 v[8:9], v1, s[{SRD_WS}:{SRD_WS+3}], s{S_T0} offen offset:{c*128} sc1")
        e(f"buffer_store_dwordx2 v[10:11], v1, s[{SRD_WS}:{SRD_WS+3}], s{S_T3} offen offset:{c*128} sc1")
        g.nop(2)
    e("s_mov_b64 exec, -1")
    stamp(g, 8, STF)
    e("s_branch L_wo")

    g.lab("L_w7")
    if o.get("tlbwarm"):
        build_srd(g, SRD_K, S_K, 0x8000000)
        build_srd(g, SRD_V, S_V, 0x8000000)
        e(f"s_lshl_b32 s{S_T0}, s{S_PAIR}, 23")
        e(f"v_lshlrev_b32 v1, {o.get('tlbshift', 21)}, v0")
        e(f"s_mov_b32 exec_lo, {(1 << (8 << 20 >> o.get('tlbshift', 21))) - 1:#x}"); e("s_mov_b32 exec_hi, 0")
        e(f"buffer_load_dword v230, v1, s[{SRD_K}:{SRD_K+3}], s{S_T0} offen nt")
        e(f"buffer_load_dword v230, v1, s[{SRD_V}:{SRD_V+3}], s{S_T0} offen nt")
        e("s_mov_b64 exec, -1")
    if o["prefetch_code"] and not (o.get("earlypf", True) and o.get("hfirst", False) and o["b0"]):
        pfm = o.get("pfmask", 7)
        e(f"s_lshr_b32 s{S_T0}, s2, 3"); e(f"s_and_b32 s{S_T0}, s{S_T0}, {pfm}"); e(f"s_cmp_lg_u32 s{S_T0}, 0"); e("s_cbranch_scc1 L_qg")
        e(f"s_getpc_b64 s[{S_T0}:{S_T0+1}]")
        g.lab("L_pcbase")
        e(f"s_sub_u32 s{S_T0}, s{S_T0}, L_pcbase-{KN}_kernel")
        e(f"s_subb_u32 s{S_T0+1}, s{S_T0+1}, 0")
        e(f"v_lshlrev_b32 v1, {o.get('pfshift', 7)}, v0")
        e("CODE_PREFETCH_PLACEHOLDER")
    e("s_branch L_qg")
    g.lab("L_hb0")
    if o["b0"]:
        e("s_barrier")
    e(f"s_load_dword s{S_E}, s[{S_WS}:{S_WS+1}], {WS_E}")
    build_srd(g, SRD_WS, S_WS, WS_SIZE)
    build_srd(g, SRD_X, S_X, 2048)
    build_srd(g, SRD_WO, S_WO, 0x400000)
    build_srd(g, SRD_OUT, S_OUT, 2048)
    g.lab("L_qg")
    e("s_waitcnt lgkmcnt(0)")
    e(f"s_mul_i32 s{S_TAG}, s{S_E}, 1664525")
    e(f"s_add_u32 s{S_TAG}, s{S_TAG}, 1013904223")
    e(f"s_lshl_b32 s{S_T0}, s{S_B}, 12"); e(f"s_lshl_b32 s{S_T2}, s{S_HKV}, 9")
    e(f"s_add_u32 s{S_T0}, s{S_T0}, s{S_T2}")
    e(f"s_sub_u32 s{S_T2}, s{S_WAVE}, 4"); e(f"s_lshl_b32 s{S_T1}, s{S_T2}, 7")
    e(f"s_add_u32 s{S_T0}, s{S_T0}, s{S_T1}"); e(f"s_lshl_b32 s{S_T0}, s{S_T0}, 3")
    e(f"s_add_u32 s{S_T0}, s{S_T0}, {WS_Q}")
    if o.get("qflag", True):
        LW = g.new("qfw"); LG = g.new("qfg")
        e(f"v_mov_b32 v2, {L_FLAG}")
        e(f"s_cmp_lg_u32 s{S_WAVE}, 4"); e(f"s_cbranch_scc1 {LW}")
        e(f"v_mov_b32 v3, s{S_TAG}")
        e("ds_write_b32 v2, v3")
        e(f"s_branch {LG}")
        g.lab(LW)
        e(f"s_mov_b32 s{S_RETRY}, 0x100000")
        LW2 = g.new("qfw2")
        g.lab(LW2)
        e("ds_read_b32 v3, v2")
        e("s_waitcnt lgkmcnt(0)")
        e(f"v_readfirstlane_b32 s{S_T1}, v3")
        e(f"s_cmp_eq_u32 s{S_T1}, s{S_TAG}"); e(f"s_cbranch_scc1 {LG}")
        e(f"s_sub_u32 s{S_RETRY}, s{S_RETRY}, 1"); e(f"s_cbranch_scc1 {LG}")
        e("s_sleep 2")
        e(f"s_branch {LW2}")
        g.lab(LG)
    e("v_lshlrev_b32 v1, 4, v0")
    def ql():
        for rb in range(4):
            e(f"s_add_u32 s{S_T1}, s{S_T0}, {rb*2*4096*8}")
            e(f"buffer_load_dwordx4 {vr(16+4*rb,4)}, v1, s[{SRD_WS}:{SRD_WS+3}], s{S_T1} offen sc1")
    if o.get("qscout", False):
        poll(g, "q", ql, [17+2*i for i in range(8)], 8, sleep=o.get("qsleep", 4), mask=(1 << 32) | 1)
    poll(g, "q", ql, [17+2*i for i in range(8)], 8, sleep=o.get("qsleep", 4))
    e("v_add_f32 v16, v16, v20"); e("v_add_f32 v18, v18, v22"); e("v_add_f32 v24, v24, v28"); e("v_add_f32 v26, v26, v30")
    e("v_add_f32 v16, v16, v24"); e("v_add_f32 v18, v18, v26")
    e("v_cvt_pk_bf16_f32 v12, v16, v18")
    e(f"s_lshl_b32 s{S_T2}, s{S_T2}, 8"); e(f"s_add_u32 s{S_T2}, s{S_T2}, {L_Q}")
    e("v_lshlrev_b32 v1, 2, v0"); e(f"v_add_u32 v1, s{S_T2}, v1")
    e("ds_write_b32 v1, v12")
    e("s_waitcnt lgkmcnt(0)")
    stamp(g, 2, ST)
    e("s_barrier")
    if o.get("earlyE", False):
        LA = g.new("arr")
        e(f"s_cmp_lg_u32 s{S_WAVE}, 5"); e(f"s_cbranch_scc1 {LA}")
        e("v_mov_b32 v2, 32"); e("v_mov_b32 v3, 1")
        e("s_mov_b64 exec, 1")
        e(f"global_atomic_add v2, v3, s[{S_DBG}:{S_DBG+1}]")
        e("s_mov_b64 exec, -1")
        g.lab(LA)
    if o.get("skiphelp"):
        e("s_branch L_hb2")
    if not o.get("skipffn2"):
        e(f"s_cmp_eq_u32 s{S_WAVE}, 6"); e("s_cbranch_scc1 L_w6")
    g.lab("L_wo")
    if o.get("prio_after") is not None:
        e(f"s_setprio {o['prio_after']}")
    if o.get("skipwo"): e("s_branch L_wodone")
    e(f"s_and_b32 s{S_T0}, s{S_SPLIT}, 3")
    e(f"s_lshl_b32 s{S_T1}, s{S_HKV}, 2"); e(f"s_add_u32 s{S_T1}, s{S_T1}, s{S_T0}")
    e(f"s_lshl_b32 s{S_SOFF}, s{S_T1}, 17")
    e(f"s_bfe_u32 s{S_T2}, s{S_SPLIT}, 0x10002"); e(f"s_lshl_b32 s{S_T2}, s{S_T2}, 16")
    e(f"s_add_u32 s{S_SOFF}, s{S_SOFF}, s{S_T2}")
    e(f"s_lshr_b32 s{S_T2}, s{S_SPLIT}, 3"); e(f"s_lshl_b32 s{S_T2}, s{S_T2}, 9")
    e(f"s_add_u32 s{S_SOFF}, s{S_SOFF}, s{S_T2}")
    e(f"s_sub_u32 s{S_T2}, s{S_WAVE}, 4"); e(f"s_lshl_b32 s{S_T2}, s{S_T2}, 7")
    e(f"s_add_u32 s{S_SOFF}, s{S_SOFF}, s{S_T2}")
    e("v_lshrrev_b32 v2, 3, v0"); e("v_lshlrev_b32 v2, 10, v2"); e("v_and_b32 v3, 7, v0"); e("v_lshl_add_u32 v2, v3, 4, v2")
    for u in range(8):
        e(f"buffer_load_dwordx4 {vr(H_W+4*u,4)}, v2, s[{SRD_WO}:{SRD_WO+3}], s{S_SOFF} offen" + o.get("wofl", " nt"))
        if u < 7:
            e(f"s_add_u32 s{S_SOFF}, s{S_SOFF}, {8*1024}")
    e("v_lshlrev_b32 v1, 4, v0"); e(f"v_add_u32 v1, s{S_STG}, v1")
    e("v_lshrrev_b32 v2, 4, v0"); e("v_bfe_u32 v3, v0, 2, 2"); e("v_lshl_add_u32 v3, v2, 3, v3"); e("v_and_b32 v4, 3, v0")
    e("v_lshlrev_b32 v5, 7, v3"); e("v_lshl_add_u32 v5, v4, 3, v5"); e(f"v_add_u32 v5, s{S_STG}, v5")
    e("s_waitcnt vmcnt(0)")
    for pc in range(2):
        for u in range(4):
            e(f"ds_write_b128 v1, {vr(H_W+16*pc+4*u,4)} offset:{u*1024}")
        for ct in range(4):
            f = H_WO + 4 * (pc * 4 + ct)
            e(f"ds_read_b64_tr_b16 {vr(f,2)}, v5 offset:{ct*32}")
            e(f"ds_read_b64_tr_b16 {vr(f+2,2)}, v5 offset:{ct*32+512}")
        e("s_waitcnt lgkmcnt(0)")
    g.lab("L_wodone")
    if o.get("earlyE", False):
        LE = g.new("eup"); LP = g.new("eupp"); LD = g.new("eupd")
        e(f"s_cmp_lg_u32 s{S_WAVE}, 5"); e(f"s_cbranch_scc1 {LE}")
        e("s_cmp_lg_u32 s2, 0"); e(f"s_cbranch_scc1 {LE}")
        e(f"s_mov_b32 s{S_RETRY}, 0x40000")
        e("v_mov_b32 v2, 32")
        g.lab(LP)
        e(f"global_load_dword v3, v2, s[{S_DBG}:{S_DBG+1}] sc1")
        e("s_waitcnt vmcnt(0)")
        e(f"v_readfirstlane_b32 s{S_T0}, v3")
        e(f"s_cmp_ge_u32 s{S_T0}, 256"); e(f"s_cbranch_scc1 {LD}")
        e(f"s_sub_u32 s{S_RETRY}, s{S_RETRY}, 1"); e(f"s_cbranch_scc1 {LD}")
        e("s_sleep 16")
        e(f"s_branch {LP}")
        g.lab(LD)
        e(f"v_mov_b32 v8, s{S_TAG}"); e("v_mov_b32 v1, 0")
        e("s_mov_b64 exec, 1")
        e(f"buffer_store_dword v8, v1, s[{SRD_WS}:{SRD_WS+3}], 0 offen sc1")
        e("s_mov_b64 exec, -1")
        g.lab(LE)
    if o.get("skipffn2"): e("s_branch L_hb2")
    e(f"s_cmp_lg_u32 s{S_WAVE}, 7"); e("s_cbranch_scc1 L_hb2")
    for ln in ['s_xor_b32 s60, s57, s56', 's_and_b32 s60, s60, 3', 's_cmp_lg_u32 s60, 0', 's_cbranch_scc1 L_hb2']: e(ln)
    for ln in ['s_lshr_b32 s68, s57, 2', 's_and_b32 s60, s68, 1', 's_lshl_b32 s60, s60, 1', 's_lshr_b32 s68, s68, 1', 's_add_u32 s68, s68, s60', 's_lshl_b32 s60, s56, 2', 's_add_u32 s68, s68, s60']: e(ln)
    e("v_lshrrev_b32 v2, 5, v0"); e("v_bfe_u32 v3, v0, 2, 3"); e("v_and_b32 v4, 3, v0")
    e("v_min_u32 v7, 6, v3")
    e(f"v_mul_u32_u24 v5, {4*2*512*8}, v7")
    e("v_lshl_add_u32 v5, v2, 12, v5")
    e("v_lshl_add_u32 v5, v4, 4, v5")
    e(f"s_lshl_b32 s{S_T0}, s68, 6")
    e(f"v_add_u32 v5, s{S_T0}, v5")
    def fl():
        for i in range(4):
            e(f"s_mov_b32 s{S_T1}, {WS_F + i*8192}")
            e(f"buffer_load_dwordx4 {vr(16+4*i,4)}, v5, s[{SRD_WS}:{SRD_WS+3}], s{S_T1} offen sc1")
    e("v_lshlrev_b32 v6, 10, v2"); e("v_lshl_add_u32 v6, v4, 2, v6"); e(f"s_lshl_b32 s{S_T1}, s68, 4"); e(f"v_add_u32 v6, s{S_T1}, v6")
    e(f"buffer_load_dword v{H_G+2}, v6, s[{SRD_X}:{SRD_X+3}], 0 offen")
    poll(g, "f", fl, [17+2*i for i in range(8)], 8, sleep=16)
    e("v_add_f32 v16, v16, v20"); e("v_add_f32 v18, v18, v22"); e("v_add_f32 v24, v24, v28"); e("v_add_f32 v26, v26, v30")
    e("v_add_f32 v16, v16, v24"); e("v_add_f32 v18, v18, v26")
    e("v_cmp_gt_u32 vcc, 7, v3"); g.nop(2)
    e("v_cndmask_b32 v16, 0, v16, vcc"); e("v_cndmask_b32 v18, 0, v18, vcc")
    row_ror_reduce(g, [16, 18], "v_add_f32", [4, 8])
    e("v_mov_b32 v20, v16"); e("v_mov_b32 v21, v18"); g.nop(2)
    e("v_permlane16_swap_b32 v16, v20"); e("v_permlane16_swap_b32 v18, v21"); g.nop(1)
    e("v_add_f32 v16, v16, v20"); e("v_add_f32 v18, v18, v21")
    e("v_cvt_pk_bf16_f32 v8, v16, v18")
    e("v_lshlrev_b32 v10, 16, v8"); e("v_and_b32 v11, 0xffff0000, v8")
    e(f"s_mov_b32 s{S_T0}, {L2E:#x}")
    for r in (10, 11):
        e(f"v_mul_f32 v12, s{S_T0}, v{r}")
        e(f"v_exp_f32 v12, -v12"); g.nop(1)
        e(f"v_add_f32 v12, 1.0, v12")
        e(f"v_rcp_f32 v12, v12"); g.nop(1)
        e(f"v_mul_f32 v{r}, v{r}, v12")
    e("v_cvt_pk_bf16_f32 v8, v10, v11")
    e(f"v_lshlrev_b32 v{H_G}, 16, v8"); e(f"v_and_b32 v{H_G+1}, 0xffff0000, v8")
    g.lab("L_hb2")
    e(f"s_sub_u32 s{S_T0}, s{S_WAVE}, 4")
    e(f"s_lshl_b32 s{S_T1}, s{S_T0}, 9")
    e("v_lshlrev_b32 v232, 2, v0"); e(f"v_add_u32 v232, s{S_T1}, v232")
    e(f"v_add_u32 v233, {2*RING}, v232")
    e(f"s_lshl_b32 s{S_T1}, s{S_T0}, 3"); e(f"s_add_u32 s{S_T1}, s{S_T1}, {L_ML}")
    e(f"v_mov_b32 v234, s{S_T1}")
    e("v_lshlrev_b32 v235, 4, v0")
    e("v_and_b32 v228, 1, v0")
    e(f"s_lshl_b32 s67, s{S_PAIR}, 4"); e(f"s_add_u32 s67, s67, s{S_SPLIT}")
    e(f"s_lshl_b32 s67, s67, 2"); e(f"s_add_u32 s67, s67, s{S_T0}")
    e(f"s_lshl_b32 s67, s67, 11"); e(f"s_add_u32 s67, s67, {WS_P}")
    e("v_lshrrev_b32 v236, 4, v0"); e("v_lshlrev_b32 v236, 4, v236"); e(f"v_add_u32 v236, {L_OB}, v236")
    e("v_lshlrev_b32 v237, 3, v0")
    e(f"s_and_b32 s{S_T2}, s{S_SPLIT}, 3")
    e(f"s_lshl_b32 s69, s{S_HKV}, 2"); e(f"s_add_u32 s69, s69, s{S_T2}")
    e(f"s_lshl_b32 s69, s69, 1"); e(f"s_bfe_u32 s{S_T2}, s{S_SPLIT}, 0x10002"); e(f"s_add_u32 s69, s69, s{S_T2}")
    e(f"s_lshl_b32 s{S_T2}, s{S_B}, 6"); e(f"s_add_u32 s69, s69, s{S_T2}")
    e(f"s_lshl_b32 s69, s69, 12")
    e(f"s_lshr_b32 s{S_T2}, s{S_SPLIT}, 3"); e(f"s_lshl_b32 s{S_T2}, s{S_T2}, 11"); e(f"s_add_u32 s69, s69, s{S_T2}")
    e(f"s_lshl_b32 s{S_T2}, s{S_T0}, 9"); e(f"s_add_u32 s69, s69, s{S_T2}")
    e(f"s_add_u32 s69, s69, {WS_S}")
    for ln in ['s_lshr_b32 s68, s57, 2', 's_and_b32 s61, s68, 1', 's_lshl_b32 s61, s61, 1', 's_lshr_b32 s68, s68, 1', 's_add_u32 s68, s68, s61', 's_lshl_b32 s61, s56, 2', 's_add_u32 s68, s68, s61']: e(ln)
    e("v_lshrrev_b32 v2, 5, v0"); e("v_bfe_u32 v3, v0, 2, 3"); e("v_and_b32 v4, 3, v0")
    e("v_lshlrev_b32 v238, 18, v2"); e("v_lshl_add_u32 v238, v3, 15, v238"); e("v_lshl_add_u32 v238, v4, 4, v238")
    e(f"s_lshl_b32 s{S_T0}, s68, 6"); e(f"v_add_u32 v238, s{S_T0}, v238")
    e("v_lshlrev_b32 v239, 10, v2"); e("v_lshl_add_u32 v239, v4, 2, v239"); e(f"s_lshl_b32 s{S_T1}, s68, 4"); e(f"v_add_u32 v239, s{S_T1}, v239")
    e("s_mov_b32 s70, 0xffff0000"); e("s_mov_b32 s71, 0")
    e("s_mov_b32 s72, 0"); e("s_mov_b32 s73, 0x0000ffff")
    e("s_mov_b32 s74, 0"); e("s_mov_b32 s75, 0xffff0000")
    e(f"v_mov_b32 v41, s{S_TAG}"); e(f"v_mov_b32 v43, s{S_TAG}"); e(f"v_mov_b32 v45, s{S_TAG}"); e(f"v_mov_b32 v47, s{S_TAG}")
    e(f"s_mov_b32 s{S_C0}, {L2E:#x}")
    if o.get("pretouch"):
        fl = "" if o["pretouch"] == 1 else " sc1"
        e(f"buffer_load_dword v227, v235, s[{SRD_WS}:{SRD_WS+3}], s67 offen{fl}")
        e(f"buffer_load_dword v227, v235, s[{SRD_WS}:{SRD_WS+3}], s67 offen offset:1152{fl}")
        e(f"buffer_load_dword v227, v237, s[{SRD_WS}:{SRD_WS+3}], s69 offen{fl}")
    if o.get("tailpf", True):
        e(f"s_getpc_b64 s[{S_T2}:{S_T2+1}]")
        g.lab("L_pc2")
        e(f"s_add_u32 s{S_T2}, s{S_T2}, L_tail-L_pc2"); e(f"s_addc_u32 s{S_T2+1}, s{S_T2+1}, 0")
        e("v_lshlrev_b32 v229, 7, v0")
        e(f"v_min_u32 v229, L_code_end-L_tail-4, v229")
    stamp(g, 3, ST)

    g.lab("L_tail")
    if DS:
        LX = g.new("ds")
        e(f"s_cmp_lg_u32 s{S_WAVE}, 0"); e(f"s_cbranch_scc1 {LX}")
        dstamp(g, 2, True)
        e("v_mov_b32 v236, 12"); e("v_mov_b32 v237, s88")
        e("s_mov_b64 exec, 1")
        e(f"global_atomic_umax v236, v237, s[{S_DBG}:{S_DBG+1}]")
        e("s_mov_b64 exec, -1")
        e("s_not_b32 s90, s90")
        e("v_mov_b32 v236, 0"); e("v_mov_b32 v237, s90")
        e("s_mov_b64 exec, 1")
        e(f"global_atomic_umax v236, v237, s[{S_DBG}:{S_DBG+1}]")
        e("s_mov_b64 exec, -1")
        g.lab(LX)
    e("s_barrier")
    stamp(g, 4, STT)
    e(f"s_cmp_lt_u32 s{S_WAVE}, 4"); e("s_cbranch_scc1 L_t2")
    e("ds_read_b32 v8, v232"); e("ds_read_b32 v9, v232 offset:256")
    e("ds_read_b32 v10, v232 offset:32768"); e("ds_read_b32 v11, v232 offset:33024")
    e("ds_read_b32 v12, v233"); e("ds_read_b32 v13, v233 offset:256")
    e("ds_read_b32 v14, v233 offset:32768"); e("ds_read_b32 v15, v233 offset:33024")
    for w in range(4):
        e(f"ds_read_b64 {vr(16+2*w,2)}, v234 offset:{w*32}")
    if o.get("tailpf", True):
        LP = g.new("tpf")
        e(f"s_cmp_lg_u32 s{S_WAVE}, 7"); e(f"s_cbranch_scc1 {LP}")
        e("s_mov_b32 exec_hi, 0")
        e(f"global_load_dword v230, v229, s[{S_T2}:{S_T2+1}]")
        e("s_mov_b64 exec, -1")
        g.lab(LP)
    e("v_cmp_eq_u32 vcc, 1, v228")
    e("s_waitcnt lgkmcnt(0)")
    e("v_max3_f32 v24, v16, v18, v20"); e("v_max_f32 v24, v24, v22")
    for w in range(4):
        e(f"v_sub_f32 v{16+2*w}, v{16+2*w}, v24")
    for w in range(4):
        e(f"v_mul_f32 v{16+2*w}, s{S_C0}, v{16+2*w}")
    for w in range(4):
        e(f"v_exp_f32 v{16+2*w}, v{16+2*w}")
    g.nop(1)
    e("v_mul_f32 v40, v8, v16"); e("v_mul_f32 v44, v9, v16"); e("v_mul_f32 v46, v17, v16")
    for w in range(1, 4):
        e(f"v_fmac_f32 v40, v{8+2*w}, v{16+2*w}"); e(f"v_fmac_f32 v44, v{9+2*w}, v{16+2*w}"); e(f"v_fmac_f32 v46, v{17+2*w}, v{16+2*w}")
    e("v_cndmask_b32 v42, v24, v46, vcc")
    e("v_mov_b32 v46, v42")
    e(f"buffer_store_dwordx4 v[40:43], v235, s[{SRD_WS}:{SRD_WS+3}], s67 offen sc1")
    e(f"buffer_store_dwordx4 v[44:47], v235, s[{SRD_WS}:{SRD_WS+3}], s67 offen offset:1024 sc1")
    if o.get("diagH") == 1:
        stamp(g, 1, True)
        e("s_waitcnt vmcnt(0)")
        stamp(g, 2, True)
    g.lab("L_t2")
    stamp(g, 5, STT)
    e(f"s_and_b32 s{S_T0}, s{S_SPLIT}, 3")
    e("v_lshrrev_b32 v2, 2, v0"); e("v_and_b32 v3, 3, v0")
    e("v_lshlrev_b32 v5, 13, v2")
    e("v_lshl_add_u32 v4, v3, 5, v5")
    e(f"s_lshl_b32 s{S_T1}, s{S_PAIR}, 17")
    e(f"s_lshl_b32 s{S_T2}, s{S_T0}, 11"); e(f"s_add_u32 s{S_T1}, s{S_T1}, s{S_T2}")
    e(f"s_bfe_u32 s{S_T2}, s{S_SPLIT}, 0x10002"); e(f"s_lshl_b32 s{S_T2}, s{S_T2}, 10"); e(f"s_add_u32 s{S_T1}, s{S_T1}, s{S_T2}")
    e(f"s_lshl_b32 s{S_T2}, s{S_WAVE}, 7"); e(f"s_add_u32 s{S_T1}, s{S_T1}, s{S_T2}")
    e(f"s_add_u32 s{S_T1}, s{S_T1}, {WS_P}")
    def pl():
        e(f"buffer_load_dwordx4 v[8:11], v4, s[{SRD_WS}:{SRD_WS+3}], s{S_T1} offen sc1")
        e(f"buffer_load_dwordx4 v[12:15], v4, s[{SRD_WS}:{SRD_WS+3}], s{S_T1} offen offset:16 sc1")
    if o.get("gate"):
        LG = g.new("gate")
        e(f"s_cmp_eq_u32 s{S_WAVE}, {o['gate'] - 1}"); e(f"s_cbranch_scc1 {LG}")
        e("s_barrier")
        g.lab(LG)
    poll(g, "p", pl, [9, 11, 13, 15], 24, sleep=o.get("psleep", 1))
    if o.get("gate"):
        LG2 = g.new("gate2")
        e(f"s_cmp_lg_u32 s{S_WAVE}, {o['gate'] - 1}"); e(f"s_cbranch_scc1 {LG2}")
        e("s_barrier")
        g.lab(LG2)
    e("v_mov_b32 v16, v10"); e("v_mov_b32 v18, v14"); e("v_mov_b32 v10, v12")
    stamp(g, 6, STT)
    e("v_mov_b32 v20, v16")
    row_ror_reduce(g, [20], "v_max_f32", [4, 8])
    rows_reduce(g, 20, 21, "v_max_f32")
    e(f"s_mov_b32 s{S_C0}, {L2E:#x}")
    e("v_sub_f32 v16, v16, v20"); e(f"v_mul_f32 v16, s{S_C0}, v16"); e("v_exp_f32 v16, v16"); g.nop(1)
    e("v_mul_f32 v18, v18, v16")
    e("v_mul_f32 v8, v8, v16"); e("v_mul_f32 v10, v10, v16")
    row_ror_reduce(g, [8, 10, 18], "v_add_f32", [4, 8])
    rows_reduce_multi(g, [8, 10, 18], [26, 27, 28], "v_add_f32")
    e("v_rcp_f32 v19, v18"); g.nop(1)
    for r in (8, 10):
        e(f"v_mul_f32 v20, v{r}, v19"); e(f"v_fma_f32 v21, -v20, v18, v{r}"); e(f"v_fma_f32 v{r}, v21, v19, v20")
    e("v_cvt_pk_bf16_f32 v22, v8, v10")
    e(f"s_lshl_b32 s{S_T2}, s{S_WAVE}, 4"); e(f"s_add_u32 s{S_T2}, s{S_T2}, {L_OB}")
    e(f"v_lshlrev_b32 v3, 2, v3"); e(f"v_add_u32 v3, s{S_T2}, v3")
    e("s_mov_b64 exec, 0xf")
    e("ds_write_b32 v3, v22")
    e("s_mov_b64 exec, -1")
    e("s_waitcnt lgkmcnt(0)")
    e("s_barrier")
    e(f"s_cmp_lt_u32 s{S_WAVE}, 4"); e("s_cbranch_scc1 L_fin")
    for ks in range(2):
        e(f"ds_read_b128 {vr(8+4*ks,4)}, v236 offset:{ks*64}")
    e("s_waitcnt lgkmcnt(0)")
    for ks in range(2):
        for ct in range(4):
            c = "0" if ks == 0 else vr(16+4*ct, 4)
            e(f"v_mfma_f32_16x16x32_bf16 {vr(16+4*ct,4)}, {vr(8+4*ks,4)}, {vr(H_WO+4*(ks*4+ct),4)}, {c}")
    g.nop(6)
    e("v_cndmask_b32 v40, v16, v20, s[70:71]")
    e("v_cndmask_b32 v40, v40, v24, s[72:73]")
    g.nop(1)
    e("v_cndmask_b32 v40, v40, v28, s[74:75]")
    pub2(g, 40, 237, "s69")
    if o.get("diagH") == 2:
        stamp(g, 1, True)
        e("s_waitcnt vmcnt(0)")
        stamp(g, 2, True)
    stamp(g, 7, STT)
    e(f"s_cmp_lg_u32 s{S_WAVE}, 7"); e("s_cbranch_scc1 L_fin")
    for ln in ['s_xor_b32 s60, s57, s56', 's_and_b32 s60, s60, 3', 's_cmp_lg_u32 s60, 0', 's_cbranch_scc1 L_fin']: e(ln)
    def sl():
        for i in range(8):
            e(f"s_mov_b32 s{S_T1}, {WS_S + i*4096}")
            e(f"buffer_load_dwordx4 {vr(64+4*i,4)}, v238, s[{SRD_WS}:{SRD_WS+3}], s{S_T1} offen sc1")
    poll(g, "s", sl, [64+2*i+1 for i in range(16)], 8)
    stamp(g, 8, STT)
    for i in range(4):
        e(f"v_add_f32 v{64+4*i}, v{64+4*i}, v{80+4*i}"); e(f"v_add_f32 v{66+4*i}, v{66+4*i}, v{82+4*i}")
    e("v_add_f32 v64, v64, v72"); e("v_add_f32 v66, v66, v74"); e("v_add_f32 v68, v68, v76"); e("v_add_f32 v70, v70, v78")
    e("v_add_f32 v16, v64, v68"); e("v_add_f32 v18, v66, v70")
    row_ror_reduce(g, [16, 18], "v_add_f32", [4, 8])
    e("v_mov_b32 v20, v16"); e("v_mov_b32 v21, v18"); g.nop(2)
    e("v_permlane16_swap_b32 v16, v20"); e("v_permlane16_swap_b32 v18, v21"); g.nop(1)
    e("v_add_f32 v16, v16, v20"); e("v_add_f32 v18, v18, v21")
    e("v_cvt_pk_bf16_f32 v8, v16, v18")
    e("v_lshlrev_b32 v10, 16, v8"); e("v_and_b32 v11, 0xffff0000, v8")
    e(f"v_mul_f32 v10, v10, v{H_G}"); e(f"v_mul_f32 v11, v11, v{H_G+1}")
    e("v_cvt_pk_bf16_f32 v8, v10, v11")
    e("v_lshlrev_b32 v10, 16, v8"); e("v_and_b32 v11, 0xffff0000, v8")
    e(f"v_lshlrev_b32 v12, 16, v{H_G+2}"); e(f"v_and_b32 v13, 0xffff0000, v{H_G+2}")
    e("v_add_f32 v10, v10, v12"); e("v_add_f32 v11, v11, v13")
    e("v_cvt_pk_bf16_f32 v8, v10, v11")
    e("s_mov_b32 exec_lo, 0xf"); e("s_mov_b32 exec_hi, 0xf")
    e(f"buffer_store_dword v8, v239, s[{SRD_OUT}:{SRD_OUT+3}], 0 offen" + o.get("outfl", ""))
    e("s_mov_b64 exec, -1")
    if DS: dstamp(g, 1, True)
    if not o.get("earlyE", False):
        e("s_cmp_lg_u32 s2, 0"); e("s_cbranch_scc1 L_fin")
        e(f"v_mov_b32 v8, s{S_TAG}"); e("v_mov_b32 v1, 0")
        e("s_mov_b64 exec, 1")
        e(f"buffer_store_dword v8, v1, s[{SRD_WS}:{SRD_WS+3}], 0 offen sc1")
        e("s_mov_b64 exec, -1")
    g.lab("L_fin")
    if DS2:
        LX = g.new("ds2"); LY = g.new("ds2y")
        e("s_memrealtime s[84:85]")
        e("s_waitcnt lgkmcnt(0)")
        e("s_mov_b64 exec, 1")
        e(f"s_cmp_eq_u32 s{S_WAVE}, 7"); e(f"s_cbranch_scc1 {LY}")
        e(f"s_cmp_lg_u32 s{S_WAVE}, 0"); e(f"s_cbranch_scc1 {LX}")
        e("s_cmp_ge_u32 s2, 3"); e(f"s_cbranch_scc1 {LX}")
        e("s_mul_i32 s83, s2, 12")
        e("v_mov_b32 v1, s83")
        e("v_mov_b32 v2, s90"); e("v_mov_b32 v3, s86"); e("v_mov_b32 v4, s88")
        e(f"global_store_dwordx3 v1, v[2:4], s[{S_DBG}:{S_DBG+1}]")
        e(f"s_branch {LX}")
        g.lab(LY)
        e("s_cmp_ge_u32 s2, 7"); e(f"s_cbranch_scc1 {LX}")
        e("s_lshl_b32 s83, s2, 2"); e("s_add_u32 s83, s83, 36")
        e("v_mov_b32 v1, s83"); e("v_mov_b32 v2, s84")
        e(f"global_store_dword v1, v2, s[{S_DBG}:{S_DBG+1}]")
        g.lab(LX)
    if ST:
        stamp(g, 9, ST)
        e("s_waitcnt lgkmcnt(0)")
        e(f"s_lshl_b32 s{S_T0}, s2, 3"); e(f"s_add_u32 s{S_T0}, s{S_T0}, s{S_WAVE}"); e(f"s_lshl_b32 s{S_T0}, s{S_T0}, 6")
        e(f"s_add_u32 s{S_T0}, s{S_T0}, {WS_DBG}")
        e("v_mov_b32 v1, 0")
        e("s_mov_b64 exec, 1")
        for i in range(10):
            e(f"v_mov_b32 v2, s{S_ST0+2*i}")
            e(f"buffer_store_dword v2, v1, s[{SRD_WS}:{SRD_WS+3}], s{S_T0} offen offset:{4*i}")
            g.nop(1)
    g.lab("L_end")
    e("s_endpgm")
    g.lab("L_code_end")
    g.L.append('.section .rodata,"a"')
    g.L.append(".p2align 6")
    g.L.append(f".amdhsa_kernel {KN}_kernel")
    for s in ["next_free_vgpr 240", "next_free_sgpr 102", "accum_offset 240", "group_segment_fixed_size 0", "kernarg_size 88",
              "user_sgpr_count 2", "user_sgpr_kernarg_segment_ptr 1", "system_sgpr_workgroup_id_x 1",
              "float_denorm_mode_32 3", "float_denorm_mode_16_64 3"]:
        g.L.append("  .amdhsa_" + s)
    g.L.append(".end_amdhsa_kernel")
    if o.get("hfirst", False) and o["b0"]:
        L = g.L
        i0 = L.index("L_helper:")
        isl = L.index("L_slice:")
        i1 = next(i for i in range(isl, len(L)) if L[i].strip() == "s_barrier") + 1
        H1 = L[i0:i1]
        rest = L[:i0] + ["L_helper2:"] + L[i1:]
        ib = next(i for i in range(len(rest)) if rest[i].strip() == "s_cbranch_scc1 L_helper")
        assert rest[ib-1].strip().startswith("s_cmp_ge_u32 s3, 4")
        rest[ib] = "  s_cbranch_scc0 L_stream"
        for lab in ("L_w67", "L_hb0"):
            j = rest.index(lab + ":")
            assert rest[j+1].strip() == "s_barrier"
            del rest[j+1]
            H1 = [ln.replace("s_cbranch_scc1 " + lab, "s_cbranch_scc1 " + lab + "_b0") if ln.strip() == "s_cbranch_scc1 " + lab else ln for ln in H1]
        stubs = ["L_w67_b0:"]
        if o.get("earlypf", True):
            pm = o.get("epfmask", 0)
            stubs += ["  s_cmp_lg_u32 s3, 7", "  s_cbranch_scc1 L_epf_skip",
                      "  s_lshr_b32 s60, s2, 3", f"  s_and_b32 s60, s60, {pm}", "  s_cmp_lg_u32 s60, 0", "  s_cbranch_scc1 L_epf_skip",
                      "  s_getpc_b64 s[60:61]", "L_epf_pc:", f"  s_sub_u32 s60, s60, L_epf_pc-{KN}_kernel", "  s_subb_u32 s61, s61, 0",
                      "  v_lshlrev_b32 v1, 7, v0"]
            for i in range(o.get("epf_n", 2)):
                stubs += [f"  v_min_u32 v3, L_code_end-{KN}_kernel-4, v1", "  global_load_dword v230, v3, s[60:61]", "  v_add_u32 v1, 8192, v1"]
            stubs += ["L_epf_skip:"]
        stubs += ["  s_barrier", "  s_branch L_w67", "L_hb0_b0:", "  s_barrier", "  s_branch L_hb0"]
        g.L = rest[:ib+1] + H1 + ["  s_branch L_helper2"] + stubs + ["L_stream:"] + rest[ib+1:]
    txt = "\n".join(g.L) + "\n"
    lf = o.get("ldflags")
    if lf:
        out = []
        for ln in txt.split("\n"):
            if "buffer_load_dword" in ln and ln.rstrip().endswith(" sc1") and " lds" not in ln:
                ln = ln.rstrip()[:-4] + " " + lf
            out.append(ln)
        txt = "\n".join(out)
    pf = []
    span = 64 << o.get("pfshift", 7)
    for i in range((o.get("pf_kib", 24) * 1024 + span - 1) // span):
        pf.append(f"  v_min_u32 v3, L_code_end-{KN}_kernel-4, v1")
        pf.append(f"  global_load_dword v230, v3, s[{S_T0}:{S_T0+1}]")
        pf.append(f"  v_add_u32 v1, {span}, v1")
    txt = txt.replace("  CODE_PREFETCH_PLACEHOLDER", "\n".join(pf))
    return txt

if __name__ == "__main__":
    import json
    opt = json.loads(sys.argv[2]) if len(sys.argv) > 2 else {}
    open(sys.argv[1], "w").write(gen(opt))
```

```python
import sys
KN = "recurrent_scan__gqa_block_cached__dense_activation_silu__decode"

WS_E   = 0x0
WS_Q   = 0x200000
WS_H   = 0x240000
WS_ML  = 0x28000
WS_F   = 0x30000
WS_S   = 0x80000
WS_P   = 0x400000
WS_CNT = 0x2A0000
WS_DBG = 0x300000
WS_SIZE = 0x800000

RING   = 32768
L_STG  = 0x20000
L_XN4  = 0x24000
L_XN5  = 0x24800
L_Q    = 0x25000
L_H    = 0x25400
L_OB   = 0x25600
L_ML   = 0x25800
L_FLAG = 0x25900
LDS_BYTES = 0x26000

L2E = 0x3fb8aa3b
SCALE = 0x3db504f3
NEG_INF = 0xff800000

DEBUG_TO = True
class G:
    def __init__(self):
        self.L = []
        self.uid = 0
    def e(self, s):
        self.L.append("  " + s)
    def lab(self, s):
        self.L.append(s + ":")
    def new(self, p):
        self.uid += 1
        return f"L_{p}_{self.uid}"
    def nop(self, n):
        while n > 0:
            k = min(n, 16)
            self.e(f"s_nop {k-1}")
            n -= k

def vr(a, n=None):
    return f"v{a}" if n is None else f"v[{a}:{a+n-1}]"
def sr(a, n=None):
    return f"s{a}" if n is None else f"s[{a}:{a+n-1}]"

S_WAVE = 3
S_X, S_K, S_V, S_WQ, S_WO, S_BX, S_W1, S_W2 = 4, 6, 8, 10, 12, 14, 16, 18
S_OUT, S_DBG, S_WS = 20, 22, 24
S_TAG, S_E = 26, 27
SRD_K, SRD_V, SRD_WS, SRD_W, SRD_X, SRD_OUT, SRD_WO = 28, 32, 36, 40, 44, 48, 52
S_PAIR, S_SPLIT, S_B, S_HKV = 56, 57, 58, 59
S_T0, S_T1, S_T2, S_T3, S_T4, S_T5 = 60, 61, 62, 63, 64, 65
S_RETRY = 66
S_OFF = 67
S_RB = 68
S_PB = 69
S_CNT = 70
S_SOFF = 71
S_RS32 = 72
S_EX = 74
S_ST0 = 76
S_C0 = 96
S_C1 = 97
S_ROT = 98
S_NEXT = 99

def build_srd(g, d, ptr, size):
    g.e(f"s_mov_b32 s{d}, s{ptr}")
    g.e(f"s_and_b32 s{d+1}, s{ptr+1}, 0xffff")
    g.e(f"s_mov_b32 s{d+2}, {size:#x}")
    g.e(f"s_mov_b32 s{d+3}, 0x20000")

def rows_reduce(g, v, t, op):
    for sw in ("v_permlane16_swap_b32", "v_permlane32_swap_b32"):
        g.e(f"v_mov_b32 v{t}, v{v}")
        g.nop(2)
        g.e(f"{sw} v{v}, v{t}")
        g.nop(1)
        g.e(f"{op} v{v}, v{v}, v{t}")

def rows_reduce_multi(g, vs, ts, op):
    for sw in ("v_permlane16_swap_b32", "v_permlane32_swap_b32"):
        for v, t in zip(vs, ts):
            g.e(f"v_mov_b32 v{t}, v{v}")
        g.nop(max(0, 3 - len(vs)) if len(vs) < 3 else 0)
        if len(vs) >= 3: pass
        g.nop(1)
        for v, t in zip(vs, ts):
            g.e(f"{sw} v{v}, v{t}")
        g.nop(1)
        for v, t in zip(vs, ts):
            g.e(f"{op} v{v}, v{v}, v{t}")
        g.nop(1)

def row_ror_reduce(g, vs, op, rors):
    for r in rors:
        g.nop(2)
        for v in vs:
            g.e(f"{op}_dpp v{v}, v{v}, v{v} row_ror:{r} row_mask:0xf bank_mask:0xf")
            if len(vs) == 1:
                pass
    g.nop(1)

POLL_IDS = {"q": 0, "h": 1, "f": 2, "p": 3, "s": 4}
def poll(g, name, issue_loads, tag_regs, tmp, dbgword=None, sleep=1, mask=None):
    L = g.new("poll_" + name); D = g.new("polld_" + name); TO = g.new("pollto_" + name)
    g.e(f"s_mov_b32 s{S_RETRY}, 0x40000")
    if mask is not None:
        g.e(f"s_mov_b32 exec_lo, {mask & 0xffffffff:#x}"); g.e(f"s_mov_b32 exec_hi, {mask >> 32:#x}")
    g.lab(L)
    issue_loads()
    g.e("s_waitcnt vmcnt(0)")
    g.e(f"v_xor_b32 v{tmp}, s{S_TAG}, v{tag_regs[0]}")
    for t in tag_regs[1:]:
        g.e(f"v_xor_b32 v{tmp+1}, s{S_TAG}, v{t}")
        g.e(f"v_or_b32 v{tmp}, v{tmp}, v{tmp+1}")
    g.e(f"v_cmp_ne_u32 vcc, 0, v{tmp}")
    g.e(f"s_cbranch_vccz {D}")
    g.e("s_mov_b64 exec, vcc")
    g.e(f"s_sub_u32 s{S_RETRY}, s{S_RETRY}, 1")
    g.e(f"s_cbranch_scc1 {TO}")
    g.e(f"s_sleep {sleep}")
    g.e(f"s_branch {L}")
    g.lab(TO)
    if DEBUG_TO:
        g.e(f"v_mov_b32 v{tmp}, {4*POLL_IDS[name]}")
        g.e(f"v_mov_b32 v{tmp+1}, s2")
        g.e(f"v_add_u32 v{tmp+1}, 0x1000, v{tmp+1}")
        g.e(f"global_store_dword v{tmp}, v{tmp+1}, s[{S_DBG}:{S_DBG+1}]")
    g.lab(D)
    g.e("s_mov_b64 exec, -1")

PUB = {"mode": "store"}
def pub2(g, vdata, voff, soff, imm=0):
    off = f" offset:{imm}" if imm else ""
    if PUB["mode"] == "atomic":
        g.e(f"buffer_atomic_swap_x2 v[{vdata}:{vdata+1}], v{voff}, s[{SRD_WS}:{SRD_WS+3}], {soff} offen{off}")
    elif PUB["mode"] == "atomic_sc1":
        g.e(f"buffer_atomic_swap_x2 v[{vdata}:{vdata+1}], v{voff}, s[{SRD_WS}:{SRD_WS+3}], {soff} offen{off} sc1")
    elif PUB["mode"] == "store_sc01":
        g.e(f"buffer_store_dwordx2 v[{vdata}:{vdata+1}], v{voff}, s[{SRD_WS}:{SRD_WS+3}], {soff} offen{off} sc0 sc1")
    else:
        g.e(f"buffer_store_dwordx2 v[{vdata}:{vdata+1}], v{voff}, s[{SRD_WS}:{SRD_WS+3}], {soff} offen{off} sc1")

def poll2(g, name, issue, nloads, tags, on_ok, A, B, tmp, stagger=10):
    L = g.new("p2_" + name); D = g.new("p2d_" + name); TO = g.new("p2to_" + name)
    W = "s[100:101]"
    def check(base):
        tr = tags(base)
        g.e(f"s_mov_b64 exec, {W}")
        g.e(f"v_xor_b32 v{tmp}, s{S_TAG}, v{tr[0]}")
        for t in tr[1:]:
            g.e(f"v_xor_b32 v{tmp+1}, s{S_TAG}, v{t}")
            g.e(f"v_or_b32 v{tmp}, v{tmp}, v{tmp+1}")
        g.e(f"v_cmp_ne_u32 vcc, 0, v{tmp}")
        g.e(f"s_andn2_b64 exec, {W}, vcc")
        SK = g.new("p2s")
        g.e(f"s_cbranch_execz {SK}")
        on_ok(base)
        g.lab(SK)
        g.e(f"s_mov_b64 {W}, vcc")
        g.e(f"s_cbranch_vccz {D}")
        g.e(f"s_mov_b64 exec, {W}")
    g.e(f"s_mov_b32 s{S_RETRY}, 0x40000")
    g.e(f"s_mov_b64 {W}, -1")
    issue(A)
    g.e(f"s_sleep {stagger}")
    g.lab(L)
    issue(B)
    g.e(f"s_waitcnt vmcnt({nloads})")
    check(A)
    issue(A)
    g.e(f"s_waitcnt vmcnt({nloads})")
    check(B)
    g.e(f"s_sub_u32 s{S_RETRY}, s{S_RETRY}, 1")
    g.e(f"s_cbranch_scc0 {L}")
    if DEBUG_TO:
        g.e(f"v_mov_b32 v{tmp}, {4*POLL_IDS[name]}")
        g.e(f"v_mov_b32 v{tmp+1}, s2")
        g.e(f"v_add_u32 v{tmp+1}, 0x1000, v{tmp+1}")
        g.e(f"global_store_dword v{tmp}, v{tmp+1}, s[{S_DBG}:{S_DBG+1}]")
    g.lab(D)
    g.e("s_mov_b64 exec, -1")

def dstamp(g, word, on, tmpv=(236, 237), sp=(92, 93)):
    if not on: return
    g.e(f"s_memrealtime s[{sp[0]}:{sp[1]}]")
    g.e("s_waitcnt lgkmcnt(0)")
    g.e(f"v_mov_b32 v{tmpv[0]}, {4*word}")
    g.e(f"v_mov_b32 v{tmpv[1]}, s{sp[0]}")
    g.e("s_mov_b64 s[94:95], exec")
    g.e("s_mov_b64 exec, 1")
    g.e(f"global_atomic_umax v{tmpv[0]}, v{tmpv[1]}, s[{S_DBG}:{S_DBG+1}]")
    g.e("s_mov_b64 exec, s[94:95]")

def stamp(g, idx, on):
    if on:
        g.e(f"s_memrealtime s[{S_ST0+2*idx}:{S_ST0+2*idx+1}]")

HEADER = """
Fused decode step: layernorm -> (GQA attention over a 2x8x32768x128 KV cache -> wo) * silu(FFN) + x.
One persistent launch, 256 workgroups (one per CU) x 8 waves; generated by my own script (work/gen.py).
 waves 0-3  stream K/V tiles (32 keys) HBM -> LDS (LDS-DMA, source-side swizzle), MFMA QK^T / PV, online softmax.
            16 workgroups share one (batch, kv-head); the first tiles are static, the rest come from a ticket counter.
 waves 4-7  layernorm, q / FFN slices (MFMA GEMV), hand-offs, wo fragments, split combine, wo GEMV, final reduce.
 Hand-offs between workgroups go through d_ws as {value, tag} granules (write-through stores, sc1 loads); the tag is
 derived from an epoch word in d_ws that every launch advances, so stale granules of earlier launches never match.
 kernarg: x, K, V, wq, wo, Bx (unused), w1, w2, out, debug, ws
"""

def gen(opt=None):
    o = dict(pattern="grp16", rot=512*1024, xmap=False, stamps=False, ntiles=16, prefetch_code=True, stage=99, b0=True, thr=16, prio=True, dyn=True, sthr=24, wnt=1, ns=10, poll2=False, copies=1, wofl="", gate=1)
    if opt: o.update(opt)
    DS = False
    DS2 = bool(o.get("dstamps"))
    ST = bool(o["stamps"])
    STT = o["stamps"] is True
    STA = o["stamps"] == "A"
    STP = o["stamps"] == "P"
    STF = o["stamps"] == "F"
    STE = o["stamps"] == "E"
    STX = o["stamps"] == "X"
    STL = o["stamps"] == "L"
    PUB["mode"] = o.get("pub", "store")
    g = G(); e = g.e
    g.L.append(f"; @launch grid=(256,1,1) block=(512,1,1) lds={LDS_BYTES}")
    for ln in HEADER.strip().split("\n"):
        g.L.append("; " + ln)
    g.L.append('.amdgcn_target "amdgcn-amd-amdhsa--gfx950"')
    g.L.append(".text")
    g.L.append(f".globl {KN}_kernel")
    g.L.append(".p2align 8")
    g.L.append(f".type {KN}_kernel,@function")
    g.lab(f"{KN}_kernel")
    e("s_cmp_ge_u32 s2, 256")
    e("s_cbranch_scc1 L_end")
    stamp(g, 0, ST)
    if DS2: e("s_memrealtime s[90:91]")
    e(f"s_load_dwordx16 s[4:19], s[0:1], 0")
    e(f"s_load_dwordx4 s[20:23], s[0:1], 64")
    e(f"s_load_dwordx2 s[24:25], s[0:1], 80")
    e("v_lshrrev_b32 v1, 6, v0")
    e("v_and_b32 v0, 63, v0")
    e(f"v_readfirstlane_b32 s{S_WAVE}, v1")
    if o["xmap"]:
        e(f"s_and_b32 s{S_T0}, s2, 7"); e(f"s_lshl_b32 s{S_T0}, s{S_T0}, 5"); e(f"s_lshr_b32 s{S_T1}, s2, 3")
        e(f"s_add_u32 s{S_T0}, s{S_T0}, s{S_T1}")
        e(f"s_lshr_b32 s{S_PAIR}, s{S_T0}, 4"); e(f"s_and_b32 s{S_SPLIT}, s{S_T0}, 15")
    else:
        e(f"s_lshr_b32 s{S_PAIR}, s2, 4"); e(f"s_and_b32 s{S_SPLIT}, s2, 15")
    e(f"s_lshr_b32 s{S_B}, s{S_PAIR}, 3"); e(f"s_and_b32 s{S_HKV}, s{S_PAIR}, 7")
    e(f"s_cmp_ge_u32 s{S_WAVE}, 4")
    e("s_cbranch_scc1 L_helper")

    V_KD, V_VD, V_KR, V_VR = 8, 12, 14, 18
    V_Q, V_O = 28, 44
    RK = (76, 140); RV = (108, 172)
    V_S, V_A, V_P = 204, 212, 220
    V_M, V_L, V_AL, V_NM, V_MX, V_T = 224, 225, 226, 227, 228, 229
    e("v_lshrrev_b32 v1, 4, v0")
    e("v_and_b32 v2, 15, v0")
    e("v_lshlrev_b32 v3, 8, v1")
    e("v_xor_b32 v4, v2, v1")
    for n in range(4):
        e(f"v_xor_b32 v5, {4*n}, v4")
        e(f"v_lshl_add_u32 v{V_KD+n}, v5, 4, v3")
    e("v_lshlrev_b32 v4, 1, v1")
    e("v_xor_b32 v4, v2, v4")
    for n in range(2):
        e(f"v_xor_b32 v5, {8*n}, v4")
        e(f"v_lshl_add_u32 v{V_VD+n}, v5, 4, v3")
    e(f"s_lshl_b32 s{S_RB}, s{S_WAVE}, 15")
    e(f"s_lshl_b32 s{S_PB}, s{S_PAIR}, 23")
    if o["pattern"] == "grp16":
        e(f"s_lshl_b32 s{S_OFF}, s{S_SPLIT}, 2"); e(f"s_add_u32 s{S_OFF}, s{S_OFF}, s{S_WAVE}")
        e(f"s_lshl_b32 s{S_OFF}, s{S_OFF}, 13")
        STEP = 16 * 4 * 8192
    else:
        e(f"s_lshl_b32 s{S_OFF}, s{S_SPLIT}, 6"); e(f"s_add_u32 s{S_OFF}, s{S_OFF}, s{S_WAVE}")
        e(f"s_lshl_b32 s{S_OFF}, s{S_OFF}, 13")
        STEP = 4 * 8192
    e(f"s_mul_i32 s{S_ROT}, s{S_PAIR}, {o['rot']}")
    e(f"s_add_u32 s{S_OFF}, s{S_OFF}, s{S_ROT}")
    e("s_waitcnt lgkmcnt(0)")
    stamp(g, 4, STA)
    e(f"s_load_dword s{S_E}, s[{S_WS}:{S_WS+1}], {WS_E}")
    build_srd(g, SRD_K, S_K, 0x8000000)
    build_srd(g, SRD_V, S_K if o.get("emu2") else S_V, 0x8000000)

    def tile_addr():
        e(f"s_and_b32 s{S_SOFF}, s{S_OFF}, 0x7fffff")
        e(f"s_add_u32 s{S_SOFF}, s{S_SOFF}, s{S_PB}")
    def issue(which, slot):
        srd = SRD_K if which == 0 else SRD_V
        for half in range(2):
            off = slot * 16384 + which * 8192 + half * 4096
            e(f"s_add_u32 m0, s{S_RB}, {off}")
            if o.get("emu2") and which == 1:
                e(f"s_xor_b32 s{S_T0}, s{S_SOFF}, 0x400000")
                if half: e(f"s_add_u32 s{S_T0}, s{S_T0}, 4096")
            elif half == 0:
                e(f"s_mov_b32 s{S_T0}, s{S_SOFF}")
            else:
                e(f"s_add_u32 s{S_T0}, s{S_SOFF}, 4096")
            for i in range(4):
                n = half * 4 + i
                vo = (V_KD + (n & 3)) if which == 0 else (V_VD + (n & 1))
                fl = o.get("kfl" if which == 0 else "vfl", " nt")
                e(f"buffer_load_dwordx4 v{vo}, s[{srd}:{srd+3}], s{S_T0} offen offset:{i*1024}{fl} lds")
    THR = o["thr"]
    nissued = 0
    for slot in range(2):
        tile_addr()
        for which in range(2):
            if o["b0"] and nissued == o.get("b0at", 16):
                e("s_barrier")
            if nissued + 8 > THR:
                e(f"s_waitcnt vmcnt({THR - 8})")
                stamp(g, 3 + nissued // 8, STP)
            issue(which, slot)
            nissued += 8
        e(f"s_add_u32 s{S_OFF}, s{S_OFF}, {STEP}")
    stamp(g, 5, STA)
    e("v_and_b32 v1, 15, v0")
    e("v_lshrrev_b32 v2, 4, v0")
    e("v_xor_b32 v3, v2, v1")
    e(f"v_lshlrev_b32 v4, 8, v1")
    e(f"v_add_u32 v4, s{S_RB}, v4")
    for kk in range(4):
        e(f"v_xor_b32 v5, {4*kk}, v3")
        e(f"v_lshl_add_u32 v{V_KR+kk}, v5, 4, v4")
    e("v_lshrrev_b32 v1, 2, v0")
    e("v_and_b32 v2, 7, v1")
    e("v_and_b32 v3, 3, v0")
    e("v_lshlrev_b32 v4, 8, v1")
    e("v_lshl_add_u32 v4, v3, 3, v4")
    e(f"v_add_u32 v4, s{S_RB}, v4")
    e("v_add_u32 v4, 8192, v4")
    for dt in range(8):
        e(f"v_xor_b32 v5, {dt}, v2")
        e(f"v_lshl_add_u32 v{V_VR+dt}, v5, 5, v4")
    for i in range(32):
        e(f"v_mov_b32 v{V_O+i}, 0")
    for i in range(16):
        e(f"v_mov_b32 v{V_Q+i}, 0")
    e(f"v_mov_b32 v{V_M}, {NEG_INF:#x}")
    for r in (236, 237, 238, 239): e(f"v_mov_b32 v{r}, 0")
    e(f"v_mov_b32 v{V_L}, 0")
    build_srd(g, SRD_WS, S_WS, WS_SIZE)
    build_srd(g, SRD_X, S_X, 2048)
    build_srd(g, SRD_WO, S_WO, 0x400000)
    build_srd(g, SRD_OUT, S_OUT, 2048)

    def load(rs, slot, do_issue, wK, wV, thr=None, pst=None):
        e(f"s_waitcnt vmcnt({wK})")
        for T in range(2):
            for kk in range(4):
                if not o.get("noread"): e(f"ds_read_b128 {vr(RK[rs]+16*T+4*kk,4)}, v{V_KR+kk} offset:{slot*16384+T*4096}")
        e("s_waitcnt lgkmcnt(0)")
        if do_issue:
            tile_addr()
            if thr is not None and thr < 32: e(f"s_waitcnt vmcnt({thr-8})")
            if pst is not None: stamp(g, pst, STP)
            issue(0, slot)
        e(f"s_waitcnt vmcnt({wV})")
        for dt in range(8):
            for T in range(2):
                if not o.get("noread"): e(f"ds_read_b64_tr_b16 {vr(RV[rs]+4*dt+2*T,2)}, v{V_VR+dt} offset:{slot*16384+T*4096}")
        e("s_waitcnt lgkmcnt(0)")
        if do_issue:
            if thr is not None and thr < 32: e(f"s_waitcnt vmcnt({thr-8})")
            if pst is not None: stamp(g, pst+1, STP)
            issue(1, slot)
            e(f"s_add_u32 s{S_OFF}, s{S_OFF}, {STEP}")

    def compute(rs):
        if o.get("nocompute"): return
        KF, VF = RK[rs], RV[rs]
        for kk in range(4):
            for T in range(2):
                c = "0" if kk == 0 else vr(V_S+4*T, 4)
                e(f"v_mfma_f32_16x16x32_bf16 {vr(V_S+4*T,4)}, {vr(KF+16*T+4*kk,4)}, {vr(V_Q+4*kk,4)}, {c}")
        g.nop(8)
        t = V_T
        for i in range(4):
            e(f"v_cvt_pk_bf16_f32 v{t+i}, v{V_S+2*i}, v{V_S+2*i+1}")
        for i in range(4):
            e(f"v_lshlrev_b32 v{V_A+2*i}, 16, v{t+i}")
            e(f"v_and_b32 v{V_A+2*i+1}, 0xffff0000, v{t+i}")
        for i in range(8):
            e(f"v_mul_f32 v{V_A+i}, s{S_C1}, v{V_A+i}")
        for i in range(4):
            e(f"v_cvt_pk_bf16_f32 v{t+i}, v{V_A+2*i}, v{V_A+2*i+1}")
        for i in range(4):
            e(f"v_lshlrev_b32 v{V_A+2*i}, 16, v{t+i}")
            e(f"v_and_b32 v{V_A+2*i+1}, 0xffff0000, v{t+i}")
        e(f"v_max3_f32 v{V_MX}, v{V_A}, v{V_A+1}, v{V_A+2}")
        e(f"v_max3_f32 v{V_MX}, v{V_MX}, v{V_A+3}, v{V_A+4}")
        e(f"v_max3_f32 v{V_MX}, v{V_MX}, v{V_A+5}, v{V_A+6}")
        e(f"v_max3_f32 v{V_MX}, v{V_MX}, v{V_A+7}, v{V_M}")
        rows_reduce(g, V_MX, t, "v_max_f32")
        e(f"v_sub_f32 v{V_AL}, v{V_M}, v{V_MX}")
        e(f"v_mul_f32 v{V_AL}, s{S_C0}, v{V_AL}")
        e(f"v_exp_f32 v{V_AL}, v{V_AL}")
        e(f"v_mov_b32 v{V_M}, v{V_MX}")
        e(f"v_mul_f32 v{V_NM}, s{S_C0}, v{V_MX}")
        for i in range(8):
            e(f"v_fma_f32 v{V_A+i}, v{V_A+i}, s{S_C0}, -v{V_NM}")
        for i in range(8):
            e(f"v_exp_f32 v{V_A+i}, v{V_A+i}")
        e(f"v_mul_f32 v{V_L}, v{V_L}, v{V_AL}")
        if o.get("skipresc", False):
            LR = g.new("resc")
            e(f"v_cmp_neq_f32 vcc, 1.0, v{V_AL}")
            e(f"s_cbranch_vccz {LR}")
        for i in range(16):
            e(f"v_pk_mul_f32 {vr(V_O+2*i,2)}, {vr(V_O+2*i,2)}, {vr(V_AL,2)} op_sel_hi:[1,0]")
        if o.get("skipresc", False):
            g.lab(LR)
        for i in range(4):
            e(f"v_cvt_pk_bf16_f32 v{V_P+i}, v{V_A+2*i}, v{V_A+2*i+1}")
        e(f"v_add_f32 v{t}, v{V_A}, v{V_A+1}")
        e(f"v_add_f32 v{t+1}, v{V_A+2}, v{V_A+3}")
        e(f"v_add_f32 v{t+2}, v{V_A+4}, v{V_A+5}")
        e(f"v_add_f32 v{t+3}, v{V_A+6}, v{V_A+7}")
        e(f"v_add_f32 v{t}, v{t}, v{t+1}")
        e(f"v_add_f32 v{t+2}, v{t+2}, v{t+3}")
        e(f"v_add_f32 v{t}, v{t}, v{t+2}")
        e(f"v_add_f32 v{V_L}, v{V_L}, v{t}")
        for dt in range(8):
            e(f"v_mfma_f32_16x16x32_bf16 {vr(V_O+4*dt,4)}, {vr(VF+4*dt,4)}, {vr(V_P,4)}, {vr(V_O+4*dt,4)}")

    load(0, 0, True, 24, 24, THR, 7)
    load(1, 1, True, 24, 24, THR, None)
    e("s_waitcnt lgkmcnt(0)")
    e(f"s_mul_i32 s{S_TAG}, s{S_E}, 1664525")
    e(f"s_add_u32 s{S_TAG}, s{S_TAG}, 1013904223")
    stamp(g, 1, ST)
    e("s_barrier")
    if DS2: e("s_memrealtime s[86:87]")
    stamp(g, 2, ST)
    if DS:
        LX = g.new("ds")
        e(f"s_cmp_lg_u32 s{S_WAVE}, 0"); e(f"s_cbranch_scc1 {LX}")
        e("s_memrealtime s[88:89]")
        g.lab(LX)
    e("v_and_b32 v1, 15, v0")
    e("v_lshrrev_b32 v2, 4, v0")
    e("v_lshlrev_b32 v1, 8, v1")
    e("v_lshl_add_u32 v1, v2, 4, v1")
    e(f"v_add_u32 v1, {L_Q}, v1")
    e(f"s_mov_b32 s{S_EX}, 0x000f000f"); e(f"s_mov_b32 s{S_EX+1}, 0x000f000f")
    e(f"s_mov_b64 exec, s[{S_EX}:{S_EX+1}]")
    for kk in range(4):
        e(f"ds_read_b128 {vr(V_Q+4*kk,4)}, v1 offset:{kk*64}")
    e("s_mov_b64 exec, -1")
    e(f"s_mov_b32 s{S_C0}, {L2E:#x}")
    e(f"s_mov_b32 s{S_C1}, {SCALE:#x}")
    e("s_waitcnt lgkmcnt(0)")

    NT = o["ntiles"]
    STHR = o.get("sthr", 32)
    if not o["dyn"]:
        nloop = (NT - 4) // 2
        if STL:
            for it in range(nloop):
                compute(0); load(0, 0, True, 24, 24, STHR)
                compute(1); load(1, 1, True, 24, 24, STHR)
                if it < 5: stamp(g, 4 + it, True)
        else:
            e(f"s_mov_b32 s{S_CNT}, {nloop}")
            g.lab("L_loop")
            compute(0); load(0, 0, True, 24, 24, STHR)
            compute(1); load(1, 1, True, 24, 24, STHR)
            e(f"s_sub_u32 s{S_CNT}, s{S_CNT}, 1")
            e(f"s_cmp_lg_u32 s{S_CNT}, 0")
            e("s_cbranch_scc1 L_loop")
        compute(0); load(0, 0, False, 24, 16)
        compute(1); load(1, 1, False, 8, 0)
        compute(0)
        compute(1)
    else:
        NS = o.get("ns", 5)
        NDUAL = o.get("ndual", 0)
        assert NS >= 5 + 2 * NDUAL
        NSTAT = NS * 64
        V_TK, V_ONE, V_CA = 233, 234, 235
        cap = min(STHR, 24) - 8
        if NDUAL:
            e(f"s_mov_b32 s{S_CNT}, {NDUAL}")
            g.lab("L_dual")
            compute(0); load(0, 0, True, 24, 24, o.get("dthr", 32))
            compute(1); load(1, 1, True, 24, 24, o.get("dthr", 32))
            e(f"s_sub_u32 s{S_CNT}, s{S_CNT}, 1")
            e(f"s_cmp_lg_u32 s{S_CNT}, 0")
            e("s_cbranch_scc1 L_dual")
        e(f"s_sub_u32 s{S_NEXT}, s{S_OFF}, s{S_ROT}")
        e(f"s_lshr_b32 s{S_NEXT}, s{S_NEXT}, 13")
        e(f"s_sub_u32 s{S_NEXT}, s{S_NEXT}, {NSTAT}")
        e(f"s_add_u32 s95, s{S_NEXT}, {NSTAT}")
        e(f"v_mov_b32 v{V_TK}, s{S_NEXT}")
        e(f"v_mov_b32 v{V_ONE}, 1")
        e(f"s_lshl_b32 s{S_T0}, s{S_PAIR}, 8"); e(f"s_add_u32 s{S_T0}, s{S_T0}, {WS_CNT}")
        e(f"v_mov_b32 v{V_CA}, s{S_T0}")
        e(f"s_mov_b32 s{S_CNT}, 0"); e("s_mov_b32 s73, 0")
        def readK(rs, slot):
            if o.get("noread"): return
            for T in range(2):
                for kk in range(4):
                    e(f"ds_read_b128 {vr(RK[rs]+16*T+4*kk,4)}, v{V_KR+kk} offset:{slot*16384+T*4096}")
            e("s_waitcnt lgkmcnt(0)")
        def readV(rs, slot):
            if o.get("noread"): return
            for dt in range(8):
                for T in range(2):
                    e(f"ds_read_b64_tr_b16 {vr(RV[rs]+4*dt+2*T,2)}, v{V_VR+dt} offset:{slot*16384+T*4096}")
            e("s_waitcnt lgkmcnt(0)")
        def dload(sg):
            e("s_waitcnt vmcnt(25)")
            readK(sg, sg)
            e(f"s_waitcnt vmcnt({cap})")
            e(f"v_readfirstlane_b32 s{S_NEXT}, v{V_TK}")
            e(f"s_add_u32 s{S_NEXT}, s{S_NEXT}, {NSTAT}")
            e(f"s_cmp_ge_u32 s{S_NEXT}, 1024")
            e(f"s_cbranch_scc1 L_drain{sg}")
            if NS > 5:
                LA = g.new("tka"); LB = g.new("tkb")
                e(f"s_add_u32 s95, s95, 64")
                e(f"s_cmp_ge_u32 s95, {NSTAT}"); e(f"s_cbranch_scc1 {LA}")
                e(f"s_sub_u32 s{S_T0}, s95, {NSTAT}")
                e(f"v_mov_b32 v{V_TK}, s{S_T0}")
                e(f"s_branch {LB}")
                g.lab(LA)
            e("s_mov_b64 exec, 1")
            e(f"global_atomic_add v{V_TK}, v{V_CA}, v{V_ONE}, s[{S_WS}:{S_WS+1}] sc0")
            e("s_mov_b64 exec, -1")
            if NS > 5: g.lab(LB)
            e(f"s_lshl_b32 s{S_OFF}, s{S_NEXT}, 13")
            e(f"s_add_u32 s{S_OFF}, s{S_OFF}, s{S_ROT}")
            tile_addr(); issue(0, sg)
            e("s_waitcnt vmcnt(26)")
            readV(sg, sg)
            e(f"s_waitcnt vmcnt({cap})")
            issue(1, sg)
            e(f"s_add_u32 s{S_CNT}, s{S_CNT}, 1")
        S_DR, S_E0, S_EM = 73, 92, 94
        S_PREV, S_NP = 92, 93
        NPA = o.get("npa", 0); NPC = o.get("npc", 112)
        def do_atomic():
            e("s_mov_b64 exec, 1")
            e(f"global_atomic_add v{V_TK}, v{V_CA}, v{V_ONE}, s[{S_WS}:{S_WS+1}] sc0")
            e("s_mov_b64 exec, -1")
        def ticket(faillabel, np_check=False):
            e(f"v_readfirstlane_b32 s{S_NEXT}, v{V_TK}")
            e(f"s_add_u32 s{S_NEXT}, s{S_NEXT}, {NSTAT}")
            e(f"s_cmp_ge_u32 s{S_NEXT}, 1024")
            e(f"s_cbranch_scc1 {faillabel}")
            LB = g.new("tkb")
            if np_check and NPA:
                LN = g.new("tkn")
                e(f"s_sub_u32 s{S_T0}, s{S_NEXT}, s{S_PREV}")
                e(f"s_mov_b32 s{S_PREV}, s{S_NEXT}")
                e(f"s_mul_i32 s{S_T0}, s{S_T0}, {NPA}")
                e(f"s_add_u32 s{S_T0}, s{S_T0}, s{S_NEXT}")
                e(f"s_cmp_le_u32 s{S_T0}, {1024 + NPC}"); e(f"s_cbranch_scc1 {LN}")
                e(f"s_mov_b32 s{S_NP}, 1")
                e(f"s_branch {LB}")
                g.lab(LN)
            elif NPA:
                e(f"s_mov_b32 s{S_PREV}, s{S_NEXT}")
            if NS > 5:
                LA = g.new("tka")
                e(f"s_add_u32 s95, s95, 64")
                e(f"s_cmp_ge_u32 s95, {NSTAT}"); e(f"s_cbranch_scc1 {LA}")
                e(f"s_sub_u32 s{S_T0}, s95, {NSTAT}")
                e(f"v_mov_b32 v{V_TK}, s{S_T0}")
                e(f"s_branch {LB}")
                g.lab(LA)
            do_atomic()
            g.lab(LB)
            e(f"s_lshl_b32 s{S_OFF}, s{S_NEXT}, 13")
            e(f"s_add_u32 s{S_OFF}, s{S_OFF}, s{S_ROT}")
            tile_addr()
        def consume(faillabel):
            e(f"v_readfirstlane_b32 s{S_NEXT}, v{V_TK}")
            e(f"s_add_u32 s{S_NEXT}, s{S_NEXT}, {NSTAT}")
            e(f"s_cmp_ge_u32 s{S_NEXT}, 1024")
            e(f"s_cbranch_scc1 {faillabel}")
            if o.get("emu2"):
                LE = g.new("emu")
                e(f"s_cmp_lt_u32 s{S_NEXT}, 512"); e(f"s_cbranch_scc1 {LE}")
                e(f"s_mov_b32 s{SRD_K}, s{S_V}"); e(f"s_and_b32 s{SRD_K+1}, s{S_V+1}, 0xffff")
                e(f"s_mov_b32 s{SRD_V}, s{S_V}"); e(f"s_and_b32 s{SRD_V+1}, s{S_V+1}, 0xffff")
                g.lab(LE)
            e(f"s_lshl_b32 s{S_OFF}, s{S_NEXT}, 13")
            e(f"s_add_u32 s{S_OFF}, s{S_OFF}, s{S_ROT}")
            tile_addr()
        def request():
            LB = g.new("rqb")
            if NS > 5:
                LA = g.new("rqa")
                e(f"s_add_u32 s95, s95, 64")
                e(f"s_cmp_ge_u32 s95, {NSTAT}"); e(f"s_cbranch_scc1 {LA}")
                e(f"s_sub_u32 s{S_T0}, s95, {NSTAT}")
                e(f"v_mov_b32 v{V_TK}, s{S_T0}")
                e(f"s_branch {LB}")
                g.lab(LA)
            do_atomic()
            g.lab(LB)
        if o.get("np2"):
            S_MODE = 93
            compute(0)
            e("s_waitcnt vmcnt(24)")
            readK(0, 0)
            consume("L_ldone")
            issue(0, 0)
            e("s_waitcnt vmcnt(24)")
            readV(0, 0)
            issue(1, 0)
            e("s_add_u32 s95, s95, 64")
            compute(1)
            e("s_waitcnt vmcnt(24)")
            readK(1, 1)
            e("s_waitcnt vmcnt(16)")
            readV(1, 1)
            compute(0)
            compute(1)
            g.lab("L_loop")
            e("s_waitcnt vmcnt(8)")
            readK(0, 0)
            e(f"s_cmp_ge_u32 s95, {NSTAT}"); e("s_cbranch_scc1 L_dynA")
            e(f"s_lshl_b32 s{S_OFF}, s95, 13"); e(f"s_add_u32 s{S_OFF}, s{S_OFF}, s{S_ROT}")
            e("s_add_u32 s95, s95, 64")
            tile_addr(); issue(0, 0)
            e("s_waitcnt vmcnt(8)")
            readV(0, 0)
            issue(1, 0)
            e(f"s_mov_b32 s{S_MODE}, 0")
            e(f"s_add_u32 s{S_CNT}, s{S_CNT}, 1")
            e("s_branch L_comp")
            g.lab("L_dynA")
            do_atomic()
            e("s_waitcnt vmcnt(1)")
            readV(0, 0)
            e(f"s_mov_b32 s{S_MODE}, 1")
            g.lab("L_comp")
            compute(0)
            e(f"s_cmp_eq_u32 s{S_MODE}, 0"); e("s_cbranch_scc1 L_loop")
            e("s_waitcnt vmcnt(0)")
            consume("L_ldone")
            issue(0, 0); issue(1, 0)
            e(f"s_add_u32 s{S_CNT}, s{S_CNT}, 1")
            e("s_branch L_loop")
        elif o.get("single", True) and o.get("late", True):
            compute(0)
            stamp(g, 4, STX)
            e("s_waitcnt vmcnt(24)")
            readK(0, 0)
            consume("L_ldone")
            issue(0, 0)
            e("s_waitcnt vmcnt(24)")
            readV(0, 0)
            issue(1, 0)
            stamp(g, 5, STX)
            compute(1)
            stamp(g, 6, STX)
            request()
            e("s_waitcnt vmcnt(24)")
            readK(1, 1)
            e("s_waitcnt vmcnt(16)")
            readV(1, 1)
            stamp(g, 7, STX)
            compute(0)
            compute(1)
            stamp(g, 8, STX)
            e("s_mov_b32 s93, 0")
            e(f"s_cmp_ge_u32 s95, {NSTAT}"); e("s_cselect_b32 s93, 1, 0")
            g.lab("L_loop")
            e("s_waitcnt vmcnt(8)")
            stamp(g, 6, STE)
            readK(0, 0)
            if o.get("vfirst", False):
                LW = g.new("wv"); LW2 = g.new("wv2")
                e("s_cmp_eq_u32 s93, 1"); e(f"s_cbranch_scc1 {LW}")
                e("s_waitcnt vmcnt(0)")
                e(f"s_branch {LW2}")
                g.lab(LW)
                e("s_waitcnt vmcnt(1)")
                g.lab(LW2)
                readV(0, 0)
                e("s_waitcnt vmcnt(0)")
                stamp(g, 7, STE)
                consume("L_last")
                stamp(g, 4, STE)
                issue(0, 0)
                issue(1, 0)
            else:
                e("s_waitcnt vmcnt(0)")
                stamp(g, 7, STE)
                consume("L_last")
                stamp(g, 4, STE)
                issue(0, 0)
                readV(0, 0)
                issue(1, 0)
            e(f"s_add_u32 s{S_CNT}, s{S_CNT}, 1")
            if o["stamps"] == "R":
                for idx, c in ((4, 1), (5, 3), (6, 5), (7, 7), (8, 9)):
                    LS = g.new("rs")
                    e(f"s_cmp_lg_u32 s{S_CNT}, {c}"); e(f"s_cbranch_scc1 {LS}")
                    stamp(g, idx, True)
                    g.lab(LS)
            g.lab("L_comp")
            compute(0)
            e(f"s_cmp_eq_u32 s{S_DR}, 1"); e("s_cbranch_scc1 L_ldone")
            stamp(g, 5, STE)
            request()
            e(f"s_cmp_ge_u32 s95, {NSTAT}"); e("s_cselect_b32 s93, 1, 0")
            e("s_branch L_loop")
            g.lab("L_last")
            e(f"s_mov_b32 s{S_DR}, 1")
            if not o.get("vfirst", False):
                readV(0, 0)
            e("s_branch L_comp")
        elif o.get("single", True):
            e(f"s_mov_b32 s{S_NP}, 0")
            compute(0)
            e("s_waitcnt vmcnt(24)")
            readK(0, 0)
            ticket("L_ldone")
            issue(0, 0)
            e("s_waitcnt vmcnt(24)")
            readV(0, 0)
            issue(1, 0)
            compute(1)
            e("s_waitcnt vmcnt(24)")
            readK(1, 1)
            e("s_waitcnt vmcnt(16)")
            readV(1, 1)
            compute(0)
            compute(1)
            g.lab("L_loop")
            e("s_waitcnt vmcnt(8)")
            readK(0, 0)
            ticket("L_last", True)
            issue(0, 0)
            e("s_waitcnt vmcnt(8)")
            readV(0, 0)
            issue(1, 0)
            e(f"s_add_u32 s{S_CNT}, s{S_CNT}, 1")
            g.lab("L_comp")
            compute(0)
            e(f"s_cmp_eq_u32 s{S_DR}, 0"); e("s_cbranch_scc1 L_loop")
            e("s_branch L_ldone")
            g.lab("L_last")
            e(f"s_mov_b32 s{S_DR}, 1")
            e("s_waitcnt vmcnt(0)")
            readV(0, 0)
            e("s_branch L_comp")
        else:
            e(f"s_mov_b32 s{S_E0}, 0"); e(f"s_mov_b32 s{S_E0+1}, 0"); e(f"s_mov_b32 s{S_EM}, 0")
            g.lab("L_loop")
            for sg in range(2):
                compute(sg)
                e(f"s_cmp_eq_u32 s{S_E0+sg}, 1"); e(f"s_cbranch_scc1 L_empty{sg}")
                e(f"s_cmp_eq_u32 s{S_DR}, 1"); e(f"s_cbranch_scc1 L_dw{sg}")
                e("s_waitcnt vmcnt(24)")
                readK(sg, sg)
                e(f"s_waitcnt vmcnt({cap})")
                ticket(f"L_noref{sg}")
                issue(0, sg)
                e("s_waitcnt vmcnt(24)")
                readV(sg, sg)
                e(f"s_waitcnt vmcnt({cap})")
                issue(1, sg)
                e(f"s_add_u32 s{S_CNT}, s{S_CNT}, 1")
                e(f"s_branch L_next{sg}")
                g.lab(f"L_dw{sg}")
                e("s_waitcnt vmcnt(0)")
                readK(sg, sg)
                g.lab(f"L_noref{sg}")
                e(f"s_mov_b32 s{S_DR}, 1"); e(f"s_mov_b32 s{S_E0+sg}, 1")
                e("s_waitcnt vmcnt(16)")
                readV(sg, sg)
                e(f"s_branch L_next{sg}")
                g.lab(f"L_empty{sg}")
                e(f"s_add_u32 s{S_EM}, s{S_EM}, 1")
                e(f"s_cmp_eq_u32 s{S_EM}, 2"); e("s_cbranch_scc1 L_ldone")
                g.lab(f"L_next{sg}")
            e("s_branch L_loop")
        g.lab("L_ldone")
        if STL: e(f"s_mov_b32 s{S_ST0+8}, s{S_CNT}")
    stamp(g, 3, ST and not STP)
    if DS2: e("s_memrealtime s[88:89]")
    rows_reduce(g, V_L, V_T, "v_add_f32")
    e("v_and_b32 v1, 15, v0")
    e("v_lshrrev_b32 v2, 4, v0")
    e("v_lshlrev_b32 v3, 9, v1")
    e("v_lshl_add_u32 v3, v2, 4, v3")
    e(f"v_add_u32 v3, s{S_RB}, v3")
    e(f"s_lshl_b32 s{S_T0}, s{S_WAVE}, 5")
    e(f"s_add_u32 s{S_T0}, s{S_T0}, {L_ML}")
    e(f"v_lshlrev_b32 v4, 3, v1")
    e(f"v_add_u32 v4, s{S_T0}, v4")
    g.nop(8)
    e(f"s_mov_b64 exec, s[{S_EX}:{S_EX+1}]")
    for dt in range(8):
        e(f"ds_write_b128 v3, {vr(V_O+4*dt,4)} offset:{dt*64}")
    e(f"ds_write_b64 v4, {vr(V_M,2)}")
    e("s_mov_b64 exec, -1")
    e(f"s_mov_b64 s[{S_T2}:{S_T2+1}], s[{S_X}:{S_X+1}]")
    for r in (228, 229, 231, 232, 233, 234, 235): e(f"v_mov_b32 v{r}, 0")
    e("s_waitcnt lgkmcnt(0)")
    e("s_branch L_tail")

    g.lab("L_helper")
    H_W = 64
    H_F = 128
    H_WO = 192
    H_G = 224
    S_STG = S_T5
    if o.get("skipA"):
        e("s_waitcnt lgkmcnt(0)")
        e(f"s_load_dword s{S_E}, s[{S_WS}:{S_WS+1}], {WS_E}")
        build_srd(g, SRD_WS, S_WS, WS_SIZE); build_srd(g, SRD_X, S_X, 2048); build_srd(g, SRD_WO, S_WO, 0x400000); build_srd(g, SRD_OUT, S_OUT, 2048)
        build_srd(g, SRD_W, S_WQ, 0x400000)
        e("s_waitcnt lgkmcnt(0)")
        e(f"s_mul_i32 s{S_TAG}, s{S_E}, 1664525"); e(f"s_add_u32 s{S_TAG}, s{S_TAG}, 1013904223")
        if o["b0"]: e("s_barrier")
        e("s_barrier")
        e("s_branch L_hb2")
    if o["prio"]:
        e("s_setprio 3")
    e(f"s_sub_u32 s{S_T5}, s{S_WAVE}, 4")
    e(f"s_lshl_b32 s{S_T5}, s{S_T5}, 12")
    e(f"s_add_u32 s{S_T5}, s{S_T5}, {L_STG}")
    e(f"s_cmp_ge_u32 s{S_WAVE}, 6"); e("s_cbranch_scc1 L_w67")
    e(f"s_and_b32 s{S_T2}, s2, 3")
    e(f"s_lshr_b32 s{S_T1}, s2, 2")
    e("v_lshrrev_b32 v2, 3, v0")
    e("v_and_b32 v3, 7, v0")
    e("v_lshlrev_b32 v1, 4, v0")
    e(f"s_cmp_eq_u32 s{S_WAVE}, 5"); e("s_cbranch_scc1 L_w5setup")
    e(f"s_mov_b32 s{S_T0}, 8192")
    e(f"s_mov_b32 s{S_T3}, {L_XN4}")
    e(f"s_mov_b32 s{S_C0}, {WS_Q}"); e(f"s_mov_b32 s{S_C1}, {4096*8}")
    e("s_waitcnt lgkmcnt(0)")
    build_srd(g, SRD_W, S_WQ, 0x400000)
    if o["dyn"]:
        e(f"s_and_b32 s{S_T4}, s2, 30"); e(f"s_cmp_lg_u32 s{S_T4}, 0"); e("s_cbranch_scc1 L_slice")
        e(f"s_and_b32 s{S_T4}, s2, 1"); e(f"s_lshl_b32 s{S_T4}, s{S_T4}, 3")
        e(f"s_lshr_b32 s{S_SOFF}, s2, 5"); e(f"s_add_u32 s{S_T4}, s{S_T4}, s{S_SOFF}")
        e(f"s_lshl_b32 s{S_T4}, s{S_T4}, 8"); e(f"s_add_u32 s{S_T4}, s{S_T4}, {WS_CNT}")
        e(f"v_mov_b32 v4, s{S_T4}"); e("v_mov_b32 v5, 0")
        e("s_mov_b64 exec, 1")
        e(f"global_store_dword v4, v5, s[{S_WS}:{S_WS+1}] sc1")
        e("s_mov_b64 exec, -1")
    e("s_branch L_slice")
    g.lab("L_w5setup")
    e(f"s_mov_b32 s{S_T0}, 3584")
    e(f"s_mov_b32 s{S_T3}, {L_XN5}")
    e(f"s_mov_b32 s{S_C0}, {WS_H}"); e(f"s_mov_b32 s{S_C1}, {1792*8}")
    e("s_waitcnt lgkmcnt(0)")
    build_srd(g, SRD_W, S_W1, 512*3584)
    e(f"s_cmp_ge_u32 s{S_SPLIT}, 7"); e("s_cbranch_scc1 L_hb0")
    e(f"s_mul_i32 s{S_T1}, s{S_PAIR}, 7"); e(f"s_add_u32 s{S_T1}, s{S_T1}, s{S_SPLIT}")
    e(f"s_and_b32 s{S_T2}, s{S_T1}, 3"); e(f"s_lshr_b32 s{S_T1}, s{S_T1}, 2")
    g.lab("L_slice")
    stamp(g, 4, STA)
    build_srd(g, SRD_X, S_X, 2048)
    e(f"buffer_load_dwordx4 v[8:11], v1, s[{SRD_X}:{SRD_X+3}], 0 offen")
    e(f"buffer_load_dwordx4 v[12:15], v1, s[{SRD_X}:{SRD_X+3}], 0 offen offset:1024")
    e(f"v_mul_lo_u32 v2, v2, s{S_T0}")
    e("v_lshl_add_u32 v2, v3, 4, v2")
    e(f"s_lshl_b32 s{S_SOFF}, s{S_T2}, 7"); e(f"s_mul_i32 s{S_SOFF}, s{S_SOFF}, s{S_T0}")
    e(f"s_lshl_b32 s{S_T4}, s{S_T1}, 7"); e(f"s_add_u32 s{S_SOFF}, s{S_SOFF}, s{S_T4}")
    e(f"s_lshl_b32 s{S_RS32}, s{S_T0}, 3")
    for i in range(16):
        e(f"buffer_load_dwordx4 {vr(H_W+4*i,4)}, v2, s[{SRD_W}:{SRD_W+3}], s{S_SOFF} offen" + (" nt" if o.get("wnt") else ""))
        if i < 15:
            e(f"s_add_u32 s{S_SOFF}, s{S_SOFF}, s{S_RS32}")
    stamp(g, 5, STA)
    if o["b0"]:
        e("s_barrier")
    e(f"s_load_dword s{S_E}, s[{S_WS}:{S_WS+1}], {WS_E}")
    build_srd(g, SRD_WS, S_WS, WS_SIZE)
    build_srd(g, SRD_WO, S_WO, 0x400000)
    build_srd(g, SRD_OUT, S_OUT, 2048)
    e("s_waitcnt vmcnt(16)")
    stamp(g, 6, STA)
    X0, X1 = 16, 24
    for b, (src, dst) in enumerate(((8, X0), (12, X1))):
        for i in range(4):
            e(f"v_lshlrev_b32 v{dst+2*i}, 16, v{src+i}")
            e(f"v_and_b32 v{dst+2*i+1}, 0xffff0000, v{src+i}")
    SU = 32
    for b, dst in enumerate((X0, X1)):
        e(f"v_add_f32 v{SU+b}, v{dst}, v{dst+1}")
        for i in range(2, 8):
            e(f"v_add_f32 v{SU+b}, v{SU+b}, v{dst+i}")
    def wave_sum2(a):
        row_ror_reduce(g, [a, a+1], "v_add_f32", [1, 2, 4, 8])
        rows_reduce_multi(g, [a, a+1], [a+2, a+3], "v_add_f32")
    wave_sum2(SU)
    e(f"s_mov_b32 s{S_T4}, 0x3b000000")
    e(f"v_mul_f32 v{SU}, s{S_T4}, v{SU}")
    e(f"v_mul_f32 v{SU+1}, s{S_T4}, v{SU+1}")
    VA = 36
    for b, dst in enumerate((X0, X1)):
        e(f"v_sub_f32 v40, v{dst}, v{SU+b}")
        e(f"v_mul_f32 v{VA+b}, v40, v40")
        for i in range(1, 8):
            e(f"v_sub_f32 v40, v{dst+i}, v{SU+b}")
            e(f"v_fmac_f32 v{VA+b}, v40, v40")
    wave_sum2(VA)
    e(f"v_mul_f32 v{VA}, s{S_T4}, v{VA}")
    e(f"v_mul_f32 v{VA+1}, s{S_T4}, v{VA+1}")
    e(f"v_cvt_pk_bf16_f32 v40, v{SU}, v{SU+1}")
    e(f"v_cvt_pk_bf16_f32 v41, v{VA}, v{VA+1}")
    e(f"v_lshlrev_b32 v{SU}, 16, v40"); e(f"v_and_b32 v{SU+1}, 0xffff0000, v40")
    e(f"v_lshlrev_b32 v{VA}, 16, v41"); e(f"v_and_b32 v{VA+1}, 0xffff0000, v41")
    e(f"v_add_f32 v{VA}, 0x3727c5ac, v{VA}"); e(f"v_add_f32 v{VA+1}, 0x3727c5ac, v{VA+1}")
    e(f"v_cvt_pk_bf16_f32 v41, v{VA}, v{VA+1}")
    e(f"v_lshlrev_b32 v{VA}, 16, v41"); e(f"v_and_b32 v{VA+1}, 0xffff0000, v41")
    e(f"v_sqrt_f32 v{VA}, v{VA}"); e(f"v_sqrt_f32 v{VA+1}, v{VA+1}")
    g.nop(1)
    e(f"v_cvt_pk_bf16_f32 v41, v{VA}, v{VA+1}")
    e(f"v_lshlrev_b32 v{VA}, 16, v41"); e(f"v_and_b32 v{VA+1}, 0xffff0000, v41")
    e(f"v_rcp_f32 v38, v{VA}"); e(f"v_rcp_f32 v39, v{VA+1}")
    for b, dst in enumerate((X0, X1)):
        for i in range(8):
            e(f"v_sub_f32 v{dst+i}, v{dst+i}, v{SU+b}")
        for i in range(4):
            e(f"v_cvt_pk_bf16_f32 v40, v{dst+2*i}, v{dst+2*i+1}")
            e(f"v_lshlrev_b32 v{dst+2*i}, 16, v40"); e(f"v_and_b32 v{dst+2*i+1}, 0xffff0000, v40")
        for i in range(8):
            e(f"v_mul_f32 v41, v{dst+i}, v{38+b}")
            e(f"v_fma_f32 v42, -v41, v{VA+b}, v{dst+i}")
            e(f"v_fma_f32 v{dst+i}, v42, v{38+b}, v41")
        for i in range(4):
            e(f"v_cvt_pk_bf16_f32 v{44+4*b+i}, v{dst+2*i}, v{dst+2*i+1}")
    e("v_lshlrev_b32 v1, 4, v0")
    e(f"v_add_u32 v1, s{S_T3}, v1")
    e("ds_write_b128 v1, v[44:47]")
    e("ds_write_b128 v1, v[48:51] offset:1024")
    e("v_lshlrev_b32 v1, 4, v0")
    e(f"v_add_u32 v1, s{S_STG}, v1")
    e("v_lshrrev_b32 v2, 4, v0")
    e("v_bfe_u32 v3, v0, 2, 2")
    e("v_lshl_add_u32 v3, v2, 3, v3")
    e("v_and_b32 v4, 3, v0")
    e("v_lshlrev_b32 v5, 7, v3")
    e("v_lshl_add_u32 v5, v4, 3, v5")
    e(f"v_add_u32 v5, s{S_STG}, v5")
    e("v_and_b32 v6, 1, v0")
    e("v_lshlrev_b32 v6, 10, v6")
    e("v_lshl_add_u32 v6, v2, 4, v6")
    e(f"s_lshl_b32 s{S_T4}, s{S_T2}, 8"); e(f"s_add_u32 s{S_T4}, s{S_T4}, s{S_T3}")
    e(f"v_add_u32 v6, s{S_T4}, v6")
    ACC = 48
    stamp(g, 7, STA)
    if STA:
        e("s_waitcnt vmcnt(0)")
        stamp(g, 8, STA)
    for pc in range(4):
        e(f"ds_read_b128 {vr(16+4*pc,4)}, v6 offset:{64*pc}")
    for pc in range(4):
        e(f"s_waitcnt vmcnt({12-4*pc})")
        for i in range(4):
            e(f"ds_write_b128 v1, {vr(H_W+16*pc+4*i,4)} offset:{i*1024}")
        for c in range(4):
            e(f"ds_read_b64_tr_b16 {vr(32+4*c,2)}, v5 offset:{c*32}")
            e(f"ds_read_b64_tr_b16 {vr(32+4*c+2,2)}, v5 offset:{c*32+512}")
        e("s_waitcnt lgkmcnt(0)")
        for c in range(4):
            cc = "0" if pc == 0 else vr(ACC+4*c, 4)
            e(f"v_mfma_f32_16x16x32_bf16 {vr(ACC+4*c,4)}, {vr(16+4*pc,4)}, {vr(32+4*c,4)}, {cc}")
    e(f"s_mul_i32 s{S_TAG}, s{S_E}, 1664525")
    e(f"s_add_u32 s{S_TAG}, s{S_TAG}, 1013904223")
    e(f"s_lshl_b32 s{S_T0}, s{S_T2}, 1"); e(f"s_mul_i32 s{S_T0}, s{S_T0}, s{S_C1}")
    e(f"s_add_u32 s{S_T0}, s{S_T0}, s{S_C0}")
    e(f"s_lshl_b32 s{S_T4}, s{S_T1}, 9"); e(f"s_add_u32 s{S_T0}, s{S_T0}, s{S_T4}")
    e(f"s_add_u32 s{S_T4}, s{S_T0}, s{S_C1}")
    e("v_lshlrev_b32 v1, 3, v0")
    e(f"v_mov_b32 v9, s{S_TAG}"); e(f"v_mov_b32 v11, s{S_TAG}")
    g.nop(4)
    for c in range(4):
        if c < 2:
            e(f"s_mov_b32 exec_lo, {0xffff << (16*c):#x}"); e("s_mov_b32 exec_hi, 0")
        else:
            e("s_mov_b32 exec_lo, 0"); e(f"s_mov_b32 exec_hi, {0xffff << (16*(c-2)):#x}")
        e(f"v_mov_b32 v8, v{ACC+4*c}"); e(f"v_mov_b32 v10, v{ACC+4*c+1}")
    e("s_mov_b64 exec, -1")
    pub2(g, 8, 1, f"s{S_T0}")
    pub2(g, 10, 1, f"s{S_T4}")
    stamp(g, 1, ST)
    e("s_branch L_qg")
    g.lab("L_w67")
    if o["b0"]:
        e("s_barrier")
    e("s_waitcnt lgkmcnt(0)")
    e(f"s_load_dword s{S_E}, s[{S_WS}:{S_WS+1}], {WS_E}")
    build_srd(g, SRD_WS, S_WS, WS_SIZE)
    build_srd(g, SRD_X, S_X, 2048)
    build_srd(g, SRD_WO, S_WO, 0x400000)
    build_srd(g, SRD_OUT, S_OUT, 2048)
    e(f"s_cmp_eq_u32 s{S_WAVE}, 7"); e("s_cbranch_scc1 L_w7")
    e("s_branch L_qg")
    g.lab("L_w6")
    if o.get("prio_after") is not None:
        e(f"s_setprio {o['prio_after']}")
    build_srd(g, SRD_W, S_W2, 1792*1024)
    e(f"s_sub_u32 s{S_T0}, s{S_SPLIT}, 7")
    e(f"s_cmp_ge_u32 s{S_T0}, 7")
    e("s_cbranch_scc1 L_wo")
    e(f"s_mul_i32 s{S_T1}, s{S_PAIR}, 7"); e(f"s_add_u32 s{S_T0}, s{S_T0}, s{S_T1}")
    e(f"s_lshr_b32 s{S_T1}, s{S_T0}, 2")
    e(f"s_and_b32 s{S_T2}, s{S_T0}, 3")
    e("v_lshrrev_b32 v2, 3, v0"); e("v_lshlrev_b32 v2, 10, v2")
    e("v_and_b32 v3, 7, v0"); e("v_lshl_add_u32 v2, v3, 4, v2")
    e(f"s_lshl_b32 s{S_SOFF}, s{S_T1}, 16")
    e(f"s_lshl_b32 s{S_T3}, s{S_T2}, 8")
    e(f"s_add_u32 s{S_SOFF}, s{S_SOFF}, s{S_T3}")
    for ks in range(2):
        for ch in range(2):
            for u in range(4):
                idx = (ks * 2 + ch) * 4 + u
                e(f"s_add_u32 s{S_T3}, s{S_SOFF}, {(32*ks+8*u)*1024}")
                e(f"buffer_load_dwordx4 {vr(H_W+4*idx,4)}, v2, s[{SRD_W}:{SRD_W+3}], s{S_T3} offen offset:{ch*128}" + (" nt" if o.get("wnt") else ""))
    stamp(g, 4, STF)
    e("v_lshlrev_b32 v1, 4, v0")
    e(f"v_add_u32 v1, s{S_STG}, v1")
    e("v_lshrrev_b32 v2, 4, v0"); e("v_bfe_u32 v3, v0, 2, 2"); e("v_lshl_add_u32 v3, v2, 3, v3"); e("v_and_b32 v4, 3, v0")
    e("v_lshlrev_b32 v5, 7, v3"); e("v_lshl_add_u32 v5, v4, 3, v5"); e(f"v_add_u32 v5, s{S_STG}, v5")
    e("s_waitcnt vmcnt(0)")
    stamp(g, 5, STF)
    for ks in range(2):
        for ch in range(2):
            pc = ks * 2 + ch
            for u in range(4):
                e(f"ds_write_b128 v1, {vr(H_W+16*pc+4*u,4)} offset:{u*1024}")
            for c in range(4):
                f = H_F + 4 * (ks * 8 + ch * 4 + c)
                e(f"ds_read_b64_tr_b16 {vr(f,2)}, v5 offset:{c*32}")
                e(f"ds_read_b64_tr_b16 {vr(f+2,2)}, v5 offset:{c*32+512}")
            e("s_waitcnt lgkmcnt(0)")
    e("v_lshrrev_b32 v6, 5, v0")
    e(f"v_mul_u32_u24 v6, {1792*8}, v6")
    e("v_and_b32 v7, 31, v0")
    e("v_lshl_add_u32 v6, v7, 4, v6")
    e(f"s_lshl_b32 s{S_T0}, s{S_T1}, 9"); e(f"s_add_u32 s{S_T0}, s{S_T0}, {WS_H}")
    def hl():
        for r4 in range(4):
            e(f"s_add_u32 s{S_T3}, s{S_T0}, {r4*2*1792*8}")
            e(f"buffer_load_dwordx4 {vr(16+4*r4,4)}, v6, s[{SRD_WS}:{SRD_WS+3}], s{S_T3} offen sc1")
    stamp(g, 6, STF)
    poll(g, "h", hl, [17+2*i for i in range(8)], 8, sleep=8)
    stamp(g, 7, STF)
    e("v_add_f32 v16, v16, v20"); e("v_add_f32 v18, v18, v22"); e("v_add_f32 v24, v24, v28"); e("v_add_f32 v26, v26, v30")
    e("v_add_f32 v16, v16, v24"); e("v_add_f32 v18, v18, v26")
    e("v_cvt_pk_bf16_f32 v8, v16, v18")
    e("v_lshlrev_b32 v10, 16, v8"); e("v_and_b32 v11, 0xffff0000, v8")
    e(f"s_mov_b32 s{S_T0}, {L2E:#x}")
    for r in (10, 11):
        e(f"v_mul_f32 v12, s{S_T0}, v{r}")
        e(f"v_exp_f32 v12, -v12"); g.nop(1)
        e(f"v_add_f32 v12, 1.0, v12")
        e(f"v_rcp_f32 v12, v12"); g.nop(1)
        e(f"v_mul_f32 v{r}, v{r}, v12")
    e("v_cvt_pk_bf16_f32 v12, v10, v11")
    e("v_lshlrev_b32 v7, 2, v0")
    e(f"v_add_u32 v7, {L_H}, v7")
    e("ds_write_b32 v7, v12")
    e("v_and_b32 v6, 1, v0"); e("v_lshlrev_b32 v6, 7, v6"); e("v_lshl_add_u32 v6, v2, 4, v6"); e(f"v_add_u32 v6, {L_H}, v6")
    e("ds_read_b128 v[16:19], v6")
    e("ds_read_b128 v[20:23], v6 offset:64")
    e("s_waitcnt lgkmcnt(0)")
    for c in range(8):
        e(f"v_mfma_f32_16x16x32_bf16 {vr(H_W+4*c,4)}, v[16:19], {vr(H_F+4*c,4)}, 0")
    for c in range(8):
        e(f"v_mfma_f32_16x16x32_bf16 {vr(H_W+4*c,4)}, v[20:23], {vr(H_F+32+4*c,4)}, {vr(H_W+4*c,4)}")
    g.nop(10)
    e("v_and_b32 v1, 15, v0"); e("v_lshlrev_b32 v1, 3, v1")
    e(f"s_lshl_b32 s{S_T0}, s{S_T1}, 13")
    e(f"s_lshl_b32 s{S_T3}, s{S_T2}, 10")
    e(f"s_add_u32 s{S_T0}, s{S_T0}, s{S_T3}"); e(f"s_add_u32 s{S_T0}, s{S_T0}, {WS_F}")
    e(f"s_add_u32 s{S_T3}, s{S_T0}, 4096")
    e(f"v_mov_b32 v9, s{S_TAG}"); e(f"v_mov_b32 v11, s{S_TAG}")
    e("s_mov_b64 exec, 0xffff")
    for c in range(8):
        e(f"v_mov_b32 v8, v{H_W+4*c}"); e(f"v_mov_b32 v10, v{H_W+4*c+1}")
        e(f"buffer_store_dwordx2 v[8:9], v1, s[{SRD_WS}:{SRD_WS+3}], s{S_T0} offen offset:{c*128} sc1")
        e(f"buffer_store_dwordx2 v[10:11], v1, s[{SRD_WS}:{SRD_WS+3}], s{S_T3} offen offset:{c*128} sc1")
        g.nop(2)
    e("s_mov_b64 exec, -1")
    stamp(g, 8, STF)
    e("s_branch L_wo")

    g.lab("L_w7")
    if o.get("tlbwarm"):
        build_srd(g, SRD_K, S_K, 0x8000000)
        build_srd(g, SRD_V, S_V, 0x8000000)
        e(f"s_lshl_b32 s{S_T0}, s{S_PAIR}, 23")
        e(f"v_lshlrev_b32 v1, {o.get('tlbshift', 21)}, v0")
        e(f"s_mov_b32 exec_lo, {(1 << (8 << 20 >> o.get('tlbshift', 21))) - 1:#x}"); e("s_mov_b32 exec_hi, 0")
        e(f"buffer_load_dword v230, v1, s[{SRD_K}:{SRD_K+3}], s{S_T0} offen nt")
        e(f"buffer_load_dword v230, v1, s[{SRD_V}:{SRD_V+3}], s{S_T0} offen nt")
        e("s_mov_b64 exec, -1")
    if o["prefetch_code"] and not (o.get("earlypf", True) and o.get("hfirst", False) and o["b0"]):
        pfm = o.get("pfmask", 7)
        e(f"s_lshr_b32 s{S_T0}, s2, 3"); e(f"s_and_b32 s{S_T0}, s{S_T0}, {pfm}"); e(f"s_cmp_lg_u32 s{S_T0}, 0"); e("s_cbranch_scc1 L_qg")
        e(f"s_getpc_b64 s[{S_T0}:{S_T0+1}]")
        g.lab("L_pcbase")
        e(f"s_sub_u32 s{S_T0}, s{S_T0}, L_pcbase-{KN}_kernel")
        e(f"s_subb_u32 s{S_T0+1}, s{S_T0+1}, 0")
        e(f"v_lshlrev_b32 v1, {o.get('pfshift', 7)}, v0")
        e("CODE_PREFETCH_PLACEHOLDER")
    e("s_branch L_qg")
    g.lab("L_hb0")
    if o["b0"]:
        e("s_barrier")
    e(f"s_load_dword s{S_E}, s[{S_WS}:{S_WS+1}], {WS_E}")
    build_srd(g, SRD_WS, S_WS, WS_SIZE)
    build_srd(g, SRD_X, S_X, 2048)
    build_srd(g, SRD_WO, S_WO, 0x400000)
    build_srd(g, SRD_OUT, S_OUT, 2048)
    g.lab("L_qg")
    e("s_waitcnt lgkmcnt(0)")
    e(f"s_mul_i32 s{S_TAG}, s{S_E}, 1664525")
    e(f"s_add_u32 s{S_TAG}, s{S_TAG}, 1013904223")
    e(f"s_lshl_b32 s{S_T0}, s{S_B}, 12"); e(f"s_lshl_b32 s{S_T2}, s{S_HKV}, 9")
    e(f"s_add_u32 s{S_T0}, s{S_T0}, s{S_T2}")
    e(f"s_sub_u32 s{S_T2}, s{S_WAVE}, 4"); e(f"s_lshl_b32 s{S_T1}, s{S_T2}, 7")
    e(f"s_add_u32 s{S_T0}, s{S_T0}, s{S_T1}"); e(f"s_lshl_b32 s{S_T0}, s{S_T0}, 3")
    e(f"s_add_u32 s{S_T0}, s{S_T0}, {WS_Q}")
    if o.get("qflag", True):
        LW = g.new("qfw"); LG = g.new("qfg")
        e(f"v_mov_b32 v2, {L_FLAG}")
        e(f"s_cmp_lg_u32 s{S_WAVE}, 4"); e(f"s_cbranch_scc1 {LW}")
        e(f"v_mov_b32 v3, s{S_TAG}")
        e("ds_write_b32 v2, v3")
        e(f"s_branch {LG}")
        g.lab(LW)
        e(f"s_mov_b32 s{S_RETRY}, 0x100000")
        LW2 = g.new("qfw2")
        g.lab(LW2)
        e("ds_read_b32 v3, v2")
        e("s_waitcnt lgkmcnt(0)")
        e(f"v_readfirstlane_b32 s{S_T1}, v3")
        e(f"s_cmp_eq_u32 s{S_T1}, s{S_TAG}"); e(f"s_cbranch_scc1 {LG}")
        e(f"s_sub_u32 s{S_RETRY}, s{S_RETRY}, 1"); e(f"s_cbranch_scc1 {LG}")
        e("s_sleep 2")
        e(f"s_branch {LW2}")
        g.lab(LG)
    e("v_lshlrev_b32 v1, 4, v0")
    def ql():
        for rb in range(4):
            e(f"s_add_u32 s{S_T1}, s{S_T0}, {rb*2*4096*8}")
            e(f"buffer_load_dwordx4 {vr(16+4*rb,4)}, v1, s[{SRD_WS}:{SRD_WS+3}], s{S_T1} offen sc1")
    if o.get("qscout", False):
        poll(g, "q", ql, [17+2*i for i in range(8)], 8, sleep=o.get("qsleep", 4), mask=(1 << 32) | 1)
    poll(g, "q", ql, [17+2*i for i in range(8)], 8, sleep=o.get("qsleep", 4))
    e("v_add_f32 v16, v16, v20"); e("v_add_f32 v18, v18, v22"); e("v_add_f32 v24, v24, v28"); e("v_add_f32 v26, v26, v30")
    e("v_add_f32 v16, v16, v24"); e("v_add_f32 v18, v18, v26")
    e("v_cvt_pk_bf16_f32 v12, v16, v18")
    e(f"s_lshl_b32 s{S_T2}, s{S_T2}, 8"); e(f"s_add_u32 s{S_T2}, s{S_T2}, {L_Q}")
    e("v_lshlrev_b32 v1, 2, v0"); e(f"v_add_u32 v1, s{S_T2}, v1")
    e("ds_write_b32 v1, v12")
    e("s_waitcnt lgkmcnt(0)")
    stamp(g, 2, ST)
    e("s_barrier")
    if o.get("earlyE", False):
        LA = g.new("arr")
        e(f"s_cmp_lg_u32 s{S_WAVE}, 5"); e(f"s_cbranch_scc1 {LA}")
        e("v_mov_b32 v2, 32"); e("v_mov_b32 v3, 1")
        e("s_mov_b64 exec, 1")
        e(f"global_atomic_add v2, v3, s[{S_DBG}:{S_DBG+1}]")
        e("s_mov_b64 exec, -1")
        g.lab(LA)
    if o.get("skiphelp"):
        e("s_branch L_hb2")
    if not o.get("skipffn2"):
        e(f"s_cmp_eq_u32 s{S_WAVE}, 6"); e("s_cbranch_scc1 L_w6")
    g.lab("L_wo")
    if o.get("prio_after") is not None:
        e(f"s_setprio {o['prio_after']}")
    if o.get("skipwo"): e("s_branch L_wodone")
    e(f"s_and_b32 s{S_T0}, s{S_SPLIT}, 3")
    e(f"s_lshl_b32 s{S_T1}, s{S_HKV}, 2"); e(f"s_add_u32 s{S_T1}, s{S_T1}, s{S_T0}")
    e(f"s_lshl_b32 s{S_SOFF}, s{S_T1}, 17")
    e(f"s_bfe_u32 s{S_T2}, s{S_SPLIT}, 0x10002"); e(f"s_lshl_b32 s{S_T2}, s{S_T2}, 16")
    e(f"s_add_u32 s{S_SOFF}, s{S_SOFF}, s{S_T2}")
    e(f"s_lshr_b32 s{S_T2}, s{S_SPLIT}, 3"); e(f"s_lshl_b32 s{S_T2}, s{S_T2}, 9")
    e(f"s_add_u32 s{S_SOFF}, s{S_SOFF}, s{S_T2}")
    e(f"s_sub_u32 s{S_T2}, s{S_WAVE}, 4"); e(f"s_lshl_b32 s{S_T2}, s{S_T2}, 7")
    e(f"s_add_u32 s{S_SOFF}, s{S_SOFF}, s{S_T2}")
    e("v_lshrrev_b32 v2, 3, v0"); e("v_lshlrev_b32 v2, 10, v2"); e("v_and_b32 v3, 7, v0"); e("v_lshl_add_u32 v2, v3, 4, v2")
    for u in range(8):
        e(f"buffer_load_dwordx4 {vr(H_W+4*u,4)}, v2, s[{SRD_WO}:{SRD_WO+3}], s{S_SOFF} offen" + o.get("wofl", " nt"))
        if u < 7:
            e(f"s_add_u32 s{S_SOFF}, s{S_SOFF}, {8*1024}")
    e("v_lshlrev_b32 v1, 4, v0"); e(f"v_add_u32 v1, s{S_STG}, v1")
    e("v_lshrrev_b32 v2, 4, v0"); e("v_bfe_u32 v3, v0, 2, 2"); e("v_lshl_add_u32 v3, v2, 3, v3"); e("v_and_b32 v4, 3, v0")
    e("v_lshlrev_b32 v5, 7, v3"); e("v_lshl_add_u32 v5, v4, 3, v5"); e(f"v_add_u32 v5, s{S_STG}, v5")
    e("s_waitcnt vmcnt(0)")
    for pc in range(2):
        for u in range(4):
            e(f"ds_write_b128 v1, {vr(H_W+16*pc+4*u,4)} offset:{u*1024}")
        for ct in range(4):
            f = H_WO + 4 * (pc * 4 + ct)
            e(f"ds_read_b64_tr_b16 {vr(f,2)}, v5 offset:{ct*32}")
            e(f"ds_read_b64_tr_b16 {vr(f+2,2)}, v5 offset:{ct*32+512}")
        e("s_waitcnt lgkmcnt(0)")
    g.lab("L_wodone")
    if o.get("earlyE", False):
        LE = g.new("eup"); LP = g.new("eupp"); LD = g.new("eupd")
        e(f"s_cmp_lg_u32 s{S_WAVE}, 5"); e(f"s_cbranch_scc1 {LE}")
        e("s_cmp_lg_u32 s2, 0"); e(f"s_cbranch_scc1 {LE}")
        e(f"s_mov_b32 s{S_RETRY}, 0x40000")
        e("v_mov_b32 v2, 32")
        g.lab(LP)
        e(f"global_load_dword v3, v2, s[{S_DBG}:{S_DBG+1}] sc1")
        e("s_waitcnt vmcnt(0)")
        e(f"v_readfirstlane_b32 s{S_T0}, v3")
        e(f"s_cmp_ge_u32 s{S_T0}, 256"); e(f"s_cbranch_scc1 {LD}")
        e(f"s_sub_u32 s{S_RETRY}, s{S_RETRY}, 1"); e(f"s_cbranch_scc1 {LD}")
        e("s_sleep 16")
        e(f"s_branch {LP}")
        g.lab(LD)
        e(f"v_mov_b32 v8, s{S_TAG}"); e("v_mov_b32 v1, 0")
        e("s_mov_b64 exec, 1")
        e(f"buffer_store_dword v8, v1, s[{SRD_WS}:{SRD_WS+3}], 0 offen sc1")
        e("s_mov_b64 exec, -1")
        g.lab(LE)
    if o.get("skipffn2"): e("s_branch L_hb2")
    e(f"s_cmp_lg_u32 s{S_WAVE}, 7"); e("s_cbranch_scc1 L_hb2")
    for ln in ['s_xor_b32 s60, s57, s56', 's_and_b32 s60, s60, 3', 's_cmp_lg_u32 s60, 0', 's_cbranch_scc1 L_hb2']: e(ln)
    for ln in ['s_lshr_b32 s68, s57, 2', 's_and_b32 s60, s68, 1', 's_lshl_b32 s60, s60, 1', 's_lshr_b32 s68, s68, 1', 's_add_u32 s68, s68, s60', 's_lshl_b32 s60, s56, 2', 's_add_u32 s68, s68, s60']: e(ln)
    e("v_lshrrev_b32 v2, 5, v0"); e("v_bfe_u32 v3, v0, 2, 3"); e("v_and_b32 v4, 3, v0")
    e("v_min_u32 v7, 6, v3")
    e(f"v_mul_u32_u24 v5, {4*2*512*8}, v7")
    e("v_lshl_add_u32 v5, v2, 12, v5")
    e("v_lshl_add_u32 v5, v4, 4, v5")
    e(f"s_lshl_b32 s{S_T0}, s68, 6")
    e(f"v_add_u32 v5, s{S_T0}, v5")
    def fl():
        for i in range(4):
            e(f"s_mov_b32 s{S_T1}, {WS_F + i*8192}")
            e(f"buffer_load_dwordx4 {vr(16+4*i,4)}, v5, s[{SRD_WS}:{SRD_WS+3}], s{S_T1} offen sc1")
    e("v_lshlrev_b32 v6, 10, v2"); e("v_lshl_add_u32 v6, v4, 2, v6"); e(f"s_lshl_b32 s{S_T1}, s68, 4"); e(f"v_add_u32 v6, s{S_T1}, v6")
    e(f"buffer_load_dword v{H_G+2}, v6, s[{SRD_X}:{SRD_X+3}], 0 offen")
    poll(g, "f", fl, [17+2*i for i in range(8)], 8, sleep=16)
    e("v_add_f32 v16, v16, v20"); e("v_add_f32 v18, v18, v22"); e("v_add_f32 v24, v24, v28"); e("v_add_f32 v26, v26, v30")
    e("v_add_f32 v16, v16, v24"); e("v_add_f32 v18, v18, v26")
    e("v_cmp_gt_u32 vcc, 7, v3"); g.nop(2)
    e("v_cndmask_b32 v16, 0, v16, vcc"); e("v_cndmask_b32 v18, 0, v18, vcc")
    row_ror_reduce(g, [16, 18], "v_add_f32", [4, 8])
    e("v_mov_b32 v20, v16"); e("v_mov_b32 v21, v18"); g.nop(2)
    e("v_permlane16_swap_b32 v16, v20"); e("v_permlane16_swap_b32 v18, v21"); g.nop(1)
    e("v_add_f32 v16, v16, v20"); e("v_add_f32 v18, v18, v21")
    e("v_cvt_pk_bf16_f32 v8, v16, v18")
    e("v_lshlrev_b32 v10, 16, v8"); e("v_and_b32 v11, 0xffff0000, v8")
    e(f"s_mov_b32 s{S_T0}, {L2E:#x}")
    for r in (10, 11):
        e(f"v_mul_f32 v12, s{S_T0}, v{r}")
        e(f"v_exp_f32 v12, -v12"); g.nop(1)
        e(f"v_add_f32 v12, 1.0, v12")
        e(f"v_rcp_f32 v12, v12"); g.nop(1)
        e(f"v_mul_f32 v{r}, v{r}, v12")
    e("v_cvt_pk_bf16_f32 v8, v10, v11")
    e(f"v_lshlrev_b32 v{H_G}, 16, v8"); e(f"v_and_b32 v{H_G+1}, 0xffff0000, v8")
    g.lab("L_hb2")
    e(f"s_sub_u32 s{S_T0}, s{S_WAVE}, 4")
    e(f"s_lshl_b32 s{S_T1}, s{S_T0}, 9")
    e("v_lshlrev_b32 v232, 2, v0"); e(f"v_add_u32 v232, s{S_T1}, v232")
    e(f"v_add_u32 v233, {2*RING}, v232")
    e(f"s_lshl_b32 s{S_T1}, s{S_T0}, 3"); e(f"s_add_u32 s{S_T1}, s{S_T1}, {L_ML}")
    e(f"v_mov_b32 v234, s{S_T1}")
    e("v_lshlrev_b32 v235, 4, v0")
    e("v_and_b32 v228, 1, v0")
    e(f"s_lshl_b32 s67, s{S_PAIR}, 4"); e(f"s_add_u32 s67, s67, s{S_SPLIT}")
    e(f"s_lshl_b32 s67, s67, 2"); e(f"s_add_u32 s67, s67, s{S_T0}")
    e(f"s_lshl_b32 s67, s67, 11"); e(f"s_add_u32 s67, s67, {WS_P}")
    e("v_lshrrev_b32 v236, 4, v0"); e("v_lshlrev_b32 v236, 4, v236"); e(f"v_add_u32 v236, {L_OB}, v236")
    e("v_lshlrev_b32 v237, 3, v0")
    e(f"s_and_b32 s{S_T2}, s{S_SPLIT}, 3")
    e(f"s_lshl_b32 s69, s{S_HKV}, 2"); e(f"s_add_u32 s69, s69, s{S_T2}")
    e(f"s_lshl_b32 s69, s69, 1"); e(f"s_bfe_u32 s{S_T2}, s{S_SPLIT}, 0x10002"); e(f"s_add_u32 s69, s69, s{S_T2}")
    e(f"s_lshl_b32 s{S_T2}, s{S_B}, 6"); e(f"s_add_u32 s69, s69, s{S_T2}")
    e(f"s_lshl_b32 s69, s69, 12")
    e(f"s_lshr_b32 s{S_T2}, s{S_SPLIT}, 3"); e(f"s_lshl_b32 s{S_T2}, s{S_T2}, 11"); e(f"s_add_u32 s69, s69, s{S_T2}")
    e(f"s_lshl_b32 s{S_T2}, s{S_T0}, 9"); e(f"s_add_u32 s69, s69, s{S_T2}")
    e(f"s_add_u32 s69, s69, {WS_S}")
    for ln in ['s_lshr_b32 s68, s57, 2', 's_and_b32 s61, s68, 1', 's_lshl_b32 s61, s61, 1', 's_lshr_b32 s68, s68, 1', 's_add_u32 s68, s68, s61', 's_lshl_b32 s61, s56, 2', 's_add_u32 s68, s68, s61']: e(ln)
    e("v_lshrrev_b32 v2, 5, v0"); e("v_bfe_u32 v3, v0, 2, 3"); e("v_and_b32 v4, 3, v0")
    e("v_lshlrev_b32 v238, 18, v2"); e("v_lshl_add_u32 v238, v3, 15, v238"); e("v_lshl_add_u32 v238, v4, 4, v238")
    e(f"s_lshl_b32 s{S_T0}, s68, 6"); e(f"v_add_u32 v238, s{S_T0}, v238")
    e("v_lshlrev_b32 v239, 10, v2"); e("v_lshl_add_u32 v239, v4, 2, v239"); e(f"s_lshl_b32 s{S_T1}, s68, 4"); e(f"v_add_u32 v239, s{S_T1}, v239")
    e("s_mov_b32 s70, 0xffff0000"); e("s_mov_b32 s71, 0")
    e("s_mov_b32 s72, 0"); e("s_mov_b32 s73, 0x0000ffff")
    e("s_mov_b32 s74, 0"); e("s_mov_b32 s75, 0xffff0000")
    e(f"v_mov_b32 v41, s{S_TAG}"); e(f"v_mov_b32 v43, s{S_TAG}"); e(f"v_mov_b32 v45, s{S_TAG}"); e(f"v_mov_b32 v47, s{S_TAG}")
    e(f"s_mov_b32 s{S_C0}, {L2E:#x}")
    if o.get("pretouch"):
        fl = "" if o["pretouch"] == 1 else " sc1"
        e(f"buffer_load_dword v227, v235, s[{SRD_WS}:{SRD_WS+3}], s67 offen{fl}")
        e(f"buffer_load_dword v227, v235, s[{SRD_WS}:{SRD_WS+3}], s67 offen offset:1152{fl}")
        e(f"buffer_load_dword v227, v237, s[{SRD_WS}:{SRD_WS+3}], s69 offen{fl}")
    if o.get("tailpf", True):
        e(f"s_getpc_b64 s[{S_T2}:{S_T2+1}]")
        g.lab("L_pc2")
        e(f"s_add_u32 s{S_T2}, s{S_T2}, L_tail-L_pc2"); e(f"s_addc_u32 s{S_T2+1}, s{S_T2+1}, 0")
        e("v_lshlrev_b32 v229, 7, v0")
        e(f"v_min_u32 v229, L_code_end-L_tail-4, v229")
    stamp(g, 3, ST)

    g.lab("L_tail")
    if DS:
        LX = g.new("ds")
        e(f"s_cmp_lg_u32 s{S_WAVE}, 0"); e(f"s_cbranch_scc1 {LX}")
        dstamp(g, 2, True)
        e("v_mov_b32 v236, 12"); e("v_mov_b32 v237, s88")
        e("s_mov_b64 exec, 1")
        e(f"global_atomic_umax v236, v237, s[{S_DBG}:{S_DBG+1}]")
        e("s_mov_b64 exec, -1")
        e("s_not_b32 s90, s90")
        e("v_mov_b32 v236, 0"); e("v_mov_b32 v237, s90")
        e("s_mov_b64 exec, 1")
        e(f"global_atomic_umax v236, v237, s[{S_DBG}:{S_DBG+1}]")
        e("s_mov_b64 exec, -1")
        g.lab(LX)
    e("s_barrier")
    stamp(g, 4, STT)
    e(f"s_cmp_lt_u32 s{S_WAVE}, 4"); e("s_cbranch_scc1 L_t2")
    e("ds_read_b32 v8, v232"); e("ds_read_b32 v9, v232 offset:256")
    e("ds_read_b32 v10, v232 offset:32768"); e("ds_read_b32 v11, v232 offset:33024")
    e("ds_read_b32 v12, v233"); e("ds_read_b32 v13, v233 offset:256")
    e("ds_read_b32 v14, v233 offset:32768"); e("ds_read_b32 v15, v233 offset:33024")
    for w in range(4):
        e(f"ds_read_b64 {vr(16+2*w,2)}, v234 offset:{w*32}")
    if o.get("tailpf", True):
        LP = g.new("tpf")
        e(f"s_cmp_lg_u32 s{S_WAVE}, 7"); e(f"s_cbranch_scc1 {LP}")
        e("s_mov_b32 exec_hi, 0")
        e(f"global_load_dword v230, v229, s[{S_T2}:{S_T2+1}]")
        e("s_mov_b64 exec, -1")
        g.lab(LP)
    e("v_cmp_eq_u32 vcc, 1, v228")
    e("s_waitcnt lgkmcnt(0)")
    e("v_max3_f32 v24, v16, v18, v20"); e("v_max_f32 v24, v24, v22")
    for w in range(4):
        e(f"v_sub_f32 v{16+2*w}, v{16+2*w}, v24")
    for w in range(4):
        e(f"v_mul_f32 v{16+2*w}, s{S_C0}, v{16+2*w}")
    for w in range(4):
        e(f"v_exp_f32 v{16+2*w}, v{16+2*w}")
    g.nop(1)
    e("v_mul_f32 v40, v8, v16"); e("v_mul_f32 v44, v9, v16"); e("v_mul_f32 v46, v17, v16")
    for w in range(1, 4):
        e(f"v_fmac_f32 v40, v{8+2*w}, v{16+2*w}"); e(f"v_fmac_f32 v44, v{9+2*w}, v{16+2*w}"); e(f"v_fmac_f32 v46, v{17+2*w}, v{16+2*w}")
    e("v_cndmask_b32 v42, v24, v46, vcc")
    e("v_mov_b32 v46, v42")
    e(f"buffer_store_dwordx4 v[40:43], v235, s[{SRD_WS}:{SRD_WS+3}], s67 offen sc1")
    e(f"buffer_store_dwordx4 v[44:47], v235, s[{SRD_WS}:{SRD_WS+3}], s67 offen offset:1024 sc1")
    if o.get("diagH") == 1:
        stamp(g, 1, True)
        e("s_waitcnt vmcnt(0)")
        stamp(g, 2, True)
    g.lab("L_t2")
    stamp(g, 5, STT)
    e(f"s_and_b32 s{S_T0}, s{S_SPLIT}, 3")
    e("v_lshrrev_b32 v2, 2, v0"); e("v_and_b32 v3, 3, v0")
    e("v_lshlrev_b32 v5, 13, v2")
    e("v_lshl_add_u32 v4, v3, 5, v5")
    e(f"s_lshl_b32 s{S_T1}, s{S_PAIR}, 17")
    e(f"s_lshl_b32 s{S_T2}, s{S_T0}, 11"); e(f"s_add_u32 s{S_T1}, s{S_T1}, s{S_T2}")
    e(f"s_bfe_u32 s{S_T2}, s{S_SPLIT}, 0x10002"); e(f"s_lshl_b32 s{S_T2}, s{S_T2}, 10"); e(f"s_add_u32 s{S_T1}, s{S_T1}, s{S_T2}")
    e(f"s_lshl_b32 s{S_T2}, s{S_WAVE}, 7"); e(f"s_add_u32 s{S_T1}, s{S_T1}, s{S_T2}")
    e(f"s_add_u32 s{S_T1}, s{S_T1}, {WS_P}")
    def pl():
        e(f"buffer_load_dwordx4 v[8:11], v4, s[{SRD_WS}:{SRD_WS+3}], s{S_T1} offen sc1")
        e(f"buffer_load_dwordx4 v[12:15], v4, s[{SRD_WS}:{SRD_WS+3}], s{S_T1} offen offset:16 sc1")
    if o.get("gate"):
        LG = g.new("gate")
        e(f"s_cmp_eq_u32 s{S_WAVE}, {o['gate'] - 1}"); e(f"s_cbranch_scc1 {LG}")
        e("s_barrier")
        g.lab(LG)
    poll(g, "p", pl, [9, 11, 13, 15], 24, sleep=o.get("psleep", 1))
    if o.get("gate"):
        LG2 = g.new("gate2")
        e(f"s_cmp_lg_u32 s{S_WAVE}, {o['gate'] - 1}"); e(f"s_cbranch_scc1 {LG2}")
        e("s_barrier")
        g.lab(LG2)
    e("v_mov_b32 v16, v10"); e("v_mov_b32 v18, v14"); e("v_mov_b32 v10, v12")
    stamp(g, 6, STT)
    e("v_mov_b32 v20, v16")
    row_ror_reduce(g, [20], "v_max_f32", [4, 8])
    rows_reduce(g, 20, 21, "v_max_f32")
    e(f"s_mov_b32 s{S_C0}, {L2E:#x}")
    e("v_sub_f32 v16, v16, v20"); e(f"v_mul_f32 v16, s{S_C0}, v16"); e("v_exp_f32 v16, v16"); g.nop(1)
    e("v_mul_f32 v18, v18, v16")
    e("v_mul_f32 v8, v8, v16"); e("v_mul_f32 v10, v10, v16")
    row_ror_reduce(g, [8, 10, 18], "v_add_f32", [4, 8])
    rows_reduce_multi(g, [8, 10, 18], [26, 27, 28], "v_add_f32")
    e("v_rcp_f32 v19, v18"); g.nop(1)
    for r in (8, 10):
        e(f"v_mul_f32 v20, v{r}, v19"); e(f"v_fma_f32 v21, -v20, v18, v{r}"); e(f"v_fma_f32 v{r}, v21, v19, v20")
    e("v_cvt_pk_bf16_f32 v22, v8, v10")
    e(f"s_lshl_b32 s{S_T2}, s{S_WAVE}, 4"); e(f"s_add_u32 s{S_T2}, s{S_T2}, {L_OB}")
    e(f"v_lshlrev_b32 v3, 2, v3"); e(f"v_add_u32 v3, s{S_T2}, v3")
    e("s_mov_b64 exec, 0xf")
    e("ds_write_b32 v3, v22")
    e("s_mov_b64 exec, -1")
    e("s_waitcnt lgkmcnt(0)")
    e("s_barrier")
    e(f"s_cmp_lt_u32 s{S_WAVE}, 4"); e("s_cbranch_scc1 L_fin")
    for ks in range(2):
        e(f"ds_read_b128 {vr(8+4*ks,4)}, v236 offset:{ks*64}")
    e("s_waitcnt lgkmcnt(0)")
    for ks in range(2):
        for ct in range(4):
            c = "0" if ks == 0 else vr(16+4*ct, 4)
            e(f"v_mfma_f32_16x16x32_bf16 {vr(16+4*ct,4)}, {vr(8+4*ks,4)}, {vr(H_WO+4*(ks*4+ct),4)}, {c}")
    g.nop(6)
    e("v_cndmask_b32 v40, v16, v20, s[70:71]")
    e("v_cndmask_b32 v40, v40, v24, s[72:73]")
    g.nop(1)
    e("v_cndmask_b32 v40, v40, v28, s[74:75]")
    pub2(g, 40, 237, "s69")
    if o.get("diagH") == 2:
        stamp(g, 1, True)
        e("s_waitcnt vmcnt(0)")
        stamp(g, 2, True)
    stamp(g, 7, STT)
    e(f"s_cmp_lg_u32 s{S_WAVE}, 7"); e("s_cbranch_scc1 L_fin")
    for ln in ['s_xor_b32 s60, s57, s56', 's_and_b32 s60, s60, 3', 's_cmp_lg_u32 s60, 0', 's_cbranch_scc1 L_fin']: e(ln)
    def sl():
        for i in range(8):
            e(f"s_mov_b32 s{S_T1}, {WS_S + i*4096}")
            e(f"buffer_load_dwordx4 {vr(64+4*i,4)}, v238, s[{SRD_WS}:{SRD_WS+3}], s{S_T1} offen sc1")
    poll(g, "s", sl, [64+2*i+1 for i in range(16)], 8)
    stamp(g, 8, STT)
    for i in range(4):
        e(f"v_add_f32 v{64+4*i}, v{64+4*i}, v{80+4*i}"); e(f"v_add_f32 v{66+4*i}, v{66+4*i}, v{82+4*i}")
    e("v_add_f32 v64, v64, v72"); e("v_add_f32 v66, v66, v74"); e("v_add_f32 v68, v68, v76"); e("v_add_f32 v70, v70, v78")
    e("v_add_f32 v16, v64, v68"); e("v_add_f32 v18, v66, v70")
    row_ror_reduce(g, [16, 18], "v_add_f32", [4, 8])
    e("v_mov_b32 v20, v16"); e("v_mov_b32 v21, v18"); g.nop(2)
    e("v_permlane16_swap_b32 v16, v20"); e("v_permlane16_swap_b32 v18, v21"); g.nop(1)
    e("v_add_f32 v16, v16, v20"); e("v_add_f32 v18, v18, v21")
    e("v_cvt_pk_bf16_f32 v8, v16, v18")
    e("v_lshlrev_b32 v10, 16, v8"); e("v_and_b32 v11, 0xffff0000, v8")
    e(f"v_mul_f32 v10, v10, v{H_G}"); e(f"v_mul_f32 v11, v11, v{H_G+1}")
    e("v_cvt_pk_bf16_f32 v8, v10, v11")
    e("v_lshlrev_b32 v10, 16, v8"); e("v_and_b32 v11, 0xffff0000, v8")
    e(f"v_lshlrev_b32 v12, 16, v{H_G+2}"); e(f"v_and_b32 v13, 0xffff0000, v{H_G+2}")
    e("v_add_f32 v10, v10, v12"); e("v_add_f32 v11, v11, v13")
    e("v_cvt_pk_bf16_f32 v8, v10, v11")
    e("s_mov_b32 exec_lo, 0xf"); e("s_mov_b32 exec_hi, 0xf")
    e(f"buffer_store_dword v8, v239, s[{SRD_OUT}:{SRD_OUT+3}], 0 offen" + o.get("outfl", ""))
    e("s_mov_b64 exec, -1")
    if DS: dstamp(g, 1, True)
    if not o.get("earlyE", False):
        e("s_cmp_lg_u32 s2, 0"); e("s_cbranch_scc1 L_fin")
        e(f"v_mov_b32 v8, s{S_TAG}"); e("v_mov_b32 v1, 0")
        e("s_mov_b64 exec, 1")
        e(f"buffer_store_dword v8, v1, s[{SRD_WS}:{SRD_WS+3}], 0 offen sc1")
        e("s_mov_b64 exec, -1")
    g.lab("L_fin")
    if DS2:
        LX = g.new("ds2"); LY = g.new("ds2y")
        e("s_memrealtime s[84:85]")
        e("s_waitcnt lgkmcnt(0)")
        e("s_mov_b64 exec, 1")
        e(f"s_cmp_eq_u32 s{S_WAVE}, 7"); e(f"s_cbranch_scc1 {LY}")
        e(f"s_cmp_lg_u32 s{S_WAVE}, 0"); e(f"s_cbranch_scc1 {LX}")
        e("s_cmp_ge_u32 s2, 3"); e(f"s_cbranch_scc1 {LX}")
        e("s_mul_i32 s83, s2, 12")
        e("v_mov_b32 v1, s83")
        e("v_mov_b32 v2, s90"); e("v_mov_b32 v3, s86"); e("v_mov_b32 v4, s88")
        e(f"global_store_dwordx3 v1, v[2:4], s[{S_DBG}:{S_DBG+1}]")
        e(f"s_branch {LX}")
        g.lab(LY)
        e("s_cmp_ge_u32 s2, 7"); e(f"s_cbranch_scc1 {LX}")
        e("s_lshl_b32 s83, s2, 2"); e("s_add_u32 s83, s83, 36")
        e("v_mov_b32 v1, s83"); e("v_mov_b32 v2, s84")
        e(f"global_store_dword v1, v2, s[{S_DBG}:{S_DBG+1}]")
        g.lab(LX)
    if ST:
        stamp(g, 9, ST)
        e("s_waitcnt lgkmcnt(0)")
        e(f"s_lshl_b32 s{S_T0}, s2, 3"); e(f"s_add_u32 s{S_T0}, s{S_T0}, s{S_WAVE}"); e(f"s_lshl_b32 s{S_T0}, s{S_T0}, 6")
        e(f"s_add_u32 s{S_T0}, s{S_T0}, {WS_DBG}")
        e("v_mov_b32 v1, 0")
        e("s_mov_b64 exec, 1")
        for i in range(10):
            e(f"v_mov_b32 v2, s{S_ST0+2*i}")
            e(f"buffer_store_dword v2, v1, s[{SRD_WS}:{SRD_WS+3}], s{S_T0} offen offset:{4*i}")
            g.nop(1)
    g.lab("L_end")
    e("s_endpgm")
    g.lab("L_code_end")
    g.L.append('.section .rodata,"a"')
    g.L.append(".p2align 6")
    g.L.append(f".amdhsa_kernel {KN}_kernel")
    for s in ["next_free_vgpr 240", "next_free_sgpr 102", "accum_offset 240", "group_segment_fixed_size 0", "kernarg_size 88",
              "user_sgpr_count 2", "user_sgpr_kernarg_segment_ptr 1", "system_sgpr_workgroup_id_x 1",
              "float_denorm_mode_32 3", "float_denorm_mode_16_64 3"]:
        g.L.append("  .amdhsa_" + s)
    g.L.append(".end_amdhsa_kernel")
    if o.get("hfirst", False) and o["b0"]:
        L = g.L
        i0 = L.index("L_helper:")
        isl = L.index("L_slice:")
        i1 = next(i for i in range(isl, len(L)) if L[i].strip() == "s_barrier") + 1
        H1 = L[i0:i1]
        rest = L[:i0] + ["L_helper2:"] + L[i1:]
        ib = next(i for i in range(len(rest)) if rest[i].strip() == "s_cbranch_scc1 L_helper")
        assert rest[ib-1].strip().startswith("s_cmp_ge_u32 s3, 4")
        rest[ib] = "  s_cbranch_scc0 L_stream"
        for lab in ("L_w67", "L_hb0"):
            j = rest.index(lab + ":")
            assert rest[j+1].strip() == "s_barrier"
            del rest[j+1]
            H1 = [ln.replace("s_cbranch_scc1 " + lab, "s_cbranch_scc1 " + lab + "_b0") if ln.strip() == "s_cbranch_scc1 " + lab else ln for ln in H1]
        stubs = ["L_w67_b0:"]
        if o.get("earlypf", True):
            pm = o.get("epfmask", 0)
            stubs += ["  s_cmp_lg_u32 s3, 7", "  s_cbranch_scc1 L_epf_skip",
                      "  s_lshr_b32 s60, s2, 3", f"  s_and_b32 s60, s60, {pm}", "  s_cmp_lg_u32 s60, 0", "  s_cbranch_scc1 L_epf_skip",
                      "  s_getpc_b64 s[60:61]", "L_epf_pc:", f"  s_sub_u32 s60, s60, L_epf_pc-{KN}_kernel", "  s_subb_u32 s61, s61, 0",
                      "  v_lshlrev_b32 v1, 7, v0"]
            for i in range(o.get("epf_n", 2)):
                stubs += [f"  v_min_u32 v3, L_code_end-{KN}_kernel-4, v1", "  global_load_dword v230, v3, s[60:61]", "  v_add_u32 v1, 8192, v1"]
            stubs += ["L_epf_skip:"]
        stubs += ["  s_barrier", "  s_branch L_w67", "L_hb0_b0:", "  s_barrier", "  s_branch L_hb0"]
        g.L = rest[:ib+1] + H1 + ["  s_branch L_helper2"] + stubs + ["L_stream:"] + rest[ib+1:]
    txt = "\n".join(g.L) + "\n"
    lf = o.get("ldflags")
    if lf:
        out = []
        for ln in txt.split("\n"):
            if "buffer_load_dword" in ln and ln.rstrip().endswith(" sc1") and " lds" not in ln:
                ln = ln.rstrip()[:-4] + " " + lf
            out.append(ln)
        txt = "\n".join(out)
    pf = []
    span = 64 << o.get("pfshift", 7)
    for i in range((o.get("pf_kib", 24) * 1024 + span - 1) // span):
        pf.append(f"  v_min_u32 v3, L_code_end-{KN}_kernel-4, v1")
        pf.append(f"  global_load_dword v230, v3, s[{S_T0}:{S_T0+1}]")
        pf.append(f"  v_add_u32 v1, {span}, v1")
    txt = txt.replace("  CODE_PREFETCH_PLACEHOLDER", "\n".join(pf))
    return txt

if __name__ == "__main__":
    import json
    opt = json.loads(sys.argv[2]) if len(sys.argv) > 2 else {}
    open(sys.argv[1], "w").write(gen(opt))
```
